```python
import torch

def _softmax(x, axis=-1):
    return torch.softmax(x, dim=axis)
def _gelu(x):
    return torch.nn.functional.gelu(x, approximate="tanh")
def _silu(x):
    return torch.nn.functional.silu(x)
def _sigmoid(x):
    return torch.sigmoid(x)
def _layernorm(x, axis=-1, eps=1e-5):
    m = x.mean(dim=axis, keepdim=True)
    v = x.var(dim=axis, keepdim=True, unbiased=False)
    return (x - m) / torch.sqrt(v + eps)
def _scatter_add(tgt, idx, src, axis=0):
    return tgt.clone().index_add_(axis, idx, src)
def _segment_sum(src, seg, n):
    out = torch.zeros((n,) + src.shape[1:], dtype=src.dtype)
    return out.index_add_(0, seg, src)
def _pad(x, pw):
    flat = tuple(v for pair in reversed(pw) for v in pair)
    return torch.nn.functional.pad(x, flat)

kernel_name = 'interleave_layers__sliding_block_cached__glu_gated_bilinear__decode'

def setup_inputs():

    _w = (lambda a: (lambda t: t.to(torch.bfloat16) if t.is_floating_point() else t)(torch.as_tensor(a)))
    def _A_setup():
        B, Sq, D = 1, 1, 512
        Hq, Hkv, Sk, Dh = 32, 8, 65536, 128
        assert Hq % Hkv == 0, (Hq, Hkv)
        return {
            "x": _w((lambda *s: torch.randn(*s, dtype=torch.bfloat16) * 0.05)(B, Sq, D)),
            "k_cache": _w((lambda *s: torch.randn(*s, dtype=torch.bfloat16) * 0.8)(B, Hkv, Sk, Dh)),
            "v_cache": _w((lambda *s: torch.randn(*s, dtype=torch.bfloat16) * 0.8)(B, Hkv, Sk, Dh)),
            "wq": _w((lambda *s: torch.randn(*s, dtype=torch.bfloat16) * 0.8)(D, Hq * Dh) * (D ** -0.5)),
            "wo": _w((lambda *s: torch.randn(*s, dtype=torch.bfloat16) * 0.8)(Hq * Dh, D) * ((Hq * Dh) ** -0.5)),
        }
    _A_in = _A_setup()

    def _B_setup():
        B, S, D, F = 1, 1, 512, 1792
        return {
            "x": _w((lambda *s: torch.randn(*s, dtype=torch.bfloat16) * 0.05)(B, S, D)),
            "w_gate": _w((lambda *s: torch.randn(*s, dtype=torch.bfloat16) * 0.2)(D, F) * (D ** -0.5)),
            "w_up": _w((lambda *s: torch.randn(*s, dtype=torch.bfloat16) * 0.2)(D, F) * (D ** -0.5)),
            "w_down": _w((lambda *s: torch.randn(*s, dtype=torch.bfloat16) * 0.2)(F, D) * (F ** -0.5)),
        }
    _B_in = _B_setup()

    return {
        "A_x": _A_in["x"],
        "A_k_cache": _A_in["k_cache"],
        "A_v_cache": _A_in["v_cache"],
        "A_wq": _A_in["wq"],
        "A_wo": _A_in["wo"],
        "B_x": _B_in["x"],
        "B_w_gate": _B_in["w_gate"],
        "B_w_up": _B_in["w_up"],
        "B_w_down": _B_in["w_down"],
    }

def reference(A_x, A_k_cache, A_v_cache, A_wq, A_wo, B_x, B_w_gate, B_w_up, B_w_down):
    def _A_ref(x, k_cache, v_cache, wq, wo):
        B, Sq, D = x.shape
        Hq, Dh = 32, 128
        Hkv, Sk = k_cache.shape[1], k_cache.shape[2]
        W = min(4096, max(256, Sk // 4))
        rep = Hq // Hkv
        q = (lambda x, *d: x.permute(*d))((x @ wq).reshape(B, Sq, Hq, Dh), 0, 2, 1, 3)
        k = (lambda x, n, axis: torch.repeat_interleave(x, n, dim=axis))(k_cache[:, :, Sk - W:, :], rep, axis=1)
        v = (lambda x, n, axis: torch.repeat_interleave(x, n, dim=axis))(v_cache[:, :, Sk - W:, :], rep, axis=1)
        scores = torch.einsum("bhqd,bhkd->bhqk", q, k) * (Dh ** -0.5)
        p = _softmax(scores, axis=-1)
        o = torch.einsum("bhqk,bhkd->bhqd", p, v)
        return (lambda x, *d: x.permute(*d))(o, 0, 2, 1, 3).reshape(B, Sq, Hq * Dh) @ wo

    def _B_ref(x, w_gate, w_up, w_down):
        g = torch.einsum("bsd,df->bsf", x, w_gate)
        u = torch.einsum("bsd,df->bsf", x, w_up)
        h = g * u
        return torch.einsum("bsf,fd->bsd", h, w_down)

    x = A_x
    x = x + _A_ref(_layernorm(x, axis=-1), A_k_cache, A_v_cache, A_wq, A_wo)
    x = x + _B_ref(_layernorm(x, axis=-1), B_w_gate, B_w_up, B_w_down)
    x = x + _A_ref(_layernorm(x, axis=-1), A_k_cache, A_v_cache, A_wq, A_wo)
    x = x + _B_ref(_layernorm(x, axis=-1), B_w_gate, B_w_up, B_w_down)
    return x
```

```python
NAME = "interleave_layers__sliding_block_cached__glu_gated_bilinear__decode"
HEADER = open("cdna_kernels/%s.s.ref" % NAME).read().split("; Override launch")[0]

class Asm:
    def __init__(self):
        self.lines = []
        self.nlab = 0
    def __call__(self, s):
        for l in s.split("\n"):
            l = l.strip()
            if l:
                self.lines.append(("" if l.endswith(":") else "    ") + l)
    def label(self, base="L"):
        self.nlab += 1
        return f"{base}_{self.nlab}"
    def text(self):
        return "\n".join(self.lines) + "\n"

def wrap(body, grid, block, lds, vgpr, sgpr=102, accum=None, doc=""):
    if accum is None:
        accum = min(256, (vgpr + 3) // 4 * 4)
    k = NAME + "_kernel"
    return (HEADER + f"; @launch grid=({grid},1,1) block=({block},1,1) lds={lds}\n"
        + "".join("; " + l + "\n" if l else ";\n" for l in doc.strip("\n").split("\n") if doc)
        + '.amdgcn_target "amdgcn-amd-amdhsa--gfx950"\n.text\n'
        + f".globl {k}\n.p2align 8\n.type {k},@function\n{k}:\n" + body
        + '.section .rodata,"a"\n.p2align 6\n'
        + f".amdhsa_kernel {k}\n  .amdhsa_next_free_vgpr {vgpr}\n  .amdhsa_next_free_sgpr {sgpr}\n  .amdhsa_accum_offset {accum}\n"
        + "  .amdhsa_group_segment_fixed_size 0\n  .amdhsa_kernarg_size 96\n  .amdhsa_user_sgpr_count 2\n"
        + "  .amdhsa_user_sgpr_kernarg_segment_ptr 1\n  .amdhsa_system_sgpr_workgroup_id_x 1\n"
        + "  .amdhsa_float_denorm_mode_32 3\n"
        + ".end_amdhsa_kernel\n")
```

```python
import sys, math
from asmlib import *

opts = dict(stamp=0, pol="nt")
for x in sys.argv[2:]:
    k, v = x.split("="); opts[k] = v
DBG = int(opts.get("dbg", 0)); spin_ids = []
STAMP = int(opts["stamp"]); POL = opts["pol"].replace("def", "").replace("_", " ")

a = Asm()
GS = 0x20400
LS = 0xD000
REC, ML, X1, HP, HS, X2 = 0x0, 0x8000, 0x8400, 0x9800, 0xB800, 0xBA00
HCS = 2 * LS
assert X2 + 5120 <= LS and HCS + 8192 <= 0x20000
TG = 0x200000
TGS = 0x8400
TLS = 0x2400
QP, QS = 0x0, 0x2000
QCS = 2 * TLS
assert QCS + 8192 <= TGS
GB = 0x2000
GD = 0x400
NONCE = 0x0
WSSIZE = 0x400000
L_WQ, L_V, L_W2, L_WD = 0x2000, 0x6000, 0xE000, 0x2000
L_X = 0x0
L_HB = L_X + 0x400
L_QB = L_X + 0x600
L_PB = L_X + 0xA00
L_MB = L_X + 0xE00
L_YB = L_X + 0x1000
L_MODE = L_X + 0x1400
LDS_SIZE = 0x16000
sX, sK, sV, sWQ, sWO, sWG, sWU, sWD, sOUT, sDBG, sWS = 4, 6, 8, 10, 12, 16, 18, 20, 22, 24, 26
sG, sI, sW, sKQ, sCG, sA4 = 28, 29, 30, 31, 32, 33
sLAY, sMODE = 34, 35
RG = 36
RX = 40
sGO = 44
RT = 52
sTAG, sT0 = 56, 57
sSPIN, sPH, sT, sT2, sNON = 61, 62, 63, 64, 65
sQUADM = 66
sMLM = 68
sPUBM = 70
sN0M = 72
sM = 74
sFIN = 76
sPC = 78
sST = 80
vK, vV, vWQ, vW2, vWD = 64, 96, 128, 144, 208
vQCS, vHCS, vR0, vR1, vXW = 224, 232, 236, 237, 238
vXRD, vXWR, vGA, vQPA, vQGA, vQSA = 239, 240, 241, 242, 243, 244
vRECA, vMLA, vOA, vOML, vHGA, vPUBA = 245, 246, 247, 248, 249, 250
vROW, vPC16, vTR0, vSTMP = 251, 252, 253, 254
vL16 = 255
vSTG = 60
SENT = 0xFFFFFFFF
ONES = 0x3F803F80
QSCALE = math.log2(math.e) / math.sqrt(128.0)
import struct
def f32(x): return "0x%08x" % struct.unpack("<I", struct.pack("<f", x))[0]

nstamp = [0]
stamp_names = []
def stamp(name):
    if not STAMP: return
    k = nstamp[0]; nstamp[0] += 1
    assert k < 11
    stamp_names.append(name)
    a(f"s_memrealtime s[{sST+2*k}:{sST+2*k+1}]")
def stamp_at(name):
    if not STAMP: return
    k = stamp_names.index(name)
    a(f"s_memrealtime s[{sST+2*k}:{sST+2*k+1}]")
def stamp_flush():
    if not STAMP: return
    l1 = a.label("SF"); l2 = a.label("SF")
    a("s_waitcnt lgkmcnt(0)")
    a(f"s_cmp_eq_u32 s{sLAY}, 0\ns_cbranch_scc0 {l1}")
    for k in range(11): a(f"v_writelane_b32 v{vSTMP}, s{sST+2*k}, {k}")
    a(f"s_branch {l2}\n{l1}:")
    for k in range(11): a(f"v_writelane_b32 v{vSTMP}, s{sST+2*k}, {k+16}")
    a(f"{l2}:")
def stamp_store():
    if not STAMP: return
    l1 = a.label("SS")
    a(f"""s_cmp_eq_u32 s{sW}, 0
    s_cbranch_scc0 {l1}
    s_mov_b32 exec_lo, -1
    s_mov_b32 exec_hi, 0
    s_lshl_b32 s{sT}, s2, 8
    s_add_u32 s{sM}, s{sWS}, s{sT}
    s_addc_u32 s{sM+1}, s{sWS+1}, 0
    s_add_u32 s{sM}, s{sM}, 0x10000000
    s_addc_u32 s{sM+1}, s{sM+1}, 0
    v_lshrrev_b32 v2, 1, v{vL16}
    v_mov_b32 v4, v{vSTMP}
    v_mov_b32 v5, 0
    global_store_dwordx2 v2, v[4:5], s[{sM}:{sM+1}]
    {l1}:""")

def spin(lab_retry, lab_giveup):
    a(f"s_sub_u32 s{sSPIN}, s{sSPIN}, 1\ns_cbranch_scc0 {lab_retry}\ns_mov_b32 s{sSPIN}, 0")
    if DBG:
        spin_ids.append(lab_retry)
        a(f"s_mov_b64 s[{sM}:{sM+1}], exec\ns_mov_b64 exec, 1\nv_mov_b32 v45, {4*len(spin_ids)}\nv_mov_b32 v46, 1\nglobal_atomic_add v45, v46, s[{sDBG}:{sDBG+1}]\ns_mov_b64 exec, s[{sM}:{sM+1}]")
    a(f"s_branch {lab_giveup}")

def pub(instr):
    l = a.label("PB")
    a(instr)
    a(f"s_cmp_eq_u32 s{sMODE}, 1\ns_cbranch_scc1 {l}")
    a(instr + " sc1")
    a(f"{l}:")

def dma(ptr, voff, lds_base, n, gstep):
    a(f"s_lshl_b32 s{sT}, s{sW}, 10\ns_add_u32 m0, s{sT}, {lds_base}")
    for j in range(n):
        a(f"s_nop 0\nglobal_load_lds_dwordx4 v{voff}, s[{ptr}:{ptr+1}] {POL}")
        if j + 1 < n:
            a(f"s_add_u32 s{ptr}, s{ptr}, {gstep}\ns_addc_u32 s{ptr+1}, s{ptr+1}, 0\ns_add_u32 m0, m0, 4096")

def waddr(vdst, stride):
    a(f"s_mov_b32 s{sT}, {stride}\nv_mul_lo_u32 v{vdst}, v{vROW}, s{sT}\nv_add_u32 v{vdst}, v{vdst}, v{vPC16}")

def trW(dst, base, vA, vB):
    for s in range(4):
        a(f"ds_read_b64_tr_b16 v[{dst+4*s}:{dst+4*s+1}], v{vA} offset:{base + s*4096}")
        a(f"ds_read_b64_tr_b16 v[{dst+4*s+2}:{dst+4*s+3}], v{vB} offset:{base + s*4096}")

DPPALL = "row_mask:0xf bank_mask:0xf"

if STAMP:
    a(f"s_memrealtime s[{sST}:{sST+1}]"); stamp_names.append("start"); nstamp[0] = 1
a(f"""
s_cmp_ge_u32 s2, 256
s_cbranch_scc1 L_end
s_getpc_b64 s[{sPC}:{sPC+1}]
L_pc:
s_load_dwordx16 s[4:19], s[0:1], 0
s_load_dwordx8 s[20:27], s[0:1], 64
v_lshlrev_b32 v1, 7, v0
v_min_u32 v1, L_end-L_pc, v1
global_load_dword v{vWD}, v1, s[{sPC}:{sPC+1}]
v_lshrrev_b32 v3, 6, v0
v_and_b32 v1, 63, v0
v_readfirstlane_b32 s{sW}, v3
s_and_b32 s{sG}, s2, 7
s_lshr_b32 s{sI}, s2, 3
s_and_b32 s{sKQ}, s{sI}, 3
s_lshr_b32 s{sCG}, s{sI}, 2
v_lshlrev_b32 v{vL16}, 4, v1
v_lshrrev_b32 v4, 3, v0
v_and_b32 v{vROW}, 31, v4
v_bfe_u32 v4, v0, 4, 1
v_bfe_u32 v5, v0, 5, 1
v_xor_b32 v4, v4, v5
v_bfe_u32 v5, v0, 6, 1
v_bfe_u32 v6, v0, 7, 1
v_xor_b32 v5, v5, v6
v_lshl_or_b32 v4, v5, 1, v4
v_lshlrev_b32 v4, 1, v4
v_and_b32 v5, 7, v0
v_xor_b32 v4, v4, v5
v_lshlrev_b32 v{vPC16}, 4, v4
v_lshl_add_u32 v7, v{vROW}, 13, v{vPC16}
s_lshl_b32 s{sT}, s{sKQ}, 20
s_lshl_b32 s{sT2}, s{sG}, 10
s_add_u32 s{sT}, s{sT}, s{sT2}
s_lshl_b32 s{sT2}, s{sCG}, 7
s_add_u32 s{sA4}, s{sT}, s{sT2}
v_and_b32 v8, 31, v0
v_bfe_u32 v9, v0, 5, 1
v_lshlrev_b32 v8, 3, v8
v_lshl_or_b32 v8, v9, 2, v8
s_lshl_b32 s{sT}, s{sKQ}, 8
v_add_u32 v10, s{sT}, v8
s_mul_i32 s{sM}, s{sG}, {GS}
s_add_u32 s{sM}, s{sM}, {GB}
s_lshl_b32 s{sT2}, s{sI}, 12
v_lshlrev_b32 v11, 4, v0
v_add_u32 v11, s{sT2}, v11
v_mov_b32 v12, -1
v_mov_b32 v13, -1
v_mov_b32 v14, -1
v_mov_b32 v15, -1
s_waitcnt lgkmcnt(0)
s_add_u32 s{sWQ}, s{sWQ}, s{sA4}
s_addc_u32 s{sWQ+1}, s{sWQ+1}, 0
s_add_u32 s{RG}, s{sWS}, s{sM}
s_addc_u32 s{RG+1}, s{sWS+1}, 0
global_load_dword v{vXW}, v10, s[{sX}:{sX+1}]
global_store_dwordx4 v11, v[12:15], s[{RG}:{RG+1}] sc1
""")
dma(sWQ, 7, L_WQ, 4, 32 * 8192)
a(f"""
s_load_dword s{sNON}, s[{sWS}:{sWS+1}], {NONCE}
s_lshl_b32 s{sT}, s{sG}, 24
s_lshl_b32 s{sT2}, s{sI}, 15
s_add_u32 s{sT}, s{sT}, s{sT2}
s_add_u32 s{sT}, s{sT}, 0xF00000
s_add_u32 s{sK}, s{sK}, s{sT}
s_addc_u32 s{sK+1}, s{sK+1}, 0
s_add_u32 s{sV}, s{sV}, s{sT}
s_addc_u32 s{sV+1}, s{sV+1}, 0
v_and_b32 v4, 15, v0
v_lshrrev_b32 v5, 6, v0
v_lshl_add_u32 v4, v5, 5, v4
v_bfe_u32 v5, v0, 4, 2
v_lshlrev_b32 v4, 8, v4
v_lshl_add_u32 v4, v5, 4, v4
v_add_u32 v4, 4096, v4
""")
for t in range(2):
    for s in range(4):
        a(f"global_load_dwordx4 v[{vK+16*t+4*s}:{vK+16*t+4*s+3}], v4, s[{sK}:{sK+1}] offset:{(t-1)*4096 + s*64} {POL}")
a(f"""
s_mov_b32 s{RG+2}, 0x20000
s_mov_b32 s{RG+3}, 0x20000
s_mov_b32 s{RX+2}, {WSSIZE}
s_mov_b32 s{RX+3}, 0x20000
s_mul_i32 s{sT}, s{sG}, {TGS}
s_add_u32 s{sT}, s{sT}, {TG}
s_add_u32 s{RT}, s{sWS}, s{sT}
s_addc_u32 s{RT+1}, s{sWS+1}, 0
s_mov_b32 s{RT+2}, {TGS}
s_mov_b32 s{RT+3}, 0x20000
s_mov_b32 s{sLAY}, 0
s_mov_b32 s{sMODE}, 0
s_mov_b32 s{sSPIN}, 0x20000
s_mov_b32 s{sQUADM}, 0x11111111
s_mov_b32 s{sQUADM+1}, 0x11111111
s_mov_b32 s{sN0M}, 0x00010001
s_mov_b32 s{sN0M+1}, 0x00010001
s_mov_b32 s{sPUBM}, 0x00110011
s_mov_b32 s{sPUBM+1}, 0x00110011
s_lshl_b32 s{sT}, s{sW}, 4
s_lshl_b64 s[{sMLM}:{sMLM+1}], 1, s{sT}
s_and_b32 s{sA4}, s{sI}, 15
s_or_b32 s{sT}, s{sG}, s{sCG}
s_cmp_eq_u32 s{sT}, 0
s_cselect_b32 s{sFIN}, 1, 0
""")
for gp in range(8):
    a(f"s_mov_b32 s{sGO+gp}, {gp*GS}")
a(f"""
v_and_b32 v1, 15, v0
v_bfe_u32 v2, v0, 4, 2
v_bfe_u32 v3, v0, 2, 2
v_and_b32 v4, 3, v0
v_lshlrev_b32 v{vXRD}, 4, v2
v_add_u32 v{vXRD}, {L_X}, v{vXRD}
v_add_u32 v5, 256, v{vXRD}
v_cmp_eq_u32 vcc, 1, v3
v_add_u32 v{vXWR}, {L_X}, v8
v_lshlrev_b32 v6, 1, v8
v_cndmask_b32 v{vXRD}, v{vXRD}, v5, vcc
v_and_b32 v5, 31, v0
v_lshlrev_b32 v5, 4, v5
s_lshl_b32 s{sT}, s{sKQ}, 9
v_add_u32 v{vGA}, s{sT}, v5
v_mul_u32_u24 v6, 2560, v9
v_add_u32 v{vGA}, v{vGA}, v6
s_lshr_b32 s{sT}, s{sA4}, 3
s_lshl_b32 s{sT}, s{sT}, 12
s_add_u32 s{sT}, s{sT}, {HP}
v_lshl_add_u32 v{vHGA}, v9, 9, v5
v_add_u32 v{vHGA}, s{sT}, v{vHGA}
s_lshl_b32 s{sT}, s{sKQ}, 11
s_lshl_b32 s{sT2}, s{sCG}, 8
s_add_u32 s{sT}, s{sT}, s{sT2}
s_lshl_b32 s{sT2}, s{sW}, 6
s_add_u32 s{sT}, s{sT}, s{sT2}
v_lshlrev_b32 v6, 4, v2
v_add_u32 v{vQPA}, s{sT}, v6
v_add_u32 v7, {QCS}, v{vQPA}
v_cndmask_b32 v{vQPA}, v{vQPA}, v7, vcc
v_add_u32 v{vQGA}, {QS}, v5
s_lshl_b32 s{sT}, s{sI}, 4
s_add_u32 s{sT}, s{sT}, {QS}
v_mov_b32 v{vQSA}, s{sT}
s_lshr_b32 s{sT}, s{sI}, 4
s_lshl_b32 s{sT}, s{sT}, 12
s_lshl_b32 s{sT2}, s{sW}, 10
s_add_u32 s{sT}, s{sT}, s{sT2}
s_lshl_b32 s{sT2}, s{sA4}, 6
s_add_u32 s{sT}, s{sT}, s{sT2}
v_lshlrev_b32 v7, 13, v2
v_lshl_add_u32 v7, v3, 4, v7
v_add_u32 v{vRECA}, s{sT}, v7
s_lshl_b32 s{sT}, s{sI}, 3
s_add_u32 s{sT}, s{sT}, {ML}
v_lshlrev_b32 v7, 8, v2
v_add_u32 v{vMLA}, s{sT}, v7
s_lshr_b32 s{sT}, s{sA4}, 3
s_lshl_b32 s{sT}, s{sT}, 2
s_add_u32 s{sT}, s{sT}, s{sW}
s_lshl_b32 s{sT2}, s{sT}, 12
v_lshl_add_u32 v7, v1, 6, v6
v_add_u32 v{vOA}, s{sT2}, v7
s_lshr_b32 s{sT2}, s{sT}, 1
s_lshl_b32 s{sT2}, s{sT2}, 8
s_add_u32 s{sT2}, s{sT2}, {ML}
s_and_b32 s{sT}, s{sT}, 1
v_and_b32 v7, 1, v3
v_xor_b32 v7, s{sT}, v7
v_lshlrev_b32 v7, 4, v7
v_lshl_add_u32 v7, v2, 2, v7
v_add_u32 v7, v7, v4
v_lshlrev_b32 v7, 3, v7
v_add_u32 v{vOML}, s{sT2}, v7
v_lshl_add_u32 v7, v2, 3, v3
v_lshlrev_b32 v7, 7, v7
v_lshrrev_b32 v10, 1, v2
v_xor_b32 v10, v10, v2
v_and_b32 v10, 1, v10
v_lshrrev_b32 v11, 1, v3
v_lshl_or_b32 v10, v10, 1, v11
v_lshlrev_b32 v10, 5, v10
v_lshl_or_b32 v10, v4, 3, v10
v_or_b32 v{vTR0}, v7, v10
v_mov_b32 v{vPUBA}, 0
v_mov_b32 v10, {ONES}
v_lshrrev_b32 v11, 2, v{vL16}
v_add_u32 v11, {L_X+256}, v11
ds_write_b32 v11, v10
ds_write_b32 v11, v10 offset:512
s_getreg_b32 s{sT2}, hwreg(HW_REG_XCC_ID)
s_and_b32 s{sT2}, s{sT2}, 15
v_mov_b32 v{vSTG+3}, s{sT2}
s_waitcnt lgkmcnt(0)
s_mul_i32 s{sTAG}, s{sNON}, 0x9E3779B1
s_add_u32 s{sTAG}, s{sTAG}, 0x7F4A7C15
s_and_b32 s{sT0}, s{sTAG}, 255
s_bfe_u32 s{sT0+1}, s{sTAG}, 0x80008
s_bfe_u32 s{sT0+2}, s{sTAG}, 0x80010
s_lshr_b32 s{sT0+3}, s{sTAG}, 24
v_mov_b32 v{vSTG+2}, s{sTAG}
s_lshl_b32 s{sT}, s{sW}, 5
v_xor_b32 v10, s{sT}, v{vTR0}
v_xor_b32 v11, 32, v10
v_add_u32 v11, 512, v11
s_waitcnt vmcnt(8)
ds_write_b32 v{vXWR}, v{vXW}
v_lshlrev_b32 v{vR0}, 16, v{vXW}
v_and_b32 v{vR1}, 0xffff0000, v{vXW}
s_barrier
""")
stamp("wq")
if STAMP: a(f"v_mov_b32 v{vSTMP}, 0")
trW(vWQ, L_WQ, 10, 11)
a("s_branch L_TQ")

a(f"""
L_G:
v_xor_b32 v{vXWR}, 512, v{vXWR}
L_Gp:
""")
for j in range(8):
    a(f"buffer_load_dwordx4 v[{8+4*j}:{11+4*j}], v{vGA}, s[{RX}:{RX+3}], s{sGO+j} offen sc1")
a("s_waitcnt vmcnt(6)")
a("v_pk_add_f32 v[40:41], v[8:9], v[12:13]\nv_pk_add_f32 v[42:43], v[10:11], v[14:15]\nv_max_u32 v44, v8, v12")
for j in range(2, 8):
    a(f"s_waitcnt vmcnt({7-j})")
    a(f"v_pk_add_f32 v[40:41], v[40:41], v[{8+4*j}:{9+4*j}]\nv_pk_add_f32 v[42:43], v[42:43], v[{10+4*j}:{11+4*j}]")
    a(f"v_max_u32 v44, v44, v{8+4*j}")
a(f"""
v_cmp_eq_u32 vcc, -1, v44
v_permlane32_swap_b32 v40, v42
v_permlane32_swap_b32 v41, v43
v_add_f32 v40, v40, v42
v_add_f32 v41, v41, v43
v_add_f32 v40, v40, v{vR0}
v_add_f32 v41, v41, v{vR1}
v_cvt_pk_bf16_f32 v{vXW}, v40, v41
ds_write_b32 v{vXWR}, v{vXW}
s_cbranch_vccnz L_Gretry
L_Gok:
v_lshlrev_b32 v{vR0}, 16, v{vXW}
v_and_b32 v{vR1}, 0xffff0000, v{vXW}
s_cmp_eq_u32 s{sPH}, 1
s_cbranch_scc1 L_TU
s_cmp_eq_u32 s{sPH}, 0
s_cbranch_scc0 L_Gother
""")

def stats(store):
    l = a.label("ST")
    a(f"""s_cbranch_scc1 {l}
    v_mov_b32 v45, {ONES}
    v_dot2_f32_bf16 v46, v{vXW}, v{vXW}, 0
    v_dot2_f32_bf16 v47, v{vXW}, v45, 0
    s_nop 2
    v_permlane32_swap_b32 v47, v46
    v_add_f32 v46, v46, v47
    s_nop 1
    v_add_f32_dpp v46, v46, v46 row_ror:1 {DPPALL}
    s_nop 1
    v_add_f32_dpp v46, v46, v46 row_ror:2 {DPPALL}
    s_nop 1
    v_add_f32_dpp v46, v46, v46 row_ror:4 {DPPALL}
    s_nop 1
    v_add_f32_dpp v46, v46, v46 row_ror:8 {DPPALL}
    s_nop 1
    v_add_f32_dpp v46, v46, v46 row_bcast:15 row_mask:0xa bank_mask:0xf
    s_nop 0
    v_mov_b32 v{vSTG}, v46
    v_mov_b32_dpp v{vSTG+1}, v46 row_bcast:31 row_mask:0xc bank_mask:0xf
    s_mov_b32 exec_lo, 0
    s_brev_b32 exec_hi, 1""")
    store()
    a(f"s_mov_b64 exec, -1\n{l}:")

a(f"""
L_TQ:
s_cmp_lg_u32 s{sW}, 0
s_waitcnt lgkmcnt(0)
s_barrier
""")
stamp("xq")
for s in range(4): a(f"ds_read_b128 v[{8+4*s}:{11+4*s}], v{vXRD} offset:{64*s}")
stats(lambda: pub(f"buffer_store_dwordx4 v[{vSTG}:{vSTG+3}], v{vQSA}, s[{RT}:{RT+3}], 0 offen"))
for s in range(4):
    a(f"s_waitcnt lgkmcnt({0 if STAMP else 3-s})")
    a(f"v_mfma_f32_16x16x32_bf16 v[24:27], v[{vWQ+4*s}:{vWQ+4*s+3}], v[{8+4*s}:{11+4*s}], {'0' if s == 0 else 'v[24:27]'}")
a(f"""
s_mov_b64 exec, s[{sPUBM}:{sPUBM+1}]
s_movk_i32 s{sT}, 0xff00
s_nop 5
""")
for k in range(4): a(f"v_and_or_b32 v{24+k}, v{24+k}, s{sT}, v{28+k}" if False else f"v_bfi_b32 v{24+k}, v{56+k}, v{24+k}, v{52+k}")
pub(f"buffer_store_dwordx4 v[24:27], v{vQPA}, s[{RT}:{RT+3}], 0 offen")
a("s_mov_b64 exec, -1")
stamp("qpub")
a(f"""
s_cmp_eq_u32 s{sLAY}, 0
s_cbranch_scc0 L_noV
v_bfe_u32 v4, v0, 4, 2
v_bfe_u32 v5, v0, 6, 1
v_lshl_add_u32 v5, v5, 2, v4
v_lshlrev_b32 v5, 1, v5
v_and_b32 v6, 15, v0
v_xor_b32 v5, v5, v6
v_lshrrev_b32 v4, 4, v0
v_lshlrev_b32 v4, 8, v4
v_lshl_add_u32 v4, v5, 4, v4
""")
dma(sV, 4, L_V, 8, 4096)
a(f"""
L_noV:
s_cmp_eq_u32 s{sW}, 0
s_cbranch_scc0 L_S
""")
def xor_acc(base, first):
    for k in range(4): a(f"v_xor_b32 v{base+k}, s{sT0+k}, v{base+k}")
    if first:
        a(f"v_or3_b32 v44, v{base}, v{base+1}, v{base+2}\nv_or_b32 v44, v44, v{base+3}")
    else:
        a(f"v_or3_b32 v44, v44, v{base}, v{base+1}\nv_or3_b32 v44, v44, v{base+2}, v{base+3}")
a(f"""
s_cmp_eq_u32 s{sLAY}, 0
s_cbranch_scc0 L_QFp
L_QC:
""")
for u in range(2):
    for k in range(4):
        a(f"s_mov_b32 s{sT}, {QCS + k*2048}\nbuffer_load_dwordx4 v[{8+16*u+4*k}:{11+16*u+4*k}], v{vL16}, s[{RT}:{RT+3}], s{sT} offen offset:{u*1024} sc1")
a("s_waitcnt vmcnt(0)")
for u in range(2):
    for k in range(4): xor_acc(8+16*u+4*k, u == 0 and k == 0)
    for h in range(2):
        r = 8 + 16*u + 2*h
        a(f"v_pk_add_f32 v[{r}:{r+1}], v[{r}:{r+1}], v[{r+4}:{r+5}]\nv_pk_add_f32 v[{r+8}:{r+9}], v[{r+8}:{r+9}], v[{r+12}:{r+13}]")
        a(f"v_pk_add_f32 v[{vQCS+4*u+2*h}:{vQCS+4*u+2*h+1}], v[{r}:{r+1}], v[{r+8}:{r+9}]")
a(f"""
v_and_b32 v44, 255, v44
v_cmp_ne_u32 vcc, 0, v44
s_cbranch_vccz L_QFp
""")
spin("L_QC", "L_QFp")
a(f"""
L_QFp:
buffer_load_dwordx4 v[48:51], v{vQGA}, s[{RT}:{RT+3}], 0 offen sc1
""")
for k in range(4):
    for u in range(2):
        if k < 2:
            a(f"buffer_load_dwordx4 v[{8+16*u+4*k}:{11+16*u+4*k}], v{vL16}, s[{RT}:{RT+3}], 0 offen offset:{k*2048+u*1024} sc1")
        else:
            if u == 0 and k == 2: a(f"s_movk_i32 s{sT}, 4096")
            a(f"buffer_load_dwordx4 v[{8+16*u+4*k}:{11+16*u+4*k}], v{vL16}, s[{RT}:{RT+3}], s{sT} offen offset:{(k-2)*2048+u*1024} sc1")
a(f"""
s_waitcnt vmcnt(8)
v_add_f32_dpp v48, v48, v48 quad_perm:[1,0,3,2] {DPPALL}
v_add_f32_dpp v49, v49, v49 quad_perm:[1,0,3,2] {DPPALL}
v_xor_b32 v45, s{sTAG}, v50
v_add_f32_dpp v48, v48, v48 quad_perm:[2,3,0,1] {DPPALL}
v_add_f32_dpp v49, v49, v49 quad_perm:[2,3,0,1] {DPPALL}
v_mul_f32 v48, {f32(1/512)}, v48
v_mul_f32 v46, {f32(-1/512)}, v49
v_fma_f32 v48, -v46, v46, v48
v_max_f32 v48, 0, v48
v_add_f32 v48, {f32(1e-5)}, v48
v_rsq_f32 v48, v48
s_waitcnt vmcnt(6)
""")
xor_acc(8, True); xor_acc(24, False)
a(f"v_mul_f32 v48, {f32(QSCALE)}, v48")
for u in range(2):
    for h in range(2):
        r = 8 + 16*u + 2*h
        a(f"v_pk_fma_f32 v[{r}:{r+1}], v[{vQCS+4*u+2*h}:{vQCS+4*u+2*h+1}], v[46:47], v[{r}:{r+1}] op_sel_hi:[1,0,1]")
for k in range(1, 4):
    for u in range(2):
        a(f"s_waitcnt vmcnt({7 - 2*k - u})")
        xor_acc(8+16*u+4*k, False)
        for h in range(2):
            r = 8 + 16*u + 2*h
            a(f"v_pk_add_f32 v[{r}:{r+1}], v[{r}:{r+1}], v[{r+4*k}:{r+4*k+1}]")
a(f"""
v_and_b32 v44, 255, v44
v_or_b32 v44, v44, v45
v_cmp_ne_u32 vcc, 0, v44
v_pk_mul_f32 v[8:9], v[8:9], v[48:49] op_sel_hi:[1,0]
v_pk_mul_f32 v[10:11], v[10:11], v[48:49] op_sel_hi:[1,0]
v_pk_mul_f32 v[24:25], v[24:25], v[48:49] op_sel_hi:[1,0]
v_pk_mul_f32 v[26:27], v[26:27], v[48:49] op_sel_hi:[1,0]
v_lshrrev_b32 v45, 1, v{vL16}
v_cvt_pk_bf16_f32 v8, v8, v9
v_cvt_pk_bf16_f32 v9, v10, v11
v_cvt_pk_bf16_f32 v10, v24, v25
v_cvt_pk_bf16_f32 v11, v26, v27
ds_write_b64 v45, v[8:9] offset:{L_QB}
ds_write_b64 v45, v[10:11] offset:{L_QB+512}
s_cbranch_vccnz L_QFretry
L_QFok:
s_cmp_eq_u32 s{sLAY}, 0
s_cbranch_scc0 L_S
v_cmp_ne_u32 vcc, v51, v{vSTG+3}
s_cmp_eq_u64 vcc, 0
s_cselect_b32 s{sT}, 1, 0
v_mov_b32 v8, s{sT}
v_mov_b32 v9, {L_MODE}
ds_write_b32 v9, v8
s_cmp_eq_u32 s{sI}, 0
s_cbranch_scc0 L_S
s_lshl_b32 s{sT}, s{sG}, 7
s_add_u32 s{sT}, s{sT}, {GD}
v_mov_b32 v9, s{sT}
s_mov_b64 exec, 1
global_store_dword v9, v{vSTG+2}, s[{sWS}:{sWS+1}] sc1
s_mov_b64 exec, -1
""")
a(f"""
L_S:
v_bfe_u32 v4, v0, 2, 2
v_bfe_u32 v5, v0, 4, 2
v_lshlrev_b32 v6, 4, v5
v_lshl_add_u32 v2, v4, 8, v6
v_lshl_add_u32 v3, v4, 6, v6
s_lshl_b32 s{sT}, s{sW}, 8
v_add_u32 v7, s{sT}, v3
s_lshl_b32 s{sT}, s{sW}, 5
v_lshlrev_b32 v1, 3, v5
v_lshl_add_u32 v1, v4, 7, v1
v_add_u32 v1, s{sT}, v1
v_and_b32 v4, 15, v0
v_lshlrev_b32 v4, 3, v4
v_lshl_add_u32 v4, v5, 7, v4
v_mov_b32 v5, {ONES}
s_waitcnt vmcnt(8) lgkmcnt(0)
s_barrier
""")
stamp("q")
for s in range(4): a(f"ds_read_b128 v[{8+4*s}:{11+4*s}], v2 offset:{L_QB + 64*s}")
for s in range(4):
    a(f"s_waitcnt lgkmcnt({0 if STAMP else 3-s})")
    for t in range(2):
        a(f"v_mfma_f32_16x16x32_bf16 v[{24+4*t}:{27+4*t}], v[{vK+16*t+4*s}:{vK+16*t+4*s+3}], v[{8+4*s}:{11+4*s}], {'0' if s == 0 else f'v[{24+4*t}:{27+4*t}]'}")
a(f"""
s_nop 6
v_max3_f32 v32, v24, v25, v26
v_max_f32 v32, v32, v27
v_max3_f32 v32, v32, v28, v29
v_max3_f32 v32, v32, v30, v31
v_mov_b32 v33, v32
s_nop 1
v_permlane32_swap_b32 v32, v33
v_max_f32 v32, v32, v33
v_mov_b32 v33, v32
s_nop 1
v_permlane16_swap_b32 v32, v33
v_max_f32 v32, v32, v33
v_pk_add_f32 v[24:25], v[24:25], v[32:33] op_sel_hi:[1,0] neg_lo:[0,1] neg_hi:[0,1]
v_pk_add_f32 v[26:27], v[26:27], v[32:33] op_sel_hi:[1,0] neg_lo:[0,1] neg_hi:[0,1]
v_pk_add_f32 v[28:29], v[28:29], v[32:33] op_sel_hi:[1,0] neg_lo:[0,1] neg_hi:[0,1]
v_pk_add_f32 v[30:31], v[30:31], v[32:33] op_sel_hi:[1,0] neg_lo:[0,1] neg_hi:[0,1]
""")
for k in range(8): a(f"v_exp_f32 v{24+k}, v{24+k}")
a(f"""
v_cvt_pk_bf16_f32 v36, v24, v25
v_cvt_pk_bf16_f32 v37, v26, v27
v_cvt_pk_bf16_f32 v38, v28, v29
v_cvt_pk_bf16_f32 v39, v30, v31
s_mov_b64 exec, s[{sQUADM}:{sQUADM+1}]
ds_write_b128 v7, v[36:39] offset:{L_PB}
v_dot2_f32_bf16 v33, v36, v5, 0
v_dot2_f32_bf16 v33, v37, v5, v33
v_dot2_f32_bf16 v33, v38, v5, v33
v_dot2_f32_bf16 v33, v39, v5, v33
s_nop 2
ds_write_b64 v1, v[32:33] offset:{L_MB}
s_mov_b64 exec, -1
s_cmp_eq_u32 s{sLAY}, 0
s_waitcnt vmcnt(0) lgkmcnt(0)
s_barrier
""")
stamp("p")
a(f"ds_read_b64 v[32:33], v4 offset:{L_MB}")
for w in range(4): a(f"ds_read_b128 v[{8+4*w}:{11+4*w}], v3 offset:{L_PB + 256*w}")
a(f"""
s_cbranch_scc0 L_Vready
v_bfe_u32 v34, v0, 2, 2
v_bfe_u32 v35, v0, 4, 2
v_lshl_add_u32 v36, v35, 2, v34
v_and_b32 v37, 7, v36
v_lshlrev_b32 v37, 1, v37
v_bfe_u32 v38, v0, 1, 1
s_lshl_b32 s{sT}, s{sW}, 2
v_or_b32 v38, s{sT}, v38
v_xor_b32 v37, v37, v38
v_lshlrev_b32 v37, 4, v37
v_lshl_add_u32 v36, v36, 8, v37
v_and_b32 v37, 1, v0
v_lshl_add_u32 v36, v37, 3, v36
v_xor_b32 v37, 32, v36
v_mov_b32 v38, {L_MODE}
ds_read_b32 v38, v38
""")
for w in range(4):
    for c in range(2):
        for e in range(2):
            r = vV + 8*w + 4*c + 2*e
            a(f"ds_read_b64_tr_b16 v[{r}:{r+1}], v{36+c} offset:{L_V + w*8192 + e*4096}")
a(f"""
s_lshl_b32 s{sT2}, s{sI}, 12
v_lshlrev_b32 v39, 4, v0
buffer_load_dwordx4 v[{vWD}:{vWD+3}], v39, s[{RG}:{RG+3}], s{sT2} offen sc1
s_waitcnt lgkmcnt(0)
v_readfirstlane_b32 s{sMODE}, v38
L_Vready:
s_waitcnt lgkmcnt({0 if STAMP else 3})
v_mfma_f32_16x16x32_bf16 v[24:27], v[8:11], v[{vV}:{vV+3}], 0
v_max_f32_dpp v34, v32, v32 row_ror:4 {DPPALL}
v_mfma_f32_16x16x32_bf16 v[28:31], v[8:11], v[{vV+4}:{vV+7}], 0
s_waitcnt lgkmcnt({0 if STAMP else 2})
v_max_f32_dpp v34, v34, v34 row_ror:8 {DPPALL}
v_mfma_f32_16x16x32_bf16 v[40:43], v[12:15], v[{vV+8}:{vV+11}], 0
v_sub_f32 v32, v32, v34
v_mfma_f32_16x16x32_bf16 v[44:47], v[12:15], v[{vV+12}:{vV+15}], 0
v_exp_f32 v32, v32
s_waitcnt lgkmcnt({0 if STAMP else 1})
v_mfma_f32_16x16x32_bf16 v[48:51], v[16:19], v[{vV+16}:{vV+19}], 0
v_mul_f32 v35, v32, v33
v_mfma_f32_16x16x32_bf16 v[8:11], v[16:19], v[{vV+20}:{vV+23}], 0
s_waitcnt lgkmcnt(0)
v_add_f32_dpp v35, v35, v35 row_ror:1 {DPPALL}
v_mfma_f32_16x16x32_bf16 v[12:15], v[20:23], v[{vV+24}:{vV+27}], 0
v_mul_f32_dpp v36, v32, v24 row_newbcast:0 {DPPALL}
v_add_f32_dpp v35, v35, v35 row_ror:2 {DPPALL}
v_mfma_f32_16x16x32_bf16 v[16:19], v[20:23], v[{vV+28}:{vV+31}], 0
v_mul_f32_dpp v37, v32, v28 row_newbcast:0 {DPPALL}
v_add_f32_dpp v35, v35, v35 row_ror:4 {DPPALL}
v_fmac_f32_dpp v36, v32, v40 row_newbcast:4 {DPPALL}
v_fmac_f32_dpp v37, v32, v44 row_newbcast:4 {DPPALL}
v_add_f32_dpp v35, v35, v35 row_ror:8 {DPPALL}
v_fmac_f32_dpp v36, v32, v48 row_newbcast:8 {DPPALL}
v_fmac_f32_dpp v37, v32, v8 row_newbcast:8 {DPPALL}
v_fmac_f32_dpp v36, v32, v12 row_newbcast:12 {DPPALL}
s_nop 1
v_fmac_f32_dpp v37, v32, v16 row_newbcast:12 {DPPALL}
v_cvt_pk_bf16_f32 v36, v36, v37
s_nop 1
v_mov_b32_dpp v37, v36 quad_perm:[1,1,1,1] {DPPALL}
v_mov_b32_dpp v38, v36 quad_perm:[2,2,2,2] {DPPALL}
v_mov_b32_dpp v39, v36 quad_perm:[3,3,3,3] {DPPALL}
s_mov_b64 exec, s[{sQUADM}:{sQUADM+1}]
""")
pub(f"buffer_store_dwordx4 v[36:39], v{vRECA}, s[{RG}:{RG+3}], 0 offen")
a(f"s_mov_b64 exec, s[{sMLM}:{sMLM+1}]")
pub(f"buffer_store_dwordx2 v[34:35], v{vMLA}, s[{RG}:{RG+3}], 0 offen")
a(f"s_mov_b64 exec, -1")
stamp("rec")
a(f"""
s_cmp_ge_u32 s{sI}, 16
s_cbranch_scc1 L_B
""")
a(f"""
s_cmp_eq_u32 s{sLAY}, 0
s_cbranch_scc0 L_O
s_lshl_b32 s{sT}, s{sG}, 1
s_lshr_b32 s{sT2}, s{sA4}, 3
s_add_u32 s{sT}, s{sT}, s{sT2}
s_lshl_b32 s{sT}, s{sT}, 18
s_and_b32 s{sT2}, s{sA4}, 7
s_lshl_b32 s{sT2}, s{sT2}, 7
s_add_u32 s{sT}, s{sT}, s{sT2}
s_add_u32 s{sWO}, s{sWO}, s{sT}
s_addc_u32 s{sWO+1}, s{sWO+1}, 0
v_lshl_add_u32 v4, v{vROW}, 10, v{vPC16}
""")
dma(sWO, 4, L_W2, 8, 32 * 1024)
a(f"""
v_bfe_u32 v1, v0, 2, 1
v_bfe_u32 v2, v0, 3, 1
v_bfe_u32 v3, v0, 4, 2
v_lshl_add_u32 v5, v3, 2, v2
v_lshl_add_u32 v5, v1, 4, v5
v_lshlrev_b32 v5, 7, v5
v_bfe_u32 v6, v0, 5, 1
v_xor_b32 v6, v6, v1
v_and_b32 v7, 1, v3
v_lshl_or_b32 v6, v6, 1, v7
v_lshlrev_b32 v6, 5, v6
v_and_b32 v7, 3, v0
v_lshl_or_b32 v6, v7, 3, v6
v_or_b32 v5, v5, v6
s_lshr_b32 s{sT}, s{sW}, 1
s_lshl_b32 s{sT}, s{sT}, 14
s_add_u32 s{sT}, s{sT}, {L_W2}
v_add_u32 v5, s{sT}, v5
s_waitcnt vmcnt(0)
s_barrier
""")
for t in range(4):
    a(f"v_xor_b32 v6, {32*t}, v5\nv_xor_b32 v7, 32, v6\nv_add_u32 v7, 256, v7")
    trW(vW2 + 16*t, 0, 6, 7)
a(f"""
s_waitcnt lgkmcnt(0)
L_O:
s_waitcnt vmcnt(0)
L_Op:
buffer_load_dwordx2 v[4:5], v{vOML}, s[{RG}:{RG+3}], 0 offen sc1
""")
for s in range(4): a(f"buffer_load_dwordx4 v[{8+4*s}:{11+4*s}], v{vOA}, s[{RG}:{RG+3}], 0 offen offset:{1024*s} sc1")
def mo(t, s):
    return f"v_mfma_f32_16x16x32_bf16 v[{24+4*t}:{27+4*t}], v[{8+4*s}:{11+4*s}], v[{vW2+16*t+4*s}:{vW2+16*t+4*s+3}], {'0' if s == 0 else f'v[{24+4*t}:{27+4*t}]'}"
a(f"""
s_waitcnt vmcnt(4)
v_max_f32_dpp v6, v4, v4 quad_perm:[1,0,3,2] {DPPALL}
s_nop 1
v_max_f32_dpp v6, v6, v6 quad_perm:[2,3,0,1] {DPPALL}
s_nop 1
v_max_f32_dpp v6, v6, v6 row_half_mirror {DPPALL}
s_waitcnt vmcnt(3)
{mo(0,0)}
v_mov_b32 v7, v6
{mo(1,0)}
v_max_u32 v44, v5, v8
{mo(2,0)}
v_permlane32_swap_b32 v6, v7
v_max_f32 v6, v6, v7
{mo(3,0)}
v_mov_b32 v7, v6
s_waitcnt vmcnt(2)
{mo(0,1)}
v_max_u32 v44, v44, v12
{mo(1,1)}
v_permlane16_swap_b32 v6, v7
v_max_f32 v6, v6, v7
{mo(2,1)}
v_sub_f32 v4, v4, v6
v_exp_f32 v4, v4
{mo(3,1)}
s_waitcnt vmcnt(1)
v_mul_f32 v6, v4, v5
{mo(0,2)}
v_max_u32 v44, v44, v16
v_add_f32_dpp v6, v6, v6 quad_perm:[1,0,3,2] {DPPALL}
{mo(1,2)}
s_nop 0
v_add_f32_dpp v6, v6, v6 quad_perm:[2,3,0,1] {DPPALL}
{mo(2,2)}
s_nop 0
v_add_f32_dpp v6, v6, v6 row_half_mirror {DPPALL}
{mo(3,2)}
v_mov_b32 v7, v6
s_waitcnt vmcnt(0)
{mo(0,3)}
v_max_u32 v44, v44, v20
v_permlane32_swap_b32 v6, v7
{mo(1,3)}
v_add_f32 v6, v6, v7
v_mov_b32 v7, v6
{mo(2,3)}
v_cmp_eq_u32 vcc, -1, v44
v_permlane16_swap_b32 v6, v7
{mo(3,3)}
v_add_f32 v6, v6, v7
v_rcp_f32 v6, v6
s_cbranch_vccnz L_Oretry
L_Ook:
v_mul_f32 v4, v4, v6
s_lshl_b32 s{sT}, s{sW}, 8
v_bfe_u32 v1, v0, 4, 1
v_bfe_u32 v2, v0, 5, 1
""")
for t in range(4):
    a(f"v_mul_f32_dpp v{40+t}, v4, v{24+4*t} row_newbcast:0 {DPPALL}")
    if t == 0: a(f"v_lshl_or_b32 v1, v1, 1, v2\nv_and_b32 v2, 15, v0")
    for r in range(1, 4): a(f"v_fmac_f32_dpp v{40+t}, v4, v{24+4*t+r} row_newbcast:{r} {DPPALL}")
    if t == 1: a(f"v_lshlrev_b32 v1, 6, v1\nv_lshl_add_u32 v1, v2, 2, v1")
a(f"""
v_permlane32_swap_b32 v40, v41
v_add_u32 v1, s{sT}, v1
v_add_f32 v40, v40, v41
v_permlane32_swap_b32 v42, v43
v_add_f32 v42, v42, v43
s_nop 1
v_permlane16_swap_b32 v40, v42
v_add_f32 v40, v40, v42
ds_write_b32 v1, v40 offset:{L_YB}
s_cmp_eq_u32 s{sW}, 0
s_waitcnt lgkmcnt(0)
s_barrier
s_cbranch_scc0 L_Odone
s_mov_b64 exec, 0xffff
""")
for w in range(4): a(f"ds_read_b128 v[{8+4*w}:{11+4*w}], v{vL16} offset:{L_YB + 256*w}")
a(f"""
s_lshr_b32 s{sT}, s{sA4}, 3
s_mul_i32 s{sT}, s{sT}, 2560
s_and_b32 s{sT2}, s{sA4}, 7
s_lshl_b32 s{sT2}, s{sT2}, 8
s_add_u32 s{sT}, s{sT}, s{sT2}
s_add_u32 s{sT}, s{sT}, {X1}
s_waitcnt lgkmcnt(0)
v_pk_add_f32 v[8:9], v[8:9], v[12:13]
v_pk_add_f32 v[16:17], v[16:17], v[20:21]
v_pk_add_f32 v[10:11], v[10:11], v[14:15]
v_pk_add_f32 v[18:19], v[18:19], v[22:23]
v_pk_add_f32 v[8:9], v[8:9], v[16:17]
v_pk_add_f32 v[10:11], v[10:11], v[18:19]
buffer_store_dwordx4 v[8:11], v{vL16}, s[{RG}:{RG+3}], s{sT} offen sc1
s_mov_b64 exec, -1
L_Odone:
""")
stamp("x1pub")
a(f"""
s_cmp_eq_u32 s{sLAY}, 0
s_cbranch_scc0 L_D
s_lshr_b32 s{sT}, s{sG}, 1
s_mul_i32 s{sT}, s{sT}, 7
s_and_b32 s{sT2}, s{sG}, 1
s_lshl_b32 s{sM}, s{sT2}, 2
s_add_u32 s{sT}, s{sT}, s{sM}
s_lshr_b32 s{sM}, s{sA4}, 3
s_and_b32 s{sT2}, s{sT2}, s{sM}
s_lshl_b32 s{sM}, s{sM}, 1
s_add_u32 s{sT}, s{sT}, s{sM}
s_lshl_b32 s{sT}, s{sT}, 16
s_and_b32 s{sM}, s{sA4}, 7
s_lshl_b32 s{sM}, s{sM}, 7
s_add_u32 s{sT}, s{sT}, s{sM}
s_add_u32 s{sWD}, s{sWD}, s{sT}
s_addc_u32 s{sWD+1}, s{sWD+1}, 0
s_lshl_b32 s{sT2}, s{sT2}, 16
v_lshl_add_u32 v4, v{vROW}, 10, v{vPC16}
v_add_u32 v5, 0x10000, v4
v_subrev_u32 v5, s{sT2}, v5
""")
a(f"s_lshl_b32 s{sT}, s{sW}, 10\ns_add_u32 m0, s{sT}, {L_WD}")
for j in range(4):
    a(f"s_nop 0\nglobal_load_lds_dwordx4 v{4 + (j>>1)}, s[{sWD}:{sWD+1}] {POL}")
    if j < 3: a(f"s_add_u32 m0, m0, 4096")
    if j in (0, 2): a(f"v_add_u32 v{4+(j>>1)}, 0x8000, v{4+(j>>1)}")
a(f"""
s_lshl_b32 s{sT}, s{sW}, 5
v_xor_b32 v6, s{sT}, v{vTR0}
v_xor_b32 v7, 32, v6
v_add_u32 v7, 512, v7
s_waitcnt vmcnt(0)
s_barrier
""")
trW(vWD, L_WD, 6, 7)
a(f"""
s_cmp_eq_u32 s{sW}, 0
s_cbranch_scc0 L_Dm
L_HC:
s_mov_b32 s{sT}, {HCS - HP}
""")
for k in range(4): a(f"buffer_load_dwordx4 v[{8+4*k}:{11+4*k}], v{vHGA}, s[{RG}:{RG+3}], s{sT} offen offset:{1024*k} sc1")
a(f"""
s_waitcnt vmcnt(0)
v_max3_u32 v44, v8, v12, v16
v_max_u32 v44, v44, v20
v_cmp_eq_u32 vcc, -1, v44
v_pk_add_f32 v[8:9], v[8:9], v[12:13]
v_pk_add_f32 v[10:11], v[10:11], v[14:15]
v_pk_add_f32 v[16:17], v[16:17], v[20:21]
v_pk_add_f32 v[18:19], v[18:19], v[22:23]
v_pk_add_f32 v[{vHCS}:{vHCS+1}], v[8:9], v[16:17]
v_pk_add_f32 v[{vHCS+2}:{vHCS+3}], v[10:11], v[18:19]
s_cbranch_vccz L_D
""")
spin("L_HC", "L_D")
a(f"""
L_D:
s_cmp_eq_u32 s{sW}, 0
s_cbranch_scc0 L_Dm
v_and_b32 v1, 3, v0
v_lshlrev_b32 v1, 4, v1
v_and_b32 v2, 0xff, v{vXWR}
s_mov_b32 s{sT}, {HS}
L_Dp:
buffer_load_dwordx2 v[48:49], v1, s[{RG}:{RG+3}], s{sT} offen sc1
""")
for k in range(4): a(f"buffer_load_dwordx4 v[{8+4*k}:{11+4*k}], v{vHGA}, s[{RG}:{RG+3}], 0 offen offset:{1024*k} sc1")
a(f"""
s_waitcnt vmcnt(4)
v_add_f32_dpp v46, v48, v48 quad_perm:[1,0,3,2] {DPPALL}
v_add_f32_dpp v47, v49, v49 quad_perm:[1,0,3,2] {DPPALL}
s_nop 0
v_add_f32_dpp v46, v46, v46 quad_perm:[2,3,0,1] {DPPALL}
v_add_f32_dpp v47, v47, v47 quad_perm:[2,3,0,1] {DPPALL}
v_mul_f32 v45, {f32(1/512)}, v46
v_mul_f32 v46, {f32(-1/512)}, v47
v_fma_f32 v45, -v46, v46, v45
v_max_f32 v45, 0, v45
v_add_f32 v45, {f32(1e-5)}, v45
v_rcp_f32 v45, v45
s_waitcnt vmcnt(3)
v_max_u32 v44, v48, v8
v_pk_fma_f32 v[8:9], v[{vHCS}:{vHCS+1}], v[46:47], v[8:9] op_sel_hi:[1,0,1]
v_pk_fma_f32 v[10:11], v[{vHCS+2}:{vHCS+3}], v[46:47], v[10:11] op_sel_hi:[1,0,1]
""")
for k in range(1, 4):
    a(f"s_waitcnt vmcnt({3-k})\nv_pk_add_f32 v[8:9], v[8:9], v[{8+4*k}:{9+4*k}]\nv_pk_add_f32 v[10:11], v[10:11], v[{10+4*k}:{11+4*k}]\nv_max_u32 v44, v44, v{8+4*k}")
a(f"""
v_cmp_eq_u32 vcc, -1, v44
v_permlane32_swap_b32 v8, v10
v_permlane32_swap_b32 v9, v11
v_mul_f32 v8, v8, v45
v_mul_f32 v9, v9, v45
v_mul_f32 v8, v8, v10
v_mul_f32 v9, v9, v11
v_cvt_pk_bf16_f32 v8, v8, v9
ds_write_b32 v2, v8 offset:{L_HB}
s_cbranch_vccnz L_Dretry
L_Dm:
v_bfe_u32 v1, v0, 4, 2
v_lshlrev_b32 v1, 4, v1
s_lshr_b32 s{sT}, s{sA4}, 3
s_mul_i32 s{sT}, s{sT}, 2560
s_and_b32 s{sT2}, s{sA4}, 7
s_lshl_b32 s{sT2}, s{sT2}, 8
s_add_u32 s{sT}, s{sT}, s{sT2}
s_lshl_b32 s{sT2}, s{sW}, 6
s_add_u32 s{sT}, s{sT}, s{sT2}
s_add_u32 s{sT}, s{sT}, {X2}
s_waitcnt lgkmcnt(0)
s_barrier
""")
stamp("h")
for s in range(4): a(f"ds_read_b128 v[{8+4*s}:{11+4*s}], v1 offset:{L_HB + 64*s}")
for s in range(4):
    a(f"s_waitcnt lgkmcnt({0 if STAMP else 3-s})")
    a(f"v_mfma_f32_16x16x32_bf16 v[24:27], v[{vWD+4*s}:{vWD+4*s+3}], v[{8+4*s}:{11+4*s}], {'0' if s == 0 else 'v[24:27]'}")
a(f"""
s_mov_b64 exec, s[{sN0M}:{sN0M+1}]
s_nop 6
buffer_store_dwordx4 v[24:27], v1, s[{RG}:{RG+3}], s{sT} offen sc1
s_mov_b64 exec, -1
""")
stamp("x2pub")
stamp_flush()
a(f"""
s_cmp_eq_u32 s{sLAY}, 0
s_cbranch_scc1 L_Anext
s_cmp_eq_u32 s{sFIN}, 1
s_cbranch_scc0 L_exit
s_cmp_eq_u32 s{sW}, 0
s_cbranch_scc0 L_exit
L_Anext:
s_mov_b32 s{sPH}, 2
""")
def gd_wait():
    l1 = a.label("GD"); l2 = a.label("GD")
    a(f"""s_cmp_eq_u32 s{sLAY}, 0
    s_cbranch_scc0 {l2}
    v_and_b32 v1, 7, v0
    v_lshlrev_b32 v1, 7, v1
    v_add_u32 v1, {GD}, v1
    {l1}:
    global_load_dword v2, v1, s[{sWS}:{sWS+1}] sc1
    s_waitcnt vmcnt(0)
    v_cmp_ne_u32 vcc, s{sTAG}, v2
    s_cbranch_vccz {l2}""")
    spin(l1, l2)
    a(f"{l2}:")
def set_rx(off):
    a(f"""s_mul_i32 s{sT}, s{sLAY}, {LS}
    s_add_u32 s{sT}, s{sT}, {off + GB}
    s_add_u32 s{RX}, s{sWS}, s{sT}
    s_addc_u32 s{RX+1}, s{sWS+1}, 0""")
def next_layer():
    a(f"""s_add_u32 s{RG}, s{RG}, {LS}
    s_addc_u32 s{RG+1}, s{RG+1}, 0
    s_add_u32 s{RT}, s{RT}, {TLS}
    s_addc_u32 s{RT+1}, s{RT+1}, 0
    s_mov_b64 s[{sPUBM}:{sPUBM+1}], s[{sN0M}:{sN0M+1}]
    s_mov_b32 s{sLAY}, 1""")
a(f"""
s_cmp_eq_u32 s{sW}, 0
s_cbranch_scc1 L_A0
""")
next_layer()
a("s_branch L_TQ\nL_A0:")
gd_wait()
set_rx(X1)
a("s_branch L_G")
a(f"""
L_Gother:
s_cmp_eq_u32 s{sPH}, 2
s_cbranch_scc0 L_final
""")
set_rx(X2)
a(f"""
s_cmp_eq_u32 s{sLAY}, 0
s_cselect_b32 s{sPH}, 0, 3
s_cbranch_scc0 L_G
""")
next_layer()
a("s_branch L_G")
a(f"""
L_final:
v_and_b32 v1, 0xff, v{vXWR}
s_lshl_b32 s{sT}, s{sKQ}, 8
v_add_u32 v1, s{sT}, v1
global_store_dword v1, v{vXW}, s[{sOUT}:{sOUT+1}]
s_cmp_eq_u32 s2, 0
s_cbranch_scc0 L_fin2
s_add_u32 s{sT}, s{sNON}, 1
v_mov_b32 v1, {NONCE}
v_mov_b32 v2, s{sT}
s_mov_b64 exec, 1
global_store_dword v1, v2, s[{sWS}:{sWS+1}]
s_mov_b64 exec, -1
L_fin2:
""")
if STAMP:
    a(f"s_memrealtime s[{sST}:{sST+1}]\ns_waitcnt lgkmcnt(0)\nv_writelane_b32 v{vSTMP}, s{sST}, 16")
a("s_branch L_exit")
a(f"""
L_B:
s_mov_b32 s{sPH}, 1
s_cmp_eq_u32 s{sLAY}, 0
s_cbranch_scc0 L_B1
s_and_b32 s{sM}, s{sCG}, 3
s_lshr_b32 s{sT}, s{sG}, 1
s_mul_i32 s{sT}, s{sT}, 7
s_and_b32 s{sT2}, s{sG}, 1
s_lshl_b32 s{sM+1}, s{sT2}, 2
s_add_u32 s{sT}, s{sT}, s{sM+1}
s_add_u32 s{sT}, s{sT}, s{sM}
s_lshl_b32 s{sT}, s{sT}, 7
s_mul_i32 s{sM+1}, s{sKQ}, {128*3584}
s_add_u32 s{sT}, s{sT}, s{sM+1}
s_add_u32 s{sWG}, s{sWG}, s{sT}
s_addc_u32 s{sWG+1}, s{sWG+1}, 0
s_add_u32 s{sWU}, s{sWU}, s{sT}
s_addc_u32 s{sWU+1}, s{sWU+1}, 0
s_lshl_b32 s{sT2}, s{sT2}, 2
s_or_b32 s{sT2}, s{sT2}, s{sM}
s_lshr_b32 s{sT}, s{sM}, 1
s_lshl_b32 s{sT}, s{sT}, 2
s_add_u32 s{sT}, s{sT}, s{sKQ}
s_lshl_b32 s{sT}, s{sT}, 10
s_and_b32 s{sM}, s{sM}, 1
s_lshl_b32 s{sM}, s{sM}, 8
s_add_u32 s{sT}, s{sT}, s{sM}
s_lshl_b32 s{sM}, s{sW}, 6
s_add_u32 s{sT}, s{sT}, s{sM}
s_add_u32 s{sT}, s{sT}, {HP}
v_bfe_u32 v1, v0, 4, 2
v_lshlrev_b32 v1, 4, v1
v_add_u32 v{vPUBA}, s{sT}, v1
v_add_u32 v1, {HCS-HP}, v{vPUBA}
v_bfe_u32 v2, v0, 2, 2
v_cmp_eq_u32 vcc, 1, v2
s_lshl_b32 s{sT}, s{sA4}, 4
s_add_u32 s{sT}, s{sT}, {HS}
v_cndmask_b32 v{vPUBA}, v{vPUBA}, v1, vcc
v_mov_b32 v{vHGA}, s{sT}
s_cmp_eq_u32 s{sT2}, 7
s_cbranch_scc0 L_Bload
""")
for k in range(32): a(f"v_mov_b32 v{vW2+k}, 0")
a("s_branch L_B1\nL_Bload:")
waddr(4, 3584)
dma(sWG, 4, L_W2, 4, 32 * 3584)
dma(sWU, 4, L_W2 + 0x4000, 4, 32 * 3584)
a(f"""
s_lshl_b32 s{sT}, s{sW}, 5
v_xor_b32 v6, s{sT}, v{vTR0}
v_xor_b32 v7, 32, v6
v_add_u32 v7, {512 + L_W2}, v7
v_add_u32 v6, {L_W2}, v6
s_waitcnt vmcnt(0)
s_barrier
""")
trW(vW2, 0, 6, 7)
trW(vW2 + 16, 0x4000, 6, 7)
a(f"""
L_B1:
s_cmp_eq_u32 s{sW}, 0
s_cbranch_scc0 L_TU
""")
gd_wait()
set_rx(X1)
a("s_branch L_G")
a(f"""
L_TU:
s_cmp_lg_u32 s{sW}, 0
s_waitcnt lgkmcnt(0)
s_barrier
""")
stamp_at("x1pub")
for s in range(4): a(f"ds_read_b128 v[{8+4*s}:{11+4*s}], v{vXRD} offset:{512 + 64*s}")
stats(lambda: pub(f"buffer_store_dwordx2 v[{vSTG}:{vSTG+1}], v{vHGA}, s[{RG}:{RG+3}], 0 offen"))
for s in range(4):
    a(f"s_waitcnt lgkmcnt({0 if STAMP else 3-s})")
    for m in range(2):
        a(f"v_mfma_f32_16x16x32_bf16 v[{24+4*m}:{27+4*m}], v[{vW2+16*m+4*s}:{vW2+16*m+4*s+3}], v[{8+4*s}:{11+4*s}], {'0' if s == 0 else f'v[{24+4*m}:{27+4*m}]'}")
a(f"""
s_mov_b64 exec, s[{sPUBM}:{sPUBM+1}]
s_nop 5
buffer_store_dwordx4 v[24:27], v{vPUBA}, s[{RG}:{RG+3}], 0 offen
buffer_store_dwordx4 v[28:31], v{vPUBA}, s[{RG}:{RG+3}], 0 offen offset:512
s_cmp_eq_u32 s{sMODE}, 1
s_cbranch_scc1 L_TUp
buffer_store_dwordx4 v[24:27], v{vPUBA}, s[{RG}:{RG+3}], 0 offen sc1
buffer_store_dwordx4 v[28:31], v{vPUBA}, s[{RG}:{RG+3}], 0 offen offset:512 sc1
L_TUp:
s_mov_b64 exec, -1
""")
stamp_at("h")
stamp_flush()
a(f"""
s_cmp_eq_u32 s{sLAY}, 0
s_cbranch_scc0 L_exit
""")
set_rx(X2)
next_layer()
a(f"""
s_mov_b32 s{sPH}, 0
s_cmp_eq_u32 s{sW}, 0
s_cbranch_scc1 L_G
s_branch L_TQ
""")
for nm, ok in (("G", "L_Gok"), ("QF", "L_QFok"), ("O", "L_Ook"), ("D", "L_Dm")):
    a(f"L_{nm}retry:")
    spin(f"L_{nm}p", ok)
a("L_exit:")
stamp_store()
a("L_end:\ns_endpgm")

txt = a.text()
txt = txt.replace(f"    v_mov_b32 v{vSTG+2}, s{sTAG}\n",
    f"    v_mov_b32 v{vSTG+2}, s{sTAG}\n" + "".join(f"    v_mov_b32 v{52+k}, s{sT0+k}\n    v_mov_b32 v{56+k}, 0xffffff00\n" for k in range(4)), 1)
open(sys.argv[1], "w").write(wrap(txt, 256, 256, LDS_SIZE, 256))
if STAMP: print(stamp_names)
if DBG: print(list(enumerate(spin_ids, 1)))
```

```python
import sys, math, struct
from asmlib import *

opts = dict(stamp=0, pol="nt", dbg=0, wo="spec", kw=2, v1=4, k1=8, om="ack", xack=1)
for x in sys.argv[2:]:
    k, v = x.split("="); opts[k] = v
STAMP = int(opts["stamp"]); DBG = int(opts["dbg"]); POL = opts["pol"].replace("def", "").replace("_", " ")

a = Asm()
NONCE = 0x0
GD = 0x400
GB = 0x2000
GS = 0x1F400
LS = 0xA800
REC, ML, HP, HS = 0x0, 0x8000, 0x8400, 0xA400
HCS = 2 * LS
QP1 = HCS + 0x2000
QS1 = QP1 + 0x2000
CLR = 3328
XR = 32 * CLR
X1, X2, XLS = XR, XR + 5120, 10240
assert HS + 512 <= LS and QS1 + 256 <= XR and XR + 2 * XLS <= GS
TG = 0x200000
QP, QS, QCS = 0x0, 0x2000, 0x2400
FL = QCS + 0x2000
BOFF = 0x5000
TGS = 2 * BOFF + 0x400
WSSIZE = 0x400000
L_X = 0x0
L_HB, L_QB, L_PB, L_MB, L_YB, L_MODE = 0x400, 0x600, 0xA00, 0xE00, 0x1000, 0x1400
L_WQ, L_V, L_W2, L_WD = 0x2000, 0x6000, 0xE000, 0x2000
L_K = 0x16000
LDS_SIZE = 0x1E000
sX, sK, sV, sWQ, sWO, sWG, sWU, sWD, sOUT, sDBG, sWS = 4, 6, 8, 10, 12, 16, 18, 20, 22, 24, 26
sG, sI, sW, sKQ, sCG, sA4 = 28, 29, 30, 31, 32, 33
sLAY, sXO = 34, 35
RG = 36
RX = 40
sGO = 44
RT = 52
sTAG, sT0 = 56, 57
sSPIN, sPH, sT, sT2, sNON = 61, 62, 63, 64, 65
sQUADM, sMLM, sPUBM, sDM, sM = 66, 68, 70, 72, 74
sTH = 3
sFIN, sTRY = 76, 77
sNF, sALT = 14, 15
sSTM = 78
sST = 80
aK, aV, aWQ, aW2, aWD = 0, 32, 64, 80, 144
NAGPR = 176
vSTG = 52
vMASK, vONE, vJUNK = 56, 57, 60
vCS = 64
(vQCS, vHCS) = (96, 104)
(vR0, vR1, vXW, vXRD, vXWR, vGA, vQPA, vQGA, vQSA, vRECA, vMLA, vOA, vOML, vHGA, vPUBA, vROW, vPC16, vTR0,
 vSTMP, vL16, vL8, vQRD, vPRD, vPWR, vMWR, vMRD, vYWR, vB16, vHWR, vHSA, vDPA, vMODE, vVA, vQL) = range(108, 142)
NVGPR = 144
ONES = 0x3F803F80
QSCALE = math.log2(math.e) / math.sqrt(128.0)
def f32(x): return "0x%08x" % struct.unpack("<I", struct.pack("<f", x))[0]
DPPALL = "row_mask:0xf bank_mask:0xf"
LG = (lambda n: 0) if STAMP else (lambda n: n)

stamp_names = []; spin_ids = []
SEL = opts.get("sel", "start,wq,xq,qpub,q,p,rec,x1pub,h,x2pub").split(",")
def stamp(name):
    if not STAMP or name not in SEL: return
    if name not in stamp_names: stamp_names.append(name)
    k = stamp_names.index(name); assert k < 11
    a(f"s_memrealtime s[{sST+2*k}:{sST+2*k+1}]")
def stamp_flush():
    if not STAMP: return
    l1 = a.label("SF"); l2 = a.label("SF")
    a("s_waitcnt lgkmcnt(0)")
    a(f"s_cmp_eq_u32 s{sLAY}, 0\ns_cbranch_scc0 {l1}")
    for k in range(11): a(f"v_writelane_b32 v{vSTMP}, s{sST+2*k}, {k}")
    a(f"s_branch {l2}\n{l1}:")
    for k in range(11): a(f"v_writelane_b32 v{vSTMP}, s{sST+2*k}, {k+16}")
    a(f"{l2}:")
def stamp_store():
    if not STAMP: return
    l1 = a.label("SS")
    a(f"""s_cmp_eq_u32 s{sW}, {opts.get("sw", 0)}
    s_cbranch_scc0 {l1}
    s_mov_b32 exec_lo, -1
    s_mov_b32 exec_hi, 0
    s_lshl_b32 s{sT}, s2, 8
    s_add_u32 s{sM}, s{sWS}, s{sT}
    s_addc_u32 s{sM+1}, s{sWS+1}, 0
    s_add_u32 s{sM}, s{sM}, 0x10000000
    s_addc_u32 s{sM+1}, s{sM+1}, 0
    v_mov_b32 v4, v{vSTMP}
    v_mov_b32 v5, 0
    global_store_dwordx2 v{vL8}, v[4:5], s[{sM}:{sM+1}]
    {l1}:""")

def spin(lab_retry, lab_giveup):
    a(f"s_sub_u32 s{sSPIN}, s{sSPIN}, 1\ns_cbranch_scc0 {lab_retry}\ns_mov_b32 s{sSPIN}, 0")
    if DBG:
        spin_ids.append(lab_retry)
        a(f"s_mov_b64 s[{sM}:{sM+1}], exec\ns_mov_b64 exec, 1\nv_mov_b32 v45, {4*len(spin_ids)}\nv_mov_b32 v46, 1\nglobal_atomic_add v45, v46, s[{sDBG}:{sDBG+1}]\ns_mov_b64 exec, s[{sM}:{sM+1}]")
    a(f"s_branch {lab_giveup}")

def dma(ptr, voff, lds_base, n, gstep):
    a(f"s_lshl_b32 s{sT}, s{sW}, 10\ns_add_u32 m0, s{sT}, {lds_base}")
    for j in range(n):
        if j == 0: a("s_nop 0")
        a(f"global_load_lds_dwordx4 v{voff}, s[{ptr}:{ptr+1}] {POL}")
        if j + 1 < n:
            a(f"s_add_u32 m0, m0, 4096\ns_add_u32 s{ptr}, s{ptr}, {gstep}\ns_addc_u32 s{ptr+1}, s{ptr+1}, 0")

def trW(dst, base, vA, vB):
    for s in range(4):
        a(f"ds_read_b64_tr_b16 a[{dst+4*s}:{dst+4*s+1}], v{vA} offset:{base + s*4096}")
        a(f"ds_read_b64_tr_b16 a[{dst+4*s+2}:{dst+4*s+3}], v{vB} offset:{base + s*4096}")
def mfma(d, A, B, first):
    return f"v_mfma_f32_16x16x32_bf16 v[{d}:{d+3}], {A}, {B}, {'0' if first else f'v[{d}:{d+3}]'}"
V4 = lambda r: f"v[{r}:{r+3}]"
A4 = lambda r: f"a[{r}:{r+3}]"

def wo_issue():
    a(f"""
    s_lshl_b32 s{sT}, s{sG}, 1
    s_lshr_b32 s{sT2}, s{sA4}, 3
    s_add_u32 s{sT}, s{sT}, s{sT2}
    s_lshl_b32 s{sT}, s{sT}, 18
    s_and_b32 s{sT2}, s{sA4}, 7
    s_lshl_b32 s{sT2}, s{sT2}, 7
    s_add_u32 s{sT}, s{sT}, s{sT2}
    s_add_u32 s{sWO}, s{sWO}, s{sT}
    s_addc_u32 s{sWO+1}, s{sWO+1}, 0
    v_lshl_add_u32 v4, v{vROW}, 10, v{vPC16}
    """)
    dma(sWO, 4, L_W2, 8, 32 * 1024)

stamp("start")
a(f"""
s_cmp_ge_u32 s2, 256
s_cbranch_scc1 L_end
s_getpc_b64 s[{sSTM}:{sSTM+1}]
L_pc:
s_load_dwordx16 s[4:19], s[0:1], 0
s_load_dwordx8 s[20:27], s[0:1], 64
v_lshlrev_b32 v1, 7, v0
v_min_u32 v1, L_end-L_pc, v1
global_load_dword v{vJUNK}, v1, s[{sSTM}:{sSTM+1}]
v_lshrrev_b32 v3, 6, v0
v_lshrrev_b32 v4, 1, v0
v_readfirstlane_b32 s{sW}, v3
v_xor_b32 v4, v4, v0
v_lshlrev_b32 v5, 1, v4
v_and_b32 v5, 32, v5
v_and_or_b32 v5, v4, 64, v5
v_lshlrev_b32 v11, 4, v0
v_and_b32 v6, 0x70, v11
v_xor_b32 v{vPC16}, v5, v6
v_lshrrev_b32 v{vROW}, 3, v0
v_lshl_add_u32 v7, v{vROW}, 13, v{vPC16}
s_and_b32 s{sG}, s2, 7
s_lshr_b32 s{sI}, s2, 3
s_and_b32 s{sKQ}, s{sI}, 3
s_lshr_b32 s{sCG}, s{sI}, 2
s_lshl_b32 s{sT}, s{sKQ}, 20
s_lshl_b32 s{sT2}, s{sG}, 10
s_lshl3_add_u32 s{sT2}, s{sCG}, s{sT2}
s_lshl_b32 s{sM}, s{sW}, 10
s_add_u32 m0, s{sM}, {L_WQ}
s_mul_i32 s{sA4}, s{sCG}, 120
s_add_u32 s{sT}, s{sT}, s{sT2}
s_add_u32 s{sT}, s{sT}, s{sA4}
s_waitcnt lgkmcnt(0)
s_add_u32 s{sWQ}, s{sWQ}, s{sT}
s_addc_u32 s{sWQ+1}, s{sWQ+1}, 0
""")
stamp("karg")
for j in range(4):
    a(f"global_load_lds_dwordx4 v7, s[{sWQ}:{sWQ+1}] {POL}")
    if j < 3: a(f"s_add_u32 m0, m0, 4096\nv_add_u32 v7, {32*8192}, v7")
a(f"""
s_load_dword s{sNON}, s[{sWS}:{sWS+1}], {NONCE}
v_lshlrev_b32 v5, 1, v0
v_and_b32 v5, 0xe0, v5
v_xor_b32 v{vVA}, v11, v5
s_lshl_b32 s{sT}, s{sG}, 24
s_lshl_b32 s{sT2}, s{sI}, 15
s_add_u32 s{sT}, s{sT}, s{sT2}
s_add_u32 s{sT}, s{sT}, 0xF00000
s_add_u32 s{sV}, s{sV}, s{sT}
s_addc_u32 s{sV+1}, s{sV+1}, 0
s_add_u32 m0, s{sM}, {L_V}
s_add_u32 s{sK}, s{sK}, s{sT}
s_addc_u32 s{sK+1}, s{sK+1}, 0
global_load_lds_dwordx4 v{vVA}, s[{sV}:{sV+1}] {POL}
v_and_b32 v8, 31, v0
v_bfe_u32 v9, v0, 5, 1
v_lshlrev_b32 v8, 3, v8
v_lshl_or_b32 v{vHWR}, v9, 2, v8
s_lshl_b32 s{sT}, s{sKQ}, 8
v_add_u32 v10, s{sT}, v{vHWR}
global_load_dword v{vXW}, v10, s[{sX}:{sX+1}]
v_and_b32 v{vL16}, 0x3f0, v11
global_load_dwordx4 v[20:23], v{vL16}, s[{sX}:{sX+1}]
s_mul_i32 s{sT}, s{sG}, {GS}
s_add_u32 s{sT}, s{sT}, {GB}
s_add_u32 s{RG}, s{sWS}, s{sT}
s_addc_u32 s{RG+1}, s{sWS+1}, 0
s_mul_i32 s{sT}, s{sG}, {TGS}
s_add_u32 s{sT}, s{sT}, {TG}
s_add_u32 s{RT}, s{sWS}, s{sT}
s_addc_u32 s{RT+1}, s{sWS+1}, 0
s_lshl_b32 s{sT}, s{sI}, 10
v_lshl_add_u32 v6, v6, 3, s{sT}
global_load_dword v{vJUNK+1}, v6, s[{RT}:{RT+1}] sc1
v_mov_b32 v12, -1
v_mov_b32 v13, -1
v_mov_b32 v14, -1
v_mov_b32 v15, -1
s_mul_i32 s{sT}, s{sI}, {CLR}
v_min_u32 v10, {CLR-16}, v11
v_add_u32 v10, s{sT}, v10
global_store_dwordx4 v10, v[12:15], s[{RG}:{RG+1}]
s_cmp_eq_u32 s{sW}, 3
s_cbranch_scc0 L_clrd
s_mul_i32 s{sT}, s{sI}, 640
s_add_u32 s{sT}, s{sT}, {XR}
v_min_u32 v10, 624, v{vL16}
v_add_u32 v10, s{sT}, v10
global_store_dwordx4 v10, v[12:15], s[{RG}:{RG+1}] sc1
L_clrd:
""")
NV1 = int(opts["v1"])
for j in range(1, NV1):
    a(f"s_add_u32 m0, m0, 4096\nv_add_u32 v{vVA}, 4096, v{vVA}\nglobal_load_lds_dwordx4 v{vVA}, s[{sV}:{sV+1}] {POL}")
a(f"""
v_and_b32 v1, 15, v0
v_bfe_u32 v2, v0, 4, 2
""")
stamp("iss")
a(f"""
s_mov_b32 s{RG+2}, 0x20000
s_mov_b32 s{RG+3}, 0x20000
s_mov_b32 s{RX+2}, {WSSIZE}
s_mov_b32 s{RX+3}, 0x20000
s_mov_b32 s{RT+2}, {2*BOFF}
s_mov_b32 s{RT+3}, 0x20000
s_mov_b32 s{sLAY}, 0
s_mov_b32 s{sALT}, 1
s_mov_b32 s{sNF}, 1
s_mov_b32 s{sTH}, 0x42000000
s_movk_i32 s{sTRY}, 64
s_mov_b32 s{sSPIN}, 0x20000
s_mov_b32 s{sQUADM}, 0x11111111
s_mov_b32 s{sQUADM+1}, 0x11111111
s_mov_b32 s{sDM}, 0x00020002
s_mov_b32 s{sDM+1}, 0x00020002
s_mov_b32 s{sPUBM}, 0x00110011
s_mov_b32 s{sPUBM+1}, 0x00110011
s_lshl_b32 s{sT}, s{sW}, 4
s_lshl_b64 s[{sMLM}:{sMLM+1}], 1, s{sT}
s_and_b32 s{sA4}, s{sI}, 15
s_or_b32 s{sT}, s{sG}, s{sCG}
s_cmp_eq_u32 s{sT}, 0
s_cselect_b32 s{sFIN}, 1, 0
s_mov_b32 s{sSTM}, 0
s_brev_b32 s{sSTM+1}, 1
s_lshr_b32 s{sXO}, s{sA4}, 3
s_mul_i32 s{sXO}, s{sXO}, 2560
s_and_b32 s{sT2}, s{sA4}, 7
s_lshl_b32 s{sT2}, s{sT2}, 8
s_add_u32 s{sXO}, s{sXO}, s{sT2}
""")
for gp in range(8):
    a(f"s_mov_b32 s{sGO+gp}, {gp*GS}")
a(f"""
v_bfe_u32 v3, v0, 2, 2
v_and_b32 v4, 3, v0
v_lshrrev_b32 v{vL8}, 1, v{vL16}
v_lshlrev_b32 v{vB16}, 4, v2
v_add_u32 v5, 256, v{vB16}
v_cmp_eq_u32 vcc, 1, v3
v_mov_b32 v{vXWR}, v{vHWR}
v_mov_b32 v{vONE}, {ONES}
v_cndmask_b32 v{vXRD}, v{vB16}, v5, vcc
v_lshlrev_b32 v5, 1, v8
s_lshl_b32 s{sT}, s{sKQ}, 9
v_add_u32 v{vGA}, s{sT}, v5
v_mul_u32_u24 v6, 2560, v9
v_add_u32 v{vGA}, v{vGA}, v6
s_lshr_b32 s{sT}, s{sA4}, 3
s_lshl_b32 s{sT}, s{sT}, 12
s_add_u32 s{sT}, s{sT}, {HP}
v_lshl_add_u32 v{vHGA}, v9, 9, v5
v_add_u32 v{vHGA}, s{sT}, v{vHGA}
v_lshlrev_b32 v{vHSA}, 4, v4
v_add_u32 v{vHSA}, {HS}, v{vHSA}
s_lshl_b32 s{sT}, s{sKQ}, 11
s_lshl_b32 s{sT2}, s{sCG}, 8
s_add_u32 s{sT}, s{sT}, s{sT2}
s_lshl_b32 s{sT2}, s{sW}, 6
s_add_u32 s{sT}, s{sT}, s{sT2}
v_add_u32 v{vQPA}, s{sT}, v{vB16}
v_add_u32 v7, {QCS}, v{vQPA}
v_cndmask_b32 v{vQPA}, v{vQPA}, v7, vcc
v_add_u32 v{vQGA}, {QS}, v5
s_lshl_b32 s{sT}, s{sI}, 4
s_add_u32 s{sT}, s{sT}, {QS}
v_mov_b32 v{vQSA}, s{sT}
s_lshr_b32 s{sT}, s{sI}, 4
s_lshl_b32 s{sT}, s{sT}, 12
s_lshl_b32 s{sT2}, s{sW}, 10
s_add_u32 s{sT}, s{sT}, s{sT2}
s_lshl_b32 s{sT2}, s{sA4}, 6
s_add_u32 s{sT}, s{sT}, s{sT2}
v_lshlrev_b32 v7, 13, v2
v_lshl_add_u32 v7, v3, 4, v7
v_add_u32 v{vRECA}, s{sT}, v7
s_lshl_b32 s{sT}, s{sI}, 3
s_add_u32 s{sT}, s{sT}, {ML}
v_lshlrev_b32 v7, 8, v2
v_add_u32 v{vMLA}, s{sT}, v7
s_lshr_b32 s{sT}, s{sA4}, 3
s_lshl_b32 s{sT}, s{sT}, 2
s_add_u32 s{sT}, s{sT}, s{sW}
s_lshl_b32 s{sT2}, s{sT}, 12
v_lshl_add_u32 v7, v1, 6, v{vB16}
v_add_u32 v{vOA}, s{sT2}, v7
s_lshr_b32 s{sT2}, s{sT}, 1
s_lshl_b32 s{sT2}, s{sT2}, 8
s_add_u32 s{sT2}, s{sT2}, {ML}
s_and_b32 s{sT}, s{sT}, 1
v_and_b32 v7, 1, v3
v_xor_b32 v7, s{sT}, v7
v_lshlrev_b32 v7, 4, v7
v_lshl_add_u32 v7, v2, 2, v7
v_add_u32 v7, v7, v4
v_lshlrev_b32 v7, 3, v7
v_add_u32 v{vOML}, s{sT2}, v7
v_lshl_add_u32 v7, v2, 3, v3
v_lshlrev_b32 v7, 7, v7
v_lshrrev_b32 v10, 1, v2
v_xor_b32 v10, v10, v2
v_and_b32 v10, 1, v10
v_lshrrev_b32 v11, 1, v3
v_lshl_or_b32 v10, v10, 1, v11
v_lshlrev_b32 v10, 5, v10
v_lshl_or_b32 v10, v4, 3, v10
v_or_b32 v{vTR0}, v7, v10
v_lshl_add_u32 v{vQRD}, v3, 8, v{vB16}
v_lshl_add_u32 v{vPRD}, v3, 6, v{vB16}
s_lshl_b32 s{sT}, s{sW}, 8
v_add_u32 v{vPWR}, s{sT}, v{vPRD}
v_lshrrev_b32 v7, 1, v2
v_and_b32 v10, 1, v2
v_lshl_or_b32 v7, v10, 1, v7
v_lshlrev_b32 v7, 6, v7
v_lshl_add_u32 v7, v1, 2, v7
v_add_u32 v{vYWR}, s{sT}, v7
s_lshl_b32 s{sT}, s{sW}, 5
v_lshlrev_b32 v7, 3, v2
v_lshl_add_u32 v7, v3, 7, v7
v_add_u32 v{vMWR}, s{sT}, v7
v_lshlrev_b32 v7, 3, v1
v_lshl_add_u32 v{vMRD}, v2, 7, v7
s_lshl_b32 s{sT}, s{sW}, 7
v_lshl_add_u32 v7, v1, 6, v{vB16}
v_add_u32 v{vDPA}, s{sT}, v7
v_mov_b32 v{vPUBA}, 0
v_mov_b32 v{vMASK}, 0xffffff00
v_lshrrev_b32 v11, 1, v{vL8}
ds_write_b32 v11, v{vONE} offset:{L_X+256}
ds_write_b32 v11, v{vONE} offset:{L_X+768}
s_getreg_b32 s{sT2}, hwreg(HW_REG_XCC_ID)
s_and_b32 s{sT2}, s{sT2}, 15
v_mov_b32 v{vSTG+3}, s{sT2}
s_waitcnt lgkmcnt(0)
s_mul_i32 s{sTAG}, s{sNON}, 0x9E3779B1
s_add_u32 s{sTAG}, s{sTAG}, 0x7F4A7C15
s_and_b32 s{sT0}, s{sTAG}, 255
s_bfe_u32 s{sT0+1}, s{sTAG}, 0x80008
s_bfe_u32 s{sT0+2}, s{sTAG}, 0x80010
s_lshr_b32 s{sT0+3}, s{sTAG}, 24
v_mov_b32 v{vSTG+2}, s{sTAG}
s_lshl_b32 s{sT}, s{sW}, 5
v_xor_b32 v10, s{sT}, v{vTR0}
v_xor_b32 v11, 32, v10
v_add_u32 v11, 512, v11
""")
stamp("setup")
for j in range(NV1, 8):
    a(f"s_add_u32 m0, m0, 4096\nv_add_u32 v{vVA}, 4096, v{vVA}\nglobal_load_lds_dwordx4 v{vVA}, s[{sV}:{sV+1}] {POL}")
stamp("iss2")
a(f"""
s_waitcnt vmcnt(7)
v_dot2_f32_bf16 v24, v20, v{vONE}, 0
v_dot2_f32_bf16 v24, v21, v{vONE}, v24
v_dot2_f32_bf16 v24, v22, v{vONE}, v24
v_dot2_f32_bf16 v24, v23, v{vONE}, v24
v_lshlrev_b32 v{vR0}, 16, v{vXW}
v_and_b32 v{vR1}, 0xffff0000, v{vXW}
s_nop 0
v_add_f32_dpp v24, v24, v24 row_ror:1 {DPPALL}
s_nop 1
v_add_f32_dpp v24, v24, v24 row_ror:2 {DPPALL}
s_nop 1
v_add_f32_dpp v24, v24, v24 row_ror:4 {DPPALL}
s_nop 1
v_add_f32_dpp v24, v24, v24 row_ror:8 {DPPALL}
v_mov_b32 v25, v24
s_nop 1
v_permlane32_swap_b32 v24, v25
v_add_f32 v24, v24, v25
v_mov_b32 v25, v24
s_nop 1
v_permlane16_swap_b32 v24, v25
v_add_f32 v24, v24, v25
v_mov_b32 v25, {f32(-1/512)}
v_fma_f32 v26, v24, v25, v{vR0}
v_fma_f32 v27, v24, v25, v{vR1}
v_cvt_pk_bf16_f32 v{vXW}, v26, v27
ds_write_b32 v{vXWR}, v{vXW}
s_barrier
""")
stamp("wq")
if STAMP: a(f"v_mov_b32 v{vSTMP}, 0")
trW(aWQ, L_WQ, 10, 11)
a("s_branch L_TQ")

a(f"""
L_G:
v_xor_b32 v{vXWR}, 512, v{vXWR}
""")
if int(opts["xack"]): a("s_waitcnt vmcnt(0)")
stamp("g0")
a("L_Gp:")
for j in range(8):
    a(f"buffer_load_dwordx4 {V4(8+4*j)}, v{vGA}, s[{RX}:{RX+3}], s{sGO+j} offen sc1")
a("s_waitcnt vmcnt(6)")
a("v_pk_add_f32 v[40:41], v[8:9], v[12:13]\nv_pk_add_f32 v[42:43], v[10:11], v[14:15]\nv_max_u32 v44, v8, v12")
for j in range(2, 8):
    a(f"s_waitcnt vmcnt({7-j})")
    a(f"v_pk_add_f32 v[40:41], v[40:41], v[{8+4*j}:{9+4*j}]\nv_pk_add_f32 v[42:43], v[42:43], v[{10+4*j}:{11+4*j}]")
    a(f"v_max_u32 v44, v44, v{8+4*j}")
a(f"""
v_cmp_eq_u32 vcc, -1, v44
v_permlane32_swap_b32 v40, v42
v_permlane32_swap_b32 v41, v43
v_add_f32 v40, v40, v42
v_add_f32 v41, v41, v43
v_add_f32 v40, v40, v{vR0}
v_add_f32 v41, v41, v{vR1}
v_cvt_pk_bf16_f32 v{vXW}, v40, v41
ds_write_b32 v{vXWR}, v{vXW}
s_cbranch_vccnz L_Gretry
L_Gok:
""")
stamp("gok")
a(f"""
v_lshlrev_b32 v{vR0}, 16, v{vXW}
v_and_b32 v{vR1}, 0xffff0000, v{vXW}
s_cmp_eq_u32 s{sPH}, 1
s_cbranch_scc1 L_TU
s_cmp_eq_u32 s{sPH}, 0
s_cbranch_scc0 L_Gother
""")

def stats():
    l = a.label("ST")
    a(f"""s_cbranch_scc1 {l}
    v_dot2_f32_bf16 v46, v{vXW}, v{vXW}, 0
    v_dot2_f32_bf16 v47, v{vXW}, v{vONE}, 0
    s_nop 2
    v_permlane32_swap_b32 v47, v46
    v_add_f32 v46, v46, v47
    s_nop 1
    v_add_f32_dpp v46, v46, v46 row_ror:1 {DPPALL}
    s_nop 1
    v_add_f32_dpp v46, v46, v46 row_ror:2 {DPPALL}
    s_nop 1
    v_add_f32_dpp v46, v46, v46 row_ror:4 {DPPALL}
    s_nop 1
    v_add_f32_dpp v46, v46, v46 row_ror:8 {DPPALL}
    s_nop 1
    v_add_f32_dpp v46, v46, v46 row_bcast:15 row_mask:0xa bank_mask:0xf
    s_nop 0
    v_mov_b32 v{vSTG}, v46
    v_mov_b32_dpp v{vSTG+1}, v46 row_bcast:31 row_mask:0xc bank_mask:0xf
    {l}:""")

a(f"""
L_TQ:
s_cmp_lg_u32 s{sW}, 0
s_waitcnt lgkmcnt(0)
s_barrier
""")
stamp("xq")
for s in range(4): a(f"ds_read_b128 {V4(8+4*s)}, v{vXRD} offset:{64*s}")
stats()
for s in range(4):
    a(f"s_waitcnt lgkmcnt({LG(3-s)})")
    a(mfma(24, A4(aWQ+4*s), V4(8+4*s), s == 0))
def tq_tail(fl):
    a(f"""s_mov_b64 exec, s[{sPUBM}:{sPUBM+1}]
    s_cmp_lg_u32 s{sW}, 0
    s_nop 3
    buffer_store_dwordx4 v[24:27], v{vQPA}, s[{RG}:{RG+3}], 0 offen{fl}
    s_cbranch_scc1 L_S
    s_mov_b64 exec, s[{sSTM}:{sSTM+1}]
    buffer_store_dwordx2 v[{vSTG}:{vSTG+1}], v{vQSA}, s[{RG}:{RG+3}], 0 offen{fl}
    s_mov_b64 exec, -1""")
a(f"s_cmp_eq_u32 s{sALT}, 0\ns_cbranch_scc0 L_TQalt")
tq_tail("")
stamp("qpub")
a(f"""
L_QFe:
s_movk_i32 s{sT}, 4096
L_QFp:
buffer_load_dwordx2 v[48:49], v{vQGA}, s[{RG}:{RG+3}], 0 offen sc1
""")
for u in range(2):
    for k in range(4):
        so = "0" if k < 2 else f"s{sT}"
        a(f"buffer_load_dwordx4 {V4(8+16*u+4*k)}, v{vQL}, s[{RG}:{RG+3}], {so} offen offset:{(k&1)*2048+u*1024} sc1")
def ln_chain(first):
    if first:
        a(f"""v_add_f32_dpp v48, v48, v48 quad_perm:[1,0,3,2] {DPPALL}
        v_add_f32_dpp v49, v49, v49 quad_perm:[1,0,3,2] {DPPALL}""")
    else:
        a(f"""v_add_f32_dpp v48, v48, v48 quad_perm:[2,3,0,1] {DPPALL}
        v_add_f32_dpp v49, v49, v49 quad_perm:[2,3,0,1] {DPPALL}
        v_mul_f32 v48, {f32(1/512)}, v48
        v_mul_f32 v46, {f32(-1/512)}, v49
        v_fma_f32 v48, -v46, v46, v48
        v_max_f32 v48, 0, v48
        v_add_f32 v48, {f32(1e-5)}, v48
        v_rsq_f32 v48, v48""")
a(f"s_waitcnt vmcnt(8)\nv_cmp_eq_u32 vcc, -1, v48")
ln_chain(True)
a("s_cbranch_vccnz L_QFretry\nL_QF2:")
stamp("qf2")
ln_chain(False)
a(f"""
s_waitcnt vmcnt(6)
v_pk_add_f32 v[40:41], v[8:9], v[12:13]
v_pk_add_f32 v[42:43], v[10:11], v[14:15]
v_mul_f32 v48, {f32(QSCALE)}, v48
s_waitcnt vmcnt(5)
v_pk_add_f32 v[40:41], v[40:41], v[16:17]
v_pk_add_f32 v[42:43], v[42:43], v[18:19]
v_max3_u32 v44, v8, v12, v16
v_pk_fma_f32 v[40:41], v[{vQCS}:{vQCS+1}], v[46:47], v[40:41] op_sel_hi:[1,0,1]
v_pk_fma_f32 v[42:43], v[{vQCS+2}:{vQCS+3}], v[46:47], v[42:43] op_sel_hi:[1,0,1]
s_waitcnt vmcnt(3)
v_pk_add_f32 v[40:41], v[40:41], v[20:21]
v_pk_add_f32 v[42:43], v[42:43], v[22:23]
v_max3_u32 v44, v44, v20, v24
v_pk_fma_f32 v[24:25], v[{vQCS+4}:{vQCS+5}], v[46:47], v[24:25] op_sel_hi:[1,0,1]
v_pk_fma_f32 v[26:27], v[{vQCS+6}:{vQCS+7}], v[46:47], v[26:27] op_sel_hi:[1,0,1]
v_pk_mul_f32 v[40:41], v[40:41], v[48:49] op_sel_hi:[1,0]
v_pk_mul_f32 v[42:43], v[42:43], v[48:49] op_sel_hi:[1,0]
s_waitcnt vmcnt(2)
v_pk_add_f32 v[24:25], v[24:25], v[28:29]
v_pk_add_f32 v[26:27], v[26:27], v[30:31]
v_cvt_pk_bf16_f32 v40, v40, v41
v_cvt_pk_bf16_f32 v41, v42, v43
s_waitcnt vmcnt(1)
v_pk_add_f32 v[24:25], v[24:25], v[32:33]
v_pk_add_f32 v[26:27], v[26:27], v[34:35]
ds_write_b64 v{vL8}, v[40:41] offset:{L_QB}
v_max3_u32 v44, v44, v28, v32
s_waitcnt vmcnt(0)
v_pk_add_f32 v[24:25], v[24:25], v[36:37]
v_pk_add_f32 v[26:27], v[26:27], v[38:39]
v_pk_mul_f32 v[24:25], v[24:25], v[48:49] op_sel_hi:[1,0]
v_pk_mul_f32 v[26:27], v[26:27], v[48:49] op_sel_hi:[1,0]
v_cvt_pk_bf16_f32 v24, v24, v25
v_cvt_pk_bf16_f32 v25, v26, v27
ds_write_b64 v{vL8}, v[24:25] offset:{L_QB+512}
v_max_u32 v44, v44, v36
v_cmp_eq_u32 vcc, -1, v44
s_cbranch_vccnz L_QF2retry
""")
stamp("qfok")
a(f"""
L_S:
s_mov_b64 exec, -1
s_waitcnt lgkmcnt(0)
s_barrier
""")
stamp("q")
for s in range(4): a(f"ds_read_b128 {V4(8+4*s)}, v{vQRD} offset:{L_QB + 64*s}")
a(f"""s_cmp_eq_u32 s{sLAY}, 0
s_cbranch_scc1 L_S0
L_S1:""")
for s in range(4):
    a(f"s_waitcnt lgkmcnt({LG(3-s)})")
    for t in range(2): a(mfma(24+4*t, A4(aK+16*t+4*s), V4(8+4*s), s == 0))
a(f"""
v_readfirstlane_b32 s{sNF}, v{vMODE}
v_mov_b32 v32, 0
s_nop 4
""")
stamp("smm")
for k in range(8): a(f"v_exp_f32 v{40+k}, v{24+k}")
def p_tail():
    a(f"""
    v_cvt_pk_bf16_f32 v36, v40, v41
    v_cvt_pk_bf16_f32 v37, v42, v43
    v_cvt_pk_bf16_f32 v38, v44, v45
    v_cvt_pk_bf16_f32 v39, v46, v47
    s_mov_b64 exec, s[{sQUADM}:{sQUADM+1}]
    ds_write_b128 v{vPWR}, v[36:39] offset:{L_PB}
    v_dot2_f32_bf16 v33, v36, v{vONE}, 0
    v_dot2_f32_bf16 v33, v37, v{vONE}, v33
    v_dot2_f32_bf16 v33, v38, v{vONE}, v33
    v_dot2_f32_bf16 v33, v39, v{vONE}, v33""")
p_tail()
a(f"""
v_max3_f32 v34, v24, v25, v26
v_max3_f32 v35, v27, v28, v29
v_max3_f32 v34, v34, v30, v31
ds_write_b64 v{vMWR}, v[32:33] offset:{L_MB}
v_max_f32 v34, v34, v35
v_cmp_nle_f32 vcc, |v34|, s{sTH}
s_cbranch_vccnz L_Sbig
L_Sp:
s_mov_b64 exec, -1
s_cmp_eq_u32 s{sNF}, 0
s_waitcnt lgkmcnt(0)
s_barrier
""")
stamp("p")
for w in range(4): a(f"ds_read_b128 {V4(8+4*w)}, v{vPRD} offset:{L_PB + 256*w}")
a(f"ds_read_b64 v[32:33], v{vMRD} offset:{L_MB}")
for w in range(4):
    a(f"s_waitcnt lgkmcnt({LG(4-w)})")
    for c in range(2): a(mfma(24+4*c, V4(8+4*w), A4(aV+8*w+4*c), w == 0))
a(f"""
s_waitcnt lgkmcnt(0)
v_add_f32_dpp v35, v33, v33 row_ror:1 {DPPALL}
v_cmp_neq_f32 vcc, 0, v32
v_mov_b32 v34, 0
v_add_f32_dpp v35, v35, v35 row_ror:2 {DPPALL}
s_cbranch_vccnz L_PVbig
s_nop 0
v_add_f32_dpp v35, v35, v35 row_ror:4 {DPPALL}
v_cvt_pk_bf16_f32 v36, v24, v28
s_nop 0
v_add_f32_dpp v35, v35, v35 row_ror:8 {DPPALL}
L_PVt:
v_mov_b32_dpp v37, v36 quad_perm:[1,1,1,1] {DPPALL}
v_mov_b32_dpp v38, v36 quad_perm:[2,2,2,2] {DPPALL}
v_mov_b32_dpp v39, v36 quad_perm:[3,3,3,3] {DPPALL}
s_mov_b64 exec, s[{sQUADM}:{sQUADM+1}]
s_cbranch_scc0 L_RECsafe
""")
def rec_tail(fl):
    a(f"""buffer_store_dwordx4 v[36:39], v{vRECA}, s[{RG}:{RG+3}], 0 offen{fl}
    s_mov_b64 exec, s[{sMLM}:{sMLM+1}]
    buffer_store_dwordx2 v[34:35], v{vMLA}, s[{RG}:{RG+3}], 0 offen{fl}""")
rec_tail("")
a(f"""L_RECd:
s_mov_b64 exec, -1""")
stamp("rec")
a(f"""
s_cmp_ge_u32 s{sI}, 16
s_cbranch_scc1 L_B
""")
a(f"""
s_cmp_eq_u32 s{sLAY}, 0
s_cbranch_scc0 L_O
""")
a(f"""
v_bfe_u32 v1, v0, 2, 1
v_bfe_u32 v2, v0, 3, 1
v_bfe_u32 v3, v0, 4, 2
v_lshl_add_u32 v5, v3, 2, v2
v_lshl_add_u32 v5, v1, 4, v5
v_lshlrev_b32 v5, 7, v5
v_bfe_u32 v6, v0, 5, 1
v_xor_b32 v6, v6, v1
v_and_b32 v7, 1, v3
v_lshl_or_b32 v6, v6, 1, v7
v_lshlrev_b32 v6, 5, v6
v_and_b32 v7, 3, v0
v_lshl_or_b32 v6, v7, 3, v6
v_or_b32 v5, v5, v6
s_lshr_b32 s{sT}, s{sW}, 1
s_lshl_b32 s{sT}, s{sT}, 14
s_add_u32 s{sT}, s{sT}, {L_W2}
v_add_u32 v5, s{sT}, v5
s_waitcnt vmcnt(0)
s_barrier
""")
for t in range(4):
    a(f"v_xor_b32 v6, {32*t}, v5\nv_xor_b32 v7, 32, v6\nv_add_u32 v7, 256, v7")
    trW(aW2 + 16*t, 0, 6, 7)
OM = opts["om"]
a("L_O:")
if OM == "ack": a("s_waitcnt vmcnt(0)")
if OM in ("bell", "bell2"):
    a(f"""L_Ob:
    buffer_load_dwordx2 v[4:5], v{vOML}, s[{RG}:{RG+3}], 0 offen sc1
    s_waitcnt vmcnt(0)
    v_cmp_eq_u32 vcc, -1, v5
    s_cbranch_vccnz L_Obretry""")
a(f"""
L_Op:
buffer_load_dwordx2 v[4:5], v{vOML}, s[{RG}:{RG+3}], 0 offen sc1
""")
for s in range(4): a(f"buffer_load_dwordx4 {V4(8+4*s)}, v{vOA}, s[{RG}:{RG+3}], 0 offen offset:{1024*s} sc1")
mo = lambda t, s: mfma(24+4*t, V4(8+4*s), A4(aW2+16*t+4*s), s == 0)
a(f"""
s_waitcnt vmcnt(4) lgkmcnt(0)
v_cmp_eq_u32 vcc, -1, v5
s_cbranch_vccnz L_Oretry
L_O2:
""")
stamp("o2")
a(f"""
s_waitcnt vmcnt(3)
{mo(0,0)}
{mo(1,0)}
{mo(2,0)}
{mo(3,0)}
s_waitcnt vmcnt(2)
{mo(0,1)}
{mo(1,1)}
{mo(2,1)}
{mo(3,1)}
s_waitcnt vmcnt(1)
{mo(0,2)}
v_add_f32_dpp v6, v5, v5 quad_perm:[1,0,3,2] {DPPALL}
v_max3_u32 v44, v8, v12, v16
{mo(1,2)}
v_add_f32_dpp v6, v6, v6 quad_perm:[2,3,0,1] {DPPALL}
v_cmp_neq_f32 s[{sM}:{sM+1}], 0, v4
{mo(2,2)}
v_add_f32_dpp v6, v6, v6 row_half_mirror {DPPALL}
v_mov_b32 v7, v6
{mo(3,2)}
s_waitcnt vmcnt(0)
v_permlane32_swap_b32 v6, v7
{mo(0,3)}
v_add_f32 v6, v6, v7
v_mov_b32 v7, v6
{mo(1,3)}
v_max_u32 v44, v44, v20
v_permlane16_swap_b32 v6, v7
{mo(2,3)}
v_cmp_eq_u32 vcc, -1, v44
v_add_f32 v6, v6, v7
{mo(3,3)}
v_rcp_f32 v6, v6
s_cbranch_vccnz L_O2retry
L_Ook:
""")
stamp("ook")
a(f"""
s_cmp_lg_u64 s[{sM}:{sM+1}], 0
s_cbranch_scc1 L_Obig
v_pk_add_f32 v[24:25], v[24:25], v[26:27]
v_pk_add_f32 v[28:29], v[28:29], v[30:31]
v_add_f32 v40, v24, v25
v_add_f32 v41, v28, v29
v_pk_add_f32 v[32:33], v[32:33], v[34:35]
v_pk_add_f32 v[36:37], v[36:37], v[38:39]
v_add_f32 v42, v32, v33
v_add_f32 v43, v36, v37
L_Ot:
v_permlane32_swap_b32 v40, v41
v_add_f32 v40, v40, v41
v_permlane32_swap_b32 v42, v43
v_add_f32 v42, v42, v43
s_add_u32 s{sT}, s{sXO}, {X1}
s_cmp_eq_u32 s{sW}, 0
v_permlane16_swap_b32 v40, v42
v_add_f32 v40, v40, v42
v_mul_f32 v40, v40, v6
ds_write_b32 v{vYWR}, v40 offset:{L_YB}
s_waitcnt lgkmcnt(0)
s_barrier
s_cbranch_scc0 L_Odone
s_mov_b64 exec, 0xffff
""")
stamp("ob")
for w in range(4): a(f"ds_read_b128 {V4(8+4*w)}, v{vL16} offset:{L_YB + 256*w}")
a(f"""
s_waitcnt lgkmcnt({LG(2)})
v_pk_add_f32 v[8:9], v[8:9], v[12:13]
v_pk_add_f32 v[10:11], v[10:11], v[14:15]
s_waitcnt lgkmcnt({LG(1)})
v_pk_add_f32 v[8:9], v[8:9], v[16:17]
v_pk_add_f32 v[10:11], v[10:11], v[18:19]
s_waitcnt lgkmcnt(0)
v_pk_add_f32 v[8:9], v[8:9], v[20:21]
v_pk_add_f32 v[10:11], v[10:11], v[22:23]
buffer_store_dwordx4 v[8:11], v{vL16}, s[{RG}:{RG+3}], s{sT} offen sc1
s_mov_b64 exec, -1
L_Odone:
""")
stamp("x1pub")
def xor_acc(base, first, acc=44):
    for k in range(4): a(f"v_xor_b32 v{base+k}, s{sT0+k}, v{base+k}")
    if first:
        a(f"v_or3_b32 v{acc}, v{base}, v{base+1}, v{base+2}\nv_or_b32 v{acc}, v{acc}, v{base+3}")
    else:
        a(f"v_or3_b32 v{acc}, v{acc}, v{base}, v{base+1}\nv_or3_b32 v{acc}, v{acc}, v{base+2}, v{base+3}")
def gd_wait():
    l1 = a.label("GD"); l2 = a.label("GD"); l3 = a.label("QC"); l4 = a.label("QC")
    a(f"{l3}:")
    for k in range(4):
        a(f"s_mov_b32 s{sT2}, {QCS + k*2048}")
        for u in range(2):
            a(f"buffer_load_dwordx4 {V4(8+16*u+4*k)}, v{vL16}, s[{RT}:{RT+3}], s{sT2} offen offset:{u*1024} sc1")
    a("s_waitcnt vmcnt(0)")
    for u in range(2):
        for k in range(4): xor_acc(8+16*u+4*k, u == 0 and k == 0)
        for h in range(2):
            r = 8 + 16*u + 2*h
            a(f"v_pk_add_f32 v[{r}:{r+1}], v[{r}:{r+1}], v[{r+4}:{r+5}]\nv_pk_add_f32 v[{r+8}:{r+9}], v[{r+8}:{r+9}], v[{r+12}:{r+13}]")
            a(f"v_pk_add_f32 v[{vQCS+4*u+2*h}:{vQCS+4*u+2*h+1}], v[{r}:{r+1}], v[{r+8}:{r+9}]")
    a(f"v_and_b32 v44, 255, v44\nv_cmp_ne_u32 vcc, 0, v44\ns_cbranch_vccz {l4}")
    spin(l3, l4)
    a(f"{l4}:")
    a(f"""v_and_b32 v1, 7, v0
    v_lshlrev_b32 v1, 7, v1
    v_add_u32 v1, {GD}, v1
    {l1}:
    global_load_dword v2, v1, s[{sWS}:{sWS+1}] sc1
    s_waitcnt vmcnt(0)
    v_cmp_ne_u32 vcc, s{sTAG}, v2
    s_cbranch_vccz {l2}""")
    spin(l1, l2)
    a(f"{l2}:")
def set_rx(off):
    a(f"""s_mul_i32 s{sT}, s{sLAY}, {XLS}
    s_add_u32 s{sT}, s{sT}, {off + GB}
    s_add_u32 s{RX}, s{sWS}, s{sT}
    s_addc_u32 s{RX+1}, s{sWS+1}, 0""")
def next_layer():
    a(f"""s_add_u32 s{RG}, s{RG}, {LS}
    s_addc_u32 s{RG+1}, s{RG+1}, 0
    s_sub_u32 s{sXO}, s{sXO}, {LS - XLS}
    s_mov_b32 s{sALT}, s{sNF}
    v_add_u32 v{vQL}, {QP1 - LS}, v{vL16}
    s_lshl_b32 s{sT2}, s{sKQ}, 11
    s_lshl_b32 s{sM}, s{sCG}, 8
    s_add_u32 s{sT2}, s{sT2}, s{sM}
    s_lshl_b32 s{sM}, s{sW}, 6
    s_add_u32 s{sT2}, s{sT2}, s{sM}
    s_add_u32 s{sT2}, s{sT2}, {QP1 - LS}
    v_add_u32 v{vQPA}, s{sT2}, v{vB16}
    v_and_b32 v1, 0xf8, v{vL8}
    v_add_u32 v{vQGA}, {QS1 - LS}, v1
    s_lshl_b32 s{sT2}, s{sI}, 3
    s_add_u32 s{sT2}, s{sT2}, {QS1 - LS}
    v_mov_b32 v{vQSA}, s{sT2}
    s_mov_b32 s{sPUBM}, 0x00010001
    s_mov_b32 s{sPUBM+1}, 0x00010001
    s_mov_b32 s{sLAY}, 1""")
a(f"""
s_mov_b32 s{sPH}, 2
s_cmp_eq_u32 s{sLAY}, 0
s_cbranch_scc1 L_A0
s_cmp_eq_u32 s{sW}, 0
s_cbranch_scc0 L_Dm
s_cmp_eq_u32 s{sFIN}, 1
s_cbranch_scc0 L_Dp
""")
set_rx(X1)
a(f"""
s_branch L_G
L_A0:
s_lshr_b32 s{sT}, s{sG}, 1
s_mul_i32 s{sT}, s{sT}, 7
s_and_b32 s{sT2}, s{sG}, 1
s_lshl_b32 s{sM}, s{sT2}, 2
s_add_u32 s{sT}, s{sT}, s{sM}
s_lshr_b32 s{sM}, s{sA4}, 3
s_and_b32 s{sT2}, s{sT2}, s{sM}
s_lshl_b32 s{sM}, s{sM}, 1
s_add_u32 s{sT}, s{sT}, s{sM}
s_lshl_b32 s{sT}, s{sT}, 16
s_and_b32 s{sM}, s{sA4}, 7
s_lshl_b32 s{sM}, s{sM}, 7
s_add_u32 s{sT}, s{sT}, s{sM}
s_add_u32 s{sWD}, s{sWD}, s{sT}
s_addc_u32 s{sWD+1}, s{sWD+1}, 0
s_lshl_b32 s{sT2}, s{sT2}, 16
v_lshl_add_u32 v4, v{vROW}, 10, v{vPC16}
v_add_u32 v5, 0x10000, v4
v_subrev_u32 v5, s{sT2}, v5
s_lshl_b32 s{sT}, s{sW}, 10
s_add_u32 m0, s{sT}, {L_WD}
""")
for j in range(4):
    a(f"s_nop 0\nglobal_load_lds_dwordx4 v{4 + (j>>1)}, s[{sWD}:{sWD+1}] {POL}")
    if j < 3: a(f"s_add_u32 m0, m0, 4096")
    if j in (0, 2): a(f"v_add_u32 v{4+(j>>1)}, 0x8000, v{4+(j>>1)}")
a(f"""
s_and_b32 s{sT}, s{sW}, 1
s_lshl_b32 s{sT}, s{sT}, 6
v_xor_b32 v6, s{sT}, v{vTR0}
v_xor_b32 v7, 32, v6
v_add_u32 v4, 512, v7
v_add_u32 v5, 512, v6
s_waitcnt vmcnt(0)
s_barrier
""")
trW(aWD, L_WD, 6, 4)
trW(aWD + 16, L_WD, 7, 5)
a(f"""
s_cmp_eq_u32 s{sW}, 0
s_cbranch_scc0 L_Dm
""")
gd_wait()
set_rx(X1)
a(f"""
s_branch L_G
L_Gother:
s_cmp_eq_u32 s{sPH}, 2
s_cbranch_scc0 L_final
s_cmp_eq_u32 s{sLAY}, 0
s_cbranch_scc0 L_Dp
s_mov_b32 s{sT}, {HCS - HP}
L_HC:
""")
for k in range(4): a(f"buffer_load_dwordx4 {V4(8+4*k)}, v{vHGA}, s[{RG}:{RG+3}], s{sT} offen offset:{1024*k} sc1")
a(f"""
s_waitcnt vmcnt(0)
v_max3_u32 v44, v8, v12, v16
v_max_u32 v44, v44, v20
v_cmp_eq_u32 vcc, -1, v44
v_pk_add_f32 v[8:9], v[8:9], v[12:13]
v_pk_add_f32 v[10:11], v[10:11], v[14:15]
v_pk_add_f32 v[16:17], v[16:17], v[20:21]
v_pk_add_f32 v[18:19], v[18:19], v[22:23]
v_pk_add_f32 v[{vHCS}:{vHCS+1}], v[8:9], v[16:17]
v_pk_add_f32 v[{vHCS+2}:{vHCS+3}], v[10:11], v[18:19]
s_cbranch_vccz L_Dp
""")
spin("L_HC", "L_Dp")
a(f"""
L_Dp:
buffer_load_dwordx2 v[48:49], v{vHSA}, s[{RG}:{RG+3}], 0 offen sc1
""")
for k in range(4): a(f"buffer_load_dwordx4 {V4(8+4*k)}, v{vHGA}, s[{RG}:{RG+3}], 0 offen offset:{1024*k} sc1")
a(f"""
s_waitcnt vmcnt(4)
v_cmp_eq_u32 vcc, -1, v48
v_add_f32_dpp v46, v48, v48 quad_perm:[1,0,3,2] {DPPALL}
v_add_f32_dpp v47, v49, v49 quad_perm:[1,0,3,2] {DPPALL}
s_cbranch_vccnz L_Dretry
L_D2:
""")
stamp("d2")
a(f"""
v_add_f32_dpp v46, v46, v46 quad_perm:[2,3,0,1] {DPPALL}
v_add_f32_dpp v47, v47, v47 quad_perm:[2,3,0,1] {DPPALL}
v_mul_f32 v45, {f32(1/512)}, v46
v_mul_f32 v46, {f32(-1/512)}, v47
v_fma_f32 v45, -v46, v46, v45
v_max_f32 v45, 0, v45
v_add_f32 v45, {f32(1e-5)}, v45
v_rcp_f32 v45, v45
s_waitcnt vmcnt(2)
v_max_u32 v44, v8, v12
v_pk_fma_f32 v[8:9], v[{vHCS}:{vHCS+1}], v[46:47], v[8:9] op_sel_hi:[1,0,1]
v_pk_fma_f32 v[10:11], v[{vHCS+2}:{vHCS+3}], v[46:47], v[10:11] op_sel_hi:[1,0,1]
""")
for k in range(1, 4):
    if k > 1: a(f"s_waitcnt vmcnt({3-k})")
    a(f"v_pk_add_f32 v[8:9], v[8:9], v[{8+4*k}:{9+4*k}]\nv_pk_add_f32 v[10:11], v[10:11], v[{10+4*k}:{11+4*k}]")
    if k > 1: a(f"v_max_u32 v44, v44, v{8+4*k}")
a(f"""
v_cmp_eq_u32 vcc, -1, v44
v_permlane32_swap_b32 v8, v10
v_permlane32_swap_b32 v9, v11
v_mul_f32 v8, v8, v45
v_mul_f32 v9, v9, v45
v_mul_f32 v8, v8, v10
v_mul_f32 v9, v9, v11
v_cvt_pk_bf16_f32 v8, v8, v9
ds_write_b32 v{vHWR}, v8 offset:{L_HB}
s_cbranch_vccnz L_D2retry
L_Dm:
s_add_u32 s{sT}, s{sXO}, {X2}
s_cmp_ge_u32 s{sW}, 2
s_waitcnt lgkmcnt(0)
s_barrier
s_cbranch_scc1 L_Ddone
""")
stamp("h")
for s in range(4): a(f"ds_read_b128 {V4(8+4*s)}, v{vB16} offset:{L_HB + 64*s}")
for s in range(4):
    a(f"s_waitcnt lgkmcnt({LG(3-s)})")
    for t in range(2): a(mfma(24+4*t, A4(aWD+16*t+4*s), V4(8+4*s), s == 0))
a(f"""
s_mov_b64 exec, s[{sDM}:{sDM+1}]
s_nop 6
v_mov_b32 v24, v28
v_mov_b32 v25, v29
v_mov_b32 v26, v30
v_mov_b32 v27, v31
s_mov_b32 exec_lo, 0x00030003
s_mov_b32 exec_hi, 0x00030003
buffer_store_dwordx4 v[24:27], v{vDPA}, s[{RG}:{RG+3}], s{sT} offen sc1
s_mov_b64 exec, -1
L_Ddone:
""")
stamp("x2pub")
stamp_flush()
set_rx(X2)
a(f"""
s_cmp_eq_u32 s{sLAY}, 0
s_cbranch_scc1 L_next
s_mov_b32 s{sPH}, 3
s_cmp_eq_u32 s{sFIN}, 1
s_cbranch_scc0 L_exit
s_cmp_eq_u32 s{sW}, 0
s_cbranch_scc1 L_G
s_branch L_exit
L_final:
s_lshl_b32 s{sT}, s{sKQ}, 8
v_add_u32 v1, s{sT}, v{vHWR}
global_store_dword v1, v{vXW}, s[{sOUT}:{sOUT+1}]
s_cmp_eq_u32 s2, 0
s_cbranch_scc0 L_fin2
s_add_u32 s{sT}, s{sNON}, 1
v_mov_b32 v1, {NONCE}
v_mov_b32 v2, s{sT}
s_mov_b64 exec, 1
global_store_dword v1, v2, s[{sWS}:{sWS+1}]
s_mov_b64 exec, -1
L_fin2:
""")
if STAMP:
    a(f"s_memrealtime s[{sST}:{sST+1}]\ns_waitcnt lgkmcnt(0)\nv_writelane_b32 v{vSTMP}, s{sST}, 16")
a("s_branch L_exit")
a(f"""
L_B:
s_mov_b32 s{sPH}, 1
s_cmp_eq_u32 s{sLAY}, 0
s_cbranch_scc0 L_B1
s_and_b32 s{sM}, s{sCG}, 3
s_lshr_b32 s{sT}, s{sG}, 1
s_mul_i32 s{sT}, s{sT}, 7
s_and_b32 s{sT2}, s{sG}, 1
s_lshl_b32 s{sM+1}, s{sT2}, 2
s_add_u32 s{sT}, s{sT}, s{sM+1}
s_add_u32 s{sT}, s{sT}, s{sM}
s_lshl_b32 s{sT}, s{sT}, 7
s_mul_i32 s{sM+1}, s{sKQ}, {128*3584}
s_add_u32 s{sT}, s{sT}, s{sM+1}
s_add_u32 s{sWG}, s{sWG}, s{sT}
s_addc_u32 s{sWG+1}, s{sWG+1}, 0
s_add_u32 s{sWU}, s{sWU}, s{sT}
s_addc_u32 s{sWU+1}, s{sWU+1}, 0
s_lshl_b32 s{sT2}, s{sT2}, 2
s_or_b32 s{sT2}, s{sT2}, s{sM}
s_lshr_b32 s{sT}, s{sM}, 1
s_lshl_b32 s{sT}, s{sT}, 2
s_add_u32 s{sT}, s{sT}, s{sKQ}
s_lshl_b32 s{sT}, s{sT}, 10
s_and_b32 s{sM}, s{sM}, 1
s_lshl_b32 s{sM}, s{sM}, 8
s_add_u32 s{sT}, s{sT}, s{sM}
s_lshl_b32 s{sM}, s{sW}, 6
s_add_u32 s{sT}, s{sT}, s{sM}
s_add_u32 s{sT}, s{sT}, {HP}
v_add_u32 v{vPUBA}, s{sT}, v{vB16}
v_add_u32 v1, {HCS-HP}, v{vPUBA}
v_bfe_u32 v2, v0, 2, 2
v_cmp_eq_u32 vcc, 1, v2
s_lshl_b32 s{sT}, s{sA4}, 4
s_add_u32 s{sT}, s{sT}, {HS}
v_cndmask_b32 v{vPUBA}, v{vPUBA}, v1, vcc
v_mov_b32 v{vHSA}, s{sT}
s_cmp_eq_u32 s{sT2}, 7
s_cbranch_scc0 L_Bload
""")
for k in range(32): a(f"v_accvgpr_write_b32 a{aW2+k}, 0")
a("s_branch L_B0\nL_Bload:")
a(f"s_movk_i32 s{sT}, 3584\nv_mul_lo_u32 v4, v{vROW}, s{sT}\nv_add_u32 v4, v4, v{vPC16}")
dma(sWG, 4, L_W2, 4, 32 * 3584)
dma(sWU, 4, L_W2 + 0x4000, 4, 32 * 3584)
a(f"""
s_lshl_b32 s{sT}, s{sW}, 5
v_xor_b32 v6, s{sT}, v{vTR0}
v_xor_b32 v7, 32, v6
v_add_u32 v7, {512 + L_W2}, v7
v_add_u32 v6, {L_W2}, v6
s_waitcnt vmcnt(0)
s_barrier
""")
trW(aW2, 0, 6, 7)
trW(aW2 + 16, 0x4000, 6, 7)
a(f"""
L_B0:
s_cmp_eq_u32 s{sW}, 0
s_cbranch_scc0 L_TU
""")
gd_wait()
a(f"""
L_B1:
s_cmp_eq_u32 s{sW}, 0
s_cbranch_scc0 L_TU
""")
set_rx(X1)
a("s_branch L_G")
a(f"""
L_TU:
s_cmp_lg_u32 s{sW}, 0
s_waitcnt lgkmcnt(0)
s_barrier
""")
stamp("x1pub")
for s in range(4): a(f"ds_read_b128 {V4(8+4*s)}, v{vXRD} offset:{512 + 64*s}")
stats()
for s in range(4):
    a(f"s_waitcnt lgkmcnt({LG(3-s)})")
    for m in range(2): a(mfma(24+4*m, A4(aW2+16*m+4*s), V4(8+4*s), s == 0))
def tu_tail(fl, done):
    a(f"""s_mov_b64 exec, s[{sPUBM}:{sPUBM+1}]
    s_cmp_lg_u32 s{sW}, 0
    s_nop 2
    buffer_store_dwordx4 v[24:27], v{vPUBA}, s[{RG}:{RG+3}], 0 offen{fl}
    buffer_store_dwordx4 v[28:31], v{vPUBA}, s[{RG}:{RG+3}], 0 offen offset:512{fl}
    s_cbranch_scc1 {done}
    s_mov_b64 exec, s[{sSTM}:{sSTM+1}]
    buffer_store_dwordx2 v[{vSTG}:{vSTG+1}], v{vHSA}, s[{RG}:{RG+3}], 0 offen{fl}""")
a(f"s_cmp_eq_u32 s{sNF}, 0\ns_cbranch_scc0 L_TUsafe")
tu_tail("", "L_TUd")
a("L_TUd:\ns_mov_b64 exec, -1")
stamp("h")
stamp_flush()
a(f"""
s_cmp_eq_u32 s{sLAY}, 0
s_cbranch_scc0 L_exit
""")
set_rx(X2)
a("L_next:")
next_layer()
a(f"""
s_mov_b32 s{sPH}, 0
s_cmp_eq_u32 s{sW}, 0
s_cbranch_scc1 L_G
s_branch L_TQ
""")
a("L_Gretry:");   spin("L_Gp", "L_Gok")
a("L_QFretry:");  spin("L_QFp", "L_QF2")
a("L_QF2retry:"); spin("L_QFp", "L_S")
a("L_RECsafe:"); rec_tail(" sc1"); a("s_branch L_RECd")
a("L_TUsafe:"); tu_tail(" sc1", "L_TUd"); a("s_branch L_TUd")
a(f"""
L_S0:
v_mov_b32 v{vMODE}, {L_MODE}
ds_read_b32 v{vMODE}, v{vMODE}
s_branch L_S1
L_Sbig:
s_mov_b64 exec, -1
v_max3_f32 v32, v24, v25, v26
v_max_f32 v32, v32, v27
v_max3_f32 v32, v32, v28, v29
v_max3_f32 v32, v32, v30, v31
v_mov_b32 v33, v32
s_nop 1
v_permlane32_swap_b32 v32, v33
v_max_f32 v32, v32, v33
v_mov_b32 v33, v32
s_nop 1
v_permlane16_swap_b32 v32, v33
v_max_f32 v32, v32, v33
""")
for k in range(8): a(f"v_sub_f32 v{40+k}, v{24+k}, v32")
for k in range(8): a(f"v_exp_f32 v{40+k}, v{40+k}")
p_tail()
a(f"""
s_nop 2
ds_write_b64 v{vMWR}, v[32:33] offset:{L_MB}
s_branch L_Sp
L_PVbig:
s_nop 7
{mfma(24, V4(8), A4(aV), True)}
{mfma(28, V4(8), A4(aV+4), True)}
{mfma(40, V4(12), A4(aV+8), True)}
{mfma(44, V4(12), A4(aV+12), True)}
{mfma(48, V4(16), A4(aV+16), True)}
{mfma(8, V4(16), A4(aV+20), True)}
{mfma(12, V4(20), A4(aV+24), True)}
{mfma(16, V4(20), A4(aV+28), True)}
v_max_f32_dpp v34, v32, v32 row_ror:4 {DPPALL}
s_nop 1
v_max_f32_dpp v34, v34, v34 row_ror:8 {DPPALL}
v_sub_f32 v32, v32, v34
v_exp_f32 v32, v32
s_nop 0
v_mul_f32 v35, v32, v33
s_nop 1
v_add_f32_dpp v35, v35, v35 row_ror:1 {DPPALL}
v_mul_f32_dpp v36, v32, v24 row_newbcast:0 {DPPALL}
v_mul_f32_dpp v37, v32, v28 row_newbcast:0 {DPPALL}
v_add_f32_dpp v35, v35, v35 row_ror:2 {DPPALL}
v_fmac_f32_dpp v36, v32, v40 row_newbcast:4 {DPPALL}
v_fmac_f32_dpp v37, v32, v44 row_newbcast:4 {DPPALL}
v_add_f32_dpp v35, v35, v35 row_ror:4 {DPPALL}
v_fmac_f32_dpp v36, v32, v48 row_newbcast:8 {DPPALL}
v_fmac_f32_dpp v37, v32, v8 row_newbcast:8 {DPPALL}
v_add_f32_dpp v35, v35, v35 row_ror:8 {DPPALL}
v_fmac_f32_dpp v36, v32, v12 row_newbcast:12 {DPPALL}
v_fmac_f32_dpp v37, v32, v16 row_newbcast:12 {DPPALL}
v_cvt_pk_bf16_f32 v36, v36, v37
s_nop 1
s_branch L_PVt
L_Obig:
v_max_f32_dpp v6, v4, v4 quad_perm:[1,0,3,2] {DPPALL}
s_nop 1
v_max_f32_dpp v6, v6, v6 quad_perm:[2,3,0,1] {DPPALL}
s_nop 1
v_max_f32_dpp v6, v6, v6 row_half_mirror {DPPALL}
v_mov_b32 v7, v6
s_nop 1
v_permlane32_swap_b32 v6, v7
v_max_f32 v6, v6, v7
v_mov_b32 v7, v6
s_nop 1
v_permlane16_swap_b32 v6, v7
v_max_f32 v6, v6, v7
v_sub_f32 v4, v4, v6
v_exp_f32 v4, v4
s_nop 0
v_mul_f32 v6, v4, v5
s_nop 1
v_add_f32_dpp v6, v6, v6 quad_perm:[1,0,3,2] {DPPALL}
s_nop 1
v_add_f32_dpp v6, v6, v6 quad_perm:[2,3,0,1] {DPPALL}
s_nop 1
v_add_f32_dpp v6, v6, v6 row_half_mirror {DPPALL}
v_mov_b32 v7, v6
s_nop 1
v_permlane32_swap_b32 v6, v7
v_add_f32 v6, v6, v7
v_mov_b32 v7, v6
s_nop 1
v_permlane16_swap_b32 v6, v7
v_add_f32 v6, v6, v7
v_rcp_f32 v6, v6
""")
for t in range(4):
    a(f"v_mul_f32_dpp v{40+t}, v4, v{24+4*t} row_newbcast:0 {DPPALL}")
    for r in range(1, 4): a(f"v_fmac_f32_dpp v{40+t}, v4, v{24+4*t+r} row_newbcast:{r} {DPPALL}")
a("s_branch L_Ot")
a(f"""
L_TQalt:
s_cmp_eq_u32 s{sLAY}, 0
s_cbranch_scc1 L_TQ0
""")
tq_tail(" sc1")
a(f"""
s_branch L_QFe
L_TQ0:
s_nop 3
""")
for k in range(4): a(f"v_bfi_b32 v{24+k}, v{vMASK}, v{24+k}, s{sT0+k}")
K1 = int(opts["k1"])
def kdma(j0, j1):
    for j in range(j0, j1):
        a(f"v_xor_b32 v5, {64*(j&3)}, v4\nglobal_load_lds_dwordx4 v5, s[{sK}:{sK+1}] {POL}")
        if j < 7: a(f"s_add_u32 m0, m0, 1024\ns_add_u32 s{sK}, s{sK}, 1024\ns_addc_u32 s{sK+1}, s{sK+1}, 0")
def qloads():
    a(f"buffer_load_dwordx4 v[48:51], v{vQGA}, s[{RT}:{RT+3}], 0 offen sc1")
    for k in range(4):
        for u in range(2):
            so = "0" if k < 2 else f"s{sT}"
            a(f"buffer_load_dwordx4 {V4(8+16*u+4*k)}, v{vL16}, s[{RT}:{RT+3}], {so} offen offset:{(k&1)*2048+u*1024} sc1")
def kreads():
    for s in range(4):
        a(f"v_xor_b32 v5, {64*s}, v3")
        for t in range(2): a(f"ds_read_b128 {A4(aK+16*t+4*s)}, v5 offset:{4096*t}")
def vreads():
    for w in range(4):
        for c in range(2):
            for e in range(2):
                r = aV + 8*w + 4*c + 2*e
                a(f"ds_read_b64_tr_b16 a[{r}:{r+1}], v{6+c} offset:{L_V + w*8192 + e*4096}")
def l0_addr():
    a(f"""v_bfe_u32 v34, v0, 2, 2
    v_bfe_u32 v35, v0, 4, 2
    v_lshl_add_u32 v36, v35, 2, v34
    v_and_b32 v37, 7, v36
    v_lshlrev_b32 v37, 1, v37
    v_bfe_u32 v38, v0, 1, 1
    s_lshl_b32 s{sT}, s{sW}, 2
    v_or_b32 v38, s{sT}, v38
    v_xor_b32 v37, v37, v38
    v_lshlrev_b32 v37, 4, v37
    v_lshl_add_u32 v36, v36, 8, v37
    v_and_b32 v37, 1, v0
    v_lshl_add_u32 v6, v37, 3, v36
    v_xor_b32 v7, 32, v6
    v_and_b32 v3, 15, v0
    v_xor_b32 v5, v35, v3
    v_lshlrev_b32 v5, 4, v5
    v_lshl_add_u32 v3, v3, 8, v5
    s_lshl_b32 s{sT}, s{sW}, 13
    s_add_u32 s{sT}, s{sT}, {L_K}
    v_add_u32 v3, s{sT}, v3""")
a(f"""
s_mov_b64 exec, s[{sPUBM}:{sPUBM+1}]
buffer_store_dwordx4 v[24:27], v{vQPA}, s[{RT}:{RT+3}], 0 offen
s_mov_b64 exec, -1
v_xor_b32 v4, v{vB16}, v{vL16}
s_lshl_b32 s{sT}, s{sW}, 13
v_add_u32 v4, s{sT}, v4
s_add_u32 m0, s{sT}, {L_K}
s_mov_b32 s{sT2}, {BOFF}
s_cmp_eq_u32 s{sW}, 0
s_cbranch_scc0 L_K0
s_mov_b64 exec, s[{sSTM}:{sSTM+1}]
buffer_store_dwordx4 {V4(vSTG)}, v{vQSA}, s[{RT}:{RT+3}], 0 offen
s_mov_b64 exec, -1
""")
stamp("qpub")
kdma(0, 8)
a(f"""
s_mov_b64 exec, s[{sPUBM}:{sPUBM+1}]
buffer_store_dwordx4 v[24:27], v{vQPA}, s[{RT}:{RT+3}], s{sT2} offen sc1
s_mov_b64 exec, s[{sSTM}:{sSTM+1}]
buffer_store_dwordx4 {V4(vSTG)}, v{vQSA}, s[{RT}:{RT+3}], s{sT2} offen sc1
s_mov_b64 exec, -1
""")
l0_addr()
a(f"s_movk_i32 s{sT}, 4096\ns_waitcnt vmcnt({2 + int(opts['kw'])})")
stamp("kw")
qloads()
a("s_barrier")
vreads()
a("s_waitcnt vmcnt(9)")
kreads()
a(f"""s_waitcnt vmcnt(8)
s_branch L_Q01
L_K0:""")
kdma(0, K1)
a(f"""
s_mov_b64 exec, s[{sPUBM}:{sPUBM+1}]
buffer_store_dwordx4 v[24:27], v{vQPA}, s[{RT}:{RT+3}], s{sT2} offen sc1
s_mov_b64 exec, -1
""")
l0_addr()
a(f"""s_waitcnt vmcnt({K1 + 1})
s_barrier""")
kdma(K1, 8)
a(f"""
s_mul_i32 s{sT2}, s{sI}, {CLR}
v_lshlrev_b32 v5, 3, v{vL16}
v_min_u32 v5, {CLR-128}, v5
buffer_load_dword v{vJUNK}, v5, s[{RG}:{RG+3}], s{sT2} offen sc1
s_cmp_ge_u32 s{sI}, 16
s_cbranch_scc1 L_K1""")
wo_issue()
vreads()
a("s_waitcnt vmcnt(9)")
kreads()
a(f"""s_cmp_eq_u32 s{sW}, 3
s_cbranch_scc0 L_S
s_sub_u32 s{sWO}, s{sWO}, {7*32*1024 + 24*1024}
s_subb_u32 s{sWO+1}, s{sWO+1}, 0
s_mov_b32 m0, {L_W2}""")
for j in range(8):
    if j == 0: a("s_nop 0")
    a(f"global_load_lds_dwordx4 v4, s[{sWO}:{sWO+1}] {POL}")
    if j < 7: a(f"s_add_u32 m0, m0, 4096\ns_add_u32 s{sWO}, s{sWO}, {32*1024}\ns_addc_u32 s{sWO+1}, s{sWO+1}, 0")
a("s_branch L_S\nL_K1:")
vreads()
a("s_waitcnt vmcnt(1)")
kreads()
a("s_branch L_S")
a("L_Q0p:")
qloads()
a(f"""
s_waitcnt vmcnt(8)
L_Q01:
v_cmp_ne_u32 vcc, s{sTAG}, v50""")
ln_chain(True)
a("s_cbranch_vccnz L_Q0retry\nL_Q02:")
stamp("qf2")
ln_chain(False)
a("s_waitcnt vmcnt(6)")
xor_acc(8, True); xor_acc(24, False)
a(f"v_mul_f32 v48, {f32(QSCALE)}, v48")
for k in range(1, 4):
    for u in range(2):
        a(f"s_waitcnt vmcnt({7 - 2*k - u})")
        xor_acc(8+16*u+4*k, False)
        for h in range(2):
            r = 8 + 16*u + 2*h
            a(f"v_pk_add_f32 v[{r}:{r+1}], v[{r}:{r+1}], v[{r+4*k}:{r+4*k+1}]")
a(f"""
v_and_b32 v44, 255, v44
v_cmp_ne_u32 vcc, 0, v44
v_pk_mul_f32 v[8:9], v[8:9], v[48:49] op_sel_hi:[1,0]
v_pk_mul_f32 v[10:11], v[10:11], v[48:49] op_sel_hi:[1,0]
v_pk_mul_f32 v[24:25], v[24:25], v[48:49] op_sel_hi:[1,0]
v_pk_mul_f32 v[26:27], v[26:27], v[48:49] op_sel_hi:[1,0]
v_cvt_pk_bf16_f32 v8, v8, v9
v_cvt_pk_bf16_f32 v9, v10, v11
v_cvt_pk_bf16_f32 v10, v24, v25
v_cvt_pk_bf16_f32 v11, v26, v27
ds_write_b64 v{vL8}, v[8:9] offset:{L_QB}
ds_write_b64 v{vL8}, v[10:11] offset:{L_QB+512}
s_cbranch_vccnz L_Q02retry
L_Q0ok:
""")
stamp("qfok")
a(f"""
v_cmp_ne_u32 vcc, v51, v{vSTG+3}
s_cmp_eq_u64 vcc, 0
s_cselect_b32 s{sT}, 0, 1
v_mov_b32 v8, s{sT}
v_mov_b32 v9, {L_MODE}
ds_write_b32 v9, v8
s_cbranch_scc0 L_slow
L_slowdone:
s_cmp_eq_u32 s{sI}, 0
s_cbranch_scc0 L_S
s_lshl_b32 s{sT}, s{sG}, 7
s_add_u32 s{sT}, s{sT}, {GD}
v_mov_b32 v9, s{sT}
s_mov_b64 exec, 1
global_store_dword v9, v{vSTG+2}, s[{sWS}:{sWS+1}] sc1
s_branch L_S
""")
def qretry(giveup):
    l = a.label("QR")
    if DBG: a(f"s_mov_b64 exec, 1\nv_mov_b32 v45, 0\nv_mov_b32 v46, 1\nglobal_atomic_add v45, v46, s[{sDBG}:{sDBG+1}]\ns_mov_b64 exec, -1")
    a(f"""s_sub_u32 s{sTRY}, s{sTRY}, 1
    s_cmp_eq_u32 s{sTRY}, 0
    s_cbranch_scc0 {l}
    s_add_u32 s{RT}, s{RT}, {BOFF}
    s_addc_u32 s{RT+1}, s{RT+1}, 0
    {l}:""")
    spin("L_Q0p", giveup)
a("L_Q0retry:");  qretry("L_Q02")
a("L_Q02retry:"); qretry("L_Q0ok")
a(f"""
L_slow:
s_mul_i32 s{sT}, s{sI}, {CLR}
v_mov_b32 v12, -1
v_mov_b32 v13, -1
v_mov_b32 v14, -1
v_mov_b32 v15, -1
v_min_u32 v9, {CLR - 3072 - 16}, v{vL16}
buffer_store_dwordx4 v[12:15], v{vL16}, s[{RG}:{RG+3}], s{sT} offen sc1
buffer_store_dwordx4 v[12:15], v{vL16}, s[{RG}:{RG+3}], s{sT} offen offset:1024 sc1
buffer_store_dwordx4 v[12:15], v{vL16}, s[{RG}:{RG+3}], s{sT} offen offset:2048 sc1
buffer_store_dwordx4 v[12:15], v9, s[{RG}:{RG+3}], s{sT} offen offset:3072 sc1
s_mul_i32 s{sT}, s{sG}, {TGS}
s_add_u32 s{sT}, s{sT}, {TG + FL}
s_lshl_b32 s{sT2}, s{sI}, 4
s_add_u32 s{sT2}, s{sT2}, s{sT}
v_mov_b32 v9, s{sT2}
s_waitcnt vmcnt(0)
s_mov_b64 exec, 1
global_store_dword v9, v{vSTG+2}, s[{sWS}:{sWS+1}] sc1
s_mov_b64 exec, -1
v_and_b32 v9, 0x1f0, v{vL16}
v_add_u32 v9, s{sT}, v9
L_slowp:
global_load_dword v8, v9, s[{sWS}:{sWS+1}] sc1
s_waitcnt vmcnt(0)
v_cmp_ne_u32 vcc, s{sTAG}, v8
s_cbranch_vccz L_slowdone
""")
spin("L_slowp", "L_slowdone")
if OM in ("bell", "bell2"):
    a("L_Obretry:"); spin("L_Ob", "L_Op")
a("L_Oretry:");   spin("L_Op", "L_O2")
a("L_O2retry:");  spin("L_Op", "L_Ook")
a("L_Dretry:");   spin("L_Dp", "L_D2")
a("L_D2retry:");  spin("L_Dp", "L_Dm")
a("L_exit:")
stamp_store()
a("L_end:\ns_endpgm")

txt = a.text()
if int(opts.get("solo", 0)):
    import re
    txt = re.sub(r"s_cbranch_vccnz L_\w*retry", "s_nop 0", txt)
    txt = re.sub(r"s_cbranch_vccz (\w+)\n", r"s_branch \1\n", txt)
    txt = txt.replace("s_cbranch_scc0 L_slow\n", "s_nop 0\n")
    txt = txt.replace("s_memrealtime", "s_memtime").replace(f"s_cselect_b32 s{sT}, 0, 1", f"s_mov_b32 s{sT}, 0")
open(sys.argv[1], "w").write(wrap(txt, 256, 256, LDS_SIZE, NVGPR + NAGPR, accum=NVGPR))
if STAMP: print(",".join(stamp_names))
if DBG: print(list(enumerate(spin_ids, 1)))
```

```python
import sys, math, struct
from asmlib import *

opts = dict(stamp=0, pol="nt", dbg=0, wo="spec", kw=2, v1=4, k1=8, om="ack", xack=1)
for x in sys.argv[2:]:
    k, v = x.split("="); opts[k] = v
STAMP = int(opts["stamp"]); DBG = int(opts["dbg"]); POL = opts["pol"].replace("def", "").replace("_", " ")

a = Asm()
NONCE = 0x0
GD = 0x400
GB = 0x2000
GS = 0x1F400
LS = 0xA800
REC, ML, HP, HS = 0x0, 0x8000, 0x8400, 0xA400
HCS = 2 * LS
QP1 = HCS + 0x2000
QS1 = QP1 + 0x2000
CLR = 3328
XR = 32 * CLR
X1, X2, XLS = XR, XR + 5120, 10240
assert HS + 512 <= LS and QS1 + 256 <= XR and XR + 2 * XLS <= GS
TG = 0x200000
QP, QS, QCS = 0x0, 0x2000, 0x2400
FL = QCS + 0x2000
BOFF = 0x5000
TGS = 2 * BOFF + 0x400
WSSIZE = 0x400000
L_X = 0x0
L_HB, L_QB, L_PB, L_MB, L_YB, L_MODE = 0x400, 0x600, 0xA00, 0xE00, 0x1000, 0x1400
L_WQ, L_V, L_W2, L_WD = 0x2000, 0x6000, 0xE000, 0x2000
L_K = 0x16000
LDS_SIZE = 0x1E000
sX, sK, sV, sWQ, sWO, sWG, sWU, sWD, sOUT, sDBG, sWS = 4, 6, 8, 10, 12, 16, 18, 20, 22, 24, 26
sG, sI, sW, sKQ, sCG, sA4 = 28, 29, 30, 31, 32, 33
sLAY, sXO = 34, 35
RG = 36
RX = 40
sGO = 44
RT = 52
sTAG, sT0 = 56, 57
sSPIN, sPH, sT, sT2, sNON = 61, 62, 63, 64, 65
sQUADM, sMLM, sPUBM, sDM, sM = 66, 68, 70, 72, 74
sTH = 3
sFIN, sTRY = 76, 77
sNF, sALT = 14, 15
sSTM = 78
sST = 80
aK, aV, aWQ, aW2, aWD = 0, 32, 64, 80, 144
NAGPR = 176
vSTG = 52
vMASK, vONE, vJUNK = 56, 57, 60
vCS = 64
(vQCS, vHCS) = (96, 104)
(vR0, vR1, vXW, vXRD, vXWR, vGA, vQPA, vQGA, vQSA, vRECA, vMLA, vOA, vOML, vHGA, vPUBA, vROW, vPC16, vTR0,
 vSTMP, vL16, vL8, vQRD, vPRD, vPWR, vMWR, vMRD, vYWR, vB16, vHWR, vHSA, vDPA, vMODE, vVA, vQL) = range(108, 142)
NVGPR = 144
ONES = 0x3F803F80
QSCALE = math.log2(math.e) / math.sqrt(128.0)
def f32(x): return "0x%08x" % struct.unpack("<I", struct.pack("<f", x))[0]
DPPALL = "row_mask:0xf bank_mask:0xf"
LG = (lambda n: 0) if STAMP else (lambda n: n)

stamp_names = []; spin_ids = []
SEL = opts.get("sel", "start,wq,xq,qpub,q,p,rec,x1pub,h,x2pub").split(",")
def stamp(name):
    if not STAMP or name not in SEL: return
    if name not in stamp_names: stamp_names.append(name)
    k = stamp_names.index(name); assert k < 11
    a(f"s_memrealtime s[{sST+2*k}:{sST+2*k+1}]")
def stamp_flush():
    if not STAMP: return
    l1 = a.label("SF"); l2 = a.label("SF")
    a("s_waitcnt lgkmcnt(0)")
    a(f"s_cmp_eq_u32 s{sLAY}, 0\ns_cbranch_scc0 {l1}")
    for k in range(11): a(f"v_writelane_b32 v{vSTMP}, s{sST+2*k}, {k}")
    a(f"s_branch {l2}\n{l1}:")
    for k in range(11): a(f"v_writelane_b32 v{vSTMP}, s{sST+2*k}, {k+16}")
    a(f"{l2}:")
def stamp_store():
    if not STAMP: return
    l1 = a.label("SS")
    a(f"""s_cmp_eq_u32 s{sW}, {opts.get("sw", 0)}
    s_cbranch_scc0 {l1}
    s_mov_b32 exec_lo, -1
    s_mov_b32 exec_hi, 0
    s_lshl_b32 s{sT}, s2, 8
    s_add_u32 s{sM}, s{sWS}, s{sT}
    s_addc_u32 s{sM+1}, s{sWS+1}, 0
    s_add_u32 s{sM}, s{sM}, 0x10000000
    s_addc_u32 s{sM+1}, s{sM+1}, 0
    v_mov_b32 v4, v{vSTMP}
    v_mov_b32 v5, 0
    global_store_dwordx2 v{vL8}, v[4:5], s[{sM}:{sM+1}]
    {l1}:""")

def spin(lab_retry, lab_giveup):
    a(f"s_sub_u32 s{sSPIN}, s{sSPIN}, 1\ns_cbranch_scc0 {lab_retry}\ns_mov_b32 s{sSPIN}, 0")
    if DBG:
        spin_ids.append(lab_retry)
        a(f"s_mov_b64 s[{sM}:{sM+1}], exec\ns_mov_b64 exec, 1\nv_mov_b32 v45, {4*len(spin_ids)}\nv_mov_b32 v46, 1\nglobal_atomic_add v45, v46, s[{sDBG}:{sDBG+1}]\ns_mov_b64 exec, s[{sM}:{sM+1}]")
    a(f"s_branch {lab_giveup}")

def dma(ptr, voff, lds_base, n, gstep):
    a(f"s_lshl_b32 s{sT}, s{sW}, 10\ns_add_u32 m0, s{sT}, {lds_base}")
    for j in range(n):
        if j == 0: a("s_nop 0")
        a(f"global_load_lds_dwordx4 v{voff}, s[{ptr}:{ptr+1}] {POL}")
        if j + 1 < n:
            a(f"s_add_u32 m0, m0, 4096\ns_add_u32 s{ptr}, s{ptr}, {gstep}\ns_addc_u32 s{ptr+1}, s{ptr+1}, 0")

def trW(dst, base, vA, vB):
    for s in range(4):
        a(f"ds_read_b64_tr_b16 a[{dst+4*s}:{dst+4*s+1}], v{vA} offset:{base + s*4096}")
        a(f"ds_read_b64_tr_b16 a[{dst+4*s+2}:{dst+4*s+3}], v{vB} offset:{base + s*4096}")
def mfma(d, A, B, first):
    return f"v_mfma_f32_16x16x32_bf16 v[{d}:{d+3}], {A}, {B}, {'0' if first else f'v[{d}:{d+3}]'}"
V4 = lambda r: f"v[{r}:{r+3}]"
A4 = lambda r: f"a[{r}:{r+3}]"

def wo_issue():
    a(f"""
    s_lshl_b32 s{sT}, s{sG}, 1
    s_lshr_b32 s{sT2}, s{sA4}, 3
    s_add_u32 s{sT}, s{sT}, s{sT2}
    s_lshl_b32 s{sT}, s{sT}, 18
    s_and_b32 s{sT2}, s{sA4}, 7
    s_lshl_b32 s{sT2}, s{sT2}, 7
    s_add_u32 s{sT}, s{sT}, s{sT2}
    s_add_u32 s{sWO}, s{sWO}, s{sT}
    s_addc_u32 s{sWO+1}, s{sWO+1}, 0
    v_lshl_add_u32 v4, v{vROW}, 10, v{vPC16}
    """)
    dma(sWO, 4, L_W2, 8, 32 * 1024)

stamp("start")
a(f"""
s_cmp_ge_u32 s2, 256
s_cbranch_scc1 L_end
s_getpc_b64 s[{sSTM}:{sSTM+1}]
L_pc:
s_load_dwordx16 s[4:19], s[0:1], 0
s_load_dwordx8 s[20:27], s[0:1], 64
v_lshlrev_b32 v1, 7, v0
v_min_u32 v1, L_end-L_pc, v1
global_load_dword v{vJUNK}, v1, s[{sSTM}:{sSTM+1}]
v_lshrrev_b32 v3, 6, v0
v_lshrrev_b32 v4, 1, v0
v_readfirstlane_b32 s{sW}, v3
v_xor_b32 v4, v4, v0
v_lshlrev_b32 v5, 1, v4
v_and_b32 v5, 32, v5
v_and_or_b32 v5, v4, 64, v5
v_lshlrev_b32 v11, 4, v0
v_and_b32 v6, 0x70, v11
v_xor_b32 v{vPC16}, v5, v6
v_lshrrev_b32 v{vROW}, 3, v0
v_lshl_add_u32 v7, v{vROW}, 13, v{vPC16}
s_and_b32 s{sG}, s2, 7
s_lshr_b32 s{sI}, s2, 3
s_and_b32 s{sKQ}, s{sI}, 3
s_lshr_b32 s{sCG}, s{sI}, 2
s_lshl_b32 s{sT}, s{sKQ}, 20
s_lshl_b32 s{sT2}, s{sG}, 10
s_lshl3_add_u32 s{sT2}, s{sCG}, s{sT2}
s_lshl_b32 s{sM}, s{sW}, 10
s_add_u32 m0, s{sM}, {L_WQ}
s_mul_i32 s{sA4}, s{sCG}, 120
s_add_u32 s{sT}, s{sT}, s{sT2}
s_add_u32 s{sT}, s{sT}, s{sA4}
s_waitcnt lgkmcnt(0)
s_add_u32 s{sWQ}, s{sWQ}, s{sT}
s_addc_u32 s{sWQ+1}, s{sWQ+1}, 0
""")
stamp("karg")
for j in range(4):
    a(f"global_load_lds_dwordx4 v7, s[{sWQ}:{sWQ+1}] {POL}")
    if j < 3: a(f"s_add_u32 m0, m0, 4096\nv_add_u32 v7, {32*8192}, v7")
a(f"""
s_load_dword s{sNON}, s[{sWS}:{sWS+1}], {NONCE}
v_lshlrev_b32 v5, 1, v0
v_and_b32 v5, 0xe0, v5
v_xor_b32 v{vVA}, v11, v5
s_lshl_b32 s{sT}, s{sG}, 24
s_lshl_b32 s{sT2}, s{sI}, 15
s_add_u32 s{sT}, s{sT}, s{sT2}
s_add_u32 s{sT}, s{sT}, 0xF00000
s_add_u32 s{sV}, s{sV}, s{sT}
s_addc_u32 s{sV+1}, s{sV+1}, 0
s_add_u32 m0, s{sM}, {L_V}
s_add_u32 s{sK}, s{sK}, s{sT}
s_addc_u32 s{sK+1}, s{sK+1}, 0
global_load_lds_dwordx4 v{vVA}, s[{sV}:{sV+1}] {POL}
v_and_b32 v8, 31, v0
v_bfe_u32 v9, v0, 5, 1
v_lshlrev_b32 v8, 3, v8
v_lshl_or_b32 v{vHWR}, v9, 2, v8
s_lshl_b32 s{sT}, s{sKQ}, 8
v_add_u32 v10, s{sT}, v{vHWR}
global_load_dword v{vXW}, v10, s[{sX}:{sX+1}]
v_and_b32 v{vL16}, 0x3f0, v11
global_load_dwordx4 v[20:23], v{vL16}, s[{sX}:{sX+1}]
s_mul_i32 s{sT}, s{sG}, {GS}
s_add_u32 s{sT}, s{sT}, {GB}
s_add_u32 s{RG}, s{sWS}, s{sT}
s_addc_u32 s{RG+1}, s{sWS+1}, 0
s_mul_i32 s{sT}, s{sG}, {TGS}
s_add_u32 s{sT}, s{sT}, {TG}
s_add_u32 s{RT}, s{sWS}, s{sT}
s_addc_u32 s{RT+1}, s{sWS+1}, 0
s_lshl_b32 s{sT}, s{sI}, 10
v_lshl_add_u32 v6, v6, 3, s{sT}
global_load_dword v{vJUNK+1}, v6, s[{RT}:{RT+1}] sc1
v_mov_b32 v12, -1
v_mov_b32 v13, -1
v_mov_b32 v14, -1
v_mov_b32 v15, -1
s_mul_i32 s{sT}, s{sI}, {CLR}
v_min_u32 v10, {CLR-16}, v11
v_add_u32 v10, s{sT}, v10
global_store_dwordx4 v10, v[12:15], s[{RG}:{RG+1}]
s_cmp_eq_u32 s{sW}, 3
s_cbranch_scc0 L_clrd
s_mul_i32 s{sT}, s{sI}, 640
s_add_u32 s{sT}, s{sT}, {XR}
v_min_u32 v10, 624, v{vL16}
v_add_u32 v10, s{sT}, v10
global_store_dwordx4 v10, v[12:15], s[{RG}:{RG+1}] sc1
L_clrd:
""")
NV1 = int(opts["v1"])
for j in range(1, NV1):
    a(f"s_add_u32 m0, m0, 4096\nv_add_u32 v{vVA}, 4096, v{vVA}\nglobal_load_lds_dwordx4 v{vVA}, s[{sV}:{sV+1}] {POL}")
a(f"""
v_and_b32 v1, 15, v0
v_bfe_u32 v2, v0, 4, 2
""")
stamp("iss")
a(f"""
s_mov_b32 s{RG+2}, 0x20000
s_mov_b32 s{RG+3}, 0x20000
s_mov_b32 s{RX+2}, {WSSIZE}
s_mov_b32 s{RX+3}, 0x20000
s_mov_b32 s{RT+2}, {2*BOFF}
s_mov_b32 s{RT+3}, 0x20000
s_mov_b32 s{sLAY}, 0
s_mov_b32 s{sALT}, 1
s_mov_b32 s{sNF}, 1
s_mov_b32 s{sTH}, 0x42000000
s_movk_i32 s{sTRY}, 64
s_mov_b32 s{sSPIN}, 0x20000
s_mov_b32 s{sQUADM}, 0x11111111
s_mov_b32 s{sQUADM+1}, 0x11111111
s_mov_b32 s{sDM}, 0x00020002
s_mov_b32 s{sDM+1}, 0x00020002
s_mov_b32 s{sPUBM}, 0x00110011
s_mov_b32 s{sPUBM+1}, 0x00110011
s_lshl_b32 s{sT}, s{sW}, 4
s_lshl_b64 s[{sMLM}:{sMLM+1}], 1, s{sT}
s_and_b32 s{sA4}, s{sI}, 15
s_or_b32 s{sT}, s{sG}, s{sCG}
s_cmp_eq_u32 s{sT}, 0
s_cselect_b32 s{sFIN}, 1, 0
s_mov_b32 s{sSTM}, 0
s_brev_b32 s{sSTM+1}, 1
s_lshr_b32 s{sXO}, s{sA4}, 3
s_mul_i32 s{sXO}, s{sXO}, 2560
s_and_b32 s{sT2}, s{sA4}, 7
s_lshl_b32 s{sT2}, s{sT2}, 8
s_add_u32 s{sXO}, s{sXO}, s{sT2}
""")
for gp in range(8):
    a(f"s_mov_b32 s{sGO+gp}, {gp*GS}")
a(f"""
v_bfe_u32 v3, v0, 2, 2
v_and_b32 v4, 3, v0
v_lshrrev_b32 v{vL8}, 1, v{vL16}
v_lshlrev_b32 v{vB16}, 4, v2
v_add_u32 v5, 256, v{vB16}
v_cmp_eq_u32 vcc, 1, v3
v_mov_b32 v{vXWR}, v{vHWR}
v_mov_b32 v{vONE}, {ONES}
v_cndmask_b32 v{vXRD}, v{vB16}, v5, vcc
v_lshlrev_b32 v5, 1, v8
s_lshl_b32 s{sT}, s{sKQ}, 9
v_add_u32 v{vGA}, s{sT}, v5
v_mul_u32_u24 v6, 2560, v9
v_add_u32 v{vGA}, v{vGA}, v6
s_lshr_b32 s{sT}, s{sA4}, 3
s_lshl_b32 s{sT}, s{sT}, 12
s_add_u32 s{sT}, s{sT}, {HP}
v_lshl_add_u32 v{vHGA}, v9, 9, v5
v_add_u32 v{vHGA}, s{sT}, v{vHGA}
v_lshlrev_b32 v{vHSA}, 4, v4
v_add_u32 v{vHSA}, {HS}, v{vHSA}
s_lshl_b32 s{sT}, s{sKQ}, 11
s_lshl_b32 s{sT2}, s{sCG}, 8
s_add_u32 s{sT}, s{sT}, s{sT2}
s_lshl_b32 s{sT2}, s{sW}, 6
s_add_u32 s{sT}, s{sT}, s{sT2}
v_add_u32 v{vQPA}, s{sT}, v{vB16}
v_add_u32 v7, {QCS}, v{vQPA}
v_cndmask_b32 v{vQPA}, v{vQPA}, v7, vcc
v_add_u32 v{vQGA}, {QS}, v5
s_lshl_b32 s{sT}, s{sI}, 4
s_add_u32 s{sT}, s{sT}, {QS}
v_mov_b32 v{vQSA}, s{sT}
s_lshr_b32 s{sT}, s{sI}, 4
s_lshl_b32 s{sT}, s{sT}, 12
s_lshl_b32 s{sT2}, s{sW}, 10
s_add_u32 s{sT}, s{sT}, s{sT2}
s_lshl_b32 s{sT2}, s{sA4}, 6
s_add_u32 s{sT}, s{sT}, s{sT2}
v_lshlrev_b32 v7, 13, v2
v_lshl_add_u32 v7, v3, 4, v7
v_add_u32 v{vRECA}, s{sT}, v7
s_lshl_b32 s{sT}, s{sI}, 3
s_add_u32 s{sT}, s{sT}, {ML}
v_lshlrev_b32 v7, 8, v2
v_add_u32 v{vMLA}, s{sT}, v7
s_lshr_b32 s{sT}, s{sA4}, 3
s_lshl_b32 s{sT}, s{sT}, 2
s_add_u32 s{sT}, s{sT}, s{sW}
s_lshl_b32 s{sT2}, s{sT}, 12
v_lshl_add_u32 v7, v1, 6, v{vB16}
v_add_u32 v{vOA}, s{sT2}, v7
s_lshr_b32 s{sT2}, s{sT}, 1
s_lshl_b32 s{sT2}, s{sT2}, 8
s_add_u32 s{sT2}, s{sT2}, {ML}
s_and_b32 s{sT}, s{sT}, 1
v_and_b32 v7, 1, v3
v_xor_b32 v7, s{sT}, v7
v_lshlrev_b32 v7, 4, v7
v_lshl_add_u32 v7, v2, 2, v7
v_add_u32 v7, v7, v4
v_lshlrev_b32 v7, 3, v7
v_add_u32 v{vOML}, s{sT2}, v7
v_lshl_add_u32 v7, v2, 3, v3
v_lshlrev_b32 v7, 7, v7
v_lshrrev_b32 v10, 1, v2
v_xor_b32 v10, v10, v2
v_and_b32 v10, 1, v10
v_lshrrev_b32 v11, 1, v3
v_lshl_or_b32 v10, v10, 1, v11
v_lshlrev_b32 v10, 5, v10
v_lshl_or_b32 v10, v4, 3, v10
v_or_b32 v{vTR0}, v7, v10
v_lshl_add_u32 v{vQRD}, v3, 8, v{vB16}
v_lshl_add_u32 v{vPRD}, v3, 6, v{vB16}
s_lshl_b32 s{sT}, s{sW}, 8
v_add_u32 v{vPWR}, s{sT}, v{vPRD}
v_lshrrev_b32 v7, 1, v2
v_and_b32 v10, 1, v2
v_lshl_or_b32 v7, v10, 1, v7
v_lshlrev_b32 v7, 6, v7
v_lshl_add_u32 v7, v1, 2, v7
v_add_u32 v{vYWR}, s{sT}, v7
s_lshl_b32 s{sT}, s{sW}, 5
v_lshlrev_b32 v7, 3, v2
v_lshl_add_u32 v7, v3, 7, v7
v_add_u32 v{vMWR}, s{sT}, v7
v_lshlrev_b32 v7, 3, v1
v_lshl_add_u32 v{vMRD}, v2, 7, v7
s_lshl_b32 s{sT}, s{sW}, 7
v_lshl_add_u32 v7, v1, 6, v{vB16}
v_add_u32 v{vDPA}, s{sT}, v7
v_mov_b32 v{vPUBA}, 0
v_mov_b32 v{vMASK}, 0xffffff00
v_lshrrev_b32 v11, 1, v{vL8}
ds_write_b32 v11, v{vONE} offset:{L_X+256}
ds_write_b32 v11, v{vONE} offset:{L_X+768}
s_getreg_b32 s{sT2}, hwreg(HW_REG_XCC_ID)
s_and_b32 s{sT2}, s{sT2}, 15
v_mov_b32 v{vSTG+3}, s{sT2}
s_waitcnt lgkmcnt(0)
s_mul_i32 s{sTAG}, s{sNON}, 0x9E3779B1
s_add_u32 s{sTAG}, s{sTAG}, 0x7F4A7C15
s_and_b32 s{sT0}, s{sTAG}, 255
s_bfe_u32 s{sT0+1}, s{sTAG}, 0x80008
s_bfe_u32 s{sT0+2}, s{sTAG}, 0x80010
s_lshr_b32 s{sT0+3}, s{sTAG}, 24
v_mov_b32 v{vSTG+2}, s{sTAG}
s_lshl_b32 s{sT}, s{sW}, 5
v_xor_b32 v10, s{sT}, v{vTR0}
v_xor_b32 v11, 32, v10
v_add_u32 v11, 512, v11
""")
stamp("setup")
for j in range(NV1, 8):
    a(f"s_add_u32 m0, m0, 4096\nv_add_u32 v{vVA}, 4096, v{vVA}\nglobal_load_lds_dwordx4 v{vVA}, s[{sV}:{sV+1}] {POL}")
stamp("iss2")
a(f"""
s_waitcnt vmcnt(7)
v_dot2_f32_bf16 v24, v20, v{vONE}, 0
v_dot2_f32_bf16 v24, v21, v{vONE}, v24
v_dot2_f32_bf16 v24, v22, v{vONE}, v24
v_dot2_f32_bf16 v24, v23, v{vONE}, v24
v_lshlrev_b32 v{vR0}, 16, v{vXW}
v_and_b32 v{vR1}, 0xffff0000, v{vXW}
s_nop 0
v_add_f32_dpp v24, v24, v24 row_ror:1 {DPPALL}
s_nop 1
v_add_f32_dpp v24, v24, v24 row_ror:2 {DPPALL}
s_nop 1
v_add_f32_dpp v24, v24, v24 row_ror:4 {DPPALL}
s_nop 1
v_add_f32_dpp v24, v24, v24 row_ror:8 {DPPALL}
v_mov_b32 v25, v24
s_nop 1
v_permlane32_swap_b32 v24, v25
v_add_f32 v24, v24, v25
v_mov_b32 v25, v24
s_nop 1
v_permlane16_swap_b32 v24, v25
v_add_f32 v24, v24, v25
v_mov_b32 v25, {f32(-1/512)}
v_fma_f32 v26, v24, v25, v{vR0}
v_fma_f32 v27, v24, v25, v{vR1}
v_cvt_pk_bf16_f32 v{vXW}, v26, v27
ds_write_b32 v{vXWR}, v{vXW}
s_barrier
""")
stamp("wq")
if STAMP: a(f"v_mov_b32 v{vSTMP}, 0")
trW(aWQ, L_WQ, 10, 11)
a("s_branch L_TQ")

a(f"""
L_G:
v_xor_b32 v{vXWR}, 512, v{vXWR}
""")
if int(opts["xack"]): a("s_waitcnt vmcnt(0)")
stamp("g0")
a("L_Gp:")
for j in range(8):
    a(f"buffer_load_dwordx4 {V4(8+4*j)}, v{vGA}, s[{RX}:{RX+3}], s{sGO+j} offen sc1")
a("s_waitcnt vmcnt(6)")
a("v_pk_add_f32 v[40:41], v[8:9], v[12:13]\nv_pk_add_f32 v[42:43], v[10:11], v[14:15]\nv_max_u32 v44, v8, v12")
for j in range(2, 8):
    a(f"s_waitcnt vmcnt({7-j})")
    a(f"v_pk_add_f32 v[40:41], v[40:41], v[{8+4*j}:{9+4*j}]\nv_pk_add_f32 v[42:43], v[42:43], v[{10+4*j}:{11+4*j}]")
    a(f"v_max_u32 v44, v44, v{8+4*j}")
a(f"""
v_cmp_eq_u32 vcc, -1, v44
v_permlane32_swap_b32 v40, v42
v_permlane32_swap_b32 v41, v43
v_add_f32 v40, v40, v42
v_add_f32 v41, v41, v43
v_add_f32 v40, v40, v{vR0}
v_add_f32 v41, v41, v{vR1}
v_cvt_pk_bf16_f32 v{vXW}, v40, v41
ds_write_b32 v{vXWR}, v{vXW}
s_cbranch_vccnz L_Gretry
L_Gok:
""")
stamp("gok")
a(f"""
v_lshlrev_b32 v{vR0}, 16, v{vXW}
v_and_b32 v{vR1}, 0xffff0000, v{vXW}
s_cmp_eq_u32 s{sPH}, 1
s_cbranch_scc1 L_TU
s_cmp_eq_u32 s{sPH}, 0
s_cbranch_scc0 L_Gother
""")

def stats():
    l = a.label("ST")
    a(f"""s_cbranch_scc1 {l}
    v_dot2_f32_bf16 v46, v{vXW}, v{vXW}, 0
    v_dot2_f32_bf16 v47, v{vXW}, v{vONE}, 0
    s_nop 2
    v_permlane32_swap_b32 v47, v46
    v_add_f32 v46, v46, v47
    s_nop 1
    v_add_f32_dpp v46, v46, v46 row_ror:1 {DPPALL}
    s_nop 1
    v_add_f32_dpp v46, v46, v46 row_ror:2 {DPPALL}
    s_nop 1
    v_add_f32_dpp v46, v46, v46 row_ror:4 {DPPALL}
    s_nop 1
    v_add_f32_dpp v46, v46, v46 row_ror:8 {DPPALL}
    s_nop 1
    v_add_f32_dpp v46, v46, v46 row_bcast:15 row_mask:0xa bank_mask:0xf
    s_nop 0
    v_mov_b32 v{vSTG}, v46
    v_mov_b32_dpp v{vSTG+1}, v46 row_bcast:31 row_mask:0xc bank_mask:0xf
    {l}:""")

a(f"""
L_TQ:
s_cmp_lg_u32 s{sW}, 0
s_waitcnt lgkmcnt(0)
s_barrier
""")
stamp("xq")
for s in range(4): a(f"ds_read_b128 {V4(8+4*s)}, v{vXRD} offset:{64*s}")
stats()
for s in range(4):
    a(f"s_waitcnt lgkmcnt({LG(3-s)})")
    a(mfma(24, A4(aWQ+4*s), V4(8+4*s), s == 0))
def tq_tail(fl):
    a(f"""s_mov_b64 exec, s[{sPUBM}:{sPUBM+1}]
    s_cmp_lg_u32 s{sW}, 0
    s_nop 3
    buffer_store_dwordx4 v[24:27], v{vQPA}, s[{RG}:{RG+3}], 0 offen{fl}
    s_cbranch_scc1 L_S
    s_mov_b64 exec, s[{sSTM}:{sSTM+1}]
    buffer_store_dwordx2 v[{vSTG}:{vSTG+1}], v{vQSA}, s[{RG}:{RG+3}], 0 offen{fl}
    s_mov_b64 exec, -1""")
a(f"s_cmp_eq_u32 s{sALT}, 0\ns_cbranch_scc0 L_TQalt")
tq_tail("")
stamp("qpub")
a(f"""
L_QFe:
s_movk_i32 s{sT}, 4096
L_QFp:
buffer_load_dwordx2 v[48:49], v{vQGA}, s[{RG}:{RG+3}], 0 offen sc1
""")
for u in range(2):
    for k in range(4):
        so = "0" if k < 2 else f"s{sT}"
        a(f"buffer_load_dwordx4 {V4(8+16*u+4*k)}, v{vQL}, s[{RG}:{RG+3}], {so} offen offset:{(k&1)*2048+u*1024} sc1")
def ln_chain(first):
    if first:
        a(f"""v_add_f32_dpp v48, v48, v48 quad_perm:[1,0,3,2] {DPPALL}
        v_add_f32_dpp v49, v49, v49 quad_perm:[1,0,3,2] {DPPALL}""")
    else:
        a(f"""v_add_f32_dpp v48, v48, v48 quad_perm:[2,3,0,1] {DPPALL}
        v_add_f32_dpp v49, v49, v49 quad_perm:[2,3,0,1] {DPPALL}
        v_mul_f32 v48, {f32(1/512)}, v48
        v_mul_f32 v46, {f32(-1/512)}, v49
        v_fma_f32 v48, -v46, v46, v48
        v_max_f32 v48, 0, v48
        v_add_f32 v48, {f32(1e-5)}, v48
        v_rsq_f32 v48, v48""")
a(f"s_waitcnt vmcnt(8)\nv_cmp_eq_u32 vcc, -1, v48")
ln_chain(True)
a("s_cbranch_vccnz L_QFretry\nL_QF2:")
stamp("qf2")
ln_chain(False)
a(f"""
s_waitcnt vmcnt(6)
v_pk_add_f32 v[40:41], v[8:9], v[12:13]
v_pk_add_f32 v[42:43], v[10:11], v[14:15]
v_mul_f32 v48, {f32(QSCALE)}, v48
s_waitcnt vmcnt(5)
v_pk_add_f32 v[40:41], v[40:41], v[16:17]
v_pk_add_f32 v[42:43], v[42:43], v[18:19]
v_max3_u32 v44, v8, v12, v16
v_pk_fma_f32 v[40:41], v[{vQCS}:{vQCS+1}], v[46:47], v[40:41] op_sel_hi:[1,0,1]
v_pk_fma_f32 v[42:43], v[{vQCS+2}:{vQCS+3}], v[46:47], v[42:43] op_sel_hi:[1,0,1]
s_waitcnt vmcnt(3)
v_pk_add_f32 v[40:41], v[40:41], v[20:21]
v_pk_add_f32 v[42:43], v[42:43], v[22:23]
v_max3_u32 v44, v44, v20, v24
v_pk_fma_f32 v[24:25], v[{vQCS+4}:{vQCS+5}], v[46:47], v[24:25] op_sel_hi:[1,0,1]
v_pk_fma_f32 v[26:27], v[{vQCS+6}:{vQCS+7}], v[46:47], v[26:27] op_sel_hi:[1,0,1]
v_pk_mul_f32 v[40:41], v[40:41], v[48:49] op_sel_hi:[1,0]
v_pk_mul_f32 v[42:43], v[42:43], v[48:49] op_sel_hi:[1,0]
s_waitcnt vmcnt(2)
v_pk_add_f32 v[24:25], v[24:25], v[28:29]
v_pk_add_f32 v[26:27], v[26:27], v[30:31]
v_cvt_pk_bf16_f32 v40, v40, v41
v_cvt_pk_bf16_f32 v41, v42, v43
s_waitcnt vmcnt(1)
v_pk_add_f32 v[24:25], v[24:25], v[32:33]
v_pk_add_f32 v[26:27], v[26:27], v[34:35]
ds_write_b64 v{vL8}, v[40:41] offset:{L_QB}
v_max3_u32 v44, v44, v28, v32
s_waitcnt vmcnt(0)
v_pk_add_f32 v[24:25], v[24:25], v[36:37]
v_pk_add_f32 v[26:27], v[26:27], v[38:39]
v_pk_mul_f32 v[24:25], v[24:25], v[48:49] op_sel_hi:[1,0]
v_pk_mul_f32 v[26:27], v[26:27], v[48:49] op_sel_hi:[1,0]
v_cvt_pk_bf16_f32 v24, v24, v25
v_cvt_pk_bf16_f32 v25, v26, v27
ds_write_b64 v{vL8}, v[24:25] offset:{L_QB+512}
v_max_u32 v44, v44, v36
v_cmp_eq_u32 vcc, -1, v44
s_cbranch_vccnz L_QF2retry
""")
stamp("qfok")
a(f"""
L_S:
s_mov_b64 exec, -1
s_waitcnt lgkmcnt(0)
s_barrier
""")
stamp("q")
for s in range(4): a(f"ds_read_b128 {V4(8+4*s)}, v{vQRD} offset:{L_QB + 64*s}")
a(f"""s_cmp_eq_u32 s{sLAY}, 0
s_cbranch_scc1 L_S0
L_S1:""")
for s in range(4):
    a(f"s_waitcnt lgkmcnt({LG(3-s)})")
    for t in range(2): a(mfma(24+4*t, A4(aK+16*t+4*s), V4(8+4*s), s == 0))
a(f"""
v_readfirstlane_b32 s{sNF}, v{vMODE}
v_mov_b32 v32, 0
s_nop 4
""")
stamp("smm")
for k in range(8): a(f"v_exp_f32 v{40+k}, v{24+k}")
def p_tail():
    a(f"""
    v_cvt_pk_bf16_f32 v36, v40, v41
    v_cvt_pk_bf16_f32 v37, v42, v43
    v_cvt_pk_bf16_f32 v38, v44, v45
    v_cvt_pk_bf16_f32 v39, v46, v47
    s_mov_b64 exec, s[{sQUADM}:{sQUADM+1}]
    ds_write_b128 v{vPWR}, v[36:39] offset:{L_PB}
    v_dot2_f32_bf16 v33, v36, v{vONE}, 0
    v_dot2_f32_bf16 v33, v37, v{vONE}, v33
    v_dot2_f32_bf16 v33, v38, v{vONE}, v33
    v_dot2_f32_bf16 v33, v39, v{vONE}, v33""")
p_tail()
a(f"""
v_max3_f32 v34, v24, v25, v26
v_max3_f32 v35, v27, v28, v29
v_max3_f32 v34, v34, v30, v31
ds_write_b64 v{vMWR}, v[32:33] offset:{L_MB}
v_max_f32 v34, v34, v35
v_cmp_nle_f32 vcc, |v34|, s{sTH}
s_cbranch_vccnz L_Sbig
L_Sp:
s_mov_b64 exec, -1
s_cmp_eq_u32 s{sNF}, 0
s_waitcnt lgkmcnt(0)
s_barrier
""")
stamp("p")
for w in range(4): a(f"ds_read_b128 {V4(8+4*w)}, v{vPRD} offset:{L_PB + 256*w}")
a(f"ds_read_b64 v[32:33], v{vMRD} offset:{L_MB}")
for w in range(4):
    a(f"s_waitcnt lgkmcnt({LG(4-w)})")
    for c in range(2): a(mfma(24+4*c, V4(8+4*w), A4(aV+8*w+4*c), w == 0))
a(f"""
s_waitcnt lgkmcnt(0)
v_add_f32_dpp v35, v33, v33 row_ror:1 {DPPALL}
v_cmp_neq_f32 vcc, 0, v32
v_mov_b32 v34, 0
v_add_f32_dpp v35, v35, v35 row_ror:2 {DPPALL}
s_cbranch_vccnz L_PVbig
s_nop 0
v_add_f32_dpp v35, v35, v35 row_ror:4 {DPPALL}
v_cvt_pk_bf16_f32 v36, v24, v28
s_nop 0
v_add_f32_dpp v35, v35, v35 row_ror:8 {DPPALL}
L_PVt:
v_mov_b32_dpp v37, v36 quad_perm:[1,1,1,1] {DPPALL}
v_mov_b32_dpp v38, v36 quad_perm:[2,2,2,2] {DPPALL}
v_mov_b32_dpp v39, v36 quad_perm:[3,3,3,3] {DPPALL}
s_mov_b64 exec, s[{sQUADM}:{sQUADM+1}]
s_cbranch_scc0 L_RECsafe
""")
def rec_tail(fl):
    a(f"""buffer_store_dwordx4 v[36:39], v{vRECA}, s[{RG}:{RG+3}], 0 offen{fl}
    s_mov_b64 exec, s[{sMLM}:{sMLM+1}]
    buffer_store_dwordx2 v[34:35], v{vMLA}, s[{RG}:{RG+3}], 0 offen{fl}""")
rec_tail("")
a(f"""L_RECd:
s_mov_b64 exec, -1""")
stamp("rec")
a(f"""
s_cmp_ge_u32 s{sI}, 16
s_cbranch_scc1 L_B
""")
a(f"""
s_cmp_eq_u32 s{sLAY}, 0
s_cbranch_scc0 L_O
""")
a(f"""
v_bfe_u32 v1, v0, 2, 1
v_bfe_u32 v2, v0, 3, 1
v_bfe_u32 v3, v0, 4, 2
v_lshl_add_u32 v5, v3, 2, v2
v_lshl_add_u32 v5, v1, 4, v5
v_lshlrev_b32 v5, 7, v5
v_bfe_u32 v6, v0, 5, 1
v_xor_b32 v6, v6, v1
v_and_b32 v7, 1, v3
v_lshl_or_b32 v6, v6, 1, v7
v_lshlrev_b32 v6, 5, v6
v_and_b32 v7, 3, v0
v_lshl_or_b32 v6, v7, 3, v6
v_or_b32 v5, v5, v6
s_lshr_b32 s{sT}, s{sW}, 1
s_lshl_b32 s{sT}, s{sT}, 14
s_add_u32 s{sT}, s{sT}, {L_W2}
v_add_u32 v5, s{sT}, v5
s_waitcnt vmcnt(0)
s_barrier
""")
for t in range(4):
    a(f"v_xor_b32 v6, {32*t}, v5\nv_xor_b32 v7, 32, v6\nv_add_u32 v7, 256, v7")
    trW(aW2 + 16*t, 0, 6, 7)
OM = opts["om"]
a("L_O:")
if OM == "ack": a("s_waitcnt vmcnt(0)")
if OM in ("bell", "bell2"):
    a(f"""L_Ob:
    buffer_load_dwordx2 v[4:5], v{vOML}, s[{RG}:{RG+3}], 0 offen sc1
    s_waitcnt vmcnt(0)
    v_cmp_eq_u32 vcc, -1, v5
    s_cbranch_vccnz L_Obretry""")
a(f"""
L_Op:
buffer_load_dwordx2 v[4:5], v{vOML}, s[{RG}:{RG+3}], 0 offen sc1
""")
for s in range(4): a(f"buffer_load_dwordx4 {V4(8+4*s)}, v{vOA}, s[{RG}:{RG+3}], 0 offen offset:{1024*s} sc1")
mo = lambda t, s: mfma(24+4*t, V4(8+4*s), A4(aW2+16*t+4*s), s == 0)
a(f"""
s_waitcnt vmcnt(4) lgkmcnt(0)
v_cmp_eq_u32 vcc, -1, v5
s_cbranch_vccnz L_Oretry
L_O2:
""")
stamp("o2")
a(f"""
s_waitcnt vmcnt(3)
{mo(0,0)}
{mo(1,0)}
{mo(2,0)}
{mo(3,0)}
s_waitcnt vmcnt(2)
{mo(0,1)}
{mo(1,1)}
{mo(2,1)}
{mo(3,1)}
s_waitcnt vmcnt(1)
{mo(0,2)}
v_add_f32_dpp v6, v5, v5 quad_perm:[1,0,3,2] {DPPALL}
v_max3_u32 v44, v8, v12, v16
{mo(1,2)}
v_add_f32_dpp v6, v6, v6 quad_perm:[2,3,0,1] {DPPALL}
v_cmp_neq_f32 s[{sM}:{sM+1}], 0, v4
{mo(2,2)}
v_add_f32_dpp v6, v6, v6 row_half_mirror {DPPALL}
v_mov_b32 v7, v6
{mo(3,2)}
s_waitcnt vmcnt(0)
v_permlane32_swap_b32 v6, v7
{mo(0,3)}
v_add_f32 v6, v6, v7
v_mov_b32 v7, v6
{mo(1,3)}
v_max_u32 v44, v44, v20
v_permlane16_swap_b32 v6, v7
{mo(2,3)}
v_cmp_eq_u32 vcc, -1, v44
v_add_f32 v6, v6, v7
{mo(3,3)}
v_rcp_f32 v6, v6
s_cbranch_vccnz L_O2retry
L_Ook:
""")
stamp("ook")
a(f"""
s_cmp_lg_u64 s[{sM}:{sM+1}], 0
s_cbranch_scc1 L_Obig
v_pk_add_f32 v[24:25], v[24:25], v[26:27]
v_pk_add_f32 v[28:29], v[28:29], v[30:31]
v_add_f32 v40, v24, v25
v_add_f32 v41, v28, v29
v_pk_add_f32 v[32:33], v[32:33], v[34:35]
v_pk_add_f32 v[36:37], v[36:37], v[38:39]
v_add_f32 v42, v32, v33
v_add_f32 v43, v36, v37
L_Ot:
v_permlane32_swap_b32 v40, v41
v_add_f32 v40, v40, v41
v_permlane32_swap_b32 v42, v43
v_add_f32 v42, v42, v43
s_add_u32 s{sT}, s{sXO}, {X1}
s_cmp_eq_u32 s{sW}, 0
v_permlane16_swap_b32 v40, v42
v_add_f32 v40, v40, v42
v_mul_f32 v40, v40, v6
ds_write_b32 v{vYWR}, v40 offset:{L_YB}
s_waitcnt lgkmcnt(0)
s_barrier
s_cbranch_scc0 L_Odone
s_mov_b64 exec, 0xffff
""")
stamp("ob")
for w in range(4): a(f"ds_read_b128 {V4(8+4*w)}, v{vL16} offset:{L_YB + 256*w}")
a(f"""
s_waitcnt lgkmcnt({LG(2)})
v_pk_add_f32 v[8:9], v[8:9], v[12:13]
v_pk_add_f32 v[10:11], v[10:11], v[14:15]
s_waitcnt lgkmcnt({LG(1)})
v_pk_add_f32 v[8:9], v[8:9], v[16:17]
v_pk_add_f32 v[10:11], v[10:11], v[18:19]
s_waitcnt lgkmcnt(0)
v_pk_add_f32 v[8:9], v[8:9], v[20:21]
v_pk_add_f32 v[10:11], v[10:11], v[22:23]
buffer_store_dwordx4 v[8:11], v{vL16}, s[{RG}:{RG+3}], s{sT} offen sc1
s_mov_b64 exec, -1
L_Odone:
""")
stamp("x1pub")
def xor_acc(base, first, acc=44):
    for k in range(4): a(f"v_xor_b32 v{base+k}, s{sT0+k}, v{base+k}")
    if first:
        a(f"v_or3_b32 v{acc}, v{base}, v{base+1}, v{base+2}\nv_or_b32 v{acc}, v{acc}, v{base+3}")
    else:
        a(f"v_or3_b32 v{acc}, v{acc}, v{base}, v{base+1}\nv_or3_b32 v{acc}, v{acc}, v{base+2}, v{base+3}")
def gd_wait():
    l1 = a.label("GD"); l2 = a.label("GD"); l3 = a.label("QC"); l4 = a.label("QC")
    a(f"{l3}:")
    for k in range(4):
        a(f"s_mov_b32 s{sT2}, {QCS + k*2048}")
        for u in range(2):
            a(f"buffer_load_dwordx4 {V4(8+16*u+4*k)}, v{vL16}, s[{RT}:{RT+3}], s{sT2} offen offset:{u*1024} sc1")
    a("s_waitcnt vmcnt(0)")
    for u in range(2):
        for k in range(4): xor_acc(8+16*u+4*k, u == 0 and k == 0)
        for h in range(2):
            r = 8 + 16*u + 2*h
            a(f"v_pk_add_f32 v[{r}:{r+1}], v[{r}:{r+1}], v[{r+4}:{r+5}]\nv_pk_add_f32 v[{r+8}:{r+9}], v[{r+8}:{r+9}], v[{r+12}:{r+13}]")
            a(f"v_pk_add_f32 v[{vQCS+4*u+2*h}:{vQCS+4*u+2*h+1}], v[{r}:{r+1}], v[{r+8}:{r+9}]")
    a(f"v_and_b32 v44, 255, v44\nv_cmp_ne_u32 vcc, 0, v44\ns_cbranch_vccz {l4}")
    spin(l3, l4)
    a(f"{l4}:")
    a(f"""v_and_b32 v1, 7, v0
    v_lshlrev_b32 v1, 7, v1
    v_add_u32 v1, {GD}, v1
    {l1}:
    global_load_dword v2, v1, s[{sWS}:{sWS+1}] sc1
    s_waitcnt vmcnt(0)
    v_cmp_ne_u32 vcc, s{sTAG}, v2
    s_cbranch_vccz {l2}""")
    spin(l1, l2)
    a(f"{l2}:")
def set_rx(off):
    a(f"""s_mul_i32 s{sT}, s{sLAY}, {XLS}
    s_add_u32 s{sT}, s{sT}, {off + GB}
    s_add_u32 s{RX}, s{sWS}, s{sT}
    s_addc_u32 s{RX+1}, s{sWS+1}, 0""")
def next_layer():
    a(f"""s_add_u32 s{RG}, s{RG}, {LS}
    s_addc_u32 s{RG+1}, s{RG+1}, 0
    s_sub_u32 s{sXO}, s{sXO}, {LS - XLS}
    s_mov_b32 s{sALT}, s{sNF}
    v_add_u32 v{vQL}, {QP1 - LS}, v{vL16}
    s_lshl_b32 s{sT2}, s{sKQ}, 11
    s_lshl_b32 s{sM}, s{sCG}, 8
    s_add_u32 s{sT2}, s{sT2}, s{sM}
    s_lshl_b32 s{sM}, s{sW}, 6
    s_add_u32 s{sT2}, s{sT2}, s{sM}
    s_add_u32 s{sT2}, s{sT2}, {QP1 - LS}
    v_add_u32 v{vQPA}, s{sT2}, v{vB16}
    v_and_b32 v1, 0xf8, v{vL8}
    v_add_u32 v{vQGA}, {QS1 - LS}, v1
    s_lshl_b32 s{sT2}, s{sI}, 3
    s_add_u32 s{sT2}, s{sT2}, {QS1 - LS}
    v_mov_b32 v{vQSA}, s{sT2}
    s_mov_b32 s{sPUBM}, 0x00010001
    s_mov_b32 s{sPUBM+1}, 0x00010001
    s_mov_b32 s{sLAY}, 1""")
a(f"""
s_mov_b32 s{sPH}, 2
s_cmp_eq_u32 s{sLAY}, 0
s_cbranch_scc1 L_A0
s_cmp_eq_u32 s{sW}, 0
s_cbranch_scc0 L_Dm
s_cmp_eq_u32 s{sFIN}, 1
s_cbranch_scc0 L_Dp
""")
set_rx(X1)
a(f"""
s_branch L_G
L_A0:
s_lshr_b32 s{sT}, s{sG}, 1
s_mul_i32 s{sT}, s{sT}, 7
s_and_b32 s{sT2}, s{sG}, 1
s_lshl_b32 s{sM}, s{sT2}, 2
s_add_u32 s{sT}, s{sT}, s{sM}
s_lshr_b32 s{sM}, s{sA4}, 3
s_and_b32 s{sT2}, s{sT2}, s{sM}
s_lshl_b32 s{sM}, s{sM}, 1
s_add_u32 s{sT}, s{sT}, s{sM}
s_lshl_b32 s{sT}, s{sT}, 16
s_and_b32 s{sM}, s{sA4}, 7
s_lshl_b32 s{sM}, s{sM}, 7
s_add_u32 s{sT}, s{sT}, s{sM}
s_add_u32 s{sWD}, s{sWD}, s{sT}
s_addc_u32 s{sWD+1}, s{sWD+1}, 0
s_lshl_b32 s{sT2}, s{sT2}, 16
v_lshl_add_u32 v4, v{vROW}, 10, v{vPC16}
v_add_u32 v5, 0x10000, v4
v_subrev_u32 v5, s{sT2}, v5
s_lshl_b32 s{sT}, s{sW}, 10
s_add_u32 m0, s{sT}, {L_WD}
""")
for j in range(4):
    a(f"s_nop 0\nglobal_load_lds_dwordx4 v{4 + (j>>1)}, s[{sWD}:{sWD+1}] {POL}")
    if j < 3: a(f"s_add_u32 m0, m0, 4096")
    if j in (0, 2): a(f"v_add_u32 v{4+(j>>1)}, 0x8000, v{4+(j>>1)}")
a(f"""
s_and_b32 s{sT}, s{sW}, 1
s_lshl_b32 s{sT}, s{sT}, 6
v_xor_b32 v6, s{sT}, v{vTR0}
v_xor_b32 v7, 32, v6
v_add_u32 v4, 512, v7
v_add_u32 v5, 512, v6
s_waitcnt vmcnt(0)
s_barrier
""")
trW(aWD, L_WD, 6, 4)
trW(aWD + 16, L_WD, 7, 5)
a(f"""
s_cmp_eq_u32 s{sW}, 0
s_cbranch_scc0 L_Dm
""")
gd_wait()
set_rx(X1)
a(f"""
s_branch L_G
L_Gother:
s_cmp_eq_u32 s{sPH}, 2
s_cbranch_scc0 L_final
s_cmp_eq_u32 s{sLAY}, 0
s_cbranch_scc0 L_Dp
s_mov_b32 s{sT}, {HCS - HP}
L_HC:
""")
for k in range(4): a(f"buffer_load_dwordx4 {V4(8+4*k)}, v{vHGA}, s[{RG}:{RG+3}], s{sT} offen offset:{1024*k} sc1")
a(f"""
s_waitcnt vmcnt(0)
v_max3_u32 v44, v8, v12, v16
v_max_u32 v44, v44, v20
v_cmp_eq_u32 vcc, -1, v44
v_pk_add_f32 v[8:9], v[8:9], v[12:13]
v_pk_add_f32 v[10:11], v[10:11], v[14:15]
v_pk_add_f32 v[16:17], v[16:17], v[20:21]
v_pk_add_f32 v[18:19], v[18:19], v[22:23]
v_pk_add_f32 v[{vHCS}:{vHCS+1}], v[8:9], v[16:17]
v_pk_add_f32 v[{vHCS+2}:{vHCS+3}], v[10:11], v[18:19]
s_cbranch_vccz L_Dp
""")
spin("L_HC", "L_Dp")
a(f"""
L_Dp:
buffer_load_dwordx2 v[48:49], v{vHSA}, s[{RG}:{RG+3}], 0 offen sc1
""")
for k in range(4): a(f"buffer_load_dwordx4 {V4(8+4*k)}, v{vHGA}, s[{RG}:{RG+3}], 0 offen offset:{1024*k} sc1")
a(f"""
s_waitcnt vmcnt(4)
v_cmp_eq_u32 vcc, -1, v48
v_add_f32_dpp v46, v48, v48 quad_perm:[1,0,3,2] {DPPALL}
v_add_f32_dpp v47, v49, v49 quad_perm:[1,0,3,2] {DPPALL}
s_cbranch_vccnz L_Dretry
L_D2:
""")
stamp("d2")
a(f"""
v_add_f32_dpp v46, v46, v46 quad_perm:[2,3,0,1] {DPPALL}
v_add_f32_dpp v47, v47, v47 quad_perm:[2,3,0,1] {DPPALL}
v_mul_f32 v45, {f32(1/512)}, v46
v_mul_f32 v46, {f32(-1/512)}, v47
v_fma_f32 v45, -v46, v46, v45
v_max_f32 v45, 0, v45
v_add_f32 v45, {f32(1e-5)}, v45
v_rcp_f32 v45, v45
s_waitcnt vmcnt(2)
v_max_u32 v44, v8, v12
v_pk_fma_f32 v[8:9], v[{vHCS}:{vHCS+1}], v[46:47], v[8:9] op_sel_hi:[1,0,1]
v_pk_fma_f32 v[10:11], v[{vHCS+2}:{vHCS+3}], v[46:47], v[10:11] op_sel_hi:[1,0,1]
""")
for k in range(1, 4):
    if k > 1: a(f"s_waitcnt vmcnt({3-k})")
    a(f"v_pk_add_f32 v[8:9], v[8:9], v[{8+4*k}:{9+4*k}]\nv_pk_add_f32 v[10:11], v[10:11], v[{10+4*k}:{11+4*k}]")
    if k > 1: a(f"v_max_u32 v44, v44, v{8+4*k}")
a(f"""
v_cmp_eq_u32 vcc, -1, v44
v_permlane32_swap_b32 v8, v10
v_permlane32_swap_b32 v9, v11
v_mul_f32 v8, v8, v45
v_mul_f32 v9, v9, v45
v_mul_f32 v8, v8, v10
v_mul_f32 v9, v9, v11
v_cvt_pk_bf16_f32 v8, v8, v9
ds_write_b32 v{vHWR}, v8 offset:{L_HB}
s_cbranch_vccnz L_D2retry
L_Dm:
s_add_u32 s{sT}, s{sXO}, {X2}
s_cmp_ge_u32 s{sW}, 2
s_waitcnt lgkmcnt(0)
s_barrier
s_cbranch_scc1 L_Ddone
""")
stamp("h")
for s in range(4): a(f"ds_read_b128 {V4(8+4*s)}, v{vB16} offset:{L_HB + 64*s}")
for s in range(4):
    a(f"s_waitcnt lgkmcnt({LG(3-s)})")
    for t in range(2): a(mfma(24+4*t, A4(aWD+16*t+4*s), V4(8+4*s), s == 0))
a(f"""
s_mov_b64 exec, s[{sDM}:{sDM+1}]
s_nop 6
v_mov_b32 v24, v28
v_mov_b32 v25, v29
v_mov_b32 v26, v30
v_mov_b32 v27, v31
s_mov_b32 exec_lo, 0x00030003
s_mov_b32 exec_hi, 0x00030003
buffer_store_dwordx4 v[24:27], v{vDPA}, s[{RG}:{RG+3}], s{sT} offen sc1
s_mov_b64 exec, -1
L_Ddone:
""")
stamp("x2pub")
stamp_flush()
set_rx(X2)
a(f"""
s_cmp_eq_u32 s{sLAY}, 0
s_cbranch_scc1 L_next
s_mov_b32 s{sPH}, 3
s_cmp_eq_u32 s{sFIN}, 1
s_cbranch_scc0 L_exit
s_cmp_eq_u32 s{sW}, 0
s_cbranch_scc1 L_G
s_branch L_exit
L_final:
s_lshl_b32 s{sT}, s{sKQ}, 8
v_add_u32 v1, s{sT}, v{vHWR}
global_store_dword v1, v{vXW}, s[{sOUT}:{sOUT+1}]
s_cmp_eq_u32 s2, 0
s_cbranch_scc0 L_fin2
s_add_u32 s{sT}, s{sNON}, 1
v_mov_b32 v1, {NONCE}
v_mov_b32 v2, s{sT}
s_mov_b64 exec, 1
global_store_dword v1, v2, s[{sWS}:{sWS+1}]
s_mov_b64 exec, -1
L_fin2:
""")
if STAMP:
    a(f"s_memrealtime s[{sST}:{sST+1}]\ns_waitcnt lgkmcnt(0)\nv_writelane_b32 v{vSTMP}, s{sST}, 16")
    if int(opts.get("dbgout", 0)):
        a(f"""v_writelane_b32 v{vSTMP}, s{sST}, 15
        s_nop 4
        v_readlane_b32 s{sT}, v{vSTMP}, 0
        s_nop 4
        v_subrev_u32 v4, s{sT}, v{vSTMP}
        v_lshrrev_b32 v5, 1, v{vL8}
        s_cmp_eq_u32 s2, 0
        s_cbranch_scc0 L_exit
        s_mov_b64 exec, 0xffff
        global_store_dword v5, v4, s[{sDBG}:{sDBG+1}]
        s_mov_b64 exec, -1""")
a("s_branch L_exit")
a(f"""
L_B:
s_mov_b32 s{sPH}, 1
s_cmp_eq_u32 s{sLAY}, 0
s_cbranch_scc0 L_B1
s_and_b32 s{sM}, s{sCG}, 3
s_lshr_b32 s{sT}, s{sG}, 1
s_mul_i32 s{sT}, s{sT}, 7
s_and_b32 s{sT2}, s{sG}, 1
s_lshl_b32 s{sM+1}, s{sT2}, 2
s_add_u32 s{sT}, s{sT}, s{sM+1}
s_add_u32 s{sT}, s{sT}, s{sM}
s_lshl_b32 s{sT}, s{sT}, 7
s_mul_i32 s{sM+1}, s{sKQ}, {128*3584}
s_add_u32 s{sT}, s{sT}, s{sM+1}
s_add_u32 s{sWG}, s{sWG}, s{sT}
s_addc_u32 s{sWG+1}, s{sWG+1}, 0
s_add_u32 s{sWU}, s{sWU}, s{sT}
s_addc_u32 s{sWU+1}, s{sWU+1}, 0
s_lshl_b32 s{sT2}, s{sT2}, 2
s_or_b32 s{sT2}, s{sT2}, s{sM}
s_lshr_b32 s{sT}, s{sM}, 1
s_lshl_b32 s{sT}, s{sT}, 2
s_add_u32 s{sT}, s{sT}, s{sKQ}
s_lshl_b32 s{sT}, s{sT}, 10
s_and_b32 s{sM}, s{sM}, 1
s_lshl_b32 s{sM}, s{sM}, 8
s_add_u32 s{sT}, s{sT}, s{sM}
s_lshl_b32 s{sM}, s{sW}, 6
s_add_u32 s{sT}, s{sT}, s{sM}
s_add_u32 s{sT}, s{sT}, {HP}
v_add_u32 v{vPUBA}, s{sT}, v{vB16}
v_add_u32 v1, {HCS-HP}, v{vPUBA}
v_bfe_u32 v2, v0, 2, 2
v_cmp_eq_u32 vcc, 1, v2
s_lshl_b32 s{sT}, s{sA4}, 4
s_add_u32 s{sT}, s{sT}, {HS}
v_cndmask_b32 v{vPUBA}, v{vPUBA}, v1, vcc
v_mov_b32 v{vHSA}, s{sT}
s_cmp_eq_u32 s{sT2}, 7
s_cbranch_scc0 L_Bload
""")
for k in range(32): a(f"v_accvgpr_write_b32 a{aW2+k}, 0")
a("s_branch L_B0\nL_Bload:")
a(f"s_movk_i32 s{sT}, 3584\nv_mul_lo_u32 v4, v{vROW}, s{sT}\nv_add_u32 v4, v4, v{vPC16}")
dma(sWG, 4, L_W2, 4, 32 * 3584)
dma(sWU, 4, L_W2 + 0x4000, 4, 32 * 3584)
a(f"""
s_lshl_b32 s{sT}, s{sW}, 5
v_xor_b32 v6, s{sT}, v{vTR0}
v_xor_b32 v7, 32, v6
v_add_u32 v7, {512 + L_W2}, v7
v_add_u32 v6, {L_W2}, v6
s_waitcnt vmcnt(0)
s_barrier
""")
trW(aW2, 0, 6, 7)
trW(aW2 + 16, 0x4000, 6, 7)
a(f"""
L_B0:
s_cmp_eq_u32 s{sW}, 0
s_cbranch_scc0 L_TU
""")
gd_wait()
a(f"""
L_B1:
s_cmp_eq_u32 s{sW}, 0
s_cbranch_scc0 L_TU
""")
set_rx(X1)
a("s_branch L_G")
a(f"""
L_TU:
s_cmp_lg_u32 s{sW}, 0
s_waitcnt lgkmcnt(0)
s_barrier
""")
stamp("x1pub")
for s in range(4): a(f"ds_read_b128 {V4(8+4*s)}, v{vXRD} offset:{512 + 64*s}")
stats()
for s in range(4):
    a(f"s_waitcnt lgkmcnt({LG(3-s)})")
    for m in range(2): a(mfma(24+4*m, A4(aW2+16*m+4*s), V4(8+4*s), s == 0))
def tu_tail(fl, done):
    a(f"""s_mov_b64 exec, s[{sPUBM}:{sPUBM+1}]
    s_cmp_lg_u32 s{sW}, 0
    s_nop 2
    buffer_store_dwordx4 v[24:27], v{vPUBA}, s[{RG}:{RG+3}], 0 offen{fl}
    buffer_store_dwordx4 v[28:31], v{vPUBA}, s[{RG}:{RG+3}], 0 offen offset:512{fl}
    s_cbranch_scc1 {done}
    s_mov_b64 exec, s[{sSTM}:{sSTM+1}]
    buffer_store_dwordx2 v[{vSTG}:{vSTG+1}], v{vHSA}, s[{RG}:{RG+3}], 0 offen{fl}""")
a(f"s_cmp_eq_u32 s{sNF}, 0\ns_cbranch_scc0 L_TUsafe")
tu_tail("", "L_TUd")
a("L_TUd:\ns_mov_b64 exec, -1")
stamp("h")
stamp_flush()
a(f"""
s_cmp_eq_u32 s{sLAY}, 0
s_cbranch_scc0 L_exit
""")
set_rx(X2)
a("L_next:")
next_layer()
a(f"""
s_mov_b32 s{sPH}, 0
s_cmp_eq_u32 s{sW}, 0
s_cbranch_scc1 L_G
s_branch L_TQ
""")
a("L_Gretry:");   spin("L_Gp", "L_Gok")
a("L_QFretry:");  spin("L_QFp", "L_QF2")
a("L_QF2retry:"); spin("L_QFp", "L_S")
a("L_RECsafe:"); rec_tail(" sc1"); a("s_branch L_RECd")
a("L_TUsafe:"); tu_tail(" sc1", "L_TUd"); a("s_branch L_TUd")
a(f"""
L_S0:
v_mov_b32 v{vMODE}, {L_MODE}
ds_read_b32 v{vMODE}, v{vMODE}
s_branch L_S1
L_Sbig:
s_mov_b64 exec, -1
v_max3_f32 v32, v24, v25, v26
v_max_f32 v32, v32, v27
v_max3_f32 v32, v32, v28, v29
v_max3_f32 v32, v32, v30, v31
v_mov_b32 v33, v32
s_nop 1
v_permlane32_swap_b32 v32, v33
v_max_f32 v32, v32, v33
v_mov_b32 v33, v32
s_nop 1
v_permlane16_swap_b32 v32, v33
v_max_f32 v32, v32, v33
""")
for k in range(8): a(f"v_sub_f32 v{40+k}, v{24+k}, v32")
for k in range(8): a(f"v_exp_f32 v{40+k}, v{40+k}")
p_tail()
a(f"""
s_nop 2
ds_write_b64 v{vMWR}, v[32:33] offset:{L_MB}
s_branch L_Sp
L_PVbig:
s_nop 7
{mfma(24, V4(8), A4(aV), True)}
{mfma(28, V4(8), A4(aV+4), True)}
{mfma(40, V4(12), A4(aV+8), True)}
{mfma(44, V4(12), A4(aV+12), True)}
{mfma(48, V4(16), A4(aV+16), True)}
{mfma(8, V4(16), A4(aV+20), True)}
{mfma(12, V4(20), A4(aV+24), True)}
{mfma(16, V4(20), A4(aV+28), True)}
v_max_f32_dpp v34, v32, v32 row_ror:4 {DPPALL}
s_nop 1
v_max_f32_dpp v34, v34, v34 row_ror:8 {DPPALL}
v_sub_f32 v32, v32, v34
v_exp_f32 v32, v32
s_nop 0
v_mul_f32 v35, v32, v33
s_nop 1
v_add_f32_dpp v35, v35, v35 row_ror:1 {DPPALL}
v_mul_f32_dpp v36, v32, v24 row_newbcast:0 {DPPALL}
v_mul_f32_dpp v37, v32, v28 row_newbcast:0 {DPPALL}
v_add_f32_dpp v35, v35, v35 row_ror:2 {DPPALL}
v_fmac_f32_dpp v36, v32, v40 row_newbcast:4 {DPPALL}
v_fmac_f32_dpp v37, v32, v44 row_newbcast:4 {DPPALL}
v_add_f32_dpp v35, v35, v35 row_ror:4 {DPPALL}
v_fmac_f32_dpp v36, v32, v48 row_newbcast:8 {DPPALL}
v_fmac_f32_dpp v37, v32, v8 row_newbcast:8 {DPPALL}
v_add_f32_dpp v35, v35, v35 row_ror:8 {DPPALL}
v_fmac_f32_dpp v36, v32, v12 row_newbcast:12 {DPPALL}
v_fmac_f32_dpp v37, v32, v16 row_newbcast:12 {DPPALL}
v_cvt_pk_bf16_f32 v36, v36, v37
s_nop 1
s_branch L_PVt
L_Obig:
v_max_f32_dpp v6, v4, v4 quad_perm:[1,0,3,2] {DPPALL}
s_nop 1
v_max_f32_dpp v6, v6, v6 quad_perm:[2,3,0,1] {DPPALL}
s_nop 1
v_max_f32_dpp v6, v6, v6 row_half_mirror {DPPALL}
v_mov_b32 v7, v6
s_nop 1
v_permlane32_swap_b32 v6, v7
v_max_f32 v6, v6, v7
v_mov_b32 v7, v6
s_nop 1
v_permlane16_swap_b32 v6, v7
v_max_f32 v6, v6, v7
v_sub_f32 v4, v4, v6
v_exp_f32 v4, v4
s_nop 0
v_mul_f32 v6, v4, v5
s_nop 1
v_add_f32_dpp v6, v6, v6 quad_perm:[1,0,3,2] {DPPALL}
s_nop 1
v_add_f32_dpp v6, v6, v6 quad_perm:[2,3,0,1] {DPPALL}
s_nop 1
v_add_f32_dpp v6, v6, v6 row_half_mirror {DPPALL}
v_mov_b32 v7, v6
s_nop 1
v_permlane32_swap_b32 v6, v7
v_add_f32 v6, v6, v7
v_mov_b32 v7, v6
s_nop 1
v_permlane16_swap_b32 v6, v7
v_add_f32 v6, v6, v7
v_rcp_f32 v6, v6
""")
for t in range(4):
    a(f"v_mul_f32_dpp v{40+t}, v4, v{24+4*t} row_newbcast:0 {DPPALL}")
    for r in range(1, 4): a(f"v_fmac_f32_dpp v{40+t}, v4, v{24+4*t+r} row_newbcast:{r} {DPPALL}")
a("s_branch L_Ot")
a(f"""
L_TQalt:
s_cmp_eq_u32 s{sLAY}, 0
s_cbranch_scc1 L_TQ0
""")
tq_tail(" sc1")
a(f"""
s_branch L_QFe
L_TQ0:
s_nop 3
""")
for k in range(4): a(f"v_bfi_b32 v{24+k}, v{vMASK}, v{24+k}, s{sT0+k}")
K1 = int(opts["k1"])
def kdma(j0, j1):
    for j in range(j0, j1):
        a(f"v_xor_b32 v5, {64*(j&3)}, v4\nglobal_load_lds_dwordx4 v5, s[{sK}:{sK+1}] {POL}")
        if j < 7: a(f"s_add_u32 m0, m0, 1024\ns_add_u32 s{sK}, s{sK}, 1024\ns_addc_u32 s{sK+1}, s{sK+1}, 0")
def qloads():
    a(f"buffer_load_dwordx4 v[48:51], v{vQGA}, s[{RT}:{RT+3}], 0 offen sc1")
    for k in range(4):
        for u in range(2):
            so = "0" if k < 2 else f"s{sT}"
            a(f"buffer_load_dwordx4 {V4(8+16*u+4*k)}, v{vL16}, s[{RT}:{RT+3}], {so} offen offset:{(k&1)*2048+u*1024} sc1")
def kreads():
    for s in range(4):
        a(f"v_xor_b32 v5, {64*s}, v3")
        for t in range(2): a(f"ds_read_b128 {A4(aK+16*t+4*s)}, v5 offset:{4096*t}")
def vreads():
    for w in range(4):
        for c in range(2):
            for e in range(2):
                r = aV + 8*w + 4*c + 2*e
                a(f"ds_read_b64_tr_b16 a[{r}:{r+1}], v{6+c} offset:{L_V + w*8192 + e*4096}")
def l0_addr():
    a(f"""v_bfe_u32 v34, v0, 2, 2
    v_bfe_u32 v35, v0, 4, 2
    v_lshl_add_u32 v36, v35, 2, v34
    v_and_b32 v37, 7, v36
    v_lshlrev_b32 v37, 1, v37
    v_bfe_u32 v38, v0, 1, 1
    s_lshl_b32 s{sT}, s{sW}, 2
    v_or_b32 v38, s{sT}, v38
    v_xor_b32 v37, v37, v38
    v_lshlrev_b32 v37, 4, v37
    v_lshl_add_u32 v36, v36, 8, v37
    v_and_b32 v37, 1, v0
    v_lshl_add_u32 v6, v37, 3, v36
    v_xor_b32 v7, 32, v6
    v_and_b32 v3, 15, v0
    v_xor_b32 v5, v35, v3
    v_lshlrev_b32 v5, 4, v5
    v_lshl_add_u32 v3, v3, 8, v5
    s_lshl_b32 s{sT}, s{sW}, 13
    s_add_u32 s{sT}, s{sT}, {L_K}
    v_add_u32 v3, s{sT}, v3""")
a(f"""
s_mov_b64 exec, s[{sPUBM}:{sPUBM+1}]
buffer_store_dwordx4 v[24:27], v{vQPA}, s[{RT}:{RT+3}], 0 offen
s_mov_b64 exec, -1
v_xor_b32 v4, v{vB16}, v{vL16}
s_lshl_b32 s{sT}, s{sW}, 13
v_add_u32 v4, s{sT}, v4
s_add_u32 m0, s{sT}, {L_K}
s_mov_b32 s{sT2}, {BOFF}
s_cmp_eq_u32 s{sW}, 0
s_cbranch_scc0 L_K0
s_mov_b64 exec, s[{sSTM}:{sSTM+1}]
buffer_store_dwordx4 {V4(vSTG)}, v{vQSA}, s[{RT}:{RT+3}], 0 offen
s_mov_b64 exec, -1
""")
stamp("qpub")
kdma(0, 8)
a(f"""
s_mov_b64 exec, s[{sPUBM}:{sPUBM+1}]
buffer_store_dwordx4 v[24:27], v{vQPA}, s[{RT}:{RT+3}], s{sT2} offen sc1
s_mov_b64 exec, s[{sSTM}:{sSTM+1}]
buffer_store_dwordx4 {V4(vSTG)}, v{vQSA}, s[{RT}:{RT+3}], s{sT2} offen sc1
s_mov_b64 exec, -1
""")
l0_addr()
a(f"s_movk_i32 s{sT}, 4096\ns_waitcnt vmcnt({2 + int(opts['kw'])})")
stamp("kw")
qloads()
a("s_barrier")
vreads()
a("s_waitcnt vmcnt(9)")
kreads()
a(f"""s_waitcnt vmcnt(8)
s_branch L_Q01
L_K0:""")
kdma(0, K1)
a(f"""
s_mov_b64 exec, s[{sPUBM}:{sPUBM+1}]
buffer_store_dwordx4 v[24:27], v{vQPA}, s[{RT}:{RT+3}], s{sT2} offen sc1
s_mov_b64 exec, -1
""")
l0_addr()
a(f"""s_waitcnt vmcnt({K1 + 1})
s_barrier""")
kdma(K1, 8)
a(f"""
s_mul_i32 s{sT2}, s{sI}, {CLR}
v_lshlrev_b32 v5, 3, v{vL16}
v_min_u32 v5, {CLR-128}, v5
buffer_load_dword v{vJUNK}, v5, s[{RG}:{RG+3}], s{sT2} offen sc1
s_cmp_ge_u32 s{sI}, 16
s_cbranch_scc1 L_K1""")
wo_issue()
vreads()
a("s_waitcnt vmcnt(9)")
kreads()
a(f"""s_cmp_eq_u32 s{sW}, 3
s_cbranch_scc0 L_S
s_sub_u32 s{sWO}, s{sWO}, {7*32*1024 + 24*1024}
s_subb_u32 s{sWO+1}, s{sWO+1}, 0
s_mov_b32 m0, {L_W2}""")
for j in range(8):
    if j == 0: a("s_nop 0")
    a(f"global_load_lds_dwordx4 v4, s[{sWO}:{sWO+1}] {POL}")
    if j < 7: a(f"s_add_u32 m0, m0, 4096\ns_add_u32 s{sWO}, s{sWO}, {32*1024}\ns_addc_u32 s{sWO+1}, s{sWO+1}, 0")
a("s_branch L_S\nL_K1:")
vreads()
a("s_waitcnt vmcnt(1)")
kreads()
a("s_branch L_S")
a("L_Q0p:")
qloads()
a(f"""
s_waitcnt vmcnt(8)
L_Q01:
v_cmp_ne_u32 vcc, s{sTAG}, v50""")
ln_chain(True)
a("s_cbranch_vccnz L_Q0retry\nL_Q02:")
stamp("qf2")
ln_chain(False)
a("s_waitcnt vmcnt(6)")
xor_acc(8, True); xor_acc(24, False)
a(f"v_mul_f32 v48, {f32(QSCALE)}, v48")
for k in range(1, 4):
    for u in range(2):
        a(f"s_waitcnt vmcnt({7 - 2*k - u})")
        xor_acc(8+16*u+4*k, False)
        for h in range(2):
            r = 8 + 16*u + 2*h
            a(f"v_pk_add_f32 v[{r}:{r+1}], v[{r}:{r+1}], v[{r+4*k}:{r+4*k+1}]")
a(f"""
v_and_b32 v44, 255, v44
v_cmp_ne_u32 vcc, 0, v44
v_pk_mul_f32 v[8:9], v[8:9], v[48:49] op_sel_hi:[1,0]
v_pk_mul_f32 v[10:11], v[10:11], v[48:49] op_sel_hi:[1,0]
v_pk_mul_f32 v[24:25], v[24:25], v[48:49] op_sel_hi:[1,0]
v_pk_mul_f32 v[26:27], v[26:27], v[48:49] op_sel_hi:[1,0]
v_cvt_pk_bf16_f32 v8, v8, v9
v_cvt_pk_bf16_f32 v9, v10, v11
v_cvt_pk_bf16_f32 v10, v24, v25
v_cvt_pk_bf16_f32 v11, v26, v27
ds_write_b64 v{vL8}, v[8:9] offset:{L_QB}
ds_write_b64 v{vL8}, v[10:11] offset:{L_QB+512}
s_cbranch_vccnz L_Q02retry
L_Q0ok:
""")
stamp("qfok")
a(f"""
v_cmp_ne_u32 vcc, v51, v{vSTG+3}
s_cmp_eq_u64 vcc, 0
s_cselect_b32 s{sT}, 0, 1
v_mov_b32 v8, s{sT}
v_mov_b32 v9, {L_MODE}
ds_write_b32 v9, v8
s_cbranch_scc0 L_slow
L_slowdone:
s_cmp_eq_u32 s{sI}, 0
s_cbranch_scc0 L_S
s_lshl_b32 s{sT}, s{sG}, 7
s_add_u32 s{sT}, s{sT}, {GD}
v_mov_b32 v9, s{sT}
s_mov_b64 exec, 1
global_store_dword v9, v{vSTG+2}, s[{sWS}:{sWS+1}] sc1
s_branch L_S
""")
def qretry(giveup):
    l = a.label("QR")
    if DBG: a(f"s_mov_b64 exec, 1\nv_mov_b32 v45, 0\nv_mov_b32 v46, 1\nglobal_atomic_add v45, v46, s[{sDBG}:{sDBG+1}]\ns_mov_b64 exec, -1")
    a(f"""s_sub_u32 s{sTRY}, s{sTRY}, 1
    s_cmp_eq_u32 s{sTRY}, 0
    s_cbranch_scc0 {l}
    s_add_u32 s{RT}, s{RT}, {BOFF}
    s_addc_u32 s{RT+1}, s{RT+1}, 0
    {l}:""")
    spin("L_Q0p", giveup)
a("L_Q0retry:");  qretry("L_Q02")
a("L_Q02retry:"); qretry("L_Q0ok")
a(f"""
L_slow:
s_mul_i32 s{sT}, s{sI}, {CLR}
v_mov_b32 v12, -1
v_mov_b32 v13, -1
v_mov_b32 v14, -1
v_mov_b32 v15, -1
v_min_u32 v9, {CLR - 3072 - 16}, v{vL16}
buffer_store_dwordx4 v[12:15], v{vL16}, s[{RG}:{RG+3}], s{sT} offen sc1
buffer_store_dwordx4 v[12:15], v{vL16}, s[{RG}:{RG+3}], s{sT} offen offset:1024 sc1
buffer_store_dwordx4 v[12:15], v{vL16}, s[{RG}:{RG+3}], s{sT} offen offset:2048 sc1
buffer_store_dwordx4 v[12:15], v9, s[{RG}:{RG+3}], s{sT} offen offset:3072 sc1
s_mul_i32 s{sT}, s{sG}, {TGS}
s_add_u32 s{sT}, s{sT}, {TG + FL}
s_lshl_b32 s{sT2}, s{sI}, 4
s_add_u32 s{sT2}, s{sT2}, s{sT}
v_mov_b32 v9, s{sT2}
s_waitcnt vmcnt(0)
s_mov_b64 exec, 1
global_store_dword v9, v{vSTG+2}, s[{sWS}:{sWS+1}] sc1
s_mov_b64 exec, -1
v_and_b32 v9, 0x1f0, v{vL16}
v_add_u32 v9, s{sT}, v9
L_slowp:
global_load_dword v8, v9, s[{sWS}:{sWS+1}] sc1
s_waitcnt vmcnt(0)
v_cmp_ne_u32 vcc, s{sTAG}, v8
s_cbranch_vccz L_slowdone
""")
spin("L_slowp", "L_slowdone")
if OM in ("bell", "bell2"):
    a("L_Obretry:"); spin("L_Ob", "L_Op")
a("L_Oretry:");   spin("L_Op", "L_O2")
a("L_O2retry:");  spin("L_Op", "L_Ook")
a("L_Dretry:");   spin("L_Dp", "L_D2")
a("L_D2retry:");  spin("L_Dp", "L_Dm")
a("L_exit:")
stamp_store()
a("L_end:\ns_endpgm")

txt = a.text()
if int(opts.get("solo", 0)):
    import re
    txt = re.sub(r"s_cbranch_vccnz L_\w*retry", "s_nop 0", txt)
    txt = re.sub(r"s_cbranch_vccz (\w+)\n", r"s_branch \1\n", txt)
    txt = txt.replace("s_cbranch_scc0 L_slow\n", "s_nop 0\n")
    txt = txt.replace("s_memrealtime", "s_memtime").replace(f"s_cselect_b32 s{sT}, 0, 1", f"s_mov_b32 s{sT}, 0")
open(sys.argv[1], "w").write(wrap(txt, 256, 256, LDS_SIZE, NVGPR + NAGPR, accum=NVGPR))
if STAMP: print(",".join(stamp_names))
if DBG: print(list(enumerate(spin_ids, 1)))
```

```python
import sys, math, struct
from asmlib import *

opts = dict(stamp=0, pol="nt", dbg=0, wo="spec", kw=2, v1=4, k1=8, om="ack", xack=1, bgd=1, vearly=1, il=1, kup=0, sd=0, sb=0, sx=0, bell=1, bell0=0, bell2=1, abell=1, fbell=0)
for x in sys.argv[2:]:
    k, v = x.split("="); opts[k] = v
STAMP = int(opts["stamp"]); DBG = int(opts["dbg"]); POL = opts["pol"].replace("def", "").replace("_", " ")

IL = int(opts["il"])
VSTEP, KSTEP, KWSH, ISH = (131072, 32768, 18, 10) if IL else (4096, 1024, 13, 15)
a = Asm()
NONCE = 0x0
GD = 0x400
GB = 0x2000
GS = 0x1F400
LS = 0xA800
REC, ML, HP, HS, BL = 0x0, 0x8000, 0x8400, 0xA400, 0xA600
HCS = 2 * LS
QP1 = HCS + 0x2000
QS1 = QP1 + 0x2000
CLR = 3328
XR = 32 * CLR
X1, X2, XLS = XR, XR + 5120, 10240
assert HS + 512 <= LS and QS1 + 256 <= XR and XR + 2 * XLS <= GS
TG = 0x200000
QP, QS, QCS = 0x0, 0x2000, 0x2400
FL = QCS + 0x2000
BOFF = 0x5000
TGS = 2 * BOFF + 0x400
WSSIZE = 0x400000
L_X = 0x0
L_HB, L_QB, L_PB, L_MB, L_YB, L_MODE, L_CS = 0x400, 0x600, 0xA00, 0xE00, 0x1000, 0x1400, 0x1800
L_WQ, L_V, L_W2, L_WD = 0x2000, 0x6000, 0xE000, 0x2000
L_K = 0x16000
LDS_SIZE = 0x1E000
sX, sK, sV, sWQ, sWO, sWG, sWU, sWD, sOUT, sDBG, sWS = 4, 6, 8, 10, 12, 16, 18, 20, 22, 24, 26
sG, sI, sW, sKQ, sCG, sA4 = 28, 29, 30, 31, 32, 33
sLAY, sXO = 34, 35
RG = 36
RX = 40
sGO = 44
RT = 52
sTAG, sT0 = 56, 57
sSPIN, sPH, sT, sT2, sNON = 61, 62, 63, 64, 65
sQUADM, sMLM, sPUBM, sDM, sM = 66, 68, 70, 72, 74
sTH = 3
sFIN, sTRY = 76, 77
sNF, sALT = 14, 15
sSTM = 78
sST = 80
aK, aV, aWQ, aW2, aWD = 0, 32, 64, 80, 144
NAGPR = 176
vSTG = 52
vMASK, vONE, vJUNK = 56, 57, 60
vCS = 64
(vQCS, vHCS) = (96, 104)
(vR0, vR1, vXW, vXRD, vXWR, vGA, vQPA, vQGA, vQSA, vRECA, vMLA, vOA, vOML, vHGA, vPUBA, vROW, vPC16, vTR0,
 vSTMP, vL16, vL8, vQRD, vPRD, vPWR, vMWR, vMRD, vYWR, vB16, vHWR, vHSA, vDPA, vMODE, vVA, vQL, vKA) = range(108, 143)
NVGPR = 144
ONES = 0x3F803F80
QSCALE = math.log2(math.e) / math.sqrt(128.0)
def f32(x): return "0x%08x" % struct.unpack("<I", struct.pack("<f", x))[0]
DPPALL = "row_mask:0xf bank_mask:0xf"
LG = lambda n: n

stamp_names = []; spin_ids = []
SEL = opts.get("sel", "start,wq,xq,qpub,q,p,rec,x1pub,h,x2pub").split(",")
def stamp(name):
    if not STAMP or name not in SEL: return
    if name not in stamp_names: stamp_names.append(name)
    k = stamp_names.index(name); assert k < 11
    a(f"s_memrealtime s[{sST+2*k}:{sST+2*k+1}]")
def stamp_flush():
    if not STAMP: return
    l1 = a.label("SF"); l2 = a.label("SF")
    a("s_waitcnt lgkmcnt(0)")
    a(f"s_cmp_eq_u32 s{sLAY}, 0\ns_cbranch_scc0 {l1}")
    for k in range(11): a(f"v_writelane_b32 v{vSTMP}, s{sST+2*k}, {k}")
    a(f"s_branch {l2}\n{l1}:")
    for k in range(11): a(f"v_writelane_b32 v{vSTMP}, s{sST+2*k}, {k+16}")
    a(f"{l2}:")
def stamp_store():
    if not STAMP: return
    l1 = a.label("SS")
    a(f"""s_cmp_eq_u32 s{sW}, {opts.get("sw", 0)}
    s_cbranch_scc0 {l1}
    s_mov_b32 exec_lo, -1
    s_mov_b32 exec_hi, 0
    s_lshl_b32 s{sT}, s2, 8
    s_add_u32 s{sM}, s{sWS}, s{sT}
    s_addc_u32 s{sM+1}, s{sWS+1}, 0
    s_add_u32 s{sM}, s{sM}, 0x10000000
    s_addc_u32 s{sM+1}, s{sM+1}, 0
    v_mov_b32 v4, v{vSTMP}
    v_mov_b32 v5, 0
    global_store_dwordx2 v{vL8}, v[4:5], s[{sM}:{sM+1}]
    {l1}:""")

def spin(lab_retry, lab_giveup):
    a(f"s_sub_u32 s{sSPIN}, s{sSPIN}, 1\ns_cbranch_scc0 {lab_retry}\ns_mov_b32 s{sSPIN}, 0")
    if DBG:
        spin_ids.append(lab_retry)
        a(f"s_mov_b64 s[{sM}:{sM+1}], exec\ns_mov_b64 exec, 1\nv_mov_b32 v45, {4*len(spin_ids)}\nv_mov_b32 v46, 1\nglobal_atomic_add v45, v46, s[{sDBG}:{sDBG+1}]\ns_mov_b64 exec, s[{sM}:{sM+1}]")
    a(f"s_branch {lab_giveup}")

def dma(ptr, voff, lds_base, n, gstep):
    a(f"s_lshl_b32 s{sT}, s{sW}, 10\ns_add_u32 m0, s{sT}, {lds_base}")
    for j in range(n):
        if j == 0: a("s_nop 0")
        a(f"global_load_lds_dwordx4 v{voff}, s[{ptr}:{ptr+1}] {POL}")
        if j + 1 < n:
            a(f"s_add_u32 m0, m0, 4096\ns_add_u32 s{ptr}, s{ptr}, {gstep}\ns_addc_u32 s{ptr+1}, s{ptr+1}, 0")

def trW(dst, base, vA, vB):
    for s in range(4):
        a(f"ds_read_b64_tr_b16 a[{dst+4*s}:{dst+4*s+1}], v{vA} offset:{base + s*4096}")
        a(f"ds_read_b64_tr_b16 a[{dst+4*s+2}:{dst+4*s+3}], v{vB} offset:{base + s*4096}")
def mfma(d, A, B, first):
    return f"v_mfma_f32_16x16x32_bf16 v[{d}:{d+3}], {A}, {B}, {'0' if first else f'v[{d}:{d+3}]'}"
V4 = lambda r: f"v[{r}:{r+3}]"
A4 = lambda r: f"a[{r}:{r+3}]"

def wo_issue():
    a(f"""
    s_lshl_b32 s{sT}, s{sG}, 1
    s_lshr_b32 s{sT2}, s{sA4}, 3
    s_add_u32 s{sT}, s{sT}, s{sT2}
    s_lshl_b32 s{sT}, s{sT}, 18
    s_and_b32 s{sT2}, s{sA4}, 7
    s_lshl_b32 s{sT2}, s{sT2}, 7
    s_add_u32 s{sT}, s{sT}, s{sT2}
    s_add_u32 s{sWO}, s{sWO}, s{sT}
    s_addc_u32 s{sWO+1}, s{sWO+1}, 0
    v_lshl_add_u32 v4, v{vROW}, 10, v{vPC16}
    """)
    dma(sWO, 4, L_W2, 8, 32 * 1024)

stamp("start")
a(f"""
s_cmp_ge_u32 s2, 256
s_cbranch_scc1 L_end
s_getpc_b64 s[{sSTM}:{sSTM+1}]
L_pc:
s_load_dwordx16 s[4:19], s[0:1], 0
s_load_dwordx8 s[20:27], s[0:1], 64
v_lshlrev_b32 v1, 7, v0
v_min_u32 v1, L_end-L_pc, v1
global_load_dword v{vJUNK}, v1, s[{sSTM}:{sSTM+1}]
v_lshrrev_b32 v3, 6, v0
v_lshrrev_b32 v4, 1, v0
v_readfirstlane_b32 s{sW}, v3
v_xor_b32 v4, v4, v0
v_lshlrev_b32 v5, 1, v4
v_and_b32 v5, 32, v5
v_and_or_b32 v5, v4, 64, v5
v_lshlrev_b32 v11, 4, v0
v_and_b32 v6, 0x70, v11
v_xor_b32 v{vPC16}, v5, v6
v_lshrrev_b32 v{vROW}, 3, v0
v_lshl_add_u32 v7, v{vROW}, 13, v{vPC16}
s_and_b32 s{sG}, s2, 7
s_lshr_b32 s{sI}, s2, 3
s_and_b32 s{sKQ}, s{sI}, 3
s_lshr_b32 s{sCG}, s{sI}, 2
s_lshl_b32 s{sT}, s{sKQ}, 20
s_lshl_b32 s{sT2}, s{sG}, 10
s_lshl3_add_u32 s{sT2}, s{sCG}, s{sT2}
s_lshl_b32 s{sM}, s{sW}, 10
s_add_u32 m0, s{sM}, {L_WQ}
s_mul_i32 s{sA4}, s{sCG}, 120
s_add_u32 s{sT}, s{sT}, s{sT2}
s_add_u32 s{sT}, s{sT}, s{sA4}
s_waitcnt lgkmcnt(0)
s_add_u32 s{sWQ}, s{sWQ}, s{sT}
s_addc_u32 s{sWQ+1}, s{sWQ+1}, 0
""")
stamp("karg")
for j in range(4):
    a(f"global_load_lds_dwordx4 v7, s[{sWQ}:{sWQ+1}] {POL}")
    if j < 3: a(f"s_add_u32 m0, m0, 4096\nv_add_u32 v7, {32*8192}, v7")
a(f"""
s_load_dword s{sNON}, s[{sWS}:{sWS+1}], {NONCE}
v_lshlrev_b32 v5, 1, v0
v_and_b32 v5, 0xe0, v5
v_xor_b32 v{vVA}, v11, v5
{f"v_and_b32 v{vVA}, 0x3ff, v{vVA}" if IL else ""}
{f"v_lshl_add_u32 v{vVA}, v3, 15, v{vVA}" if IL else ""}
s_lshl_b32 s{sT}, s{sG}, 24
s_lshl_b32 s{sT2}, s{sI}, {ISH}
s_add_u32 s{sT}, s{sT}, s{sT2}
s_add_u32 s{sT}, s{sT}, 0xF00000
s_add_u32 s{sV}, s{sV}, s{sT}
s_addc_u32 s{sV+1}, s{sV+1}, 0
s_add_u32 m0, s{sM}, {L_V}
s_add_u32 s{sK}, s{sK}, s{sT}
s_addc_u32 s{sK+1}, s{sK+1}, 0
global_load_lds_dwordx4 v{vVA}, s[{sV}:{sV+1}] {POL}
v_and_b32 v8, 31, v0
v_bfe_u32 v9, v0, 5, 1
v_lshlrev_b32 v8, 3, v8
v_lshl_or_b32 v{vHWR}, v9, 2, v8
s_lshl_b32 s{sT}, s{sKQ}, 8
v_add_u32 v10, s{sT}, v{vHWR}
global_load_dword v{vXW}, v10, s[{sX}:{sX+1}]
v_and_b32 v{vL16}, 0x3f0, v11
global_load_dwordx4 v[20:23], v{vL16}, s[{sX}:{sX+1}]
s_mul_i32 s{sT}, s{sG}, {GS}
s_add_u32 s{sT}, s{sT}, {GB}
s_add_u32 s{RG}, s{sWS}, s{sT}
s_addc_u32 s{RG+1}, s{sWS+1}, 0
s_mul_i32 s{sT}, s{sG}, {TGS}
s_add_u32 s{sT}, s{sT}, {TG}
s_add_u32 s{RT}, s{sWS}, s{sT}
s_addc_u32 s{RT+1}, s{sWS+1}, 0
s_lshl_b32 s{sT}, s{sI}, 10
v_lshl_add_u32 v6, v6, 3, s{sT}
global_load_dword v{vJUNK+1}, v6, s[{RT}:{RT+1}] sc1
v_mov_b32 v12, -1
v_mov_b32 v13, -1
v_mov_b32 v14, -1
v_mov_b32 v15, -1
s_mul_i32 s{sT}, s{sI}, {CLR}
v_min_u32 v10, {CLR-16}, v11
v_add_u32 v10, s{sT}, v10
global_store_dwordx4 v10, v[12:15], s[{RG}:{RG+1}]
s_cmp_eq_u32 s{sW}, 3
s_cbranch_scc0 L_clrd
s_mul_i32 s{sT}, s{sI}, 640
s_add_u32 s{sT}, s{sT}, {XR}
v_min_u32 v10, 624, v{vL16}
v_add_u32 v10, s{sT}, v10
global_store_dwordx4 v10, v[12:15], s[{RG}:{RG+1}] sc1
L_clrd:
""")
NV1 = int(opts["v1"])
for j in range(1, NV1):
    a(f"s_add_u32 m0, m0, 4096\nv_add_u32 v{vVA}, {VSTEP}, v{vVA}\nglobal_load_lds_dwordx4 v{vVA}, s[{sV}:{sV+1}] {POL}")
a(f"""
v_and_b32 v1, 15, v0
v_bfe_u32 v2, v0, 4, 2
""")
stamp("iss")
a(f"""
s_mov_b32 s{RG+2}, 0x20000
s_mov_b32 s{RG+3}, 0x20000
s_mov_b32 s{RX+2}, {WSSIZE}
s_mov_b32 s{RX+3}, 0x20000
s_mov_b32 s{RT+2}, {2*BOFF}
s_mov_b32 s{RT+3}, 0x20000
s_mov_b32 s{sLAY}, 0
s_mov_b32 s{sALT}, 1
s_mov_b32 s{sNF}, 1
s_mov_b32 s{sTH}, 0x42000000
s_movk_i32 s{sTRY}, 64
s_mov_b32 s{sSPIN}, 0x20000
s_mov_b32 s{sQUADM}, 0x11111111
s_mov_b32 s{sQUADM+1}, 0x11111111
s_mov_b32 s{sDM}, 0x00020002
s_mov_b32 s{sDM+1}, 0x00020002
s_mov_b32 s{sPUBM}, 0x00110011
s_mov_b32 s{sPUBM+1}, 0x00110011
s_lshl_b32 s{sT}, s{sW}, 4
s_lshl_b64 s[{sMLM}:{sMLM+1}], 1, s{sT}
s_and_b32 s{sA4}, s{sI}, 15
s_or_b32 s{sT}, s{sG}, s{sCG}
s_cmp_eq_u32 s{sT}, 0
s_cselect_b32 s{sFIN}, 1, 0
s_mov_b32 s{sSTM}, 0
s_brev_b32 s{sSTM+1}, 1
s_lshr_b32 s{sXO}, s{sA4}, 3
s_mul_i32 s{sXO}, s{sXO}, 2560
s_and_b32 s{sT2}, s{sA4}, 7
s_lshl_b32 s{sT2}, s{sT2}, 8
s_add_u32 s{sXO}, s{sXO}, s{sT2}
""")
for gp in range(8):
    a(f"s_mov_b32 s{sGO+gp}, {gp*GS}")
a(f"""
v_bfe_u32 v3, v0, 2, 2
v_and_b32 v4, 3, v0
v_lshrrev_b32 v{vL8}, 1, v{vL16}
v_lshlrev_b32 v{vB16}, 4, v2
v_add_u32 v5, 256, v{vB16}
v_cmp_eq_u32 vcc, 1, v3
v_mov_b32 v{vXWR}, v{vHWR}
v_mov_b32 v{vONE}, {ONES}
v_cndmask_b32 v{vXRD}, v{vB16}, v5, vcc
v_lshlrev_b32 v5, 1, v8
s_lshl_b32 s{sT}, s{sKQ}, 9
v_add_u32 v{vGA}, s{sT}, v5
v_mul_u32_u24 v6, 2560, v9
v_add_u32 v{vGA}, v{vGA}, v6
s_lshr_b32 s{sT}, s{sA4}, 3
s_lshl_b32 s{sT}, s{sT}, 12
s_add_u32 s{sT}, s{sT}, {HP}
v_lshl_add_u32 v{vHGA}, v9, 9, v5
v_add_u32 v{vHGA}, s{sT}, v{vHGA}
v_lshlrev_b32 v{vHSA}, 4, v4
v_add_u32 v{vHSA}, {HS}, v{vHSA}
s_lshl_b32 s{sT}, s{sKQ}, 11
s_lshl_b32 s{sT2}, s{sCG}, 8
s_add_u32 s{sT}, s{sT}, s{sT2}
s_lshl_b32 s{sT2}, s{sW}, 6
s_add_u32 s{sT}, s{sT}, s{sT2}
v_add_u32 v{vQPA}, s{sT}, v{vB16}
v_add_u32 v7, {QCS}, v{vQPA}
v_cndmask_b32 v{vQPA}, v{vQPA}, v7, vcc
v_add_u32 v{vQGA}, {QS}, v5
s_lshl_b32 s{sT}, s{sI}, 4
s_add_u32 s{sT}, s{sT}, {QS}
v_mov_b32 v{vQSA}, s{sT}
s_lshr_b32 s{sT}, s{sI}, 4
s_lshl_b32 s{sT}, s{sT}, 12
s_lshl_b32 s{sT2}, s{sW}, 10
s_add_u32 s{sT}, s{sT}, s{sT2}
s_lshl_b32 s{sT2}, s{sA4}, 6
s_add_u32 s{sT}, s{sT}, s{sT2}
v_lshlrev_b32 v7, 13, v2
v_lshl_add_u32 v7, v3, 4, v7
v_add_u32 v{vRECA}, s{sT}, v7
s_lshl_b32 s{sT}, s{sI}, 3
s_add_u32 s{sT}, s{sT}, {ML}
v_lshlrev_b32 v7, 8, v2
v_add_u32 v{vMLA}, s{sT}, v7
s_lshr_b32 s{sT}, s{sA4}, 3
s_lshl_b32 s{sT}, s{sT}, 2
s_add_u32 s{sT}, s{sT}, s{sW}
s_lshl_b32 s{sT2}, s{sT}, 12
v_lshl_add_u32 v7, v1, 6, v{vB16}
v_add_u32 v{vOA}, s{sT2}, v7
s_lshr_b32 s{sT2}, s{sT}, 1
s_lshl_b32 s{sT2}, s{sT2}, 8
s_add_u32 s{sT2}, s{sT2}, {ML}
s_and_b32 s{sT}, s{sT}, 1
v_and_b32 v7, 1, v3
v_xor_b32 v7, s{sT}, v7
v_lshlrev_b32 v7, 4, v7
v_lshl_add_u32 v7, v2, 2, v7
v_add_u32 v7, v7, v4
v_lshlrev_b32 v7, 3, v7
v_add_u32 v{vOML}, s{sT2}, v7
v_lshl_add_u32 v7, v2, 3, v3
v_lshlrev_b32 v7, 7, v7
v_lshrrev_b32 v10, 1, v2
v_xor_b32 v10, v10, v2
v_and_b32 v10, 1, v10
v_lshrrev_b32 v11, 1, v3
v_lshl_or_b32 v10, v10, 1, v11
v_lshlrev_b32 v10, 5, v10
v_lshl_or_b32 v10, v4, 3, v10
v_or_b32 v{vTR0}, v7, v10
v_lshl_add_u32 v{vQRD}, v3, 8, v{vB16}
v_lshl_add_u32 v{vPRD}, v3, 6, v{vB16}
s_lshl_b32 s{sT}, s{sW}, 8
v_add_u32 v{vPWR}, s{sT}, v{vPRD}
v_lshrrev_b32 v7, 1, v2
v_and_b32 v10, 1, v2
v_lshl_or_b32 v7, v10, 1, v7
v_lshlrev_b32 v7, 6, v7
v_lshl_add_u32 v7, v1, 2, v7
v_add_u32 v{vYWR}, s{sT}, v7
s_lshl_b32 s{sT}, s{sW}, 5
v_lshlrev_b32 v7, 3, v2
v_lshl_add_u32 v7, v3, 7, v7
v_add_u32 v{vMWR}, s{sT}, v7
v_lshlrev_b32 v7, 3, v1
v_lshl_add_u32 v{vMRD}, v2, 7, v7
s_lshl_b32 s{sT}, s{sW}, 7
v_lshl_add_u32 v7, v1, 6, v{vB16}
v_add_u32 v{vDPA}, s{sT}, v7
v_mov_b32 v{vPUBA}, 0
v_mov_b32 v{vMASK}, 0xffffff00
v_lshrrev_b32 v11, 1, v{vL8}
ds_write_b32 v11, v{vONE} offset:{L_X+256}
ds_write_b32 v11, v{vONE} offset:{L_X+768}
s_getreg_b32 s{sT2}, hwreg(HW_REG_XCC_ID)
s_and_b32 s{sT2}, s{sT2}, 15
v_mov_b32 v{vSTG+3}, s{sT2}
s_waitcnt lgkmcnt(0)
s_mul_i32 s{sTAG}, s{sNON}, 0x9E3779B1
s_add_u32 s{sTAG}, s{sTAG}, 0x7F4A7C15
s_and_b32 s{sT0}, s{sTAG}, 255
s_bfe_u32 s{sT0+1}, s{sTAG}, 0x80008
s_bfe_u32 s{sT0+2}, s{sTAG}, 0x80010
s_lshr_b32 s{sT0+3}, s{sTAG}, 24
v_mov_b32 v{vSTG+2}, s{sTAG}
s_lshl_b32 s{sT}, s{sW}, 5
v_xor_b32 v10, s{sT}, v{vTR0}
v_xor_b32 v11, 32, v10
v_add_u32 v11, 512, v11
""")
stamp("setup")
for j in range(NV1, 8):
    a(f"s_add_u32 m0, m0, 4096\nv_add_u32 v{vVA}, {VSTEP}, v{vVA}\nglobal_load_lds_dwordx4 v{vVA}, s[{sV}:{sV+1}] {POL}")
KUP = int(opts["kup"])
def kdma(j0, j1):
    for j in range(j0, j1):
        a(f"v_xor_b32 v5, {64*(j&3)}, v{vKA}\nglobal_load_lds_dwordx4 v5, s[{sK}:{sK+1}] {POL}")
        if j < 7: a(f"s_add_u32 m0, m0, 1024\ns_add_u32 s{sK}, s{sK}, {KSTEP}\ns_addc_u32 s{sK+1}, s{sK+1}, 0")
a(f"""v_xor_b32 v{vKA}, v{vB16}, v{vL16}
s_lshl_b32 s{sT}, s{sW}, {KWSH}
v_add_u32 v{vKA}, s{sT}, v{vKA}
s_lshl_b32 s{sT}, s{sW}, 13
s_add_u32 m0, s{sT}, {L_K}""")
kdma(0, KUP)
stamp("iss2")
a(f"""
s_waitcnt vmcnt({7 + KUP})
v_dot2_f32_bf16 v24, v20, v{vONE}, 0
v_dot2_f32_bf16 v24, v21, v{vONE}, v24
v_dot2_f32_bf16 v24, v22, v{vONE}, v24
v_dot2_f32_bf16 v24, v23, v{vONE}, v24
v_lshlrev_b32 v{vR0}, 16, v{vXW}
v_and_b32 v{vR1}, 0xffff0000, v{vXW}
s_nop 0
v_add_f32_dpp v24, v24, v24 row_ror:1 {DPPALL}
s_nop 1
v_add_f32_dpp v24, v24, v24 row_ror:2 {DPPALL}
s_nop 1
v_add_f32_dpp v24, v24, v24 row_ror:4 {DPPALL}
s_nop 1
v_add_f32_dpp v24, v24, v24 row_ror:8 {DPPALL}
v_mov_b32 v25, v24
s_nop 1
v_permlane32_swap_b32 v24, v25
v_add_f32 v24, v24, v25
v_mov_b32 v25, v24
s_nop 1
v_permlane16_swap_b32 v24, v25
v_add_f32 v24, v24, v25
v_mov_b32 v25, {f32(-1/512)}
v_fma_f32 v26, v24, v25, v{vR0}
v_fma_f32 v27, v24, v25, v{vR1}
v_cvt_pk_bf16_f32 v{vXW}, v26, v27
ds_write_b32 v{vXWR}, v{vXW}
s_barrier
""")
stamp("wq")
if STAMP: a(f"v_mov_b32 v{vSTMP}, 0")
trW(aWQ, L_WQ, 10, 11)
a("s_branch L_TQ")

a(f"""
L_G:
""")
if int(opts["xack"]): a("s_waitcnt vmcnt(0)")
stamp("g0")
a("L_Gp:")
for j in range(8):
    a(f"buffer_load_dwordx4 {V4(8+4*j)}, v{vGA}, s[{RX}:{RX+3}], s{sGO+j} offen sc1")
a("s_waitcnt vmcnt(6)")
a("v_pk_add_f32 v[40:41], v[8:9], v[12:13]\nv_pk_add_f32 v[42:43], v[10:11], v[14:15]\nv_max_u32 v44, v8, v12")
for j in range(2, 8):
    a(f"s_waitcnt vmcnt({7-j})")
    a(f"v_pk_add_f32 v[40:41], v[40:41], v[{8+4*j}:{9+4*j}]\nv_pk_add_f32 v[42:43], v[42:43], v[{10+4*j}:{11+4*j}]")
    a(f"v_max_u32 v44, v44, v{8+4*j}")
a(f"""
v_cmp_eq_u32 vcc, -1, v44
v_permlane32_swap_b32 v40, v42
v_permlane32_swap_b32 v41, v43
v_add_f32 v40, v40, v42
v_add_f32 v41, v41, v43
v_add_f32 v40, v40, v{vR0}
v_add_f32 v41, v41, v{vR1}
v_cvt_pk_bf16_f32 v{vXW}, v40, v41
ds_write_b32 v{vXWR}, v{vXW}
s_cbranch_vccnz L_Gretry
L_Gok:
""")
stamp("gok")
a(f"""
v_lshlrev_b32 v{vR0}, 16, v{vXW}
v_and_b32 v{vR1}, 0xffff0000, v{vXW}
s_cmp_eq_u32 s{sPH}, 1
s_cbranch_scc1 L_TU
s_cmp_eq_u32 s{sPH}, 0
s_cbranch_scc0 L_Gother
""")

def stats():
    l = a.label("ST")
    a(f"""s_cbranch_scc1 {l}
    v_dot2_f32_bf16 v46, v{vXW}, v{vXW}, 0
    v_dot2_f32_bf16 v47, v{vXW}, v{vONE}, 0
    s_nop 2
    v_permlane32_swap_b32 v47, v46
    v_add_f32 v46, v46, v47
    s_nop 1
    v_add_f32_dpp v46, v46, v46 row_ror:1 {DPPALL}
    s_nop 1
    v_add_f32_dpp v46, v46, v46 row_ror:2 {DPPALL}
    s_nop 1
    v_add_f32_dpp v46, v46, v46 row_ror:4 {DPPALL}
    s_nop 1
    v_add_f32_dpp v46, v46, v46 row_ror:8 {DPPALL}
    s_nop 1
    v_add_f32_dpp v46, v46, v46 row_bcast:15 row_mask:0xa bank_mask:0xf
    s_nop 0
    v_mov_b32 v{vSTG}, v46
    v_mov_b32_dpp v{vSTG+1}, v46 row_bcast:31 row_mask:0xc bank_mask:0xf
    {l}:""")

a(f"""
L_TQ:
s_cmp_lg_u32 s{sW}, 0
s_waitcnt lgkmcnt(0)
s_barrier
""")
stamp("xq")
for s in range(4): a(f"ds_read_b128 {V4(8+4*s)}, v{vXRD} offset:{64*s}")
stats()
for s in range(4):
    a(f"s_waitcnt lgkmcnt({LG(3-s)})")
    a(mfma(24, A4(aWQ+4*s), V4(8+4*s), s == 0))
def tq_tail(fl):
    a(f"""s_mov_b64 exec, s[{sPUBM}:{sPUBM+1}]
    s_cmp_lg_u32 s{sW}, 0
    s_nop 3
    buffer_store_dwordx4 v[24:27], v{vQPA}, s[{RG}:{RG+3}], 0 offen{fl}
    s_cbranch_scc1 L_S
    s_mov_b64 exec, s[{sSTM}:{sSTM+1}]
    buffer_store_dwordx2 v[{vSTG}:{vSTG+1}], v{vQSA}, s[{RG}:{RG+3}], 0 offen{fl}
    s_mov_b64 exec, -1""")
a(f"s_cmp_eq_u32 s{sALT}, 0\ns_cbranch_scc0 L_TQalt")
tq_tail("")
stamp("qpub")
a(f"""
L_QFe:
s_movk_i32 s{sT}, 4096
L_QFp:
buffer_load_dwordx2 v[48:49], v{vQGA}, s[{RG}:{RG+3}], 0 offen sc1
""")
for u in range(2):
    for k in range(4):
        so = "0" if k < 2 else f"s{sT}"
        a(f"buffer_load_dwordx4 {V4(8+16*u+4*k)}, v{vQL}, s[{RG}:{RG+3}], {so} offen offset:{(k&1)*2048+u*1024} sc1")
def ln_chain(first):
    if first:
        a(f"""v_add_f32_dpp v48, v48, v48 quad_perm:[1,0,3,2] {DPPALL}
        v_add_f32_dpp v49, v49, v49 quad_perm:[1,0,3,2] {DPPALL}""")
    else:
        a(f"""v_add_f32_dpp v48, v48, v48 quad_perm:[2,3,0,1] {DPPALL}
        v_add_f32_dpp v49, v49, v49 quad_perm:[2,3,0,1] {DPPALL}
        v_mul_f32 v48, {f32(1/512)}, v48
        v_mul_f32 v46, {f32(-1/512)}, v49
        v_fma_f32 v48, -v46, v46, v48
        v_max_f32 v48, 0, v48
        v_add_f32 v48, {f32(1e-5)}, v48
        v_rsq_f32 v48, v48""")
a(f"s_waitcnt vmcnt(8)\nv_cmp_eq_u32 vcc, -1, v48")
ln_chain(True)
a("s_cbranch_vccnz L_QFretry\nL_QF2:")
stamp("qf2")
ln_chain(False)
a(f"""
s_waitcnt vmcnt(6)
v_pk_add_f32 v[40:41], v[8:9], v[12:13]
v_pk_add_f32 v[42:43], v[10:11], v[14:15]
v_mul_f32 v48, {f32(QSCALE)}, v48
s_waitcnt vmcnt(5)
v_pk_add_f32 v[40:41], v[40:41], v[16:17]
v_pk_add_f32 v[42:43], v[42:43], v[18:19]
v_max3_u32 v44, v8, v12, v16
v_pk_fma_f32 v[40:41], v[{vQCS}:{vQCS+1}], v[46:47], v[40:41] op_sel_hi:[1,0,1]
v_pk_fma_f32 v[42:43], v[{vQCS+2}:{vQCS+3}], v[46:47], v[42:43] op_sel_hi:[1,0,1]
s_waitcnt vmcnt(3)
v_pk_add_f32 v[40:41], v[40:41], v[20:21]
v_pk_add_f32 v[42:43], v[42:43], v[22:23]
v_max3_u32 v44, v44, v20, v24
v_pk_fma_f32 v[24:25], v[{vQCS+4}:{vQCS+5}], v[46:47], v[24:25] op_sel_hi:[1,0,1]
v_pk_fma_f32 v[26:27], v[{vQCS+6}:{vQCS+7}], v[46:47], v[26:27] op_sel_hi:[1,0,1]
v_pk_mul_f32 v[40:41], v[40:41], v[48:49] op_sel_hi:[1,0]
v_pk_mul_f32 v[42:43], v[42:43], v[48:49] op_sel_hi:[1,0]
s_waitcnt vmcnt(2)
v_pk_add_f32 v[24:25], v[24:25], v[28:29]
v_pk_add_f32 v[26:27], v[26:27], v[30:31]
v_cvt_pk_bf16_f32 v40, v40, v41
v_cvt_pk_bf16_f32 v41, v42, v43
s_waitcnt vmcnt(1)
v_pk_add_f32 v[24:25], v[24:25], v[32:33]
v_pk_add_f32 v[26:27], v[26:27], v[34:35]
ds_write_b64 v{vL8}, v[40:41] offset:{L_QB}
v_max3_u32 v44, v44, v28, v32
s_waitcnt vmcnt(0)
v_pk_add_f32 v[24:25], v[24:25], v[36:37]
v_pk_add_f32 v[26:27], v[26:27], v[38:39]
v_pk_mul_f32 v[24:25], v[24:25], v[48:49] op_sel_hi:[1,0]
v_pk_mul_f32 v[26:27], v[26:27], v[48:49] op_sel_hi:[1,0]
v_cvt_pk_bf16_f32 v24, v24, v25
v_cvt_pk_bf16_f32 v25, v26, v27
ds_write_b64 v{vL8}, v[24:25] offset:{L_QB+512}
v_max_u32 v44, v44, v36
v_cmp_eq_u32 vcc, -1, v44
s_cbranch_vccnz L_QF2retry
""")
stamp("qfok")
a(f"""
L_S:
s_mov_b64 exec, -1
s_waitcnt lgkmcnt(0)
s_barrier
""")
stamp("q")
for s in range(4): a(f"ds_read_b128 {V4(8+4*s)}, v{vQRD} offset:{L_QB + 64*s}")
a(f"""s_cmp_eq_u32 s{sLAY}, 0
s_cbranch_scc1 L_S0
L_S1:""")
for s in range(4):
    a(f"s_waitcnt lgkmcnt({LG(3-s)})")
    for t in range(2): a(mfma(24+4*t, A4(aK+16*t+4*s), V4(8+4*s), s == 0))
a(f"""
v_readfirstlane_b32 s{sNF}, v{vMODE}
v_mov_b32 v32, 0
s_nop 4
""")
stamp("smm")
for k in range(8): a(f"v_exp_f32 v{40+k}, v{24+k}")
def p_tail():
    a(f"""
    v_cvt_pk_bf16_f32 v36, v40, v41
    v_cvt_pk_bf16_f32 v37, v42, v43
    v_cvt_pk_bf16_f32 v38, v44, v45
    v_cvt_pk_bf16_f32 v39, v46, v47
    s_mov_b64 exec, s[{sQUADM}:{sQUADM+1}]
    ds_write_b128 v{vPWR}, v[36:39] offset:{L_PB}
    v_dot2_f32_bf16 v33, v36, v{vONE}, 0
    v_dot2_f32_bf16 v33, v37, v{vONE}, v33
    v_dot2_f32_bf16 v33, v38, v{vONE}, v33
    v_dot2_f32_bf16 v33, v39, v{vONE}, v33""")
p_tail()
a(f"""
v_max3_f32 v34, v24, v25, v26
v_max3_f32 v35, v27, v28, v29
v_max3_f32 v34, v34, v30, v31
ds_write_b64 v{vMWR}, v[32:33] offset:{L_MB}
v_max_f32 v34, v34, v35
v_cmp_nle_f32 vcc, |v34|, s{sTH}
s_cbranch_vccnz L_Sbig
L_Sp:
s_mov_b64 exec, -1
s_cmp_eq_u32 s{sNF}, 0
s_waitcnt lgkmcnt(0)
s_barrier
""")
stamp("p")
for w in range(4): a(f"ds_read_b128 {V4(8+4*w)}, v{vPRD} offset:{L_PB + 256*w}")
a(f"ds_read_b64 v[32:33], v{vMRD} offset:{L_MB}")
for w in range(4):
    a(f"s_waitcnt lgkmcnt({LG(4-w)})")
    for c in range(2): a(mfma(24+4*c, V4(8+4*w), A4(aV+8*w+4*c), w == 0))
a(f"""
s_waitcnt lgkmcnt(0)
v_add_f32_dpp v35, v33, v33 row_ror:1 {DPPALL}
v_cmp_neq_f32 vcc, 0, v32
v_mov_b32 v34, 0
v_add_f32_dpp v35, v35, v35 row_ror:2 {DPPALL}
s_cbranch_vccnz L_PVbig
s_nop 0
v_add_f32_dpp v35, v35, v35 row_ror:4 {DPPALL}
v_cvt_pk_bf16_f32 v36, v24, v28
s_nop 0
v_add_f32_dpp v35, v35, v35 row_ror:8 {DPPALL}
L_PVt:
v_mov_b32_dpp v37, v36 quad_perm:[1,1,1,1] {DPPALL}
v_mov_b32_dpp v38, v36 quad_perm:[2,2,2,2] {DPPALL}
v_mov_b32_dpp v39, v36 quad_perm:[3,3,3,3] {DPPALL}
s_mov_b64 exec, s[{sQUADM}:{sQUADM+1}]
s_cbranch_scc0 L_RECsafe
""")
def rec_tail(fl):
    a(f"""buffer_store_dwordx4 v[36:39], v{vRECA}, s[{RG}:{RG+3}], 0 offen{fl}
    s_mov_b64 exec, s[{sMLM}:{sMLM+1}]
    buffer_store_dwordx2 v[34:35], v{vMLA}, s[{RG}:{RG+3}], 0 offen{fl}""")
rec_tail("")
a(f"""L_RECd:
s_mov_b64 exec, -1""")
stamp("rec")
a(f"""
s_cmp_ge_u32 s{sI}, 16
s_cbranch_scc1 L_B
""")
a(f"""
s_cmp_eq_u32 s{sLAY}, 0
s_cbranch_scc0 L_O
""")
a(f"""
v_bfe_u32 v1, v0, 2, 1
v_bfe_u32 v2, v0, 3, 1
v_bfe_u32 v3, v0, 4, 2
v_lshl_add_u32 v5, v3, 2, v2
v_lshl_add_u32 v5, v1, 4, v5
v_lshlrev_b32 v5, 7, v5
v_bfe_u32 v6, v0, 5, 1
v_xor_b32 v6, v6, v1
v_and_b32 v7, 1, v3
v_lshl_or_b32 v6, v6, 1, v7
v_lshlrev_b32 v6, 5, v6
v_and_b32 v7, 3, v0
v_lshl_or_b32 v6, v7, 3, v6
v_or_b32 v5, v5, v6
s_lshr_b32 s{sT}, s{sW}, 1
s_lshl_b32 s{sT}, s{sT}, 14
s_add_u32 s{sT}, s{sT}, {L_W2}
v_add_u32 v5, s{sT}, v5
s_waitcnt vmcnt(0)
s_barrier
""")
for t in range(4):
    a(f"v_xor_b32 v6, {32*t}, v5\nv_xor_b32 v7, 32, v6\nv_add_u32 v7, 256, v7")
    trW(aW2 + 16*t, 0, 6, 7)
OM = opts["om"]
a("L_O:")
if OM == "ack": a("s_waitcnt vmcnt(0)")
if OM in ("bell", "bell2"):
    a(f"""L_Ob:
    buffer_load_dwordx2 v[4:5], v{vOML}, s[{RG}:{RG+3}], 0 offen sc1
    s_waitcnt vmcnt(0)
    v_cmp_eq_u32 vcc, -1, v5
    s_cbranch_vccnz L_Obretry""")
a(f"""
L_Op:
buffer_load_dwordx2 v[4:5], v{vOML}, s[{RG}:{RG+3}], 0 offen sc1
""")
for s in range(4): a(f"buffer_load_dwordx4 {V4(8+4*s)}, v{vOA}, s[{RG}:{RG+3}], 0 offen offset:{1024*s} sc1")
mo = lambda t, s: mfma(24+4*t, V4(8+4*s), A4(aW2+16*t+4*s), s == 0)
a(f"""
s_waitcnt vmcnt(4) lgkmcnt(0)
v_cmp_eq_u32 vcc, -1, v5
s_cbranch_vccnz L_Oretry
L_O2:
""")
stamp("o2")
a(f"""
s_waitcnt vmcnt(3)
{mo(0,0)}
{mo(1,0)}
{mo(2,0)}
{mo(3,0)}
s_waitcnt vmcnt(2)
{mo(0,1)}
{mo(1,1)}
{mo(2,1)}
{mo(3,1)}
s_waitcnt vmcnt(1)
{mo(0,2)}
v_add_f32_dpp v6, v5, v5 quad_perm:[1,0,3,2] {DPPALL}
v_max3_u32 v44, v8, v12, v16
{mo(1,2)}
v_add_f32_dpp v6, v6, v6 quad_perm:[2,3,0,1] {DPPALL}
v_cmp_neq_f32 s[{sM}:{sM+1}], 0, v4
{mo(2,2)}
v_add_f32_dpp v6, v6, v6 row_half_mirror {DPPALL}
v_mov_b32 v7, v6
{mo(3,2)}
s_waitcnt vmcnt(0)
v_permlane32_swap_b32 v6, v7
{mo(0,3)}
v_add_f32 v6, v6, v7
v_mov_b32 v7, v6
{mo(1,3)}
v_max_u32 v44, v44, v20
v_permlane16_swap_b32 v6, v7
{mo(2,3)}
v_cmp_eq_u32 vcc, -1, v44
v_add_f32 v6, v6, v7
{mo(3,3)}
v_rcp_f32 v6, v6
s_cbranch_vccnz L_O2retry
L_Ook:
""")
stamp("ook")
a(f"""
s_cmp_lg_u64 s[{sM}:{sM+1}], 0
s_cbranch_scc1 L_Obig
v_pk_add_f32 v[24:25], v[24:25], v[26:27]
v_pk_add_f32 v[28:29], v[28:29], v[30:31]
v_add_f32 v40, v24, v25
v_add_f32 v41, v28, v29
v_pk_add_f32 v[32:33], v[32:33], v[34:35]
v_pk_add_f32 v[36:37], v[36:37], v[38:39]
v_add_f32 v42, v32, v33
v_add_f32 v43, v36, v37
L_Ot:
v_permlane32_swap_b32 v40, v41
v_add_f32 v40, v40, v41
v_permlane32_swap_b32 v42, v43
v_add_f32 v42, v42, v43
s_add_u32 s{sT}, s{sXO}, {X1}
s_cmp_eq_u32 s{sW}, 0
v_permlane16_swap_b32 v40, v42
v_add_f32 v40, v40, v42
v_mul_f32 v40, v40, v6
ds_write_b32 v{vYWR}, v40 offset:{L_YB}
s_waitcnt lgkmcnt(0)
s_barrier
s_cbranch_scc0 L_Odone
s_mov_b64 exec, 0xffff
""")
stamp("ob")
for w in range(4): a(f"ds_read_b128 {V4(8+4*w)}, v{vL16} offset:{L_YB + 256*w}")
a(f"""
s_waitcnt lgkmcnt({LG(2)})
v_pk_add_f32 v[8:9], v[8:9], v[12:13]
v_pk_add_f32 v[10:11], v[10:11], v[14:15]
s_waitcnt lgkmcnt({LG(1)})
v_pk_add_f32 v[8:9], v[8:9], v[16:17]
v_pk_add_f32 v[10:11], v[10:11], v[18:19]
s_waitcnt lgkmcnt(0)
v_pk_add_f32 v[8:9], v[8:9], v[20:21]
v_pk_add_f32 v[10:11], v[10:11], v[22:23]
buffer_store_dwordx4 v[8:11], v{vL16}, s[{RG}:{RG+3}], s{sT} offen sc1
s_mov_b64 exec, -1
L_Odone:
""")
stamp("x1pub")
def xor_acc(base, first, acc=44):
    for k in range(4): a(f"v_xor_b32 v{base+k}, s{sT0+k}, v{base+k}")
    if first:
        a(f"v_or3_b32 v{acc}, v{base}, v{base+1}, v{base+2}\nv_or_b32 v{acc}, v{acc}, v{base+3}")
    else:
        a(f"v_or3_b32 v{acc}, v{acc}, v{base}, v{base+1}\nv_or3_b32 v{acc}, v{acc}, v{base+2}, v{base+3}")
def wd_issue():
    a(f"""s_lshr_b32 s{sT}, s{sG}, 1
    s_mul_i32 s{sT}, s{sT}, 7
    s_and_b32 s{sT2}, s{sG}, 1
    s_lshl_b32 s{sM}, s{sT2}, 2
    s_add_u32 s{sT}, s{sT}, s{sM}
    s_lshr_b32 s{sM}, s{sA4}, 3
    s_and_b32 s{sT2}, s{sT2}, s{sM}
    s_lshl_b32 s{sM}, s{sM}, 1
    s_add_u32 s{sT}, s{sT}, s{sM}
    s_lshl_b32 s{sT}, s{sT}, 16
    s_and_b32 s{sM}, s{sA4}, 7
    s_lshl_b32 s{sM}, s{sM}, 1
    s_add_u32 s{sM}, s{sM}, s{sW}
    s_lshl_b32 s{sM}, s{sM}, 6
    s_add_u32 s{sT}, s{sT}, s{sM}
    s_add_u32 s{sWD}, s{sWD}, s{sT}
    s_addc_u32 s{sWD+1}, s{sWD+1}, 0
    s_lshl_b32 s{sT2}, s{sT2}, 16
    s_lshl_b32 s{sT}, s{sW}, 13
    s_add_u32 m0, s{sT}, {L_WD}
    v_bfe_u32 v4, v0, 2, 4
    v_and_b32 v5, 32, v0
    v_and_b32 v6, 48, v{vL16}
    v_xor_b32 v5, v5, v6
    v_lshl_add_u32 v4, v4, 10, v5""")
    for j in range(8):
        a(f"global_load_lds_dwordx4 v4, s[{sWD}:{sWD+1}] {POL}")
        if j < 7: a(f"s_add_u32 m0, m0, 1024\nv_add_u32 v4, 0x4000, v4")
        if j == 3: a(f"v_subrev_u32 v4, s{sT2}, v4")
    a(f"""v_bfe_u32 v4, v0, 2, 2
    v_bfe_u32 v5, v0, 4, 2
    v_lshl_add_u32 v4, v5, 3, v4
    v_lshlrev_b32 v4, 6, v4
    v_and_b32 v5, 1, v5
    v_lshl_add_u32 v4, v5, 5, v4
    v_and_b32 v5, 3, v0
    v_lshl_add_u32 v4, v5, 3, v4
    v_add_u32 v6, s{sT}, v4
    v_xor_b32 v7, 32, v6""")
def wd_reads():
    for t in range(2):
        for s_ in range(4):
            for e in range(2):
                r = aWD + 16*t + 4*s_ + 2*e
                a(f"ds_read_b64_tr_b16 a[{r}:{r+1}], v{6+t} offset:{L_WD + s_*2048 + e*256}")
def qc_gather():
    l3 = a.label("QC"); l4 = a.label("QC")
    a(f"""s_mul_i32 s{sT2}, s{sNF}, {BOFF}
    s_add_u32 s{RT}, s{RT}, s{sT2}
    s_addc_u32 s{RT+1}, s{RT+1}, 0
    {l3}:""")
    for k in range(4):
        a(f"s_mov_b32 s{sT2}, {QCS + k*2048}")
        for u in range(2):
            a(f"buffer_load_dwordx4 {V4(8+16*u+4*k)}, v{vL16}, s[{RT}:{RT+3}], s{sT2} offen offset:{u*1024} sc1")
    a("s_waitcnt vmcnt(0)")
    for u in range(2):
        for k in range(4): xor_acc(8+16*u+4*k, u == 0 and k == 0)
        for h in range(2):
            r = 8 + 16*u + 2*h
            a(f"v_pk_add_f32 v[{r}:{r+1}], v[{r}:{r+1}], v[{r+4}:{r+5}]\nv_pk_add_f32 v[{r+8}:{r+9}], v[{r+8}:{r+9}], v[{r+12}:{r+13}]")
            a(f"v_pk_add_f32 v[{vQCS+4*u+2*h}:{vQCS+4*u+2*h+1}], v[{r}:{r+1}], v[{r+8}:{r+9}]")
    a(f"v_and_b32 v44, 255, v44\nv_cmp_ne_u32 vcc, 0, v44\ns_cbranch_vccz {l4}")
    spin(l3, l4)
    a(f"""{l4}:
    ds_write_b128 v{vL16}, {V4(vQCS)} offset:{L_CS}
    ds_write_b128 v{vL16}, {V4(vQCS+4)} offset:{L_CS+1024}""")
BELL = int(opts["bell"])
def bell_ring(off):
    l1 = a.label("BR"); l2 = a.label("BR")
    a(f"""s_lshl_b32 s{sT2}, s{sA4}, 4
    s_add_u32 s{sT2}, s{sT2}, {BL + off}
    v_mov_b32 v1, 0
    s_mov_b64 exec, 1
    s_cmp_eq_u32 s{sNF}, 0
    s_waitcnt vmcnt(0)
    s_cbranch_scc0 {l1}
    buffer_store_dword v1, v1, s[{RG}:{RG+3}], s{sT2} offen
    {l2}:
    s_mov_b64 exec, -1""")
    tails.append(f"{l1}:\nbuffer_store_dword v1, v1, s[{RG}:{RG+3}], s{sT2} offen sc1\ns_branch {l2}")
tails = []
def bell_wait(off=0):
    if not BELL: return
    l1 = a.label("BW"); l2 = a.label("BW")
    if off == 0 and not int(opts["bell0"]): a(f"s_cmp_eq_u32 s{sLAY}, 0\ns_cbranch_scc1 {l2}")
    a(f"""s_lshl_b32 s{sT2}, s{sA4}, 4
    s_add_u32 s{sT2}, s{sT2}, {BL + off}
    v_mov_b32 v1, 0
    {l1}:
    buffer_load_dword v2, v1, s[{RG}:{RG+3}], s{sT2} offen sc1
    s_waitcnt vmcnt(0)
    v_cmp_eq_u32 vcc, -1, v2
    s_cbranch_vccz {l2}""")
    spin(l1, l2)
    a(f"{l2}:")
def gd_wait():
    l1 = a.label("GD"); l2 = a.label("GD")
    a(f"""v_and_b32 v1, 7, v0
    v_lshlrev_b32 v1, 7, v1
    v_add_u32 v1, {GD}, v1
    {l1}:
    global_load_dword v2, v1, s[{sWS}:{sWS+1}] sc1
    s_waitcnt vmcnt(0)
    v_cmp_ne_u32 vcc, s{sTAG}, v2
    s_cbranch_vccz {l2}""")
    spin(l1, l2)
    a(f"{l2}:")
def set_rx(off):
    a(f"""v_add_u32 v{vXWR}, {512 if off == X1 else 0}, v{vHWR}
    s_mul_i32 s{sT}, s{sLAY}, {XLS}
    s_add_u32 s{sT}, s{sT}, {off + GB}
    s_add_u32 s{RX}, s{sWS}, s{sT}
    s_addc_u32 s{RX+1}, s{sWS+1}, 0""")
def next_layer():
    a(f"""s_add_u32 s{RG}, s{RG}, {LS}
    s_addc_u32 s{RG+1}, s{RG+1}, 0
    s_sub_u32 s{sXO}, s{sXO}, {LS - XLS}
    s_mov_b32 s{sALT}, s{sNF}
    v_add_u32 v{vQL}, {QP1 - LS}, v{vL16}
    s_lshl_b32 s{sT2}, s{sKQ}, 11
    s_lshl_b32 s{sM}, s{sCG}, 8
    s_add_u32 s{sT2}, s{sT2}, s{sM}
    s_lshl_b32 s{sM}, s{sW}, 6
    s_add_u32 s{sT2}, s{sT2}, s{sM}
    s_add_u32 s{sT2}, s{sT2}, {QP1 - LS}
    v_add_u32 v{vQPA}, s{sT2}, v{vB16}
    v_and_b32 v1, 0xf8, v{vL8}
    v_add_u32 v{vQGA}, {QS1 - LS}, v1
    s_lshl_b32 s{sT2}, s{sI}, 3
    s_add_u32 s{sT2}, s{sT2}, {QS1 - LS}
    v_mov_b32 v{vQSA}, s{sT2}
    s_mov_b32 s{sPUBM}, 0x00010001
    s_mov_b32 s{sPUBM+1}, 0x00010001
    s_mov_b32 s{sLAY}, 1""")
a(f"""
s_cmp_eq_u32 s{sW}, 0
s_cbranch_scc0 L_Aside
""")
if BELL: bell_ring(0)
a(f"""
s_cmp_eq_u32 s{sLAY}, 0
s_cbranch_scc0 L_Dq
""")
wd_issue()
a(f"""
s_waitcnt vmcnt(0)
""")
wd_reads()
a(f"""
s_mov_b32 s{sT}, {HCS - HP}
L_HC:
""")
for k in range(4): a(f"buffer_load_dwordx4 {V4(8+4*k)}, v{vHGA}, s[{RG}:{RG+3}], s{sT} offen offset:{1024*k} sc1")
a(f"""
s_waitcnt vmcnt(0)
v_max3_u32 v44, v8, v12, v16
v_max_u32 v44, v44, v20
v_cmp_eq_u32 vcc, -1, v44
v_pk_add_f32 v[8:9], v[8:9], v[12:13]
v_pk_add_f32 v[10:11], v[10:11], v[14:15]
v_pk_add_f32 v[16:17], v[16:17], v[20:21]
v_pk_add_f32 v[18:19], v[18:19], v[22:23]
v_pk_add_f32 v[{vHCS}:{vHCS+1}], v[8:9], v[16:17]
v_pk_add_f32 v[{vHCS+2}:{vHCS+3}], v[10:11], v[18:19]
s_cbranch_vccz L_Dp
""")
spin("L_HC", "L_Dp")
a("L_Dq:")
if int(opts["sd"]): a(f"s_sleep {opts['sd']}")
a(f"""
L_Dp:
buffer_load_dwordx2 v[48:49], v{vHSA}, s[{RG}:{RG+3}], 0 offen sc1
""")
for k in range(4): a(f"buffer_load_dwordx4 {V4(8+4*k)}, v{vHGA}, s[{RG}:{RG+3}], 0 offen offset:{1024*k} sc1")
a(f"""
s_waitcnt vmcnt(4)
v_cmp_eq_u32 vcc, -1, v48
v_add_f32_dpp v46, v48, v48 quad_perm:[1,0,3,2] {DPPALL}
v_add_f32_dpp v47, v49, v49 quad_perm:[1,0,3,2] {DPPALL}
s_cbranch_vccnz L_Dretry
L_D2:
""")
stamp("d2")
a(f"""
v_add_f32_dpp v46, v46, v46 quad_perm:[2,3,0,1] {DPPALL}
v_add_f32_dpp v47, v47, v47 quad_perm:[2,3,0,1] {DPPALL}
v_mul_f32 v45, {f32(1/512)}, v46
v_mul_f32 v46, {f32(-1/512)}, v47
v_fma_f32 v45, -v46, v46, v45
v_max_f32 v45, 0, v45
v_add_f32 v45, {f32(1e-5)}, v45
v_rcp_f32 v45, v45
s_waitcnt vmcnt(2)
v_max_u32 v44, v8, v12
v_pk_fma_f32 v[8:9], v[{vHCS}:{vHCS+1}], v[46:47], v[8:9] op_sel_hi:[1,0,1]
v_pk_fma_f32 v[10:11], v[{vHCS+2}:{vHCS+3}], v[46:47], v[10:11] op_sel_hi:[1,0,1]
""")
for k in range(1, 4):
    if k > 1: a(f"s_waitcnt vmcnt({3-k})")
    a(f"v_pk_add_f32 v[8:9], v[8:9], v[{8+4*k}:{9+4*k}]\nv_pk_add_f32 v[10:11], v[10:11], v[{10+4*k}:{11+4*k}]")
    if k > 1: a(f"v_max_u32 v44, v44, v{8+4*k}")
a(f"""
v_cmp_eq_u32 vcc, -1, v44
v_permlane32_swap_b32 v8, v10
v_permlane32_swap_b32 v9, v11
v_mul_f32 v8, v8, v45
v_mul_f32 v9, v9, v45
v_mul_f32 v8, v8, v10
v_mul_f32 v9, v9, v11
v_cvt_pk_bf16_f32 v8, v8, v9
ds_write_b32 v{vHWR}, v8 offset:{L_HB}
s_cbranch_vccnz L_D2retry
L_Dm:
s_add_u32 s{sT}, s{sXO}, {X2}
s_cmp_ge_u32 s{sW}, 2
s_waitcnt lgkmcnt(0)
s_barrier
s_cbranch_scc1 L_Ddone
""")
stamp("h")
for s in range(4): a(f"ds_read_b128 {V4(8+4*s)}, v{vB16} offset:{L_HB + 64*s}")
for s in range(4):
    a(f"s_waitcnt lgkmcnt({LG(3-s)})")
    for t in range(2): a(mfma(24+4*t, A4(aWD+16*t+4*s), V4(8+4*s), s == 0))
a(f"""
s_mov_b64 exec, s[{sDM}:{sDM+1}]
s_nop 6
v_mov_b32 v24, v28
v_mov_b32 v25, v29
v_mov_b32 v26, v30
v_mov_b32 v27, v31
s_mov_b32 exec_lo, 0x00030003
s_mov_b32 exec_hi, 0x00030003
buffer_store_dwordx4 v[24:27], v{vDPA}, s[{RG}:{RG+3}], s{sT} offen sc1
s_mov_b64 exec, -1
L_Ddone:
""")
stamp("x2pub")
stamp_flush()
set_rx(X2)
a(f"""
ds_read_b32 v{vXW}, v{vHWR} offset:512
s_waitcnt lgkmcnt(0)
v_lshlrev_b32 v{vR0}, 16, v{vXW}
v_and_b32 v{vR1}, 0xffff0000, v{vXW}
s_cmp_eq_u32 s{sLAY}, 0
s_cbranch_scc1 L_Anext
s_mov_b32 s{sPH}, 3
s_cmp_eq_u32 s{sFIN}, 1
s_cbranch_scc0 L_exit
s_cmp_eq_u32 s{sW}, 0
s_cbranch_scc0 L_exit
""")
for _ in range(int(opts["fbell"])):
    if _ == 0: bell_ring(256)
    bell_wait(256)
a(f"""
s_branch L_G
L_Anext:
""")
if int(opts["bell2"]):
    a(f"s_cmp_eq_u32 s{sW}, 0\ns_cbranch_scc0 L_next")
    bell_ring(256)
    if int(opts["abell"]): bell_wait(256)
a(f"""
s_branch L_next
L_Aside:
s_cmp_eq_u32 s{sW}, 2
s_cbranch_scc1 L_A2
s_cmp_eq_u32 s{sW}, 1
s_cbranch_scc0 L_Dm
s_cmp_eq_u32 s{sLAY}, 0
s_cbranch_scc0 L_Dm
""")
wd_issue()
a("s_waitcnt vmcnt(0)")
wd_reads()
a(f"""
s_branch L_Dm
L_A2:
s_mov_b32 s{sPH}, 2
s_cmp_eq_u32 s{sLAY}, 0
s_cbranch_scc1 L_A20
s_cmp_eq_u32 s{sFIN}, 1
s_cbranch_scc0 L_Dm
ds_read_b32 v{vXW}, v{vHWR}
s_waitcnt lgkmcnt(0)
v_lshlrev_b32 v{vR0}, 16, v{vXW}
v_and_b32 v{vR1}, 0xffff0000, v{vXW}
s_branch L_A21
L_A20:
""")
qc_gather()
gd_wait()
a("L_A21:")
bell_wait()
set_rx(X1)
a(f"""
s_branch L_G
L_Gother:
s_cmp_eq_u32 s{sPH}, 2
s_cbranch_scc1 L_Dm
L_final:
s_lshl_b32 s{sT}, s{sKQ}, 8
v_add_u32 v1, s{sT}, v{vHWR}
global_store_dword v1, v{vXW}, s[{sOUT}:{sOUT+1}]
s_cmp_eq_u32 s2, 0
s_cbranch_scc0 L_fin2
s_add_u32 s{sT}, s{sNON}, 1
v_mov_b32 v1, {NONCE}
v_mov_b32 v2, s{sT}
s_mov_b64 exec, 1
global_store_dword v1, v2, s[{sWS}:{sWS+1}]
s_mov_b64 exec, -1
L_fin2:
""")
if STAMP:
    a(f"s_memrealtime s[{sST}:{sST+1}]\ns_waitcnt lgkmcnt(0)\nv_writelane_b32 v{vSTMP}, s{sST}, 16")
    if int(opts.get("dbgout", 0)):
        a(f"""v_writelane_b32 v{vSTMP}, s{sST}, 15
        s_nop 4
        v_readlane_b32 s{sT}, v{vSTMP}, 0
        s_nop 4
        v_subrev_u32 v4, s{sT}, v{vSTMP}
        v_lshrrev_b32 v5, 1, v{vL8}
        s_cmp_eq_u32 s2, 0
        s_cbranch_scc0 L_exit
        s_mov_b64 exec, 0xffff
        global_store_dword v5, v4, s[{sDBG}:{sDBG+1}]
        s_mov_b64 exec, -1""")
a("s_branch L_exit")
a(f"""
L_B:
s_mov_b32 s{sPH}, 1
s_cmp_eq_u32 s{sLAY}, 0
s_cbranch_scc0 L_B1
s_and_b32 s{sM}, s{sCG}, 3
s_lshr_b32 s{sT}, s{sG}, 1
s_mul_i32 s{sT}, s{sT}, 7
s_and_b32 s{sT2}, s{sG}, 1
s_lshl_b32 s{sM+1}, s{sT2}, 2
s_add_u32 s{sT}, s{sT}, s{sM+1}
s_add_u32 s{sT}, s{sT}, s{sM}
s_lshl_b32 s{sT}, s{sT}, 7
s_mul_i32 s{sM+1}, s{sKQ}, {128*3584}
s_add_u32 s{sT}, s{sT}, s{sM+1}
s_add_u32 s{sWG}, s{sWG}, s{sT}
s_addc_u32 s{sWG+1}, s{sWG+1}, 0
s_add_u32 s{sWU}, s{sWU}, s{sT}
s_addc_u32 s{sWU+1}, s{sWU+1}, 0
s_lshl_b32 s{sT2}, s{sT2}, 2
s_or_b32 s{sT2}, s{sT2}, s{sM}
s_lshr_b32 s{sT}, s{sM}, 1
s_lshl_b32 s{sT}, s{sT}, 2
s_add_u32 s{sT}, s{sT}, s{sKQ}
s_lshl_b32 s{sT}, s{sT}, 10
s_and_b32 s{sM}, s{sM}, 1
s_lshl_b32 s{sM}, s{sM}, 8
s_add_u32 s{sT}, s{sT}, s{sM}
s_lshl_b32 s{sM}, s{sW}, 6
s_add_u32 s{sT}, s{sT}, s{sM}
s_add_u32 s{sT}, s{sT}, {HP}
v_add_u32 v{vPUBA}, s{sT}, v{vB16}
s_lshl_b32 s{sT}, s{sA4}, 4
s_add_u32 s{sT}, s{sT}, {HS}
v_mov_b32 v{vHSA}, s{sT}
s_mov_b32 s{sPUBM}, 0x00010001
s_mov_b32 s{sPUBM+1}, 0x00010001
s_mov_b32 s{sPH}, s{sT2}
""")
a(f"s_cmp_eq_u32 s{sW}, 0\ns_cbranch_scc0 L_Bv")
gd_wait()
a(f"L_Bv:\ns_cmp_eq_u32 s{sW}, 1\ns_cbranch_scc0 L_Bw")
qc_gather()
a("L_Bw:\ns_barrier")
a(f"""
s_cmp_eq_u32 s{sPH}, 7
s_mov_b32 s{sPH}, 1
s_cbranch_scc0 L_Bload
""")
for k in range(32): a(f"v_accvgpr_write_b32 a{aW2+k}, 0")
a("s_branch L_B0\nL_Bload:")
a(f"s_movk_i32 s{sT}, 3584\nv_mul_lo_u32 v4, v{vROW}, s{sT}\nv_add_u32 v4, v4, v{vPC16}")
dma(sWG, 4, L_W2, 4, 32 * 3584)
dma(sWU, 4, L_W2 + 0x4000, 4, 32 * 3584)
a(f"""
s_lshl_b32 s{sT}, s{sW}, 5
v_xor_b32 v6, s{sT}, v{vTR0}
v_xor_b32 v7, 32, v6
v_add_u32 v7, {512 + L_W2}, v7
v_add_u32 v6, {L_W2}, v6
s_waitcnt vmcnt(0)
s_barrier
""")
trW(aW2, 0, 6, 7)
trW(aW2 + 16, 0x4000, 6, 7)
a(f"""
L_B0:
v_mov_b32 v8, v{vONE}
v_mov_b32 v9, v{vONE}
v_mov_b32 v10, v{vONE}
v_mov_b32 v11, v{vONE}
s_waitcnt lgkmcnt(0)
s_nop 0
""")
for s_ in range(4):
    for m in range(2): a(mfma(24+4*m, A4(aW2+16*m+4*s_), V4(8), s_ == 0))
a(f"""
s_mov_b32 s{sT}, {HCS - HP}
s_mov_b64 exec, s[{sPUBM}:{sPUBM+1}]
s_cmp_eq_u32 s{sNF}, 0
s_cbranch_scc0 L_B0s
s_nop 3
buffer_store_dwordx4 v[24:27], v{vPUBA}, s[{RG}:{RG+3}], s{sT} offen
buffer_store_dwordx4 v[28:31], v{vPUBA}, s[{RG}:{RG+3}], s{sT} offen offset:512
s_branch L_B0d
L_B0s:
s_nop 3
buffer_store_dwordx4 v[24:27], v{vPUBA}, s[{RG}:{RG+3}], s{sT} offen sc1
buffer_store_dwordx4 v[28:31], v{vPUBA}, s[{RG}:{RG+3}], s{sT} offen offset:512 sc1
L_B0d:
s_mov_b64 exec, -1
""")
a(f"""
L_B1:
s_cmp_eq_u32 s{sW}, 0
s_cbranch_scc0 L_TU
""")
bell_wait()
if int(opts["sb"]): a(f"s_cmp_eq_u32 s{sLAY}, 0\ns_cbranch_scc1 L_B2\ns_sleep {opts['sb']}\nL_B2:")
set_rx(X1)
a("s_branch L_G")
a(f"""
L_TU:
s_cmp_lg_u32 s{sW}, 0
s_waitcnt lgkmcnt(0)
s_barrier
""")
stamp("x1pub")
for s in range(4): a(f"ds_read_b128 {V4(8+4*s)}, v{vXRD} offset:{512 + 64*s}")
stats()
for s in range(4):
    a(f"s_waitcnt lgkmcnt({LG(3-s)})")
    for m in range(2): a(mfma(24+4*m, A4(aW2+16*m+4*s), V4(8+4*s), s == 0))
def tu_tail(fl, done):
    a(f"""s_mov_b64 exec, s[{sPUBM}:{sPUBM+1}]
    s_cmp_lg_u32 s{sW}, 0
    s_nop 2
    buffer_store_dwordx4 v[24:27], v{vPUBA}, s[{RG}:{RG+3}], 0 offen{fl}
    buffer_store_dwordx4 v[28:31], v{vPUBA}, s[{RG}:{RG+3}], 0 offen offset:512{fl}
    s_cbranch_scc1 {done}
    s_mov_b64 exec, s[{sSTM}:{sSTM+1}]
    buffer_store_dwordx2 v[{vSTG}:{vSTG+1}], v{vHSA}, s[{RG}:{RG+3}], 0 offen{fl}""")
a(f"s_cmp_eq_u32 s{sNF}, 0\ns_cbranch_scc0 L_TUsafe")
tu_tail("", "L_TUd")
a("L_TUd:\ns_mov_b64 exec, -1")
stamp("h")
stamp_flush()
a(f"""
s_cmp_eq_u32 s{sLAY}, 0
s_cbranch_scc0 L_exit
""")
if int(opts["sx"]): a(f"s_sleep {opts['sx']}")
if int(opts["bell2"]):
    a(f"s_cmp_eq_u32 s{sW}, 0\ns_cbranch_scc0 L_B3")
    bell_wait(256)
    a("L_B3:")
set_rx(X2)
a(f"""L_next:
ds_read_b128 {V4(vQCS)}, v{vL16} offset:{L_CS}
ds_read_b128 {V4(vQCS+4)}, v{vL16} offset:{L_CS+1024}""")
next_layer()
a(f"""
s_mov_b32 s{sPH}, 0
s_cmp_eq_u32 s{sW}, 0
s_cbranch_scc1 L_G
s_branch L_TQ
""")
a("L_Gretry:")
if DBG: a(f"s_mov_b64 exec, 1\nv_mov_b32 v45, s{sLAY}\nv_lshlrev_b32 v45, 2, v45\nv_add_u32 v45, s{sPH}, v45\nv_lshlrev_b32 v45, 2, v45\nv_add_u32 v45, 128, v45\nv_mov_b32 v46, 1\nglobal_atomic_add v45, v46, s[{sDBG}:{sDBG+1}]\ns_mov_b64 exec, -1")
spin("L_Gp", "L_Gok")
a("L_QFretry:");  spin("L_QFp", "L_QF2")
a("L_QF2retry:"); spin("L_QFp", "L_S")
for t_ in tails: a(t_)
a("L_RECsafe:"); rec_tail(" sc1"); a("s_branch L_RECd")
a("L_TUsafe:"); tu_tail(" sc1", "L_TUd"); a("s_branch L_TUd")
a(f"""
L_S0:
v_mov_b32 v{vMODE}, {L_MODE}
ds_read_b32 v{vMODE}, v{vMODE}
s_branch L_S1
L_Sbig:
s_mov_b64 exec, -1
v_max3_f32 v32, v24, v25, v26
v_max_f32 v32, v32, v27
v_max3_f32 v32, v32, v28, v29
v_max3_f32 v32, v32, v30, v31
v_mov_b32 v33, v32
s_nop 1
v_permlane32_swap_b32 v32, v33
v_max_f32 v32, v32, v33
v_mov_b32 v33, v32
s_nop 1
v_permlane16_swap_b32 v32, v33
v_max_f32 v32, v32, v33
""")
for k in range(8): a(f"v_sub_f32 v{40+k}, v{24+k}, v32")
for k in range(8): a(f"v_exp_f32 v{40+k}, v{40+k}")
p_tail()
a(f"""
s_nop 2
ds_write_b64 v{vMWR}, v[32:33] offset:{L_MB}
s_branch L_Sp
L_PVbig:
s_nop 7
{mfma(24, V4(8), A4(aV), True)}
{mfma(28, V4(8), A4(aV+4), True)}
{mfma(40, V4(12), A4(aV+8), True)}
{mfma(44, V4(12), A4(aV+12), True)}
{mfma(48, V4(16), A4(aV+16), True)}
{mfma(8, V4(16), A4(aV+20), True)}
{mfma(12, V4(20), A4(aV+24), True)}
{mfma(16, V4(20), A4(aV+28), True)}
v_max_f32_dpp v34, v32, v32 row_ror:4 {DPPALL}
s_nop 1
v_max_f32_dpp v34, v34, v34 row_ror:8 {DPPALL}
v_sub_f32 v32, v32, v34
v_exp_f32 v32, v32
s_nop 0
v_mul_f32 v35, v32, v33
s_nop 1
v_add_f32_dpp v35, v35, v35 row_ror:1 {DPPALL}
v_mul_f32_dpp v36, v32, v24 row_newbcast:0 {DPPALL}
v_mul_f32_dpp v37, v32, v28 row_newbcast:0 {DPPALL}
v_add_f32_dpp v35, v35, v35 row_ror:2 {DPPALL}
v_fmac_f32_dpp v36, v32, v40 row_newbcast:4 {DPPALL}
v_fmac_f32_dpp v37, v32, v44 row_newbcast:4 {DPPALL}
v_add_f32_dpp v35, v35, v35 row_ror:4 {DPPALL}
v_fmac_f32_dpp v36, v32, v48 row_newbcast:8 {DPPALL}
v_fmac_f32_dpp v37, v32, v8 row_newbcast:8 {DPPALL}
v_add_f32_dpp v35, v35, v35 row_ror:8 {DPPALL}
v_fmac_f32_dpp v36, v32, v12 row_newbcast:12 {DPPALL}
v_fmac_f32_dpp v37, v32, v16 row_newbcast:12 {DPPALL}
v_cvt_pk_bf16_f32 v36, v36, v37
s_nop 1
s_branch L_PVt
L_Obig:
v_max_f32_dpp v6, v4, v4 quad_perm:[1,0,3,2] {DPPALL}
s_nop 1
v_max_f32_dpp v6, v6, v6 quad_perm:[2,3,0,1] {DPPALL}
s_nop 1
v_max_f32_dpp v6, v6, v6 row_half_mirror {DPPALL}
v_mov_b32 v7, v6
s_nop 1
v_permlane32_swap_b32 v6, v7
v_max_f32 v6, v6, v7
v_mov_b32 v7, v6
s_nop 1
v_permlane16_swap_b32 v6, v7
v_max_f32 v6, v6, v7
v_sub_f32 v4, v4, v6
v_exp_f32 v4, v4
s_nop 0
v_mul_f32 v6, v4, v5
s_nop 1
v_add_f32_dpp v6, v6, v6 quad_perm:[1,0,3,2] {DPPALL}
s_nop 1
v_add_f32_dpp v6, v6, v6 quad_perm:[2,3,0,1] {DPPALL}
s_nop 1
v_add_f32_dpp v6, v6, v6 row_half_mirror {DPPALL}
v_mov_b32 v7, v6
s_nop 1
v_permlane32_swap_b32 v6, v7
v_add_f32 v6, v6, v7
v_mov_b32 v7, v6
s_nop 1
v_permlane16_swap_b32 v6, v7
v_add_f32 v6, v6, v7
v_rcp_f32 v6, v6
""")
for t in range(4):
    a(f"v_mul_f32_dpp v{40+t}, v4, v{24+4*t} row_newbcast:0 {DPPALL}")
    for r in range(1, 4): a(f"v_fmac_f32_dpp v{40+t}, v4, v{24+4*t+r} row_newbcast:{r} {DPPALL}")
a("s_branch L_Ot")
a(f"""
L_TQalt:
s_cmp_eq_u32 s{sLAY}, 0
s_cbranch_scc1 L_TQ0
""")
tq_tail(" sc1")
a(f"""
s_branch L_QFe
L_TQ0:
s_nop 3
""")
for k in range(4): a(f"v_bfi_b32 v{24+k}, v{vMASK}, v{24+k}, s{sT0+k}")
K1 = int(opts["k1"])
def qloads():
    a(f"buffer_load_dwordx4 v[48:51], v{vQGA}, s[{RT}:{RT+3}], 0 offen sc1")
    for k in range(4):
        for u in range(2):
            so = "0" if k < 2 else f"s{sT}"
            a(f"buffer_load_dwordx4 {V4(8+16*u+4*k)}, v{vL16}, s[{RT}:{RT+3}], {so} offen offset:{(k&1)*2048+u*1024} sc1")
def kreads():
    for s in range(4):
        a(f"v_xor_b32 v5, {64*s}, v3")
        for t in range(2): a(f"ds_read_b128 {A4(aK+16*t+4*s)}, v5 offset:{4096*t}")
def vreads():
    for w in range(4):
        for c in range(2):
            for e in range(2):
                r = aV + 8*w + 4*c + 2*e
                a(f"ds_read_b64_tr_b16 a[{r}:{r+1}], v{6+c} offset:{L_V + w*8192 + e*4096}")
def l0_addr():
    a(f"""v_bfe_u32 v34, v0, 2, 2
    v_bfe_u32 v35, v0, 4, 2
    v_lshl_add_u32 v36, v35, 2, v34
    v_and_b32 v37, 7, v36
    v_lshlrev_b32 v37, 1, v37
    v_bfe_u32 v38, v0, 1, 1
    s_lshl_b32 s{sT}, s{sW}, 2
    v_or_b32 v38, s{sT}, v38
    v_xor_b32 v37, v37, v38
    v_lshlrev_b32 v37, 4, v37
    v_lshl_add_u32 v36, v36, 8, v37
    v_and_b32 v37, 1, v0
    v_lshl_add_u32 v6, v37, 3, v36
    v_xor_b32 v7, 32, v6
    v_and_b32 v3, 15, v0
    v_xor_b32 v5, v35, v3
    v_lshlrev_b32 v5, 4, v5
    v_lshl_add_u32 v3, v3, 8, v5
    s_lshl_b32 s{sT}, s{sW}, 13
    s_add_u32 s{sT}, s{sT}, {L_K}
    v_add_u32 v3, s{sT}, v3""")
a(f"""
s_mov_b64 exec, s[{sPUBM}:{sPUBM+1}]
buffer_store_dwordx4 v[24:27], v{vQPA}, s[{RT}:{RT+3}], 0 offen
s_mov_b64 exec, -1
s_mov_b32 s{sT2}, {BOFF}
s_cmp_eq_u32 s{sW}, 0
s_cbranch_scc0 L_K0
s_mov_b64 exec, s[{sSTM}:{sSTM+1}]
buffer_store_dwordx4 {V4(vSTG)}, v{vQSA}, s[{RT}:{RT+3}], 0 offen
s_mov_b64 exec, -1
""")
stamp("qpub")
kdma(KUP, 8)
a(f"""
s_mov_b64 exec, s[{sPUBM}:{sPUBM+1}]
buffer_store_dwordx4 v[24:27], v{vQPA}, s[{RT}:{RT+3}], s{sT2} offen sc1
s_mov_b64 exec, s[{sSTM}:{sSTM+1}]
buffer_store_dwordx4 {V4(vSTG)}, v{vQSA}, s[{RT}:{RT+3}], s{sT2} offen sc1
s_mov_b64 exec, -1
""")
l0_addr()
VE = int(opts["vearly"])
if VE:
    a("s_waitcnt vmcnt(12)\ns_barrier"); vreads()
a(f"s_movk_i32 s{sT}, 4096\ns_waitcnt vmcnt({2 + int(opts['kw']) + (2 if int(opts['kw']) > 8 - KUP else 0)})")
stamp("kw")
qloads()
a("s_barrier")
if not VE: vreads()
a("s_waitcnt vmcnt(9)")
kreads()
a(f"""s_waitcnt vmcnt(8)
s_branch L_Q01
L_K0:""")
kdma(KUP, K1)
a(f"""
s_mov_b64 exec, s[{sPUBM}:{sPUBM+1}]
buffer_store_dwordx4 v[24:27], v{vQPA}, s[{RT}:{RT+3}], s{sT2} offen sc1
s_mov_b64 exec, -1
""")
l0_addr()
a(f"""s_waitcnt vmcnt({K1 + 2})
s_barrier""")
if VE:
    vreads(); a("s_barrier")
kdma(K1, 8)
a(f"""
s_mul_i32 s{sT2}, s{sI}, {CLR}
v_lshlrev_b32 v5, 3, v{vL16}
v_min_u32 v5, {CLR-128}, v5
buffer_load_dword v{vJUNK}, v5, s[{RG}:{RG+3}], s{sT2} offen sc1
s_cmp_ge_u32 s{sI}, 16
s_cbranch_scc1 L_K1""")
wo_issue()
if not VE: vreads()
a("s_waitcnt vmcnt(9)")
kreads()
a(f"""s_cmp_eq_u32 s{sW}, 3
s_cbranch_scc0 L_S
s_sub_u32 s{sWO}, s{sWO}, {7*32*1024 + 24*1024}
s_subb_u32 s{sWO+1}, s{sWO+1}, 0
s_mov_b32 m0, {L_W2}""")
for j in range(8):
    if j == 0: a("s_nop 0")
    a(f"global_load_lds_dwordx4 v4, s[{sWO}:{sWO+1}] {POL}")
    if j < 7: a(f"s_add_u32 m0, m0, 4096\ns_add_u32 s{sWO}, s{sWO}, {32*1024}\ns_addc_u32 s{sWO+1}, s{sWO+1}, 0")
a("s_branch L_S\nL_K1:")
if not VE: vreads()
a("s_waitcnt vmcnt(1)")
kreads()
a("s_branch L_S")
a("L_Q0p:")
qloads()
a(f"""
s_waitcnt vmcnt(8)
L_Q01:
v_cmp_ne_u32 vcc, s{sTAG}, v50""")
ln_chain(True)
a("s_cbranch_vccnz L_Q0retry\nL_Q02:")
stamp("qf2")
ln_chain(False)
a("s_waitcnt vmcnt(6)")
xor_acc(8, True); xor_acc(24, False)
a(f"v_mul_f32 v48, {f32(QSCALE)}, v48")
for k in range(1, 4):
    for u in range(2):
        a(f"s_waitcnt vmcnt({7 - 2*k - u})")
        xor_acc(8+16*u+4*k, False)
        for h in range(2):
            r = 8 + 16*u + 2*h
            a(f"v_pk_add_f32 v[{r}:{r+1}], v[{r}:{r+1}], v[{r+4*k}:{r+4*k+1}]")
a(f"""
v_and_b32 v44, 255, v44
v_cmp_ne_u32 vcc, 0, v44
v_pk_mul_f32 v[8:9], v[8:9], v[48:49] op_sel_hi:[1,0]
v_pk_mul_f32 v[10:11], v[10:11], v[48:49] op_sel_hi:[1,0]
v_pk_mul_f32 v[24:25], v[24:25], v[48:49] op_sel_hi:[1,0]
v_pk_mul_f32 v[26:27], v[26:27], v[48:49] op_sel_hi:[1,0]
v_cvt_pk_bf16_f32 v8, v8, v9
v_cvt_pk_bf16_f32 v9, v10, v11
v_cvt_pk_bf16_f32 v10, v24, v25
v_cvt_pk_bf16_f32 v11, v26, v27
ds_write_b64 v{vL8}, v[8:9] offset:{L_QB}
ds_write_b64 v{vL8}, v[10:11] offset:{L_QB+512}
s_cbranch_vccnz L_Q02retry
L_Q0ok:
""")
stamp("qfok")
a(f"""
v_cmp_ne_u32 vcc, v51, v{vSTG+3}
s_cmp_eq_u64 vcc, 0
s_cselect_b32 s{sT}, 0, 1
v_mov_b32 v8, s{sT}
v_mov_b32 v9, {L_MODE}
ds_write_b32 v9, v8
s_cbranch_scc0 L_slow
L_slowdone:
s_cmp_eq_u32 s{sI}, 0
s_cbranch_scc0 L_S
s_lshl_b32 s{sT}, s{sG}, 7
s_add_u32 s{sT}, s{sT}, {GD}
v_mov_b32 v9, s{sT}
s_mov_b64 exec, 1
global_store_dword v9, v{vSTG+2}, s[{sWS}:{sWS+1}] sc1
s_branch L_S
""")
def qretry(giveup):
    l = a.label("QR")
    if DBG: a(f"s_mov_b64 exec, 1\nv_mov_b32 v45, 0\nv_mov_b32 v46, 1\nglobal_atomic_add v45, v46, s[{sDBG}:{sDBG+1}]\ns_mov_b64 exec, -1")
    a(f"""s_sub_u32 s{sTRY}, s{sTRY}, 1
    s_cmp_eq_u32 s{sTRY}, 0
    s_cbranch_scc0 {l}
    s_add_u32 s{RT}, s{RT}, {BOFF}
    s_addc_u32 s{RT+1}, s{RT+1}, 0
    {l}:""")
    spin("L_Q0p", giveup)
a("L_Q0retry:");  qretry("L_Q02")
a("L_Q02retry:"); qretry("L_Q0ok")
a(f"""
L_slow:
s_mul_i32 s{sT}, s{sI}, {CLR}
v_mov_b32 v12, -1
v_mov_b32 v13, -1
v_mov_b32 v14, -1
v_mov_b32 v15, -1
v_min_u32 v9, {CLR - 3072 - 16}, v{vL16}
buffer_store_dwordx4 v[12:15], v{vL16}, s[{RG}:{RG+3}], s{sT} offen sc1
buffer_store_dwordx4 v[12:15], v{vL16}, s[{RG}:{RG+3}], s{sT} offen offset:1024 sc1
buffer_store_dwordx4 v[12:15], v{vL16}, s[{RG}:{RG+3}], s{sT} offen offset:2048 sc1
buffer_store_dwordx4 v[12:15], v9, s[{RG}:{RG+3}], s{sT} offen offset:3072 sc1
s_mul_i32 s{sT}, s{sG}, {TGS}
s_add_u32 s{sT}, s{sT}, {TG + FL}
s_lshl_b32 s{sT2}, s{sI}, 4
s_add_u32 s{sT2}, s{sT2}, s{sT}
v_mov_b32 v9, s{sT2}
s_waitcnt vmcnt(0)
s_mov_b64 exec, 1
global_store_dword v9, v{vSTG+2}, s[{sWS}:{sWS+1}] sc1
s_mov_b64 exec, -1
v_and_b32 v9, 0x1f0, v{vL16}
v_add_u32 v9, s{sT}, v9
L_slowp:
global_load_dword v8, v9, s[{sWS}:{sWS+1}] sc1
s_waitcnt vmcnt(0)
v_cmp_ne_u32 vcc, s{sTAG}, v8
s_cbranch_vccz L_slowdone
""")
spin("L_slowp", "L_slowdone")
if OM in ("bell", "bell2"):
    a("L_Obretry:"); spin("L_Ob", "L_Op")
def cnt(k):
    if DBG: a(f"s_mov_b64 exec, 1\nv_mov_b32 v45, s{sLAY}\nv_lshlrev_b32 v45, 2, v45\nv_add_u32 v45, {4*k}, v45\nv_mov_b32 v46, 1\nglobal_atomic_add v45, v46, s[{sDBG}:{sDBG+1}]\ns_mov_b64 exec, -1")
a("L_Oretry:");   cnt(40); spin("L_Op", "L_O2")
a("L_O2retry:");  cnt(42); spin("L_Op", "L_Ook")
a("L_Dretry:");   spin("L_Dp", "L_D2")
a("L_D2retry:");  spin("L_Dp", "L_Dm")
a("L_exit:")
stamp_store()
a("L_end:\ns_endpgm")

txt = a.text()
if int(opts.get("solo", 0)):
    import re
    txt = re.sub(r"s_cbranch_vccnz L_\w*retry", "s_nop 0", txt)
    txt = re.sub(r"s_cbranch_vccz (\w+)\n", r"s_branch \1\n", txt)
    txt = txt.replace("s_cbranch_scc0 L_slow\n", "s_nop 0\n")
    for br in ("s_cbranch_vccnz L_Sbig", "s_cbranch_vccnz L_PVbig", "s_cbranch_scc1 L_Obig"): txt = txt.replace(br, "s_nop 0")
    txt = txt.replace("s_memrealtime", "s_memtime").replace(f"s_cselect_b32 s{sT}, 0, 1", f"s_mov_b32 s{sT}, 0")
open(sys.argv[1], "w").write(wrap(txt, 256, 256, LDS_SIZE, NVGPR + NAGPR, accum=NVGPR))
if STAMP: print(",".join(stamp_names))
if DBG: print(list(enumerate(spin_ids, 1)))
```

```python
import sys, math, struct
from asmlib import *

opts = dict(stamp=0, pol="nt", dbg=0, wo="spec", kw=1, v1=4, k1=8, om="ack", xack=1, bgd=0, vearly=1, il=1, kup=0, sd=0, sb=0, sx=0, bell=1, bell0=0, bell2=1, abell=1, fbell=0, og=10, wo2="k", bx=-1, bx2=-1)
for x in sys.argv[2:]:
    k, v = x.split("="); opts[k] = v
STAMP = int(opts["stamp"]); DBG = int(opts["dbg"]); POL = opts["pol"].replace("def", "").replace("_", " ")

IL = int(opts["il"])
VSTEP, KSTEP, KWSH, ISH = (131072, 32768, 18, 10) if IL else (4096, 1024, 13, 15)
a = Asm()
NONCE = 0x0
GD = 0x400
GB = 0x2000
GS = 0x1F400
LS = 0xA800
REC, ML, HP, HS, BL = 0x0, 0x8000, 0x8400, 0xA400, 0xA600
HCS = 2 * LS
QP1 = HCS + 0x2000
QS1 = QP1 + 0x2000
CLR = 3328
XR = 32 * CLR
X1, X2, XLS = XR, XR + 5120, 10240
assert HS + 512 <= LS and QS1 + 256 <= XR and XR + 2 * XLS <= GS
TG = 0x200000
QP, QS, QCS = 0x0, 0x2000, 0x2400
FL = QCS + 0x2000
BOFF = 0x5000
TGS = 2 * BOFF + 0x400
WSSIZE = 0x400000
L_X = 0x0
L_HB, L_QB, L_PB, L_MB, L_YB, L_MODE, L_CS = 0x400, 0x600, 0xA00, 0xE00, 0x1000, 0x1400, 0x1800
L_WQ, L_V, L_W2, L_WD = 0x2000, 0x6000, 0xE000, 0x2000
L_K = 0x16000
LDS_SIZE = 0x1E000
sX, sK, sV, sWQ, sWO, sWG, sWU, sWD, sOUT, sDBG, sWS = 4, 6, 8, 10, 12, 16, 18, 20, 22, 24, 26
sG, sI, sW, sKQ, sCG, sA4 = 28, 29, 30, 31, 32, 33
sLAY, sXO = 34, 35
RG = 36
RX = 40
sGO = 44
RT = 52
sTAG, sT0 = 56, 57
sSPIN, sPH, sT, sT2, sNON = 61, 62, 63, 64, 65
sQUADM, sMLM, sPUBM, sDM, sM = 66, 68, 70, 72, 74
sTH = 3
sFIN, sTRY = 76, 77
sNF, sALT = 14, 15
sSTM = 78
sST = 80
aK, aV, aWQ, aW2, aWD = 0, 32, 64, 80, 144
NAGPR = 176
vSTG = 52
vMASK, vONE, vJUNK = 56, 57, 60
vCS = 64
(vQCS, vHCS) = (96, 104)
(vR0, vR1, vXW, vXRD, vXWR, vGA, vQPA, vQGA, vQSA, vRECA, vMLA, vOA, vOML, vHGA, vPUBA, vROW, vPC16, vTR0,
 vSTMP, vL16, vL8, vQRD, vPRD, vPWR, vMWR, vMRD, vYWR, vB16, vHWR, vHSA, vDPA, vMODE, vVA, vQL, vKA) = range(108, 143)
NVGPR = 144
ONES = 0x3F803F80
QSCALE = math.log2(math.e) / math.sqrt(128.0)
def f32(x): return "0x%08x" % struct.unpack("<I", struct.pack("<f", x))[0]
DPPALL = "row_mask:0xf bank_mask:0xf"
LG = lambda n: n

stamp_names = []; spin_ids = []
SEL = opts.get("sel", "start,wq,xq,qpub,q,p,rec,x1pub,h,x2pub").split(",")
def stamp(name):
    if not STAMP or name not in SEL: return
    if name not in stamp_names: stamp_names.append(name)
    k = stamp_names.index(name); assert k < 11
    a(f"s_memrealtime s[{sST+2*k}:{sST+2*k+1}]")
def stamp_flush():
    if not STAMP: return
    l1 = a.label("SF"); l2 = a.label("SF")
    a("s_waitcnt lgkmcnt(0)")
    a(f"s_cmp_eq_u32 s{sLAY}, 0\ns_cbranch_scc0 {l1}")
    for k in range(11): a(f"v_writelane_b32 v{vSTMP}, s{sST+2*k}, {k}")
    a(f"s_branch {l2}\n{l1}:")
    for k in range(11): a(f"v_writelane_b32 v{vSTMP}, s{sST+2*k}, {k+16}")
    a(f"{l2}:")
def stamp_store():
    if not STAMP: return
    l1 = a.label("SS")
    a(f"""s_cmp_eq_u32 s{sW}, {opts.get("sw", 0)}
    s_cbranch_scc0 {l1}
    s_mov_b32 exec_lo, -1
    s_mov_b32 exec_hi, 0
    s_lshl_b32 s{sT}, s2, 8
    s_add_u32 s{sM}, s{sWS}, s{sT}
    s_addc_u32 s{sM+1}, s{sWS+1}, 0
    s_add_u32 s{sM}, s{sM}, 0x10000000
    s_addc_u32 s{sM+1}, s{sM+1}, 0
    v_mov_b32 v4, v{vSTMP}
    v_mov_b32 v5, 0
    global_store_dwordx2 v{vL8}, v[4:5], s[{sM}:{sM+1}]
    {l1}:""")

def spin(lab_retry, lab_giveup):
    a(f"s_sub_u32 s{sSPIN}, s{sSPIN}, 1\ns_cbranch_scc0 {lab_retry}\ns_mov_b32 s{sSPIN}, 0")
    if DBG:
        spin_ids.append(lab_retry)
        a(f"s_mov_b64 s[{sM}:{sM+1}], exec\ns_mov_b64 exec, 1\nv_mov_b32 v45, {4*len(spin_ids)}\nv_mov_b32 v46, 1\nglobal_atomic_add v45, v46, s[{sDBG}:{sDBG+1}]\ns_mov_b64 exec, s[{sM}:{sM+1}]")
    a(f"s_branch {lab_giveup}")

def dma(ptr, voff, lds_base, n, gstep):
    a(f"s_lshl_b32 s{sT}, s{sW}, 10\ns_add_u32 m0, s{sT}, {lds_base}")
    for j in range(n):
        if j == 0: a("s_nop 0")
        a(f"global_load_lds_dwordx4 v{voff}, s[{ptr}:{ptr+1}] {POL}")
        if j + 1 < n:
            a(f"s_add_u32 m0, m0, 4096\ns_add_u32 s{ptr}, s{ptr}, {gstep}\ns_addc_u32 s{ptr+1}, s{ptr+1}, 0")

def trW(dst, base, vA, vB):
    for s in range(4):
        a(f"ds_read_b64_tr_b16 a[{dst+4*s}:{dst+4*s+1}], v{vA} offset:{base + s*4096}")
        a(f"ds_read_b64_tr_b16 a[{dst+4*s+2}:{dst+4*s+3}], v{vB} offset:{base + s*4096}")
def mfma(d, A, B, first):
    return f"v_mfma_f32_16x16x32_bf16 v[{d}:{d+3}], {A}, {B}, {'0' if first else f'v[{d}:{d+3}]'}"
V4 = lambda r: f"v[{r}:{r+3}]"
A4 = lambda r: f"a[{r}:{r+3}]"

def wo_issue():
    a(f"""
    s_lshl_b32 s{sT}, s{sG}, 1
    s_lshr_b32 s{sT2}, s{sA4}, 3
    s_add_u32 s{sT}, s{sT}, s{sT2}
    s_lshl_b32 s{sT}, s{sT}, 18
    s_and_b32 s{sT2}, s{sA4}, 7
    s_lshl_b32 s{sT2}, s{sT2}, 7
    s_add_u32 s{sT}, s{sT}, s{sT2}
    s_add_u32 s{sWO}, s{sWO}, s{sT}
    s_addc_u32 s{sWO+1}, s{sWO+1}, 0
    v_lshl_add_u32 v4, v{vROW}, 10, v{vPC16}
    """)
    dma(sWO, 4, L_W2, 8, 32 * 1024)

stamp("start")
a(f"""
s_cmp_ge_u32 s2, 256
s_cbranch_scc1 L_end
s_getpc_b64 s[{sSTM}:{sSTM+1}]
L_pc:
s_load_dwordx16 s[4:19], s[0:1], 0
s_load_dwordx8 s[20:27], s[0:1], 64
v_lshlrev_b32 v1, 7, v0
v_min_u32 v1, L_end-L_pc, v1
global_load_dword v{vJUNK}, v1, s[{sSTM}:{sSTM+1}]
v_lshrrev_b32 v3, 6, v0
v_lshrrev_b32 v4, 1, v0
v_readfirstlane_b32 s{sW}, v3
v_xor_b32 v4, v4, v0
v_lshlrev_b32 v5, 1, v4
v_and_b32 v5, 32, v5
v_and_or_b32 v5, v4, 64, v5
v_lshlrev_b32 v11, 4, v0
v_and_b32 v6, 0x70, v11
v_xor_b32 v{vPC16}, v5, v6
v_lshrrev_b32 v{vROW}, 3, v0
v_lshl_add_u32 v7, v{vROW}, 13, v{vPC16}
s_and_b32 s{sG}, s2, 7
s_lshr_b32 s{sI}, s2, 3
s_and_b32 s{sKQ}, s{sI}, 3
s_lshr_b32 s{sCG}, s{sI}, 2
s_lshl_b32 s{sT}, s{sKQ}, 20
s_lshl_b32 s{sT2}, s{sG}, 10
s_lshl3_add_u32 s{sT2}, s{sCG}, s{sT2}
s_lshl_b32 s{sM}, s{sW}, 10
s_add_u32 m0, s{sM}, {L_WQ}
s_mul_i32 s{sA4}, s{sCG}, 120
s_add_u32 s{sT}, s{sT}, s{sT2}
s_add_u32 s{sT}, s{sT}, s{sA4}
s_waitcnt lgkmcnt(0)
s_add_u32 s{sWQ}, s{sWQ}, s{sT}
s_addc_u32 s{sWQ+1}, s{sWQ+1}, 0
""")
stamp("karg")
for j in range(4):
    a(f"global_load_lds_dwordx4 v7, s[{sWQ}:{sWQ+1}] {POL}")
    if j < 3: a(f"s_add_u32 m0, m0, 4096\nv_add_u32 v7, {32*8192}, v7")
a(f"""
s_load_dword s{sNON}, s[{sWS}:{sWS+1}], {NONCE}
v_lshlrev_b32 v5, 1, v0
v_and_b32 v5, 0xe0, v5
v_xor_b32 v{vVA}, v11, v5
{f"v_and_b32 v{vVA}, 0x3ff, v{vVA}" if IL else ""}
{f"v_lshl_add_u32 v{vVA}, v3, 15, v{vVA}" if IL else ""}
s_lshl_b32 s{sT}, s{sG}, 24
s_lshl_b32 s{sT2}, s{sI}, {ISH}
s_add_u32 s{sT}, s{sT}, s{sT2}
s_add_u32 s{sT}, s{sT}, 0xF00000
s_add_u32 s{sV}, s{sV}, s{sT}
s_addc_u32 s{sV+1}, s{sV+1}, 0
s_add_u32 m0, s{sM}, {L_V}
s_add_u32 s{sK}, s{sK}, s{sT}
s_addc_u32 s{sK+1}, s{sK+1}, 0
global_load_lds_dwordx4 v{vVA}, s[{sV}:{sV+1}] {POL}
; x (own quarter and all of it), slot clearing, L2 warm-up of the tagged slots
v_and_b32 v8, 31, v0
v_bfe_u32 v9, v0, 5, 1
v_lshlrev_b32 v8, 3, v8
v_lshl_or_b32 v{vHWR}, v9, 2, v8
s_lshl_b32 s{sT}, s{sKQ}, 8
v_add_u32 v10, s{sT}, v{vHWR}
global_load_dword v{vXW}, v10, s[{sX}:{sX+1}]
v_and_b32 v{vL16}, 0x3f0, v11
global_load_dwordx4 v[20:23], v{vL16}, s[{sX}:{sX+1}]
s_mul_i32 s{sT}, s{sG}, {GS}
s_add_u32 s{sT}, s{sT}, {GB}
s_add_u32 s{RG}, s{sWS}, s{sT}
s_addc_u32 s{RG+1}, s{sWS+1}, 0
s_mul_i32 s{sT}, s{sG}, {TGS}
s_add_u32 s{sT}, s{sT}, {TG}
s_add_u32 s{RT}, s{sWS}, s{sT}
s_addc_u32 s{RT+1}, s{sWS+1}, 0
s_lshl_b32 s{sT}, s{sI}, 10
v_lshl_add_u32 v6, v6, 3, s{sT}
global_load_dword v{vJUNK+1}, v6, s[{RT}:{RT+1}] sc1
v_mov_b32 v12, -1
v_mov_b32 v13, -1
v_mov_b32 v14, -1
v_mov_b32 v15, -1
s_mul_i32 s{sT}, s{sI}, {CLR}
v_min_u32 v10, {CLR-16}, v11
v_add_u32 v10, s{sT}, v10
global_store_dwordx4 v10, v[12:15], s[{RG}:{RG+1}]
s_cmp_eq_u32 s{sW}, 3
s_cbranch_scc0 L_clrd
s_mul_i32 s{sT}, s{sI}, 640
s_add_u32 s{sT}, s{sT}, {XR}
v_min_u32 v10, 624, v{vL16}
v_add_u32 v10, s{sT}, v10
global_store_dwordx4 v10, v[12:15], s[{RG}:{RG+1}] sc1
L_clrd:
""")
NV1 = int(opts["v1"])
for j in range(1, NV1):
    a(f"s_add_u32 m0, m0, 4096\nv_add_u32 v{vVA}, {VSTEP}, v{vVA}\nglobal_load_lds_dwordx4 v{vVA}, s[{sV}:{sV+1}] {POL}")
a(f"""
v_and_b32 v1, 15, v0
v_bfe_u32 v2, v0, 4, 2
""")
stamp("iss")
a(f"""
s_mov_b32 s{RG+2}, 0x20000
s_mov_b32 s{RG+3}, 0x20000
s_mov_b32 s{RX+2}, {WSSIZE}
s_mov_b32 s{RX+3}, 0x20000
s_mov_b32 s{RT+2}, {2*BOFF}
s_mov_b32 s{RT+3}, 0x20000
s_mov_b32 s{sLAY}, 0
s_mov_b32 s{sALT}, 1
s_mov_b32 s{sNF}, 1
s_mov_b32 s{sTH}, 0x42000000
s_movk_i32 s{sTRY}, 64
s_mov_b32 s{sSPIN}, 0x20000
s_mov_b32 s{sQUADM}, 0x11111111
s_mov_b32 s{sQUADM+1}, 0x11111111
s_mov_b32 s{sDM}, 0x00020002
s_mov_b32 s{sDM+1}, 0x00020002
s_mov_b32 s{sPUBM}, 0x00110011
s_mov_b32 s{sPUBM+1}, 0x00110011
s_lshl_b32 s{sT}, s{sW}, 4
s_lshl_b64 s[{sMLM}:{sMLM+1}], 1, s{sT}
s_and_b32 s{sA4}, s{sI}, 15
s_or_b32 s{sT}, s{sG}, s{sCG}
s_cmp_eq_u32 s{sT}, 0
s_cselect_b32 s{sFIN}, 1, 0
s_mov_b32 s{sSTM}, 0
s_brev_b32 s{sSTM+1}, 1
s_lshr_b32 s{sXO}, s{sA4}, 3
s_mul_i32 s{sXO}, s{sXO}, 2560
s_and_b32 s{sT2}, s{sA4}, 7
s_lshl_b32 s{sT2}, s{sT2}, 8
s_add_u32 s{sXO}, s{sXO}, s{sT2}
""")
for gp in range(8):
    a(f"s_mov_b32 s{sGO+gp}, {gp*GS}")
a(f"""
v_bfe_u32 v3, v0, 2, 2
v_and_b32 v4, 3, v0
v_lshrrev_b32 v{vL8}, 1, v{vL16}
v_lshlrev_b32 v{vB16}, 4, v2
v_add_u32 v5, 256, v{vB16}
v_cmp_eq_u32 vcc, 1, v3
v_mov_b32 v{vXWR}, v{vHWR}
v_mov_b32 v{vONE}, {ONES}
v_cndmask_b32 v{vXRD}, v{vB16}, v5, vcc
v_lshlrev_b32 v5, 1, v8
s_lshl_b32 s{sT}, s{sKQ}, 9
v_add_u32 v{vGA}, s{sT}, v5
v_mul_u32_u24 v6, 2560, v9
v_add_u32 v{vGA}, v{vGA}, v6
s_lshr_b32 s{sT}, s{sA4}, 3
s_lshl_b32 s{sT}, s{sT}, 12
s_add_u32 s{sT}, s{sT}, {HP}
v_lshl_add_u32 v{vHGA}, v9, 9, v5
v_add_u32 v{vHGA}, s{sT}, v{vHGA}
v_lshlrev_b32 v{vHSA}, 4, v4
v_add_u32 v{vHSA}, {HS}, v{vHSA}
s_lshl_b32 s{sT}, s{sKQ}, 11
s_lshl_b32 s{sT2}, s{sCG}, 8
s_add_u32 s{sT}, s{sT}, s{sT2}
s_lshl_b32 s{sT2}, s{sW}, 6
s_add_u32 s{sT}, s{sT}, s{sT2}
v_add_u32 v{vQPA}, s{sT}, v{vB16}
v_add_u32 v7, {QCS}, v{vQPA}
v_cndmask_b32 v{vQPA}, v{vQPA}, v7, vcc
v_add_u32 v{vQGA}, {QS}, v5
s_lshl_b32 s{sT}, s{sI}, 4
s_add_u32 s{sT}, s{sT}, {QS}
v_mov_b32 v{vQSA}, s{sT}
s_lshr_b32 s{sT}, s{sI}, 4
s_lshl_b32 s{sT}, s{sT}, 12
s_lshl_b32 s{sT2}, s{sW}, 10
s_add_u32 s{sT}, s{sT}, s{sT2}
s_lshl_b32 s{sT2}, s{sA4}, 4
s_add_u32 s{sT}, s{sT}, s{sT2}
v_lshlrev_b32 v7, 13, v2
v_lshl_add_u32 v7, v3, 8, v7
v_add_u32 v{vRECA}, s{sT}, v7
s_lshl_b32 s{sT}, s{sI}, 3
s_add_u32 s{sT}, s{sT}, {ML}
v_lshlrev_b32 v7, 8, v2
v_add_u32 v{vMLA}, s{sT}, v7
s_lshr_b32 s{sT}, s{sA4}, 3
s_lshl_b32 s{sT}, s{sT}, 2
s_add_u32 s{sT}, s{sT}, s{sW}
s_lshl_b32 s{sT2}, s{sT}, 12
v_add_u32 v{vOA}, s{sT2}, v{vL16}
s_lshr_b32 s{sT2}, s{sT}, 1
s_lshl_b32 s{sT2}, s{sT2}, 8
s_add_u32 s{sT2}, s{sT2}, {ML}
s_and_b32 s{sT}, s{sT}, 1
v_and_b32 v7, 1, v3
v_xor_b32 v7, s{sT}, v7
v_lshlrev_b32 v7, 4, v7
v_lshl_add_u32 v7, v2, 2, v7
v_add_u32 v7, v7, v4
v_lshlrev_b32 v7, 3, v7
v_add_u32 v{vOML}, s{sT2}, v7
v_lshl_add_u32 v7, v2, 3, v3
v_lshlrev_b32 v7, 7, v7
v_lshrrev_b32 v10, 1, v2
v_xor_b32 v10, v10, v2
v_and_b32 v10, 1, v10
v_lshrrev_b32 v11, 1, v3
v_lshl_or_b32 v10, v10, 1, v11
v_lshlrev_b32 v10, 5, v10
v_lshl_or_b32 v10, v4, 3, v10
v_or_b32 v{vTR0}, v7, v10
v_lshl_add_u32 v{vQRD}, v3, 8, v{vB16}
v_lshl_add_u32 v{vPRD}, v3, 6, v{vB16}
s_lshl_b32 s{sT}, s{sW}, 8
v_add_u32 v{vPWR}, s{sT}, v{vPRD}
v_lshrrev_b32 v7, 1, v2
v_and_b32 v10, 1, v2
v_lshl_or_b32 v7, v10, 1, v7
v_lshlrev_b32 v7, 6, v7
v_lshl_add_u32 v7, v1, 2, v7
v_add_u32 v{vYWR}, s{sT}, v7
s_lshl_b32 s{sT}, s{sW}, 5
v_lshlrev_b32 v7, 3, v2
v_lshl_add_u32 v7, v3, 7, v7
v_add_u32 v{vMWR}, s{sT}, v7
v_lshlrev_b32 v7, 3, v1
v_lshl_add_u32 v{vMRD}, v2, 7, v7
s_lshl_b32 s{sT}, s{sW}, 7
v_lshl_add_u32 v7, v1, 6, v{vB16}
v_add_u32 v{vDPA}, s{sT}, v7
v_mov_b32 v{vPUBA}, 0
v_mov_b32 v{vMASK}, 0xffffff00
v_lshrrev_b32 v11, 1, v{vL8}
ds_write_b32 v11, v{vONE} offset:{L_X+256}
ds_write_b32 v11, v{vONE} offset:{L_X+768}
s_getreg_b32 s{sT2}, hwreg(HW_REG_XCC_ID)
s_and_b32 s{sT2}, s{sT2}, 15
v_mov_b32 v{vSTG+3}, s{sT2}
s_waitcnt lgkmcnt(0)
s_mul_i32 s{sTAG}, s{sNON}, 0x9E3779B1
s_add_u32 s{sTAG}, s{sTAG}, 0x7F4A7C15
s_and_b32 s{sT0}, s{sTAG}, 255
s_bfe_u32 s{sT0+1}, s{sTAG}, 0x80008
s_bfe_u32 s{sT0+2}, s{sTAG}, 0x80010
s_lshr_b32 s{sT0+3}, s{sTAG}, 24
v_mov_b32 v{vSTG+2}, s{sTAG}
s_lshl_b32 s{sT}, s{sW}, 5
v_xor_b32 v10, s{sT}, v{vTR0}
v_xor_b32 v11, 32, v10
v_add_u32 v11, 512, v11
""")
stamp("setup")
for j in range(NV1, 8):
    a(f"s_add_u32 m0, m0, 4096\nv_add_u32 v{vVA}, {VSTEP}, v{vVA}\nglobal_load_lds_dwordx4 v{vVA}, s[{sV}:{sV+1}] {POL}")
KUP = int(opts["kup"])
def kdma(j0, j1):
    for j in range(j0, j1):
        a(f"v_xor_b32 v5, {64*(j&3)}, v{vKA}\nglobal_load_lds_dwordx4 v5, s[{sK}:{sK+1}] {POL}")
        if j < 7: a(f"s_add_u32 m0, m0, 1024\ns_add_u32 s{sK}, s{sK}, {KSTEP}\ns_addc_u32 s{sK+1}, s{sK+1}, 0")
a(f"""v_xor_b32 v{vKA}, v{vB16}, v{vL16}
s_lshl_b32 s{sT}, s{sW}, {KWSH}
v_add_u32 v{vKA}, s{sT}, v{vKA}
s_lshl_b32 s{sT}, s{sW}, 13
s_add_u32 m0, s{sT}, {L_K}""")
kdma(0, KUP)
stamp("iss2")
a(f"""
s_waitcnt vmcnt({7 + KUP})
v_dot2_f32_bf16 v24, v20, v{vONE}, 0
v_dot2_f32_bf16 v24, v21, v{vONE}, v24
v_dot2_f32_bf16 v24, v22, v{vONE}, v24
v_dot2_f32_bf16 v24, v23, v{vONE}, v24
v_lshlrev_b32 v{vR0}, 16, v{vXW}
v_and_b32 v{vR1}, 0xffff0000, v{vXW}
s_nop 0
v_add_f32_dpp v24, v24, v24 row_ror:1 {DPPALL}
s_nop 1
v_add_f32_dpp v24, v24, v24 row_ror:2 {DPPALL}
s_nop 1
v_add_f32_dpp v24, v24, v24 row_ror:4 {DPPALL}
s_nop 1
v_add_f32_dpp v24, v24, v24 row_ror:8 {DPPALL}
v_mov_b32 v25, v24
s_nop 1
v_permlane32_swap_b32 v24, v25
v_add_f32 v24, v24, v25
v_mov_b32 v25, v24
s_nop 1
v_permlane16_swap_b32 v24, v25
v_add_f32 v24, v24, v25
v_mov_b32 v25, {f32(-1/512)}
v_fma_f32 v26, v24, v25, v{vR0}
v_fma_f32 v27, v24, v25, v{vR1}
v_cvt_pk_bf16_f32 v{vXW}, v26, v27
ds_write_b32 v{vXWR}, v{vXW}
s_barrier
""")
stamp("wq")
if STAMP: a(f"v_mov_b32 v{vSTMP}, 0")
trW(aWQ, L_WQ, 10, 11)
a("s_branch L_TQ")

a(f"""
L_G:
""")
if int(opts["xack"]): a("s_waitcnt vmcnt(0)")
stamp("g0")
a("L_Gp:")
for j in range(8):
    a(f"buffer_load_dwordx4 {V4(8+4*j)}, v{vGA}, s[{RX}:{RX+3}], s{sGO+j} offen sc1")
a("s_waitcnt vmcnt(6)")
a("v_pk_add_f32 v[40:41], v[8:9], v[12:13]\nv_pk_add_f32 v[42:43], v[10:11], v[14:15]\nv_max_u32 v44, v8, v12")
for j in range(2, 8):
    a(f"s_waitcnt vmcnt({7-j})")
    a(f"v_pk_add_f32 v[40:41], v[40:41], v[{8+4*j}:{9+4*j}]\nv_pk_add_f32 v[42:43], v[42:43], v[{10+4*j}:{11+4*j}]")
    a(f"v_max_u32 v44, v44, v{8+4*j}")
a(f"""
v_cmp_eq_u32 vcc, -1, v44
v_permlane32_swap_b32 v40, v42
v_permlane32_swap_b32 v41, v43
v_add_f32 v40, v40, v42
v_add_f32 v41, v41, v43
v_add_f32 v40, v40, v{vR0}
v_add_f32 v41, v41, v{vR1}
v_cvt_pk_bf16_f32 v{vXW}, v40, v41
ds_write_b32 v{vXWR}, v{vXW}
s_cbranch_vccnz L_Gretry
L_Gok:
""")
stamp("gok")
a(f"""
v_lshlrev_b32 v{vR0}, 16, v{vXW}
v_and_b32 v{vR1}, 0xffff0000, v{vXW}
s_cmp_eq_u32 s{sPH}, 1
s_cbranch_scc1 L_TU
s_cmp_eq_u32 s{sPH}, 0
s_cbranch_scc0 L_Gother
""")

def stats():
    l = a.label("ST")
    a(f"""s_cbranch_scc1 {l}
    v_dot2_f32_bf16 v46, v{vXW}, v{vXW}, 0
    v_dot2_f32_bf16 v47, v{vXW}, v{vONE}, 0
    s_nop 2
    v_permlane32_swap_b32 v47, v46
    v_add_f32 v46, v46, v47
    s_nop 1
    v_add_f32_dpp v46, v46, v46 row_ror:1 {DPPALL}
    s_nop 1
    v_add_f32_dpp v46, v46, v46 row_ror:2 {DPPALL}
    s_nop 1
    v_add_f32_dpp v46, v46, v46 row_ror:4 {DPPALL}
    s_nop 1
    v_add_f32_dpp v46, v46, v46 row_ror:8 {DPPALL}
    s_nop 1
    v_add_f32_dpp v46, v46, v46 row_bcast:15 row_mask:0xa bank_mask:0xf
    s_nop 0
    v_mov_b32 v{vSTG}, v46
    v_mov_b32_dpp v{vSTG+1}, v46 row_bcast:31 row_mask:0xc bank_mask:0xf
    {l}:""")

a(f"""
L_TQ:
s_cmp_lg_u32 s{sW}, 0
s_waitcnt lgkmcnt(0)
s_barrier
""")
stamp("xq")
for s in range(4): a(f"ds_read_b128 {V4(8+4*s)}, v{vXRD} offset:{64*s}")
stats()
for s in range(4):
    a(f"s_waitcnt lgkmcnt({LG(3-s)})")
    a(mfma(24, A4(aWQ+4*s), V4(8+4*s), s == 0))
def tq_tail(fl):
    a(f"""s_mov_b64 exec, s[{sPUBM}:{sPUBM+1}]
    s_cmp_lg_u32 s{sW}, 0
    s_nop 3
    buffer_store_dwordx4 v[24:27], v{vQPA}, s[{RG}:{RG+3}], 0 offen{fl}
    s_cbranch_scc1 L_S
    s_mov_b64 exec, s[{sSTM}:{sSTM+1}]
    buffer_store_dwordx2 v[{vSTG}:{vSTG+1}], v{vQSA}, s[{RG}:{RG+3}], 0 offen{fl}
    s_mov_b64 exec, -1""")
a(f"s_cmp_eq_u32 s{sALT}, 0\ns_cbranch_scc0 L_TQalt")
tq_tail("")
stamp("qpub")
a(f"""
L_QFe:
s_movk_i32 s{sT}, 4096
L_QFp:
buffer_load_dwordx2 v[48:49], v{vQGA}, s[{RG}:{RG+3}], 0 offen sc1
""")
for u in range(2):
    for k in range(4):
        so = "0" if k < 2 else f"s{sT}"
        a(f"buffer_load_dwordx4 {V4(8+16*u+4*k)}, v{vQL}, s[{RG}:{RG+3}], {so} offen offset:{(k&1)*2048+u*1024} sc1")
def ln_chain(first):
    if first:
        a(f"""v_add_f32_dpp v48, v48, v48 quad_perm:[1,0,3,2] {DPPALL}
        v_add_f32_dpp v49, v49, v49 quad_perm:[1,0,3,2] {DPPALL}""")
    else:
        a(f"""v_add_f32_dpp v48, v48, v48 quad_perm:[2,3,0,1] {DPPALL}
        v_add_f32_dpp v49, v49, v49 quad_perm:[2,3,0,1] {DPPALL}
        v_mul_f32 v48, {f32(1/512)}, v48
        v_mul_f32 v46, {f32(-1/512)}, v49
        v_fma_f32 v48, -v46, v46, v48
        v_max_f32 v48, 0, v48
        v_add_f32 v48, {f32(1e-5)}, v48
        v_rsq_f32 v48, v48""")
a(f"s_waitcnt vmcnt(8)\nv_cmp_eq_u32 vcc, -1, v48")
ln_chain(True)
a("s_cbranch_vccnz L_QFretry\nL_QF2:")
stamp("qf2")
ln_chain(False)
a(f"""
s_waitcnt vmcnt(6)
v_pk_add_f32 v[40:41], v[8:9], v[12:13]
v_pk_add_f32 v[42:43], v[10:11], v[14:15]
v_mul_f32 v48, {f32(QSCALE)}, v48
s_waitcnt vmcnt(5)
v_pk_add_f32 v[40:41], v[40:41], v[16:17]
v_pk_add_f32 v[42:43], v[42:43], v[18:19]
v_max3_u32 v44, v8, v12, v16
v_pk_fma_f32 v[40:41], v[{vQCS}:{vQCS+1}], v[46:47], v[40:41] op_sel_hi:[1,0,1]
v_pk_fma_f32 v[42:43], v[{vQCS+2}:{vQCS+3}], v[46:47], v[42:43] op_sel_hi:[1,0,1]
s_waitcnt vmcnt(3)
v_pk_add_f32 v[40:41], v[40:41], v[20:21]
v_pk_add_f32 v[42:43], v[42:43], v[22:23]
v_max3_u32 v44, v44, v20, v24
v_pk_fma_f32 v[24:25], v[{vQCS+4}:{vQCS+5}], v[46:47], v[24:25] op_sel_hi:[1,0,1]
v_pk_fma_f32 v[26:27], v[{vQCS+6}:{vQCS+7}], v[46:47], v[26:27] op_sel_hi:[1,0,1]
v_pk_mul_f32 v[40:41], v[40:41], v[48:49] op_sel_hi:[1,0]
v_pk_mul_f32 v[42:43], v[42:43], v[48:49] op_sel_hi:[1,0]
s_waitcnt vmcnt(2)
v_pk_add_f32 v[24:25], v[24:25], v[28:29]
v_pk_add_f32 v[26:27], v[26:27], v[30:31]
v_cvt_pk_bf16_f32 v40, v40, v41
v_cvt_pk_bf16_f32 v41, v42, v43
s_waitcnt vmcnt(1)
v_pk_add_f32 v[24:25], v[24:25], v[32:33]
v_pk_add_f32 v[26:27], v[26:27], v[34:35]
ds_write_b64 v{vL8}, v[40:41] offset:{L_QB}
v_max3_u32 v44, v44, v28, v32
s_waitcnt vmcnt(0)
v_pk_add_f32 v[24:25], v[24:25], v[36:37]
v_pk_add_f32 v[26:27], v[26:27], v[38:39]
v_pk_mul_f32 v[24:25], v[24:25], v[48:49] op_sel_hi:[1,0]
v_pk_mul_f32 v[26:27], v[26:27], v[48:49] op_sel_hi:[1,0]
v_cvt_pk_bf16_f32 v24, v24, v25
v_cvt_pk_bf16_f32 v25, v26, v27
ds_write_b64 v{vL8}, v[24:25] offset:{L_QB+512}
v_max_u32 v44, v44, v36
v_cmp_eq_u32 vcc, -1, v44
s_cbranch_vccnz L_QF2retry
""")
stamp("qfok")
a(f"""
L_S:
s_mov_b64 exec, -1
s_waitcnt lgkmcnt(0)
s_barrier
""")
stamp("q")
for s in range(4): a(f"ds_read_b128 {V4(8+4*s)}, v{vQRD} offset:{L_QB + 64*s}")
a(f"""s_cmp_eq_u32 s{sLAY}, 0
s_cbranch_scc1 L_S0
L_S1:""")
for s in range(4):
    a(f"s_waitcnt lgkmcnt({LG(3-s)})")
    for t in range(2): a(mfma(24+4*t, A4(aK+16*t+4*s), V4(8+4*s), s == 0))
a(f"""
v_readfirstlane_b32 s{sNF}, v{vMODE}
v_mov_b32 v32, 0
s_nop 4
""")
stamp("smm")
for k in range(8): a(f"v_exp_f32 v{40+k}, v{24+k}")
def p_tail():
    a(f"""
    v_cvt_pk_bf16_f32 v36, v40, v41
    v_cvt_pk_bf16_f32 v37, v42, v43
    v_cvt_pk_bf16_f32 v38, v44, v45
    v_cvt_pk_bf16_f32 v39, v46, v47
    s_mov_b64 exec, s[{sQUADM}:{sQUADM+1}]
    ds_write_b128 v{vPWR}, v[36:39] offset:{L_PB}
    v_dot2_f32_bf16 v33, v36, v{vONE}, 0
    v_dot2_f32_bf16 v33, v37, v{vONE}, v33
    v_dot2_f32_bf16 v33, v38, v{vONE}, v33
    v_dot2_f32_bf16 v33, v39, v{vONE}, v33""")
p_tail()
a(f"""
v_max3_f32 v34, v24, v25, v26
v_max3_f32 v35, v27, v28, v29
v_max3_f32 v34, v34, v30, v31
ds_write_b64 v{vMWR}, v[32:33] offset:{L_MB}
v_max_f32 v34, v34, v35
v_cmp_nle_f32 vcc, |v34|, s{sTH}
s_cbranch_vccnz L_Sbig
L_Sp:
s_mov_b64 exec, -1
s_cmp_eq_u32 s{sNF}, 0
s_waitcnt lgkmcnt(0)
s_barrier
""")
stamp("p")
for w in range(4): a(f"ds_read_b128 {V4(8+4*w)}, v{vPRD} offset:{L_PB + 256*w}")
a(f"ds_read_b64 v[32:33], v{vMRD} offset:{L_MB}")
for w in range(4):
    a(f"s_waitcnt lgkmcnt({LG(4-w)})")
    for c in range(2): a(mfma(24+4*c, V4(8+4*w), A4(aV+8*w+4*c), w == 0))
a(f"""
s_waitcnt lgkmcnt(0)
v_add_f32_dpp v35, v33, v33 row_ror:1 {DPPALL}
v_cmp_neq_f32 vcc, 0, v32
v_mov_b32 v34, 0
v_add_f32_dpp v35, v35, v35 row_ror:2 {DPPALL}
s_cbranch_vccnz L_PVbig
s_nop 0
v_add_f32_dpp v35, v35, v35 row_ror:4 {DPPALL}
v_cvt_pk_bf16_f32 v36, v24, v28
s_nop 0
v_add_f32_dpp v35, v35, v35 row_ror:8 {DPPALL}
L_PVt:
v_mov_b32_dpp v37, v36 quad_perm:[1,1,1,1] {DPPALL}
v_mov_b32_dpp v38, v36 quad_perm:[2,2,2,2] {DPPALL}
v_mov_b32_dpp v39, v36 quad_perm:[3,3,3,3] {DPPALL}
s_mov_b64 exec, s[{sQUADM}:{sQUADM+1}]
s_cbranch_scc0 L_RECsafe
""")
def rec_tail(fl):
    a(f"""buffer_store_dwordx4 v[36:39], v{vRECA}, s[{RG}:{RG+3}], 0 offen{fl}
    s_mov_b64 exec, s[{sMLM}:{sMLM+1}]
    buffer_store_dwordx2 v[34:35], v{vMLA}, s[{RG}:{RG+3}], 0 offen{fl}""")
rec_tail("")
a(f"""L_RECd:
s_mov_b64 exec, -1""")
stamp("rec")
a(f"""
s_cmp_ge_u32 s{sI}, 16
s_cbranch_scc1 L_B
""")
a(f"""
s_cmp_eq_u32 s{sLAY}, 0
s_cbranch_scc0 L_O
""")
if opts["wo2"] == "all": wo_issue()
if opts["wo2"] == "rec":
    a(f"s_cmp_eq_u32 s{sW}, 0\ns_cbranch_scc0 L_W0")
    wo_issue()
    a("L_W0:")
a(f"""
v_bfe_u32 v1, v0, 2, 1
v_bfe_u32 v2, v0, 3, 1
v_bfe_u32 v3, v0, 4, 2
v_lshl_add_u32 v5, v3, 2, v2
v_lshl_add_u32 v5, v1, 4, v5
v_lshlrev_b32 v5, 7, v5
v_bfe_u32 v6, v0, 5, 1
v_xor_b32 v6, v6, v1
v_and_b32 v7, 1, v3
v_lshl_or_b32 v6, v6, 1, v7
v_lshlrev_b32 v6, 5, v6
v_and_b32 v7, 3, v0
v_lshl_or_b32 v6, v7, 3, v6
v_or_b32 v5, v5, v6
s_lshr_b32 s{sT}, s{sW}, 1
s_lshl_b32 s{sT}, s{sT}, 14
s_add_u32 s{sT}, s{sT}, {L_W2}
v_add_u32 v5, s{sT}, v5
s_waitcnt vmcnt(0)
s_barrier
""")
for t in range(4):
    a(f"v_xor_b32 v6, {32*t}, v5\nv_xor_b32 v7, 32, v6\nv_add_u32 v7, 256, v7")
    trW(aW2 + 16*t, 0, 6, 7)
OM = opts["om"]
a("L_O:")
if OM == "ack": a("s_waitcnt vmcnt(0)")
if OM in ("bell", "bell2"):
    a(f"""L_Ob:
    buffer_load_dwordx2 v[4:5], v{vOML}, s[{RG}:{RG+3}], 0 offen sc1
    s_waitcnt vmcnt(0)
    v_cmp_eq_u32 vcc, -1, v5
    s_cbranch_vccnz L_Obretry""")
a(f"""
L_Op:
buffer_load_dwordx2 v[4:5], v{vOML}, s[{RG}:{RG+3}], 0 offen sc1
""")
OG = int(opts["og"])
for s in range(4):
    a(f"buffer_load_dwordx4 {V4(8+4*s)}, v{vOA}, s[{RG}:{RG+3}], 0 offen offset:{1024*s} sc1")
    if OG and s < 3: a(f"s_nop {OG-1}")
mo = lambda t, s: mfma(24+4*t, V4(8+4*s), A4(aW2+16*t+4*s), s == 0)
a(f"""
s_waitcnt vmcnt(4) lgkmcnt(0)
v_cmp_eq_u32 vcc, -1, v5
s_cbranch_vccnz L_Oretry
L_O2:
""")
stamp("o2")
a(f"""
s_waitcnt vmcnt(3)
{mo(0,0)}
{mo(1,0)}
{mo(2,0)}
{mo(3,0)}
s_waitcnt vmcnt(2)
{mo(0,1)}
{mo(1,1)}
{mo(2,1)}
{mo(3,1)}
s_waitcnt vmcnt(1)
{mo(0,2)}
v_add_f32_dpp v6, v5, v5 quad_perm:[1,0,3,2] {DPPALL}
v_max3_u32 v44, v8, v12, v16
{mo(1,2)}
v_add_f32_dpp v6, v6, v6 quad_perm:[2,3,0,1] {DPPALL}
v_cmp_neq_f32 s[{sM}:{sM+1}], 0, v4
{mo(2,2)}
v_add_f32_dpp v6, v6, v6 row_half_mirror {DPPALL}
v_mov_b32 v7, v6
{mo(3,2)}
s_waitcnt vmcnt(0)
v_permlane32_swap_b32 v6, v7
{mo(0,3)}
v_add_f32 v6, v6, v7
v_mov_b32 v7, v6
{mo(1,3)}
v_max_u32 v44, v44, v20
v_permlane16_swap_b32 v6, v7
{mo(2,3)}
v_cmp_eq_u32 vcc, -1, v44
v_add_f32 v6, v6, v7
{mo(3,3)}
v_rcp_f32 v6, v6
s_cbranch_vccnz L_O2retry
L_Ook:
""")
stamp("ook")
a(f"""
s_cmp_lg_u64 s[{sM}:{sM+1}], 0
s_cbranch_scc1 L_Obig
v_pk_add_f32 v[24:25], v[24:25], v[26:27]
v_pk_add_f32 v[28:29], v[28:29], v[30:31]
v_add_f32 v40, v24, v25
v_add_f32 v41, v28, v29
v_pk_add_f32 v[32:33], v[32:33], v[34:35]
v_pk_add_f32 v[36:37], v[36:37], v[38:39]
v_add_f32 v42, v32, v33
v_add_f32 v43, v36, v37
L_Ot:
v_permlane32_swap_b32 v40, v41
v_add_f32 v40, v40, v41
v_permlane32_swap_b32 v42, v43
v_add_f32 v42, v42, v43
s_add_u32 s{sT}, s{sXO}, {X1}
s_cmp_eq_u32 s{sW}, 0
v_permlane16_swap_b32 v40, v42
v_add_f32 v40, v40, v42
v_mul_f32 v40, v40, v6
ds_write_b32 v{vYWR}, v40 offset:{L_YB}
s_waitcnt lgkmcnt(0)
s_barrier
s_cbranch_scc0 L_Odone
s_mov_b64 exec, 0xffff
""")
stamp("ob")
for w in range(4): a(f"ds_read_b128 {V4(8+4*w)}, v{vL16} offset:{L_YB + 256*w}")
a(f"""
s_waitcnt lgkmcnt({LG(2)})
v_pk_add_f32 v[8:9], v[8:9], v[12:13]
v_pk_add_f32 v[10:11], v[10:11], v[14:15]
s_waitcnt lgkmcnt({LG(1)})
v_pk_add_f32 v[8:9], v[8:9], v[16:17]
v_pk_add_f32 v[10:11], v[10:11], v[18:19]
s_waitcnt lgkmcnt(0)
v_pk_add_f32 v[8:9], v[8:9], v[20:21]
v_pk_add_f32 v[10:11], v[10:11], v[22:23]
buffer_store_dwordx4 v[8:11], v{vL16}, s[{RG}:{RG+3}], s{sT} offen sc1
s_mov_b64 exec, -1
L_Odone:
""")
stamp("x1pub")
def xor_acc(base, first, acc=44):
    for k in range(4): a(f"v_xor_b32 v{base+k}, s{sT0+k}, v{base+k}")
    if first:
        a(f"v_or3_b32 v{acc}, v{base}, v{base+1}, v{base+2}\nv_or_b32 v{acc}, v{acc}, v{base+3}")
    else:
        a(f"v_or3_b32 v{acc}, v{acc}, v{base}, v{base+1}\nv_or3_b32 v{acc}, v{acc}, v{base+2}, v{base+3}")
def wd_issue():
    a(f"""s_lshr_b32 s{sT}, s{sG}, 1
    s_mul_i32 s{sT}, s{sT}, 7
    s_and_b32 s{sT2}, s{sG}, 1
    s_lshl_b32 s{sM}, s{sT2}, 2
    s_add_u32 s{sT}, s{sT}, s{sM}
    s_lshr_b32 s{sM}, s{sA4}, 3
    s_and_b32 s{sT2}, s{sT2}, s{sM}
    s_lshl_b32 s{sM}, s{sM}, 1
    s_add_u32 s{sT}, s{sT}, s{sM}
    s_lshl_b32 s{sT}, s{sT}, 16
    s_and_b32 s{sM}, s{sA4}, 7
    s_lshl_b32 s{sM}, s{sM}, 1
    s_add_u32 s{sM}, s{sM}, s{sW}
    s_lshl_b32 s{sM}, s{sM}, 6
    s_add_u32 s{sT}, s{sT}, s{sM}
    s_add_u32 s{sWD}, s{sWD}, s{sT}
    s_addc_u32 s{sWD+1}, s{sWD+1}, 0
    s_lshl_b32 s{sT2}, s{sT2}, 16
    s_lshl_b32 s{sT}, s{sW}, 13
    s_add_u32 m0, s{sT}, {L_WD}
    v_bfe_u32 v4, v0, 2, 4
    v_and_b32 v5, 32, v0
    v_and_b32 v6, 48, v{vL16}
    v_xor_b32 v5, v5, v6
    v_lshl_add_u32 v4, v4, 10, v5""")
    for j in range(8):
        a(f"global_load_lds_dwordx4 v4, s[{sWD}:{sWD+1}] {POL}")
        if j < 7: a(f"s_add_u32 m0, m0, 1024\nv_add_u32 v4, 0x4000, v4")
        if j == 3: a(f"v_subrev_u32 v4, s{sT2}, v4")
    a(f"""v_bfe_u32 v4, v0, 2, 2
    v_bfe_u32 v5, v0, 4, 2
    v_lshl_add_u32 v4, v5, 3, v4
    v_lshlrev_b32 v4, 6, v4
    v_and_b32 v5, 1, v5
    v_lshl_add_u32 v4, v5, 5, v4
    v_and_b32 v5, 3, v0
    v_lshl_add_u32 v4, v5, 3, v4
    v_add_u32 v6, s{sT}, v4
    v_xor_b32 v7, 32, v6""")
def wd_reads():
    for t in range(2):
        for s_ in range(4):
            for e in range(2):
                r = aWD + 16*t + 4*s_ + 2*e
                a(f"ds_read_b64_tr_b16 a[{r}:{r+1}], v{6+t} offset:{L_WD + s_*2048 + e*256}")
def qc_gather():
    l3 = a.label("QC"); l4 = a.label("QC")
    a(f"""s_mul_i32 s{sT2}, s{sNF}, {BOFF}
    s_add_u32 s{RT}, s{RT}, s{sT2}
    s_addc_u32 s{RT+1}, s{RT+1}, 0
    {l3}:""")
    for k in range(4):
        a(f"s_mov_b32 s{sT2}, {QCS + k*2048}")
        for u in range(2):
            a(f"buffer_load_dwordx4 {V4(8+16*u+4*k)}, v{vL16}, s[{RT}:{RT+3}], s{sT2} offen offset:{u*1024} sc1")
    a("s_waitcnt vmcnt(0)")
    for u in range(2):
        for k in range(4): xor_acc(8+16*u+4*k, u == 0 and k == 0)
        for h in range(2):
            r = 8 + 16*u + 2*h
            a(f"v_pk_add_f32 v[{r}:{r+1}], v[{r}:{r+1}], v[{r+4}:{r+5}]\nv_pk_add_f32 v[{r+8}:{r+9}], v[{r+8}:{r+9}], v[{r+12}:{r+13}]")
            a(f"v_pk_add_f32 v[{vQCS+4*u+2*h}:{vQCS+4*u+2*h+1}], v[{r}:{r+1}], v[{r+8}:{r+9}]")
    a(f"v_and_b32 v44, 255, v44\nv_cmp_ne_u32 vcc, 0, v44\ns_cbranch_vccz {l4}")
    spin(l3, l4)
    a(f"""{l4}:
    ds_write_b128 v{vL16}, {V4(vQCS)} offset:{L_CS}
    ds_write_b128 v{vL16}, {V4(vQCS+4)} offset:{L_CS+1024}""")
BELL = int(opts["bell"])
def bell_ring(off):
    l1 = a.label("BR"); l2 = a.label("BR")
    a(f"""s_lshl_b32 s{sT2}, s{sA4}, 4
    s_add_u32 s{sT2}, s{sT2}, {BL + off}
    v_mov_b32 v1, 0
    s_mov_b64 exec, 1
    s_cmp_eq_u32 s{sNF}, 0
    {"s_waitcnt vmcnt(0)" if int(opts["bx2" if off else "bx"]) < 0 else ""}
    s_cbranch_scc0 {l1}
    buffer_store_dword v1, v1, s[{RG}:{RG+3}], s{sT2} offen
    {l2}:
    s_mov_b64 exec, -1""")
    tails.append(f"{l1}:\nbuffer_store_dword v1, v1, s[{RG}:{RG+3}], s{sT2} offen sc1\ns_branch {l2}")
tails = []
def bell_wait(off=0):
    if not BELL: return
    l1 = a.label("BW"); l2 = a.label("BW")
    if off == 0 and not int(opts["bell0"]): a(f"s_cmp_eq_u32 s{sLAY}, 0\ns_cbranch_scc1 {l2}")
    a(f"""s_lshl_b32 s{sT2}, s{sA4}, 4
    s_add_u32 s{sT2}, s{sT2}, {BL + off}
    v_mov_b32 v1, 0
    {l1}:
    buffer_load_dword v2, v1, s[{RG}:{RG+3}], s{sT2} offen sc1
    s_waitcnt vmcnt(0)
    v_cmp_eq_u32 vcc, -1, v2
    s_cbranch_vccz {l2}""")
    spin(l1, l2)
    a(f"{l2}:")
    bx = int(opts["bx2" if off else "bx"])
    if bx > 0: a(f"s_sleep {bx}")
def gd_wait():
    l1 = a.label("GD"); l2 = a.label("GD")
    a(f"""v_and_b32 v1, 7, v0
    v_lshlrev_b32 v1, 7, v1
    v_add_u32 v1, {GD}, v1
    {l1}:
    global_load_dword v2, v1, s[{sWS}:{sWS+1}] sc1
    s_waitcnt vmcnt(0)
    v_cmp_ne_u32 vcc, s{sTAG}, v2
    s_cbranch_vccz {l2}""")
    spin(l1, l2)
    a(f"{l2}:")
def set_rx(off):
    a(f"""v_add_u32 v{vXWR}, {512 if off == X1 else 0}, v{vHWR}
    s_mul_i32 s{sT}, s{sLAY}, {XLS}
    s_add_u32 s{sT}, s{sT}, {off + GB}
    s_add_u32 s{RX}, s{sWS}, s{sT}
    s_addc_u32 s{RX+1}, s{sWS+1}, 0""")
def next_layer():
    a(f"""s_add_u32 s{RG}, s{RG}, {LS}
    s_addc_u32 s{RG+1}, s{RG+1}, 0
    s_sub_u32 s{sXO}, s{sXO}, {LS - XLS}
    s_mov_b32 s{sALT}, s{sNF}
    v_add_u32 v{vQL}, {QP1 - LS}, v{vL16}
    s_lshl_b32 s{sT2}, s{sKQ}, 11
    s_lshl_b32 s{sM}, s{sCG}, 8
    s_add_u32 s{sT2}, s{sT2}, s{sM}
    s_lshl_b32 s{sM}, s{sW}, 6
    s_add_u32 s{sT2}, s{sT2}, s{sM}
    s_add_u32 s{sT2}, s{sT2}, {QP1 - LS}
    v_add_u32 v{vQPA}, s{sT2}, v{vB16}
    v_and_b32 v1, 0xf8, v{vL8}
    v_add_u32 v{vQGA}, {QS1 - LS}, v1
    s_lshl_b32 s{sT2}, s{sI}, 3
    s_add_u32 s{sT2}, s{sT2}, {QS1 - LS}
    v_mov_b32 v{vQSA}, s{sT2}
    s_mov_b32 s{sPUBM}, 0x00010001
    s_mov_b32 s{sPUBM+1}, 0x00010001
    s_mov_b32 s{sLAY}, 1""")
a(f"""
s_cmp_eq_u32 s{sW}, 0
s_cbranch_scc0 L_Aside
""")
if BELL and int(opts["bell0"]): bell_ring(0)
a(f"""
s_cmp_eq_u32 s{sLAY}, 0
s_cbranch_scc0 L_Dq
""")
wd_issue()
a(f"""
s_waitcnt vmcnt(0)
""")
wd_reads()
a(f"""
s_mov_b32 s{sT}, {HCS - HP}
L_HC:
""")
for k in range(4): a(f"buffer_load_dwordx4 {V4(8+4*k)}, v{vHGA}, s[{RG}:{RG+3}], s{sT} offen offset:{1024*k} sc1")
a(f"""
s_waitcnt vmcnt(0)
v_max3_u32 v44, v8, v12, v16
v_max_u32 v44, v44, v20
v_cmp_eq_u32 vcc, -1, v44
v_pk_add_f32 v[8:9], v[8:9], v[12:13]
v_pk_add_f32 v[10:11], v[10:11], v[14:15]
v_pk_add_f32 v[16:17], v[16:17], v[20:21]
v_pk_add_f32 v[18:19], v[18:19], v[22:23]
v_pk_add_f32 v[{vHCS}:{vHCS+1}], v[8:9], v[16:17]
v_pk_add_f32 v[{vHCS+2}:{vHCS+3}], v[10:11], v[18:19]
s_cbranch_vccz L_Dp
""")
spin("L_HC", "L_Dp")
a("L_Dq:")
if BELL and not int(opts["bell0"]): bell_ring(0)
if int(opts["sd"]): a(f"s_sleep {opts['sd']}")
a(f"""
L_Dp:
buffer_load_dwordx2 v[48:49], v{vHSA}, s[{RG}:{RG+3}], 0 offen sc1
""")
for k in range(4): a(f"buffer_load_dwordx4 {V4(8+4*k)}, v{vHGA}, s[{RG}:{RG+3}], 0 offen offset:{1024*k} sc1")
a(f"""
s_waitcnt vmcnt(4)
v_cmp_eq_u32 vcc, -1, v48
v_add_f32_dpp v46, v48, v48 quad_perm:[1,0,3,2] {DPPALL}
v_add_f32_dpp v47, v49, v49 quad_perm:[1,0,3,2] {DPPALL}
s_cbranch_vccnz L_Dretry
L_D2:
""")
stamp("d2")
a(f"""
v_add_f32_dpp v46, v46, v46 quad_perm:[2,3,0,1] {DPPALL}
v_add_f32_dpp v47, v47, v47 quad_perm:[2,3,0,1] {DPPALL}
v_mul_f32 v45, {f32(1/512)}, v46
v_mul_f32 v46, {f32(-1/512)}, v47
v_fma_f32 v45, -v46, v46, v45
v_max_f32 v45, 0, v45
v_add_f32 v45, {f32(1e-5)}, v45
v_rcp_f32 v45, v45
s_waitcnt vmcnt(2)
v_max_u32 v44, v8, v12
v_pk_fma_f32 v[8:9], v[{vHCS}:{vHCS+1}], v[46:47], v[8:9] op_sel_hi:[1,0,1]
v_pk_fma_f32 v[10:11], v[{vHCS+2}:{vHCS+3}], v[46:47], v[10:11] op_sel_hi:[1,0,1]
""")
for k in range(1, 4):
    if k > 1: a(f"s_waitcnt vmcnt({3-k})")
    a(f"v_pk_add_f32 v[8:9], v[8:9], v[{8+4*k}:{9+4*k}]\nv_pk_add_f32 v[10:11], v[10:11], v[{10+4*k}:{11+4*k}]")
    if k > 1: a(f"v_max_u32 v44, v44, v{8+4*k}")
a(f"""
v_cmp_eq_u32 vcc, -1, v44
v_permlane32_swap_b32 v8, v10
v_permlane32_swap_b32 v9, v11
v_mul_f32 v8, v8, v45
v_mul_f32 v9, v9, v45
v_mul_f32 v8, v8, v10
v_mul_f32 v9, v9, v11
v_cvt_pk_bf16_f32 v8, v8, v9
ds_write_b32 v{vHWR}, v8 offset:{L_HB}
s_cbranch_vccnz L_D2retry
L_Dm:
s_add_u32 s{sT}, s{sXO}, {X2}
s_cmp_ge_u32 s{sW}, 2
s_waitcnt lgkmcnt(0)
s_barrier
s_cbranch_scc1 L_Ddone
""")
stamp("h")
for s in range(4): a(f"ds_read_b128 {V4(8+4*s)}, v{vB16} offset:{L_HB + 64*s}")
for s in range(4):
    a(f"s_waitcnt lgkmcnt({LG(3-s)})")
    for t in range(2): a(mfma(24+4*t, A4(aWD+16*t+4*s), V4(8+4*s), s == 0))
a(f"""
s_mov_b64 exec, s[{sDM}:{sDM+1}]
s_nop 6
v_mov_b32 v24, v28
v_mov_b32 v25, v29
v_mov_b32 v26, v30
v_mov_b32 v27, v31
s_mov_b32 exec_lo, 0x00030003
s_mov_b32 exec_hi, 0x00030003
buffer_store_dwordx4 v[24:27], v{vDPA}, s[{RG}:{RG+3}], s{sT} offen sc1
s_mov_b64 exec, -1
L_Ddone:
""")
stamp("x2pub")
stamp_flush()
set_rx(X2)
a(f"""
ds_read_b32 v{vXW}, v{vHWR} offset:512
s_waitcnt lgkmcnt(0)
v_lshlrev_b32 v{vR0}, 16, v{vXW}
v_and_b32 v{vR1}, 0xffff0000, v{vXW}
s_cmp_eq_u32 s{sLAY}, 0
s_cbranch_scc1 L_Anext
s_mov_b32 s{sPH}, 3
s_cmp_eq_u32 s{sFIN}, 1
s_cbranch_scc0 L_exit
s_cmp_eq_u32 s{sW}, 0
s_cbranch_scc0 L_exit
""")
for _ in range(int(opts["fbell"])):
    if _ == 0: bell_ring(256)
    bell_wait(256)
a(f"""
s_branch L_G
L_Anext:
""")
if int(opts["bell2"]):
    a(f"s_cmp_eq_u32 s{sW}, 0\ns_cbranch_scc0 L_next")
    bell_ring(256)
    if int(opts["abell"]): bell_wait(256)
a(f"""
s_branch L_next
L_Aside:
s_cmp_eq_u32 s{sW}, 2
s_cbranch_scc1 L_A2
s_cmp_eq_u32 s{sW}, 1
s_cbranch_scc0 L_Dm
s_cmp_eq_u32 s{sLAY}, 0
s_cbranch_scc0 L_Dm
""")
wd_issue()
a("s_waitcnt vmcnt(0)")
wd_reads()
a(f"""
s_branch L_Dm
L_A2:
s_mov_b32 s{sPH}, 2
s_cmp_eq_u32 s{sLAY}, 0
s_cbranch_scc1 L_A20
s_cmp_eq_u32 s{sFIN}, 1
s_cbranch_scc0 L_Dm
ds_read_b32 v{vXW}, v{vHWR}
s_waitcnt lgkmcnt(0)
v_lshlrev_b32 v{vR0}, 16, v{vXW}
v_and_b32 v{vR1}, 0xffff0000, v{vXW}
s_branch L_A21
L_A20:
""")
qc_gather()
gd_wait()
a("L_A21:")
bell_wait()
set_rx(X1)
a(f"""
s_branch L_G
L_Gother:
s_cmp_eq_u32 s{sPH}, 2
s_cbranch_scc1 L_Dm
L_final:
s_lshl_b32 s{sT}, s{sKQ}, 8
v_add_u32 v1, s{sT}, v{vHWR}
global_store_dword v1, v{vXW}, s[{sOUT}:{sOUT+1}]
s_cmp_eq_u32 s2, 0
s_cbranch_scc0 L_fin2
s_add_u32 s{sT}, s{sNON}, 1
v_mov_b32 v1, {NONCE}
v_mov_b32 v2, s{sT}
s_mov_b64 exec, 1
global_store_dword v1, v2, s[{sWS}:{sWS+1}]
s_mov_b64 exec, -1
L_fin2:
""")
if STAMP:
    a(f"s_memrealtime s[{sST}:{sST+1}]\ns_waitcnt lgkmcnt(0)\nv_writelane_b32 v{vSTMP}, s{sST}, 16")
    if int(opts.get("dbgout", 0)):
        a(f"""v_writelane_b32 v{vSTMP}, s{sST}, 15
        s_nop 4
        v_readlane_b32 s{sT}, v{vSTMP}, 0
        s_nop 4
        v_subrev_u32 v4, s{sT}, v{vSTMP}
        v_lshrrev_b32 v5, 1, v{vL8}
        s_cmp_eq_u32 s2, 0
        s_cbranch_scc0 L_exit
        s_mov_b64 exec, 0xffff
        global_store_dword v5, v4, s[{sDBG}:{sDBG+1}]
        s_mov_b64 exec, -1""")
a("s_branch L_exit")
a(f"""
L_B:
s_mov_b32 s{sPH}, 1
s_cmp_eq_u32 s{sLAY}, 0
s_cbranch_scc0 L_B1
s_and_b32 s{sM}, s{sCG}, 3
s_lshr_b32 s{sT}, s{sG}, 1
s_mul_i32 s{sT}, s{sT}, 7
s_and_b32 s{sT2}, s{sG}, 1
s_lshl_b32 s{sM+1}, s{sT2}, 2
s_add_u32 s{sT}, s{sT}, s{sM+1}
s_add_u32 s{sT}, s{sT}, s{sM}
s_lshl_b32 s{sT}, s{sT}, 7
s_mul_i32 s{sM+1}, s{sKQ}, {128*3584}
s_add_u32 s{sT}, s{sT}, s{sM+1}
s_add_u32 s{sWG}, s{sWG}, s{sT}
s_addc_u32 s{sWG+1}, s{sWG+1}, 0
s_add_u32 s{sWU}, s{sWU}, s{sT}
s_addc_u32 s{sWU+1}, s{sWU+1}, 0
s_lshl_b32 s{sT2}, s{sT2}, 2
s_or_b32 s{sT2}, s{sT2}, s{sM}
s_lshr_b32 s{sT}, s{sM}, 1
s_lshl_b32 s{sT}, s{sT}, 2
s_add_u32 s{sT}, s{sT}, s{sKQ}
s_lshl_b32 s{sT}, s{sT}, 10
s_and_b32 s{sM}, s{sM}, 1
s_lshl_b32 s{sM}, s{sM}, 8
s_add_u32 s{sT}, s{sT}, s{sM}
s_lshl_b32 s{sM}, s{sW}, 6
s_add_u32 s{sT}, s{sT}, s{sM}
s_add_u32 s{sT}, s{sT}, {HP}
v_add_u32 v{vPUBA}, s{sT}, v{vB16}
s_lshl_b32 s{sT}, s{sA4}, 4
s_add_u32 s{sT}, s{sT}, {HS}
v_mov_b32 v{vHSA}, s{sT}
s_mov_b32 s{sPUBM}, 0x00010001
s_mov_b32 s{sPUBM+1}, 0x00010001
s_mov_b32 s{sPH}, s{sT2}
""")
BGD = int(opts["bgd"])
if BGD:
    a(f"s_cmp_eq_u32 s{sW}, 0\ns_cbranch_scc0 L_Bv")
    gd_wait()
a(f"L_Bv:\ns_cmp_eq_u32 s{sW}, 1\ns_cbranch_scc0 L_Bw")
qc_gather()
a("L_Bw:")
if BGD: a("s_barrier")
a(f"""
s_cmp_eq_u32 s{sPH}, 7
s_mov_b32 s{sPH}, 1
s_cbranch_scc0 L_Bload
""")
for k in range(32): a(f"v_accvgpr_write_b32 a{aW2+k}, 0")
a("s_branch L_B0\nL_Bload:")
a(f"s_movk_i32 s{sT}, 3584\nv_mul_lo_u32 v4, v{vROW}, s{sT}\nv_add_u32 v4, v4, v{vPC16}")
dma(sWG, 4, L_W2, 4, 32 * 3584)
dma(sWU, 4, L_W2 + 0x4000, 4, 32 * 3584)
a(f"""
s_lshl_b32 s{sT}, s{sW}, 5
v_xor_b32 v6, s{sT}, v{vTR0}
v_xor_b32 v7, 32, v6
v_add_u32 v7, {512 + L_W2}, v7
v_add_u32 v6, {L_W2}, v6
s_waitcnt vmcnt(0)
s_barrier
""")
trW(aW2, 0, 6, 7)
trW(aW2 + 16, 0x4000, 6, 7)
a(f"""
L_B0:
v_mov_b32 v8, v{vONE}
v_mov_b32 v9, v{vONE}
v_mov_b32 v10, v{vONE}
v_mov_b32 v11, v{vONE}
s_waitcnt lgkmcnt(0)
s_nop 0
""")
for s_ in range(4):
    for m in range(2): a(mfma(24+4*m, A4(aW2+16*m+4*s_), V4(8), s_ == 0))
a(f"""
s_mov_b32 s{sT}, {HCS - HP}
s_mov_b64 exec, s[{sPUBM}:{sPUBM+1}]
s_cmp_eq_u32 s{sNF}, 0
s_cbranch_scc0 L_B0s
s_nop 3
buffer_store_dwordx4 v[24:27], v{vPUBA}, s[{RG}:{RG+3}], s{sT} offen
buffer_store_dwordx4 v[28:31], v{vPUBA}, s[{RG}:{RG+3}], s{sT} offen offset:512
s_branch L_B0d
L_B0s:
s_nop 3
buffer_store_dwordx4 v[24:27], v{vPUBA}, s[{RG}:{RG+3}], s{sT} offen sc1
buffer_store_dwordx4 v[28:31], v{vPUBA}, s[{RG}:{RG+3}], s{sT} offen offset:512 sc1
L_B0d:
s_mov_b64 exec, -1
""")
if not BGD:
    a(f"s_cmp_eq_u32 s{sW}, 0\ns_cbranch_scc0 L_TU")
    gd_wait()
a(f"""
L_B1:
s_cmp_eq_u32 s{sW}, 0
s_cbranch_scc0 L_TU
""")
bell_wait()
if int(opts["sb"]): a(f"s_cmp_eq_u32 s{sLAY}, 0\ns_cbranch_scc1 L_B2\ns_sleep {opts['sb']}\nL_B2:")
set_rx(X1)
a("s_branch L_G")
a(f"""
L_TU:
s_cmp_lg_u32 s{sW}, 0
s_waitcnt lgkmcnt(0)
s_barrier
""")
stamp("x1pub")
for s in range(4): a(f"ds_read_b128 {V4(8+4*s)}, v{vXRD} offset:{512 + 64*s}")
stats()
for s in range(4):
    a(f"s_waitcnt lgkmcnt({LG(3-s)})")
    for m in range(2): a(mfma(24+4*m, A4(aW2+16*m+4*s), V4(8+4*s), s == 0))
def tu_tail(fl, done):
    a(f"""s_mov_b64 exec, s[{sPUBM}:{sPUBM+1}]
    s_cmp_lg_u32 s{sW}, 0
    s_nop 2
    buffer_store_dwordx4 v[24:27], v{vPUBA}, s[{RG}:{RG+3}], 0 offen{fl}
    buffer_store_dwordx4 v[28:31], v{vPUBA}, s[{RG}:{RG+3}], 0 offen offset:512{fl}
    s_cbranch_scc1 {done}
    s_mov_b64 exec, s[{sSTM}:{sSTM+1}]
    buffer_store_dwordx2 v[{vSTG}:{vSTG+1}], v{vHSA}, s[{RG}:{RG+3}], 0 offen{fl}""")
a(f"s_cmp_eq_u32 s{sNF}, 0\ns_cbranch_scc0 L_TUsafe")
tu_tail("", "L_TUd")
a("L_TUd:\ns_mov_b64 exec, -1")
stamp("h")
stamp_flush()
a(f"""
s_cmp_eq_u32 s{sLAY}, 0
s_cbranch_scc0 L_exit
""")
if int(opts["sx"]): a(f"s_sleep {opts['sx']}")
if int(opts["bell2"]):
    a(f"s_cmp_eq_u32 s{sW}, 0\ns_cbranch_scc0 L_B3")
    bell_wait(256)
    a("L_B3:")
set_rx(X2)
a(f"""L_next:
ds_read_b128 {V4(vQCS)}, v{vL16} offset:{L_CS}
ds_read_b128 {V4(vQCS+4)}, v{vL16} offset:{L_CS+1024}""")
next_layer()
a(f"""
s_mov_b32 s{sPH}, 0
s_cmp_eq_u32 s{sW}, 0
s_cbranch_scc1 L_G
s_branch L_TQ
""")
a("L_Gretry:")
if DBG: a(f"s_mov_b64 exec, 1\nv_mov_b32 v45, s{sLAY}\nv_lshlrev_b32 v45, 2, v45\nv_add_u32 v45, s{sPH}, v45\nv_lshlrev_b32 v45, 2, v45\nv_add_u32 v45, 128, v45\nv_mov_b32 v46, 1\nglobal_atomic_add v45, v46, s[{sDBG}:{sDBG+1}]\ns_mov_b64 exec, -1")
spin("L_Gp", "L_Gok")
a("L_QFretry:");  spin("L_QFp", "L_QF2")
a("L_QF2retry:"); spin("L_QFp", "L_S")
for t_ in tails: a(t_)
a("L_RECsafe:"); rec_tail(" sc1"); a("s_branch L_RECd")
a("L_TUsafe:"); tu_tail(" sc1", "L_TUd"); a("s_branch L_TUd")
a(f"""
L_S0:
v_mov_b32 v{vMODE}, {L_MODE}
ds_read_b32 v{vMODE}, v{vMODE}
""")
if opts["wo2"] == "sall":
    a(f"s_cmp_ge_u32 s{sI}, 16\ns_cbranch_scc1 L_S1")
    wo_issue()
a(f"""
s_branch L_S1
L_Sbig:
s_mov_b64 exec, -1
v_max3_f32 v32, v24, v25, v26
v_max_f32 v32, v32, v27
v_max3_f32 v32, v32, v28, v29
v_max3_f32 v32, v32, v30, v31
v_mov_b32 v33, v32
s_nop 1
v_permlane32_swap_b32 v32, v33
v_max_f32 v32, v32, v33
v_mov_b32 v33, v32
s_nop 1
v_permlane16_swap_b32 v32, v33
v_max_f32 v32, v32, v33
""")
for k in range(8): a(f"v_sub_f32 v{40+k}, v{24+k}, v32")
for k in range(8): a(f"v_exp_f32 v{40+k}, v{40+k}")
p_tail()
a(f"""
s_nop 2
ds_write_b64 v{vMWR}, v[32:33] offset:{L_MB}
s_branch L_Sp
L_PVbig:
s_nop 7
{mfma(24, V4(8), A4(aV), True)}
{mfma(28, V4(8), A4(aV+4), True)}
{mfma(40, V4(12), A4(aV+8), True)}
{mfma(44, V4(12), A4(aV+12), True)}
{mfma(48, V4(16), A4(aV+16), True)}
{mfma(8, V4(16), A4(aV+20), True)}
{mfma(12, V4(20), A4(aV+24), True)}
{mfma(16, V4(20), A4(aV+28), True)}
v_max_f32_dpp v34, v32, v32 row_ror:4 {DPPALL}
s_nop 1
v_max_f32_dpp v34, v34, v34 row_ror:8 {DPPALL}
v_sub_f32 v32, v32, v34
v_exp_f32 v32, v32
s_nop 0
v_mul_f32 v35, v32, v33
s_nop 1
v_add_f32_dpp v35, v35, v35 row_ror:1 {DPPALL}
v_mul_f32_dpp v36, v32, v24 row_newbcast:0 {DPPALL}
v_mul_f32_dpp v37, v32, v28 row_newbcast:0 {DPPALL}
v_add_f32_dpp v35, v35, v35 row_ror:2 {DPPALL}
v_fmac_f32_dpp v36, v32, v40 row_newbcast:4 {DPPALL}
v_fmac_f32_dpp v37, v32, v44 row_newbcast:4 {DPPALL}
v_add_f32_dpp v35, v35, v35 row_ror:4 {DPPALL}
v_fmac_f32_dpp v36, v32, v48 row_newbcast:8 {DPPALL}
v_fmac_f32_dpp v37, v32, v8 row_newbcast:8 {DPPALL}
v_add_f32_dpp v35, v35, v35 row_ror:8 {DPPALL}
v_fmac_f32_dpp v36, v32, v12 row_newbcast:12 {DPPALL}
v_fmac_f32_dpp v37, v32, v16 row_newbcast:12 {DPPALL}
v_cvt_pk_bf16_f32 v36, v36, v37
s_nop 1
s_branch L_PVt
L_Obig:
; some producer shifted its scores: weight every record to the head's common maximum
v_max_f32_dpp v6, v4, v4 quad_perm:[1,0,3,2] {DPPALL}
s_nop 1
v_max_f32_dpp v6, v6, v6 quad_perm:[2,3,0,1] {DPPALL}
s_nop 1
v_max_f32_dpp v6, v6, v6 row_half_mirror {DPPALL}
v_mov_b32 v7, v6
s_nop 1
v_permlane32_swap_b32 v6, v7
v_max_f32 v6, v6, v7
v_mov_b32 v7, v6
s_nop 1
v_permlane16_swap_b32 v6, v7
v_max_f32 v6, v6, v7
v_sub_f32 v4, v4, v6
v_exp_f32 v4, v4
s_nop 0
v_mul_f32 v6, v4, v5
s_nop 1
v_add_f32_dpp v6, v6, v6 quad_perm:[1,0,3,2] {DPPALL}
s_nop 1
v_add_f32_dpp v6, v6, v6 quad_perm:[2,3,0,1] {DPPALL}
s_nop 1
v_add_f32_dpp v6, v6, v6 row_half_mirror {DPPALL}
v_mov_b32 v7, v6
s_nop 1
v_permlane32_swap_b32 v6, v7
v_add_f32 v6, v6, v7
v_mov_b32 v7, v6
s_nop 1
v_permlane16_swap_b32 v6, v7
v_add_f32 v6, v6, v7
v_rcp_f32 v6, v6
""")
for t in range(4):
    a(f"v_mul_f32_dpp v{40+t}, v4, v{24+4*t} row_newbcast:0 {DPPALL}")
    for r in range(1, 4): a(f"v_fmac_f32_dpp v{40+t}, v4, v{24+4*t+r} row_newbcast:{r} {DPPALL}")
a("s_branch L_Ot")
a(f"""
L_TQalt:
s_cmp_eq_u32 s{sLAY}, 0
s_cbranch_scc1 L_TQ0
""")
tq_tail(" sc1")
a(f"""
s_branch L_QFe
L_TQ0:
s_nop 3
""")
for k in range(4): a(f"v_bfi_b32 v{24+k}, v{vMASK}, v{24+k}, s{sT0+k}")
K1 = int(opts["k1"])
def qloads():
    a(f"buffer_load_dwordx4 v[48:51], v{vQGA}, s[{RT}:{RT+3}], 0 offen sc1")
    for k in range(4):
        for u in range(2):
            so = "0" if k < 2 else f"s{sT}"
            a(f"buffer_load_dwordx4 {V4(8+16*u+4*k)}, v{vL16}, s[{RT}:{RT+3}], {so} offen offset:{(k&1)*2048+u*1024} sc1")
def kreads():
    for s in range(4):
        a(f"v_xor_b32 v5, {64*s}, v3")
        for t in range(2): a(f"ds_read_b128 {A4(aK+16*t+4*s)}, v5 offset:{4096*t}")
def vreads():
    for w in range(4):
        for c in range(2):
            for e in range(2):
                r = aV + 8*w + 4*c + 2*e
                a(f"ds_read_b64_tr_b16 a[{r}:{r+1}], v{6+c} offset:{L_V + w*8192 + e*4096}")
def l0_addr():
    a(f"""v_bfe_u32 v34, v0, 2, 2
    v_bfe_u32 v35, v0, 4, 2
    v_lshl_add_u32 v36, v35, 2, v34
    v_and_b32 v37, 7, v36
    v_lshlrev_b32 v37, 1, v37
    v_bfe_u32 v38, v0, 1, 1
    s_lshl_b32 s{sT}, s{sW}, 2
    v_or_b32 v38, s{sT}, v38
    v_xor_b32 v37, v37, v38
    v_lshlrev_b32 v37, 4, v37
    v_lshl_add_u32 v36, v36, 8, v37
    v_and_b32 v37, 1, v0
    v_lshl_add_u32 v6, v37, 3, v36
    v_xor_b32 v7, 32, v6
    v_and_b32 v3, 15, v0
    v_xor_b32 v5, v35, v3
    v_lshlrev_b32 v5, 4, v5
    v_lshl_add_u32 v3, v3, 8, v5
    s_lshl_b32 s{sT}, s{sW}, 13
    s_add_u32 s{sT}, s{sT}, {L_K}
    v_add_u32 v3, s{sT}, v3""")
a(f"""
s_mov_b64 exec, s[{sPUBM}:{sPUBM+1}]
buffer_store_dwordx4 v[24:27], v{vQPA}, s[{RT}:{RT+3}], 0 offen
s_mov_b64 exec, -1
s_mov_b32 s{sT2}, {BOFF}
s_cmp_eq_u32 s{sW}, 0
s_cbranch_scc0 L_K0
s_mov_b64 exec, s[{sSTM}:{sSTM+1}]
buffer_store_dwordx4 {V4(vSTG)}, v{vQSA}, s[{RT}:{RT+3}], 0 offen
s_mov_b64 exec, -1
""")
stamp("qpub")
kdma(KUP, 8)
a(f"""
s_mov_b64 exec, s[{sPUBM}:{sPUBM+1}]
buffer_store_dwordx4 v[24:27], v{vQPA}, s[{RT}:{RT+3}], s{sT2} offen sc1
s_mov_b64 exec, s[{sSTM}:{sSTM+1}]
buffer_store_dwordx4 {V4(vSTG)}, v{vQSA}, s[{RT}:{RT+3}], s{sT2} offen sc1
s_mov_b64 exec, -1
""")
l0_addr()
VE = int(opts["vearly"])
if VE:
    a("s_waitcnt vmcnt(12)\ns_barrier"); vreads()
a(f"s_movk_i32 s{sT}, 4096\ns_waitcnt vmcnt({2 + int(opts['kw']) + (2 if int(opts['kw']) > 8 - KUP else 0)})")
stamp("kw")
qloads()
a("s_barrier")
if not VE: vreads()
a("s_waitcnt vmcnt(9)")
kreads()
a(f"""s_waitcnt vmcnt(8)
s_branch L_Q01
L_K0:""")
kdma(KUP, K1)
a(f"""
s_mov_b64 exec, s[{sPUBM}:{sPUBM+1}]
buffer_store_dwordx4 v[24:27], v{vQPA}, s[{RT}:{RT+3}], s{sT2} offen sc1
s_mov_b64 exec, -1
""")
l0_addr()
a(f"""s_waitcnt vmcnt({K1 + 2})
s_barrier""")
if VE:
    vreads(); a("s_barrier")
kdma(K1, 8)
a(f"""
s_mul_i32 s{sT2}, s{sI}, {CLR}
s_mul_i32 s{sT}, s{sW}, {9*128}
v_lshlrev_b32 v5, 3, v{vL16}
v_min_u32 v5, {8*128}, v5
v_add_u32 v5, s{sT}, v5
v_subrev_u32 v5, {9*128}, v5
v_min_u32 v5, {CLR-128}, v5
buffer_load_dword v{vJUNK}, v5, s[{RG}:{RG+3}], s{sT2} offen sc1
s_cmp_ge_u32 s{sI}, {0 if opts["wo2"] in ("all", "sall") else 16}
s_cbranch_scc1 L_K1""")
wo_issue()
if not VE: vreads()
a("s_waitcnt vmcnt(9)")
kreads()
if opts["wo2"] == "rec": a("s_branch L_S")
a(f"""s_cmp_eq_u32 s{sW}, 3
s_cbranch_scc0 L_S
s_sub_u32 s{sWO}, s{sWO}, {7*32*1024 + 24*1024}
s_subb_u32 s{sWO+1}, s{sWO+1}, 0
s_mov_b32 m0, {L_W2}""")
for j in range(8):
    if j == 0: a("s_nop 0")
    a(f"global_load_lds_dwordx4 v4, s[{sWO}:{sWO+1}] {POL}")
    if j < 7: a(f"s_add_u32 m0, m0, 4096\ns_add_u32 s{sWO}, s{sWO}, {32*1024}\ns_addc_u32 s{sWO+1}, s{sWO+1}, 0")
a("s_branch L_S\nL_K1:")
if not VE: vreads()
a("s_waitcnt vmcnt(1)")
kreads()
a("s_branch L_S")
a("L_Q0p:")
qloads()
a(f"""
s_waitcnt vmcnt(8)
L_Q01:
v_cmp_ne_u32 vcc, s{sTAG}, v50""")
ln_chain(True)
a("s_cbranch_vccnz L_Q0retry\nL_Q02:")
stamp("qf2")
ln_chain(False)
a("s_waitcnt vmcnt(6)")
xor_acc(8, True); xor_acc(24, False)
a(f"v_mul_f32 v48, {f32(QSCALE)}, v48")
for k in range(1, 4):
    for u in range(2):
        a(f"s_waitcnt vmcnt({7 - 2*k - u})")
        xor_acc(8+16*u+4*k, False)
        for h in range(2):
            r = 8 + 16*u + 2*h
            a(f"v_pk_add_f32 v[{r}:{r+1}], v[{r}:{r+1}], v[{r+4*k}:{r+4*k+1}]")
a(f"""
v_and_b32 v44, 255, v44
v_cmp_ne_u32 vcc, 0, v44
v_pk_mul_f32 v[8:9], v[8:9], v[48:49] op_sel_hi:[1,0]
v_pk_mul_f32 v[10:11], v[10:11], v[48:49] op_sel_hi:[1,0]
v_pk_mul_f32 v[24:25], v[24:25], v[48:49] op_sel_hi:[1,0]
v_pk_mul_f32 v[26:27], v[26:27], v[48:49] op_sel_hi:[1,0]
v_cvt_pk_bf16_f32 v8, v8, v9
v_cvt_pk_bf16_f32 v9, v10, v11
v_cvt_pk_bf16_f32 v10, v24, v25
v_cvt_pk_bf16_f32 v11, v26, v27
ds_write_b64 v{vL8}, v[8:9] offset:{L_QB}
ds_write_b64 v{vL8}, v[10:11] offset:{L_QB+512}
s_cbranch_vccnz L_Q02retry
L_Q0ok:
""")
stamp("qfok")
a(f"""
v_cmp_ne_u32 vcc, v51, v{vSTG+3}
s_cmp_eq_u64 vcc, 0
s_cselect_b32 s{sT}, 0, 1
v_mov_b32 v8, s{sT}
v_mov_b32 v9, {L_MODE}
ds_write_b32 v9, v8
s_cbranch_scc0 L_slow
L_slowdone:
s_cmp_eq_u32 s{sI}, 0
s_cbranch_scc0 L_S
s_lshl_b32 s{sT}, s{sG}, 7
s_add_u32 s{sT}, s{sT}, {GD}
v_mov_b32 v9, s{sT}
s_mov_b64 exec, 1
global_store_dword v9, v{vSTG+2}, s[{sWS}:{sWS+1}] sc1
s_branch L_S
""")
def qretry(giveup):
    l = a.label("QR")
    if DBG: a(f"s_mov_b64 exec, 1\nv_mov_b32 v45, 0\nv_mov_b32 v46, 1\nglobal_atomic_add v45, v46, s[{sDBG}:{sDBG+1}]\ns_mov_b64 exec, -1")
    a(f"""s_sub_u32 s{sTRY}, s{sTRY}, 1
    s_cmp_eq_u32 s{sTRY}, 0
    s_cbranch_scc0 {l}
    s_add_u32 s{RT}, s{RT}, {BOFF}
    s_addc_u32 s{RT+1}, s{RT+1}, 0
    {l}:""")
    spin("L_Q0p", giveup)
a("L_Q0retry:");  qretry("L_Q02")
a("L_Q02retry:"); qretry("L_Q0ok")
a(f"""
L_slow:
s_mul_i32 s{sT}, s{sI}, {CLR}
v_mov_b32 v12, -1
v_mov_b32 v13, -1
v_mov_b32 v14, -1
v_mov_b32 v15, -1
v_min_u32 v9, {CLR - 3072 - 16}, v{vL16}
buffer_store_dwordx4 v[12:15], v{vL16}, s[{RG}:{RG+3}], s{sT} offen sc1
buffer_store_dwordx4 v[12:15], v{vL16}, s[{RG}:{RG+3}], s{sT} offen offset:1024 sc1
buffer_store_dwordx4 v[12:15], v{vL16}, s[{RG}:{RG+3}], s{sT} offen offset:2048 sc1
buffer_store_dwordx4 v[12:15], v9, s[{RG}:{RG+3}], s{sT} offen offset:3072 sc1
s_mul_i32 s{sT}, s{sG}, {TGS}
s_add_u32 s{sT}, s{sT}, {TG + FL}
s_lshl_b32 s{sT2}, s{sI}, 4
s_add_u32 s{sT2}, s{sT2}, s{sT}
v_mov_b32 v9, s{sT2}
s_waitcnt vmcnt(0)
s_mov_b64 exec, 1
global_store_dword v9, v{vSTG+2}, s[{sWS}:{sWS+1}] sc1
s_mov_b64 exec, -1
v_and_b32 v9, 0x1f0, v{vL16}
v_add_u32 v9, s{sT}, v9
L_slowp:
global_load_dword v8, v9, s[{sWS}:{sWS+1}] sc1
s_waitcnt vmcnt(0)
v_cmp_ne_u32 vcc, s{sTAG}, v8
s_cbranch_vccz L_slowdone
""")
spin("L_slowp", "L_slowdone")
if OM in ("bell", "bell2"):
    a("L_Obretry:"); spin("L_Ob", "L_Op")
def cnt(k):
    if DBG: a(f"s_mov_b64 exec, 1\nv_mov_b32 v45, s{sLAY}\nv_lshlrev_b32 v45, 2, v45\nv_add_u32 v45, {4*k}, v45\nv_mov_b32 v46, 1\nglobal_atomic_add v45, v46, s[{sDBG}:{sDBG+1}]\ns_mov_b64 exec, -1")
a("L_Oretry:");   cnt(40); spin("L_Op", "L_O2")
a("L_O2retry:");  cnt(42); spin("L_Op", "L_Ook")
a("L_Dretry:");   spin("L_Dp", "L_D2")
a("L_D2retry:");  spin("L_Dp", "L_Dm")
a("L_exit:")
if int(opts.get("xdirty", 0)):
    a(f"s_mov_b64 exec, -1\ns_lshl_b32 s{sT}, s2, 16\ns_add_u32 s{sT}, s{sT}, 0x1000000\nv_lshlrev_b32 v1, 4, v0\nv_add_u32 v1, s{sT}, v1")
    for j in range(int(opts["xdirty"])):
        a(f"global_store_dwordx4 v1, v[8:11], s[{sWS}:{sWS+1}]\nv_add_u32 v1, 4096, v1")
stamp_store()
a("L_end:\ns_endpgm")

txt = a.text()
if int(opts.get("solo", 0)):
    import re
    txt = re.sub(r"s_cbranch_vccnz L_\w*retry", "s_nop 0", txt)
    txt = re.sub(r"s_cbranch_vccz (\w+)\n", r"s_branch \1\n", txt)
    txt = txt.replace("s_cbranch_scc0 L_slow\n", "s_nop 0\n")
    for br in ("s_cbranch_vccnz L_Sbig", "s_cbranch_vccnz L_PVbig", "s_cbranch_scc1 L_Obig"): txt = txt.replace(br, "s_nop 0")
    txt = txt.replace("s_memrealtime", "s_memtime").replace(f"s_cselect_b32 s{sT}, 0, 1", f"s_mov_b32 s{sT}, 0")
open(sys.argv[1], "w").write(wrap(txt, 256, 256, LDS_SIZE, NVGPR + NAGPR, accum=NVGPR))
if STAMP: print(",".join(stamp_names))
if DBG: print(list(enumerate(spin_ids, 1)))
```

```python
import sys, math, struct
from asmlib import *

opts = dict(stamp=0, pol="nt", dbg=0, wo="spec", kw=6, v1=4, k1=8, om="ack", xack=1, bgd=0, vearly=1, il=1, kup=0, sd=0, sb=0, sx=0, bell=1, bell0=0, bell2=1, abell=1, fbell=0, og=10, wo2="k", bx=-1, bx2=-1, wdp=1, gu="rec", g2=16, h2=8, bb=1, vm=1, g2q=0)
for x in sys.argv[2:]:
    k, v = x.split("="); opts[k] = v
STAMP = int(opts["stamp"]); DBG = int(opts["dbg"]); POL = opts["pol"].replace("def", "").replace("_", " ")

IL = int(opts["il"])
VSTEP, KSTEP, KWSH, ISH = (131072, 32768, 18, 10) if IL else (4096, 1024, 13, 15)
a = Asm()
NONCE = 0x0
GD = 0x400
GB = 0x2000
GS = 0x1F400
LS = 0xA800
REC, ML, HP, HS, BL = 0x0, 0x8000, 0x8400, 0xA400, 0xA600
HCS = 2 * LS
QP1 = HCS + 0x2000
QS1 = QP1 + 0x2000
CLR = 3328
XR = 32 * CLR
X1, X2, XLS = XR, XR + 5120, 10240
assert HS + 512 <= LS and QS1 + 256 <= XR and XR + 2 * XLS <= GS
TG = 0x200000
QP, QS, QCS = 0x0, 0x2000, 0x2400
FL = QCS + 0x2000
H2 = FL + 0x200
BOFF = 0x5000
TGS = 2 * BOFF + 0x400
WSSIZE = 0x400000
L_X = 0x0
L_HB, L_QB, L_PB, L_MB, L_YB, L_MODE, L_CS = 0x400, 0x600, 0xA00, 0xE00, 0x1000, 0x1400, 0x1800
L_WQ, L_V, L_W2, L_WD = 0x2000, 0x6000, 0xE000, 0x2000
L_K = 0x16000
LDS_SIZE = 0x1E000
sX, sK, sV, sWQ, sWO, sWG, sWU, sWD, sOUT, sDBG, sWS = 4, 6, 8, 10, 12, 16, 18, 20, 22, 24, 26
sG, sI, sW, sKQ, sCG, sA4 = 28, 29, 30, 31, 32, 33
sLAY, sXO = 34, 35
RG = 36
RX = 40
sGO = 44
RT = 52
sTAG, sT0 = 56, 57
sSPIN, sPH, sT, sT2, sNON = 61, 62, 63, 64, 65
sQUADM, sMLM, sPUBM, sDM, sM = 66, 68, 70, 72, 74
sTH = 3
sFIN, sTRY = 76, 77
sDUM = 4
sNF, sALT = 14, 15
sSTM = 78
sST = 80
aK, aV, aWQ, aW2, aWD = 0, 32, 64, 80, 144
NAGPR = 176
vSTG = 52
vMASK, vONE, vJUNK = 56, 57, 60
vCS = 64
(vQCS, vHCS) = (96, 104)
(vR0, vR1, vXW, vXRD, vXWR, vGA, vQPA, vQGA, vQSA, vRECA, vMLA, vOA, vOML, vHGA, vPUBA, vROW, vPC16, vTR0,
 vSTMP, vL16, vL8, vQRD, vPRD, vPWR, vMWR, vMRD, vYWR, vB16, vHWR, vHSA, vDPA, vMODE, vVA, vQL, vKA) = range(108, 143)
NVGPR = 144
ONES = 0x3F803F80
QSCALE = math.log2(math.e) / math.sqrt(128.0)
def f32(x): return "0x%08x" % struct.unpack("<I", struct.pack("<f", x))[0]
DPPALL = "row_mask:0xf bank_mask:0xf"
LG = lambda n: n

stamp_names = []; spin_ids = []
SEL = opts.get("sel", "start,wq,xq,qpub,q,p,rec,x1pub,h,x2pub").split(",")
def stamp(name):
    if not STAMP or name not in SEL: return
    if name not in stamp_names: stamp_names.append(name)
    k = stamp_names.index(name); assert k < 11
    a(f"s_memrealtime s[{sST+2*k}:{sST+2*k+1}]")
def stamp_flush():
    if not STAMP: return
    l1 = a.label("SF"); l2 = a.label("SF")
    a("s_waitcnt lgkmcnt(0)")
    a(f"s_cmp_eq_u32 s{sLAY}, 0\ns_cbranch_scc0 {l1}")
    for k in range(11): a(f"v_writelane_b32 v{vSTMP}, s{sST+2*k}, {k}")
    a(f"s_branch {l2}\n{l1}:")
    for k in range(11): a(f"v_writelane_b32 v{vSTMP}, s{sST+2*k}, {k+16}")
    a(f"{l2}:")
def stamp_store():
    if not STAMP: return
    l1 = a.label("SS")
    a(f"""s_cmp_eq_u32 s{sW}, {opts.get("sw", 0)}
    s_cbranch_scc0 {l1}
    s_mov_b32 exec_lo, -1
    s_mov_b32 exec_hi, 0
    s_lshl_b32 s{sT}, s2, 8
    s_add_u32 s{sM}, s{sWS}, s{sT}
    s_addc_u32 s{sM+1}, s{sWS+1}, 0
    s_add_u32 s{sM}, s{sM}, 0x10000000
    s_addc_u32 s{sM+1}, s{sM+1}, 0
    v_mov_b32 v4, v{vSTMP}
    v_mov_b32 v5, 0
    global_store_dwordx2 v{vL8}, v[4:5], s[{sM}:{sM+1}]
    {l1}:""")

def spin(lab_retry, lab_giveup):
    a(f"s_sub_u32 s{sSPIN}, s{sSPIN}, 1\ns_cbranch_scc0 {lab_retry}\ns_mov_b32 s{sSPIN}, 0")
    if DBG:
        spin_ids.append(lab_retry)
        a(f"s_mov_b64 s[{sM}:{sM+1}], exec\ns_mov_b64 exec, 1\nv_mov_b32 v45, {4*len(spin_ids)}\nv_mov_b32 v46, 1\nglobal_atomic_add v45, v46, s[{sDBG}:{sDBG+1}]\ns_mov_b64 exec, s[{sM}:{sM+1}]")
    a(f"s_branch {lab_giveup}")

def dma(ptr, voff, lds_base, n, gstep):
    a(f"s_lshl_b32 s{sT}, s{sW}, 10\ns_add_u32 m0, s{sT}, {lds_base}")
    for j in range(n):
        if j == 0: a("s_nop 0")
        a(f"global_load_lds_dwordx4 v{voff}, s[{ptr}:{ptr+1}] {POL}")
        if j + 1 < n:
            a(f"s_add_u32 m0, m0, 4096\ns_add_u32 s{ptr}, s{ptr}, {gstep}\ns_addc_u32 s{ptr+1}, s{ptr+1}, 0")

def trW(dst, base, vA, vB):
    for s in range(4):
        a(f"ds_read_b64_tr_b16 a[{dst+4*s}:{dst+4*s+1}], v{vA} offset:{base + s*4096}")
        a(f"ds_read_b64_tr_b16 a[{dst+4*s+2}:{dst+4*s+3}], v{vB} offset:{base + s*4096}")
def mfma(d, A, B, first):
    return f"v_mfma_f32_16x16x32_bf16 v[{d}:{d+3}], {A}, {B}, {'0' if first else f'v[{d}:{d+3}]'}"
V4 = lambda r: f"v[{r}:{r+3}]"
A4 = lambda r: f"a[{r}:{r+3}]"

def wo_issue():
    a(f"""
    s_lshl_b32 s{sT}, s{sG}, 1
    s_lshr_b32 s{sT2}, s{sA4}, 3
    s_add_u32 s{sT}, s{sT}, s{sT2}
    s_lshl_b32 s{sT}, s{sT}, 18
    s_and_b32 s{sT2}, s{sA4}, 7
    s_lshl_b32 s{sT2}, s{sT2}, 7
    s_add_u32 s{sT}, s{sT}, s{sT2}
    s_add_u32 s{sWO}, s{sWO}, s{sT}
    s_addc_u32 s{sWO+1}, s{sWO+1}, 0
    v_lshl_add_u32 v4, v{vROW}, 10, v{vPC16}
    """)
    dma(sWO, 4, L_W2, 8, 32 * 1024)

def b_setup():
    a(f"""; layer 0: gate/up blocks [128 rows x 64 cols]; the 4th column group of an odd group does not exist
s_and_b32 s{sM}, s{sCG}, 3
s_lshr_b32 s{sT}, s{sG}, 1
s_mul_i32 s{sT}, s{sT}, 7
s_and_b32 s{sT2}, s{sG}, 1
s_lshl_b32 s{sM+1}, s{sT2}, 2
s_add_u32 s{sT}, s{sT}, s{sM+1}
s_add_u32 s{sT}, s{sT}, s{sM}
s_lshl_b32 s{sT}, s{sT}, 7
s_mul_i32 s{sM+1}, s{sKQ}, {128*3584}
s_add_u32 s{sT}, s{sT}, s{sM+1}
s_add_u32 s{sWG}, s{sWG}, s{sT}
s_addc_u32 s{sWG+1}, s{sWG+1}, 0
s_add_u32 s{sWU}, s{sWU}, s{sT}
s_addc_u32 s{sWU+1}, s{sWU+1}, 0
s_lshl_b32 s{sT2}, s{sT2}, 2
s_or_b32 s{sT2}, s{sT2}, s{sM}
s_lshr_b32 s{sT}, s{sM}, 1
s_lshl_b32 s{sT}, s{sT}, 2
s_add_u32 s{sT}, s{sT}, s{sKQ}
s_lshl_b32 s{sT}, s{sT}, 10
s_and_b32 s{sM}, s{sM}, 1
s_lshl_b32 s{sM}, s{sM}, 8
s_add_u32 s{sT}, s{sT}, s{sM}
s_lshl_b32 s{sM}, s{sW}, 6
s_add_u32 s{sT}, s{sT}, s{sM}
s_add_u32 s{sT}, s{sT}, {HP}
v_add_u32 v{vPUBA}, s{sT}, v{vB16}
s_lshl_b32 s{sT}, s{sA4}, 4
s_add_u32 s{sT}, s{sT}, {HS}
v_mov_b32 v{vHSA}, s{sT}
s_mov_b32 s{sDUM}, s{sT2}
s_movk_i32 s{sT}, 3584
v_mul_lo_u32 v{vVA}, v{vROW}, s{sT}
v_add_u32 v{vVA}, v{vVA}, v{vPC16}""")
def b_issue(skip):
    a(f"s_cmp_eq_u32 s{sDUM}, 7\ns_cbranch_scc1 {skip}")
    dma(sWG, vVA, L_W2, 4, 32 * 3584)
    dma(sWU, vVA, L_W2 + 0x4000, 4, 32 * 3584)
stamp("start")
a(f"""
s_cmp_ge_u32 s2, 256
s_cbranch_scc1 L_end
s_getpc_b64 s[{sSTM}:{sSTM+1}]
L_pc:
s_load_dwordx16 s[4:19], s[0:1], 0
s_load_dwordx8 s[20:27], s[0:1], 64
v_lshlrev_b32 v1, 7, v0
v_min_u32 v1, L_end-L_pc, v1
global_load_dword v{vJUNK}, v1, s[{sSTM}:{sSTM+1}]
v_lshrrev_b32 v3, 6, v0
v_lshrrev_b32 v4, 1, v0
v_readfirstlane_b32 s{sW}, v3
v_xor_b32 v4, v4, v0
v_lshlrev_b32 v5, 1, v4
v_and_b32 v5, 32, v5
v_and_or_b32 v5, v4, 64, v5
v_lshlrev_b32 v11, 4, v0
v_and_b32 v6, 0x70, v11
v_xor_b32 v{vPC16}, v5, v6
v_lshrrev_b32 v{vROW}, 3, v0
v_lshl_add_u32 v7, v{vROW}, 13, v{vPC16}
s_and_b32 s{sG}, s2, 7
s_lshr_b32 s{sI}, s2, 3
s_and_b32 s{sKQ}, s{sI}, 3
s_lshr_b32 s{sCG}, s{sI}, 2
s_lshl_b32 s{sT}, s{sKQ}, 20
s_lshl_b32 s{sT2}, s{sG}, 10
s_lshl3_add_u32 s{sT2}, s{sCG}, s{sT2}
s_lshl_b32 s{sM}, s{sW}, 10
s_add_u32 m0, s{sM}, {L_WQ}
s_mul_i32 s{sA4}, s{sCG}, 120
s_add_u32 s{sT}, s{sT}, s{sT2}
s_add_u32 s{sT}, s{sT}, s{sA4}
s_waitcnt lgkmcnt(0)
s_add_u32 s{sWQ}, s{sWQ}, s{sT}
s_addc_u32 s{sWQ+1}, s{sWQ+1}, 0
""")
stamp("karg")
for j in range(4):
    a(f"global_load_lds_dwordx4 v7, s[{sWQ}:{sWQ+1}] {POL}")
    if j < 3: a(f"s_add_u32 m0, m0, 4096\nv_add_u32 v7, {32*8192}, v7")
a(f"""
s_load_dword s{sNON}, s[{sWS}:{sWS+1}], {NONCE}
v_lshlrev_b32 v5, 1, v0
v_and_b32 v5, 0xe0, v5
v_xor_b32 v{vVA}, v11, v5
{f"v_and_b32 v{vVA}, 0x3ff, v{vVA}" if IL else ""}
{f"v_lshl_add_u32 v{vVA}, v3, 15, v{vVA}" if IL else ""}
s_lshl_b32 s{sT}, s{sG}, 24
s_lshl_b32 s{sT2}, s{sI}, {ISH}
s_add_u32 s{sT}, s{sT}, s{sT2}
s_add_u32 s{sT}, s{sT}, 0xF00000
s_add_u32 s{sV}, s{sV}, s{sT}
s_addc_u32 s{sV+1}, s{sV+1}, 0
s_add_u32 m0, s{sM}, {L_V}
s_add_u32 s{sK}, s{sK}, s{sT}
s_addc_u32 s{sK+1}, s{sK+1}, 0
global_load_lds_dwordx4 v{vVA}, s[{sV}:{sV+1}] {POL}
; x (own quarter and all of it), slot clearing, L2 warm-up of the tagged slots
v_and_b32 v8, 31, v0
v_bfe_u32 v9, v0, 5, 1
v_lshlrev_b32 v8, 3, v8
v_lshl_or_b32 v{vHWR}, v9, 2, v8
s_lshl_b32 s{sT}, s{sKQ}, 8
v_add_u32 v10, s{sT}, v{vHWR}
global_load_dword v{vXW}, v10, s[{sX}:{sX+1}]
v_and_b32 v{vL16}, 0x3f0, v11
global_load_dwordx4 v[20:23], v{vL16}, s[{sX}:{sX+1}]
s_mul_i32 s{sT}, s{sG}, {GS}
s_add_u32 s{sT}, s{sT}, {GB}
s_add_u32 s{RG}, s{sWS}, s{sT}
s_addc_u32 s{RG+1}, s{sWS+1}, 0
s_mul_i32 s{sT}, s{sG}, {TGS}
s_add_u32 s{sT}, s{sT}, {TG}
s_add_u32 s{RT}, s{sWS}, s{sT}
s_addc_u32 s{RT+1}, s{sWS+1}, 0
s_lshl_b32 s{sT}, s{sI}, 10
v_lshl_add_u32 v6, v6, 3, s{sT}
global_load_dword v{vJUNK+1}, v6, s[{RT}:{RT+1}] sc1
v_mov_b32 v12, -1
v_mov_b32 v13, -1
v_mov_b32 v14, -1
v_mov_b32 v15, -1
s_mul_i32 s{sT}, s{sI}, {CLR}
v_min_u32 v10, {CLR-16}, v11
v_add_u32 v10, s{sT}, v10
global_store_dwordx4 v10, v[12:15], s[{RG}:{RG+1}]
s_cmp_eq_u32 s{sW}, 3
s_cbranch_scc0 L_clrd
s_mul_i32 s{sT}, s{sI}, 640
s_add_u32 s{sT}, s{sT}, {XR}
v_min_u32 v10, 624, v{vL16}
v_add_u32 v10, s{sT}, v10
global_store_dwordx4 v10, v[12:15], s[{RG}:{RG+1}] sc1
L_clrd:
""")
NV1 = int(opts["v1"])
for j in range(1, NV1):
    a(f"s_add_u32 m0, m0, 4096\nv_add_u32 v{vVA}, {VSTEP}, v{vVA}\nglobal_load_lds_dwordx4 v{vVA}, s[{sV}:{sV+1}] {POL}")
a(f"""
v_and_b32 v1, 15, v0
v_bfe_u32 v2, v0, 4, 2
""")
stamp("iss")
a(f"""
s_mov_b32 s{RG+2}, 0x20000
s_mov_b32 s{RG+3}, 0x20000
s_mov_b32 s{RX+2}, {WSSIZE}
s_mov_b32 s{RX+3}, 0x20000
s_mov_b32 s{RT+2}, {2*BOFF}
s_mov_b32 s{RT+3}, 0x20000
s_mov_b32 s{sLAY}, 0
s_mov_b32 s{sALT}, 1
s_mov_b32 s{sNF}, 1
s_mov_b32 s{sTH}, 0x42000000
s_movk_i32 s{sTRY}, 64
s_mov_b32 s{sSPIN}, 0x20000
s_mov_b32 s{sQUADM}, 0x11111111
s_mov_b32 s{sQUADM+1}, 0x11111111
s_mov_b32 s{sDM}, 0x00020002
s_mov_b32 s{sDM+1}, 0x00020002
s_mov_b32 s{sPUBM}, 0x00110011
s_mov_b32 s{sPUBM+1}, 0x00110011
s_lshl_b32 s{sT}, s{sW}, 4
s_lshl_b64 s[{sMLM}:{sMLM+1}], 1, s{sT}
s_and_b32 s{sA4}, s{sI}, 15
s_or_b32 s{sT}, s{sG}, s{sCG}
s_cmp_eq_u32 s{sT}, 0
s_cselect_b32 s{sFIN}, 1, 0
s_mov_b32 s{sSTM}, 0
s_brev_b32 s{sSTM+1}, 1
s_lshr_b32 s{sXO}, s{sA4}, 3
s_mul_i32 s{sXO}, s{sXO}, 2560
s_and_b32 s{sT2}, s{sA4}, 7
s_lshl_b32 s{sT2}, s{sT2}, 8
s_add_u32 s{sXO}, s{sXO}, s{sT2}
""")
for gp in range(8):
    a(f"s_mov_b32 s{sGO+gp}, {gp*GS}")
a(f"""
v_bfe_u32 v3, v0, 2, 2
v_and_b32 v4, 3, v0
v_lshrrev_b32 v{vL8}, 1, v{vL16}
v_lshlrev_b32 v{vB16}, 4, v2
v_add_u32 v5, 256, v{vB16}
v_cmp_eq_u32 vcc, 1, v3
v_mov_b32 v{vXWR}, v{vHWR}
v_mov_b32 v{vONE}, {ONES}
v_cndmask_b32 v{vXRD}, v{vB16}, v5, vcc
v_lshlrev_b32 v5, 1, v8
s_lshl_b32 s{sT}, s{sKQ}, 9
v_add_u32 v{vGA}, s{sT}, v5
v_mul_u32_u24 v6, 2560, v9
v_add_u32 v{vGA}, v{vGA}, v6
s_lshr_b32 s{sT}, s{sA4}, 3
s_lshl_b32 s{sT}, s{sT}, 12
s_add_u32 s{sT}, s{sT}, {HP}
v_lshl_add_u32 v{vHGA}, v9, 9, v5
v_add_u32 v{vHGA}, s{sT}, v{vHGA}
v_lshlrev_b32 v{vHSA}, 4, v4
v_add_u32 v{vHSA}, {HS}, v{vHSA}
s_lshl_b32 s{sT}, s{sKQ}, 11
s_lshl_b32 s{sT2}, s{sCG}, 8
s_add_u32 s{sT}, s{sT}, s{sT2}
s_lshl_b32 s{sT2}, s{sW}, 6
s_add_u32 s{sT}, s{sT}, s{sT2}
v_add_u32 v{vQPA}, s{sT}, v{vB16}
v_add_u32 v7, {QCS}, v{vQPA}
v_cndmask_b32 v{vQPA}, v{vQPA}, v7, vcc
v_add_u32 v{vQGA}, {QS}, v5
s_lshl_b32 s{sT}, s{sI}, 4
s_add_u32 s{sT}, s{sT}, {QS}
v_mov_b32 v{vQSA}, s{sT}
s_lshr_b32 s{sT}, s{sI}, 4
s_lshl_b32 s{sT}, s{sT}, 12
s_lshl_b32 s{sT2}, s{sW}, 10
s_add_u32 s{sT}, s{sT}, s{sT2}
s_lshl_b32 s{sT2}, s{sA4}, 4
s_add_u32 s{sT}, s{sT}, s{sT2}
v_lshlrev_b32 v7, 13, v2
v_lshl_add_u32 v7, v3, 8, v7
v_add_u32 v{vRECA}, s{sT}, v7
s_lshl_b32 s{sT}, s{sI}, 3
s_add_u32 s{sT}, s{sT}, {ML}
v_lshlrev_b32 v7, 8, v2
v_add_u32 v{vMLA}, s{sT}, v7
s_lshr_b32 s{sT}, s{sA4}, 3
s_lshl_b32 s{sT}, s{sT}, 2
s_add_u32 s{sT}, s{sT}, s{sW}
s_lshl_b32 s{sT2}, s{sT}, 12
v_add_u32 v{vOA}, s{sT2}, v{vL16}
s_lshr_b32 s{sT2}, s{sT}, 1
s_lshl_b32 s{sT2}, s{sT2}, 8
s_add_u32 s{sT2}, s{sT2}, {ML}
s_and_b32 s{sT}, s{sT}, 1
v_and_b32 v7, 1, v3
v_xor_b32 v7, s{sT}, v7
v_lshlrev_b32 v7, 4, v7
v_lshl_add_u32 v7, v2, 2, v7
v_add_u32 v7, v7, v4
v_lshlrev_b32 v7, 3, v7
v_add_u32 v{vOML}, s{sT2}, v7
v_lshl_add_u32 v7, v2, 3, v3
v_lshlrev_b32 v7, 7, v7
v_lshrrev_b32 v10, 1, v2
v_xor_b32 v10, v10, v2
v_and_b32 v10, 1, v10
v_lshrrev_b32 v11, 1, v3
v_lshl_or_b32 v10, v10, 1, v11
v_lshlrev_b32 v10, 5, v10
v_lshl_or_b32 v10, v4, 3, v10
v_or_b32 v{vTR0}, v7, v10
v_lshl_add_u32 v{vQRD}, v3, 8, v{vB16}
v_lshl_add_u32 v{vPRD}, v3, 6, v{vB16}
s_lshl_b32 s{sT}, s{sW}, 8
v_add_u32 v{vPWR}, s{sT}, v{vPRD}
v_lshrrev_b32 v7, 1, v2
v_and_b32 v10, 1, v2
v_lshl_or_b32 v7, v10, 1, v7
v_lshlrev_b32 v7, 6, v7
v_lshl_add_u32 v7, v1, 2, v7
v_add_u32 v{vYWR}, s{sT}, v7
s_lshl_b32 s{sT}, s{sW}, 5
v_lshlrev_b32 v7, 3, v2
v_lshl_add_u32 v7, v3, 7, v7
v_add_u32 v{vMWR}, s{sT}, v7
v_lshlrev_b32 v7, 3, v1
v_lshl_add_u32 v{vMRD}, v2, 7, v7
s_lshl_b32 s{sT}, s{sW}, 7
v_lshl_add_u32 v7, v1, 6, v{vB16}
v_add_u32 v{vDPA}, s{sT}, v7
v_mov_b32 v{vPUBA}, 0
v_mov_b32 v{vQL}, 0
v_mov_b32 v{vMASK}, 0xffffff00
v_mov_b32 v{vMASK+2}, 255
v_lshrrev_b32 v11, 1, v{vL8}
ds_write_b32 v11, v{vONE} offset:{L_X+256}
ds_write_b32 v11, v{vONE} offset:{L_X+768}
s_getreg_b32 s{sT2}, hwreg(HW_REG_XCC_ID)
s_and_b32 s{sT2}, s{sT2}, 15
v_mov_b32 v{vSTG+3}, s{sT2}
s_waitcnt lgkmcnt(0)
s_mul_i32 s{sTAG}, s{sNON}, 0x9E3779B1
s_add_u32 s{sTAG}, s{sTAG}, 0x7F4A7C15
s_and_b32 s{sT0}, s{sTAG}, 255
s_bfe_u32 s{sT0+1}, s{sTAG}, 0x80008
s_bfe_u32 s{sT0+2}, s{sTAG}, 0x80010
s_lshr_b32 s{sT0+3}, s{sTAG}, 24
v_mov_b32 v{vSTG+2}, s{sTAG}
s_lshl_b32 s{sT}, s{sW}, 5
v_xor_b32 v10, s{sT}, v{vTR0}
v_xor_b32 v11, 32, v10
v_add_u32 v11, 512, v11
""")
stamp("setup")
for j in range(NV1, 8):
    a(f"s_add_u32 m0, m0, 4096\nv_add_u32 v{vVA}, {VSTEP}, v{vVA}\nglobal_load_lds_dwordx4 v{vVA}, s[{sV}:{sV+1}] {POL}")
KUP = int(opts["kup"])
def kdma(j0, j1):
    for j in range(j0, j1):
        a(f"v_xor_b32 v5, {64*(j&3)}, v{vKA}\nglobal_load_lds_dwordx4 v5, s[{sK}:{sK+1}] {POL}")
        if j < 7: a(f"s_add_u32 m0, m0, 1024\ns_add_u32 s{sK}, s{sK}, {KSTEP}\ns_addc_u32 s{sK+1}, s{sK+1}, 0")
a(f"""v_xor_b32 v{vKA}, v{vB16}, v{vL16}
s_lshl_b32 s{sT}, s{sW}, {KWSH}
v_add_u32 v{vKA}, s{sT}, v{vKA}
s_lshl_b32 s{sT}, s{sW}, 13
s_add_u32 m0, s{sT}, {L_K}""")
kdma(0, KUP)
stamp("iss2")
a(f"""
s_waitcnt vmcnt(7)
v_dot2_f32_bf16 v24, v20, v{vONE}, 0
v_dot2_f32_bf16 v25, v20, v20, 0
v_dot2_f32_bf16 v24, v21, v{vONE}, v24
v_dot2_f32_bf16 v25, v21, v21, v25
v_dot2_f32_bf16 v24, v22, v{vONE}, v24
v_dot2_f32_bf16 v25, v22, v22, v25
v_dot2_f32_bf16 v24, v23, v{vONE}, v24
v_dot2_f32_bf16 v25, v23, v23, v25
v_lshlrev_b32 v{vR0}, 16, v{vXW}
v_and_b32 v{vR1}, 0xffff0000, v{vXW}
s_nop 0
""")
for r_ in (1, 2, 4, 8):
    a(f"v_add_f32_dpp v24, v24, v24 row_ror:{r_} {DPPALL}\nv_add_f32_dpp v25, v25, v25 row_ror:{r_} {DPPALL}\ns_nop 0")
for sw in (32, 16):
    a(f"""v_mov_b32 v26, v24
    v_mov_b32 v27, v25
    s_nop 0
    v_permlane{sw}_swap_b32 v24, v26
    v_permlane{sw}_swap_b32 v25, v27
    v_add_f32 v24, v24, v26
    v_add_f32 v25, v25, v27""")
a(f"""
v_mul_f32 v24, {f32(-1/512)}, v24
v_mul_f32 v25, {f32(1/512)}, v25
v_fma_f32 v25, -v24, v24, v25
v_max_f32 v25, 0, v25
v_add_f32 v25, {f32(1e-5)}, v25
v_rsq_f32 v25, v25
v_add_f32 v26, v24, v{vR0}
v_add_f32 v27, v24, v{vR1}
v_mul_f32 v25, {f32(QSCALE)}, v25
v_mul_f32 v26, v26, v25
v_mul_f32 v27, v27, v25
v_cvt_pk_bf16_f32 v{vXW}, v26, v27
ds_write_b32 v{vXWR}, v{vXW}
s_barrier
""")
stamp("wq")
if STAMP: a(f"v_mov_b32 v{vSTMP}, 0")
trW(aWQ, L_WQ, 10, 11)
a("s_branch L_TQ")

a(f"""
L_G:
""")
if int(opts["xack"]): a("s_waitcnt vmcnt(0)")
stamp("g0")
a("L_Gp:")
for j in range(8):
    a(f"buffer_load_dwordx4 {V4(8+4*j)}, v{vGA}, s[{RX}:{RX+3}], s{sGO+j} offen sc1")
a("s_waitcnt vmcnt(6)")
a("v_pk_add_f32 v[40:41], v[8:9], v[12:13]\nv_pk_add_f32 v[42:43], v[10:11], v[14:15]\nv_max_u32 v44, v8, v12")
for j in range(2, 8):
    a(f"s_waitcnt vmcnt({7-j})")
    a(f"v_pk_add_f32 v[40:41], v[40:41], v[{8+4*j}:{9+4*j}]\nv_pk_add_f32 v[42:43], v[42:43], v[{10+4*j}:{11+4*j}]")
    a(f"v_max_u32 v44, v44, v{8+4*j}")
a(f"""
v_cmp_eq_u32 vcc, -1, v44
v_permlane32_swap_b32 v40, v42
v_permlane32_swap_b32 v41, v43
v_add_f32 v40, v40, v42
v_add_f32 v41, v41, v43
v_add_f32 v40, v40, v{vR0}
v_add_f32 v41, v41, v{vR1}
v_cvt_pk_bf16_f32 v{vXW}, v40, v41
ds_write_b32 v{vXWR}, v{vXW}
s_cbranch_vccnz L_Gretry
L_Gok:
""")
stamp("gok")
a(f"""
v_lshlrev_b32 v{vR0}, 16, v{vXW}
v_and_b32 v{vR1}, 0xffff0000, v{vXW}
s_cmp_eq_u32 s{sPH}, 1
s_cbranch_scc1 L_TU
s_cmp_eq_u32 s{sPH}, 0
s_cbranch_scc0 L_Gother
""")

def stats():
    l = a.label("ST")
    a(f"""s_cbranch_scc1 {l}
    v_dot2_f32_bf16 v46, v{vXW}, v{vXW}, 0
    v_dot2_f32_bf16 v47, v{vXW}, v{vONE}, 0
    s_nop 2
    v_permlane32_swap_b32 v47, v46
    v_add_f32 v46, v46, v47
    s_nop 1
    v_add_f32_dpp v46, v46, v46 row_ror:1 {DPPALL}
    s_nop 1
    v_add_f32_dpp v46, v46, v46 row_ror:2 {DPPALL}
    s_nop 1
    v_add_f32_dpp v46, v46, v46 row_ror:4 {DPPALL}
    s_nop 1
    v_add_f32_dpp v46, v46, v46 row_ror:8 {DPPALL}
    s_nop 1
    v_add_f32_dpp v46, v46, v46 row_bcast:15 row_mask:0xa bank_mask:0xf
    s_nop 0
    v_mov_b32 v{vSTG}, v46
    v_mov_b32_dpp v{vSTG+1}, v46 row_bcast:31 row_mask:0xc bank_mask:0xf
    {l}:""")

a(f"""
L_TQ:
s_cmp_lg_u32 s{sW}, 0
s_waitcnt lgkmcnt(0)
s_barrier
""")
stamp("xq")
for s in range(4): a(f"ds_read_b128 {V4(8+4*s)}, v{vXRD} offset:{64*s}")
stats()
for s in range(4):
    a(f"s_waitcnt lgkmcnt({LG(3-s)})")
    a(mfma(24, A4(aWQ+4*s), V4(8+4*s), s == 0))
def tq_tail(fl):
    a(f"""s_mov_b64 exec, s[{sPUBM}:{sPUBM+1}]
    s_cmp_lg_u32 s{sW}, 0
    s_nop 3
    buffer_store_dwordx4 v[24:27], v{vQPA}, s[{RG}:{RG+3}], 0 offen{fl}
    s_cbranch_scc1 L_S
    s_mov_b64 exec, s[{sSTM}:{sSTM+1}]
    buffer_store_dwordx2 v[{vSTG}:{vSTG+1}], v{vQSA}, s[{RG}:{RG+3}], 0 offen{fl}
    s_mov_b64 exec, -1""")
a(f"s_cmp_eq_u32 s{sALT}, 0\ns_cbranch_scc0 L_TQalt")
tq_tail("")
stamp("qpub")
a(f"""
L_QFe:
s_movk_i32 s{sT}, 4096
L_QFp:
buffer_load_dwordx2 v[48:49], v{vQGA}, s[{RG}:{RG+3}], 0 offen sc1
""")
for u in range(2):
    for k in range(4):
        so = "0" if k < 2 else f"s{sT}"
        a(f"buffer_load_dwordx4 {V4(8+16*u+4*k)}, v{vQL}, s[{RG}:{RG+3}], {so} offen offset:{(k&1)*2048+u*1024} sc1")
def ln_chain(first):
    if first:
        a(f"""v_add_f32_dpp v48, v48, v48 quad_perm:[1,0,3,2] {DPPALL}
        v_add_f32_dpp v49, v49, v49 quad_perm:[1,0,3,2] {DPPALL}""")
    else:
        a(f"""v_add_f32_dpp v48, v48, v48 quad_perm:[2,3,0,1] {DPPALL}
        v_add_f32_dpp v49, v49, v49 quad_perm:[2,3,0,1] {DPPALL}
        v_mul_f32 v48, {f32(1/512)}, v48
        v_mul_f32 v46, {f32(-1/512)}, v49
        v_fma_f32 v48, -v46, v46, v48
        v_max_f32 v48, 0, v48
        v_add_f32 v48, {f32(1e-5)}, v48
        v_rsq_f32 v48, v48""")
a(f"s_waitcnt vmcnt(8)\nv_cmp_eq_u32 vcc, -1, v48")
ln_chain(True)
a("s_cbranch_vccnz L_QFretry\nL_QF2:")
stamp("qf2")
ln_chain(False)
a(f"""
s_waitcnt vmcnt(6)
v_pk_add_f32 v[40:41], v[8:9], v[12:13]
v_pk_add_f32 v[42:43], v[10:11], v[14:15]
v_mul_f32 v48, {f32(QSCALE)}, v48
s_waitcnt vmcnt(5)
v_pk_add_f32 v[40:41], v[40:41], v[16:17]
v_pk_add_f32 v[42:43], v[42:43], v[18:19]
v_max3_u32 v44, v8, v12, v16
v_pk_fma_f32 v[40:41], v[{vQCS}:{vQCS+1}], v[46:47], v[40:41] op_sel_hi:[1,0,1]
v_pk_fma_f32 v[42:43], v[{vQCS+2}:{vQCS+3}], v[46:47], v[42:43] op_sel_hi:[1,0,1]
s_waitcnt vmcnt(3)
v_pk_add_f32 v[40:41], v[40:41], v[20:21]
v_pk_add_f32 v[42:43], v[42:43], v[22:23]
v_max3_u32 v44, v44, v20, v24
v_pk_fma_f32 v[24:25], v[{vQCS+4}:{vQCS+5}], v[46:47], v[24:25] op_sel_hi:[1,0,1]
v_pk_fma_f32 v[26:27], v[{vQCS+6}:{vQCS+7}], v[46:47], v[26:27] op_sel_hi:[1,0,1]
v_pk_mul_f32 v[40:41], v[40:41], v[48:49] op_sel_hi:[1,0]
v_pk_mul_f32 v[42:43], v[42:43], v[48:49] op_sel_hi:[1,0]
s_waitcnt vmcnt(2)
v_pk_add_f32 v[24:25], v[24:25], v[28:29]
v_pk_add_f32 v[26:27], v[26:27], v[30:31]
v_cvt_pk_bf16_f32 v40, v40, v41
v_cvt_pk_bf16_f32 v41, v42, v43
s_waitcnt vmcnt(1)
v_pk_add_f32 v[24:25], v[24:25], v[32:33]
v_pk_add_f32 v[26:27], v[26:27], v[34:35]
ds_write_b64 v{vL8}, v[40:41] offset:{L_QB}
v_max3_u32 v44, v44, v28, v32
s_waitcnt vmcnt(0)
v_pk_add_f32 v[24:25], v[24:25], v[36:37]
v_pk_add_f32 v[26:27], v[26:27], v[38:39]
v_pk_mul_f32 v[24:25], v[24:25], v[48:49] op_sel_hi:[1,0]
v_pk_mul_f32 v[26:27], v[26:27], v[48:49] op_sel_hi:[1,0]
v_cvt_pk_bf16_f32 v24, v24, v25
v_cvt_pk_bf16_f32 v25, v26, v27
ds_write_b64 v{vL8}, v[24:25] offset:{L_QB+512}
v_max_u32 v44, v44, v36
v_cmp_eq_u32 vcc, -1, v44
s_cbranch_vccnz L_QF2retry
""")
stamp("qfok")
a(f"""
L_S:
s_mov_b64 exec, -1
s_waitcnt lgkmcnt(0)
s_barrier
""")
stamp("q")
for s in range(4): a(f"ds_read_b128 {V4(8+4*s)}, v{vQRD} offset:{L_QB + 64*s}")
for s in range(4):
    a(f"s_waitcnt lgkmcnt({LG(3-s)})")
    for t in range(2): a(mfma(24+4*t, A4(aK+16*t+4*s), V4(8+4*s), s == 0))
a(f"""
v_mov_b32 v32, 0
s_nop 5
""")
stamp("smm")
for k in range(8): a(f"v_exp_f32 v{40+k}, v{24+k}")
def p_tail():
    a(f"""
    v_cvt_pk_bf16_f32 v36, v40, v41
    v_cvt_pk_bf16_f32 v37, v42, v43
    v_cvt_pk_bf16_f32 v38, v44, v45
    v_cvt_pk_bf16_f32 v39, v46, v47
    s_mov_b64 exec, s[{sQUADM}:{sQUADM+1}]
    ds_write_b128 v{vPWR}, v[36:39] offset:{L_PB}
    v_dot2_f32_bf16 v33, v36, v{vONE}, 0
    v_dot2_f32_bf16 v33, v37, v{vONE}, v33
    v_dot2_f32_bf16 v33, v38, v{vONE}, v33
    v_dot2_f32_bf16 v33, v39, v{vONE}, v33""")
p_tail()
a(f"""
v_max3_f32 v34, v24, v25, v26
v_max3_f32 v35, v27, v28, v29
v_max3_f32 v34, v34, v30, v31
ds_write_b64 v{vMWR}, v[32:33] offset:{L_MB}
v_max_f32 v34, v34, v35
v_cmp_nle_f32 vcc, |v34|, s{sTH}
s_cbranch_vccnz L_Sbig
L_Sp:
s_mov_b64 exec, -1
s_cmp_eq_u32 s{sNF}, 0
s_waitcnt lgkmcnt(0)
s_barrier
""")
stamp("p")
for w in range(4): a(f"ds_read_b128 {V4(8+4*w)}, v{vPRD} offset:{L_PB + 256*w}")
a(f"ds_read_b64 v[32:33], v{vMRD} offset:{L_MB}")
for w in range(4):
    a(f"s_waitcnt lgkmcnt({LG(4-w)})")
    for c in range(2): a(mfma(24+4*c, V4(8+4*w), A4(aV+8*w+4*c), w == 0))
a(f"""
s_waitcnt lgkmcnt(0)
v_add_f32_dpp v35, v33, v33 row_ror:1 {DPPALL}
v_cmp_neq_f32 vcc, 0, v32
v_mov_b32 v34, 0
v_add_f32_dpp v35, v35, v35 row_ror:2 {DPPALL}
s_cbranch_vccnz L_PVbig
s_nop 0
v_add_f32_dpp v35, v35, v35 row_ror:4 {DPPALL}
v_cvt_pk_bf16_f32 v36, v24, v28
s_nop 0
v_add_f32_dpp v35, v35, v35 row_ror:8 {DPPALL}
L_PVt:
v_mov_b32_dpp v37, v36 quad_perm:[1,1,1,1] {DPPALL}
v_mov_b32_dpp v38, v36 quad_perm:[2,2,2,2] {DPPALL}
v_mov_b32_dpp v39, v36 quad_perm:[3,3,3,3] {DPPALL}
s_mov_b64 exec, s[{sQUADM}:{sQUADM+1}]
s_cbranch_scc0 L_RECsafe
""")
def rec_tail(fl):
    a(f"""buffer_store_dwordx4 v[36:39], v{vRECA}, s[{RG}:{RG+3}], 0 offen{fl}
    s_mov_b64 exec, s[{sMLM}:{sMLM+1}]
    buffer_store_dwordx2 v[34:35], v{vMLA}, s[{RG}:{RG+3}], 0 offen{fl}""")
rec_tail("")
a(f"""L_RECd:
s_mov_b64 exec, -1""")
stamp("rec")
a(f"""
s_cmp_ge_u32 s{sI}, 16
s_cbranch_scc1 L_B
""")
a(f"""
s_cmp_eq_u32 s{sLAY}, 0
s_cbranch_scc0 L_O
""")
if opts["wo2"] == "all": wo_issue()
if opts["wo2"] == "rec":
    a(f"s_cmp_eq_u32 s{sW}, 0\ns_cbranch_scc0 L_W0")
    wo_issue()
    a("L_W0:")
a(f"""
v_bfe_u32 v1, v0, 2, 1
v_bfe_u32 v2, v0, 3, 1
v_bfe_u32 v3, v0, 4, 2
v_lshl_add_u32 v5, v3, 2, v2
v_lshl_add_u32 v5, v1, 4, v5
v_lshlrev_b32 v5, 7, v5
v_bfe_u32 v6, v0, 5, 1
v_xor_b32 v6, v6, v1
v_and_b32 v7, 1, v3
v_lshl_or_b32 v6, v6, 1, v7
v_lshlrev_b32 v6, 5, v6
v_and_b32 v7, 3, v0
v_lshl_or_b32 v6, v7, 3, v6
v_or_b32 v5, v5, v6
s_lshr_b32 s{sT}, s{sW}, 1
s_lshl_b32 s{sT}, s{sT}, 14
s_add_u32 s{sT}, s{sT}, {L_W2}
v_add_u32 v5, s{sT}, v5
s_waitcnt vmcnt(0)
s_barrier
""")
for t in range(4):
    a(f"v_xor_b32 v6, {32*t}, v5\nv_xor_b32 v7, 32, v6\nv_add_u32 v7, 256, v7")
    trW(aW2 + 16*t, 0, 6, 7)
OM = opts["om"]
a("L_O:")
if OM == "ack": a("s_waitcnt vmcnt(0)")
if OM in ("bell", "bell2"):
    a(f"""L_Ob:
    buffer_load_dwordx2 v[4:5], v{vOML}, s[{RG}:{RG+3}], 0 offen sc1
    s_waitcnt vmcnt(0)
    v_cmp_eq_u32 vcc, -1, v5
    s_cbranch_vccnz L_Obretry""")
a(f"""
L_Op:
buffer_load_dwordx2 v[4:5], v{vOML}, s[{RG}:{RG+3}], 0 offen sc1
""")
OG = int(opts["og"])
for s in range(4):
    a(f"buffer_load_dwordx4 {V4(8+4*s)}, v{vOA}, s[{RG}:{RG+3}], 0 offen offset:{1024*s} sc1")
    if OG and s < 3: a(f"s_nop {OG-1}")
mo = lambda t, s: mfma(24+4*t, V4(8+4*s), A4(aW2+16*t+4*s), s == 0)
a(f"""
s_waitcnt vmcnt(4) lgkmcnt(0)
v_cmp_eq_u32 vcc, -1, v5
s_cbranch_vccnz L_Oretry
L_O2:
""")
stamp("o2")
a(f"""
s_waitcnt vmcnt(3)
{mo(0,0)}
{mo(1,0)}
{mo(2,0)}
{mo(3,0)}
s_waitcnt vmcnt(2)
{mo(0,1)}
{mo(1,1)}
{mo(2,1)}
{mo(3,1)}
s_waitcnt vmcnt(1)
{mo(0,2)}
v_add_f32_dpp v6, v5, v5 quad_perm:[1,0,3,2] {DPPALL}
v_max3_u32 v44, v8, v12, v16
{mo(1,2)}
v_add_f32_dpp v6, v6, v6 quad_perm:[2,3,0,1] {DPPALL}
v_cmp_neq_f32 s[{sM}:{sM+1}], 0, v4
{mo(2,2)}
v_add_f32_dpp v6, v6, v6 row_half_mirror {DPPALL}
v_mov_b32 v7, v6
{mo(3,2)}
s_waitcnt vmcnt(0)
v_permlane32_swap_b32 v6, v7
{mo(0,3)}
v_add_f32 v6, v6, v7
v_mov_b32 v7, v6
{mo(1,3)}
v_max_u32 v44, v44, v20
v_permlane16_swap_b32 v6, v7
{mo(2,3)}
v_cmp_eq_u32 vcc, -1, v44
v_add_f32 v6, v6, v7
{mo(3,3)}
v_rcp_f32 v6, v6
s_cbranch_vccnz L_O2retry
L_Ook:
""")
stamp("ook")
a(f"""
s_cmp_lg_u64 s[{sM}:{sM+1}], 0
s_cbranch_scc1 L_Obig
v_pk_add_f32 v[24:25], v[24:25], v[26:27]
v_pk_add_f32 v[28:29], v[28:29], v[30:31]
v_add_f32 v40, v24, v25
v_add_f32 v41, v28, v29
v_pk_add_f32 v[32:33], v[32:33], v[34:35]
v_pk_add_f32 v[36:37], v[36:37], v[38:39]
v_add_f32 v42, v32, v33
v_add_f32 v43, v36, v37
L_Ot:
v_permlane32_swap_b32 v40, v41
v_add_f32 v40, v40, v41
v_permlane32_swap_b32 v42, v43
v_add_f32 v42, v42, v43
s_add_u32 s{sT}, s{sXO}, {X1}
s_cmp_eq_u32 s{sW}, 0
v_permlane16_swap_b32 v40, v42
v_add_f32 v40, v40, v42
v_mul_f32 v40, v40, v6
ds_write_b32 v{vYWR}, v40 offset:{L_YB}
s_waitcnt lgkmcnt(0)
s_barrier
s_cbranch_scc0 L_Odone
s_mov_b64 exec, 0xffff
""")
stamp("ob")
for w in range(4): a(f"ds_read_b128 {V4(8+4*w)}, v{vL16} offset:{L_YB + 256*w}")
a(f"""
s_waitcnt lgkmcnt({LG(2)})
v_pk_add_f32 v[8:9], v[8:9], v[12:13]
v_pk_add_f32 v[10:11], v[10:11], v[14:15]
s_waitcnt lgkmcnt({LG(1)})
v_pk_add_f32 v[8:9], v[8:9], v[16:17]
v_pk_add_f32 v[10:11], v[10:11], v[18:19]
s_waitcnt lgkmcnt(0)
v_pk_add_f32 v[8:9], v[8:9], v[20:21]
v_pk_add_f32 v[10:11], v[10:11], v[22:23]
buffer_store_dwordx4 v[8:11], v{vL16}, s[{RG}:{RG+3}], s{sT} offen sc1
s_mov_b64 exec, -1
L_Odone:
""")
stamp("x1pub")
def xor_acc(base, first, acc=44):
    for k in range(4): a(f"v_xor_b32 v{base+k}, s{sT0+k}, v{base+k}")
    if first:
        a(f"v_or3_b32 v{acc}, v{base}, v{base+1}, v{base+2}\nv_or_b32 v{acc}, v{acc}, v{base+3}")
    else:
        a(f"v_or3_b32 v{acc}, v{acc}, v{base}, v{base+1}\nv_or3_b32 v{acc}, v{acc}, v{base+2}, v{base+3}")
def wd_base(own):
    a(f"""s_lshr_b32 s{sT}, s{sG}, 1
    s_mul_i32 s{sT}, s{sT}, 7
    s_and_b32 s{sT2}, s{sG}, 1
    s_lshl_b32 s{sM}, s{sT2}, 2
    s_add_u32 s{sT}, s{sT}, s{sM}
    s_lshr_b32 s{sM}, s{sA4}, 3
    s_and_b32 s{sT2}, s{sT2}, s{sM}
    s_lshl_b32 s{sM}, s{sM}, 1
    s_add_u32 s{sT}, s{sT}, s{sM}
    s_lshl_b32 s{sT}, s{sT}, 16
    s_and_b32 s{sM}, s{sA4}, 7
    s_lshl_b32 s{sM}, s{sM}, 1
    {f"s_add_u32 s{sM}, s{sM}, s{sW}" if own else ""}
    s_lshl_b32 s{sM}, s{sM}, 6
    s_add_u32 s{sT}, s{sT}, s{sM}
    s_add_u32 s{sWD}, s{sWD}, s{sT}
    s_addc_u32 s{sWD+1}, s{sWD+1}, 0
    s_lshl_b32 s{sT2}, s{sT2}, 16""")
def wd_issue():
    wd_base(True)
    a(f"""s_lshl_b32 s{sT}, s{sW}, 13
    s_add_u32 m0, s{sT}, {L_WD}
    v_bfe_u32 v4, v0, 2, 4
    v_and_b32 v5, 32, v0
    v_and_b32 v6, 48, v{vL16}
    v_xor_b32 v5, v5, v6
    v_lshl_add_u32 v4, v4, 10, v5""")
    for j in range(8):
        a(f"global_load_lds_dwordx4 v4, s[{sWD}:{sWD+1}] {POL}")
        if j < 7: a(f"s_add_u32 m0, m0, 1024\nv_add_u32 v4, 0x4000, v4")
        if j == 3: a(f"v_subrev_u32 v4, s{sT2}, v4")
    a(f"""v_bfe_u32 v4, v0, 2, 2
    v_bfe_u32 v5, v0, 4, 2
    v_lshl_add_u32 v4, v5, 3, v4
    v_lshlrev_b32 v4, 6, v4
    v_and_b32 v5, 1, v5
    v_lshl_add_u32 v4, v5, 5, v4
    v_and_b32 v5, 3, v0
    v_lshl_add_u32 v4, v5, 3, v4
    v_add_u32 v6, s{sT}, v4
    v_xor_b32 v7, 32, v6""")
def wd_reads():
    for t in range(2):
        for s_ in range(4):
            for e in range(2):
                r = aWD + 16*t + 4*s_ + 2*e
                a(f"ds_read_b64_tr_b16 a[{r}:{r+1}], v{6+t} offset:{L_WD + s_*2048 + e*256}")
def qc_gather():
    l3 = a.label("QC"); l4 = a.label("QC")
    a(f"""s_mul_i32 s{sT2}, s{sNF}, {BOFF}
    s_mul_i32 s{sT}, s{sG}, {TGS}
    s_add_u32 s{sT2}, s{sT2}, s{sT}
    s_add_u32 s{sT2}, s{sT2}, {TG}
    s_add_u32 s{RT}, s{sWS}, s{sT2}
    s_addc_u32 s{RT+1}, s{sWS+1}, 0
    {l3}:""")
    for k in range(4):
        a(f"s_mov_b32 s{sT2}, {QCS + k*2048}")
        for u in range(2):
            a(f"buffer_load_dwordx4 {V4(8+16*u+4*k)}, v{vL16}, s[{RT}:{RT+3}], s{sT2} offen offset:{u*1024} sc1")
    a("s_waitcnt vmcnt(0)")
    for u in range(2):
        for k in range(4): xor_acc(8+16*u+4*k, u == 0 and k == 0)
        for h in range(2):
            r = 8 + 16*u + 2*h
            a(f"v_pk_add_f32 v[{r}:{r+1}], v[{r}:{r+1}], v[{r+4}:{r+5}]\nv_pk_add_f32 v[{r+8}:{r+9}], v[{r+8}:{r+9}], v[{r+12}:{r+13}]")
            a(f"v_pk_add_f32 v[{vQCS+4*u+2*h}:{vQCS+4*u+2*h+1}], v[{r}:{r+1}], v[{r+8}:{r+9}]")
    a(f"v_and_b32 v44, 255, v44\nv_cmp_ne_u32 vcc, 0, v44\ns_cbranch_vccz {l4}")
    spin(l3, l4)
    a(f"""{l4}:
    ds_write_b128 v{vL16}, {V4(vQCS)} offset:{L_CS}
    ds_write_b128 v{vL16}, {V4(vQCS+4)} offset:{L_CS+1024}""")
BELL = int(opts["bell"])
def bell_ring(off):
    l1 = a.label("BR"); l2 = a.label("BR")
    a(f"""s_lshl_b32 s{sT2}, s{sA4}, 4
    s_add_u32 s{sT2}, s{sT2}, {BL + off}
    v_mov_b32 v1, 0
    s_mov_b64 exec, 1
    s_cmp_eq_u32 s{sNF}, 0
    {"s_waitcnt vmcnt(0)" if int(opts["bx2" if off else "bx"]) < 0 else ""}
    s_cbranch_scc0 {l1}
    buffer_store_dword v1, v1, s[{RG}:{RG+3}], s{sT2} offen
    {l2}:
    s_mov_b64 exec, -1""")
    tails.append(f"{l1}:\nbuffer_store_dword v1, v1, s[{RG}:{RG+3}], s{sT2} offen sc1\ns_branch {l2}")
tails = []
def bell_wait(off=0):
    if not BELL: return
    l1 = a.label("BW"); l2 = a.label("BW")
    if off == 0 and not int(opts["bell0"]): a(f"s_cmp_eq_u32 s{sLAY}, 0\ns_cbranch_scc1 {l2}")
    a(f"""s_lshl_b32 s{sT2}, s{sA4}, 4
    s_add_u32 s{sT2}, s{sT2}, {BL + off}
    v_mov_b32 v1, 0
    {l1}:
    buffer_load_dword v2, v1, s[{RG}:{RG+3}], s{sT2} offen sc1
    s_waitcnt vmcnt(0)
    v_cmp_eq_u32 vcc, -1, v2
    s_cbranch_vccz {l2}""")
    spin(l1, l2)
    a(f"{l2}:")
    bx = int(opts["bx2" if off else "bx"])
    if bx > 0: a(f"s_sleep {bx}")
def gd_wait(off=0):
    l1 = a.label("GD"); l2 = a.label("GD")
    a(f"""v_and_b32 v1, 7, v0
    v_lshlrev_b32 v1, 7, v1
    v_add_u32 v1, {GD + off*16}, v1
    {l1}:
    global_load_dword v2, v1, s[{sWS}:{sWS+1}] sc1
    s_waitcnt vmcnt(0)
    v_cmp_ne_u32 vcc, s{sTAG}, v2
    s_cbranch_vccz {l2}""")
    spin(l1, l2)
    a(f"{l2}:")
def set_rx(off):
    a(f"""v_add_u32 v{vXWR}, {512 if off == X1 else 0}, v{vHWR}
    s_mul_i32 s{sT}, s{sLAY}, {XLS}
    s_add_u32 s{sT}, s{sT}, {off + GB}
    s_add_u32 s{RX}, s{sWS}, s{sT}
    s_addc_u32 s{RX+1}, s{sWS+1}, 0""")
def next_layer():
    a(f"""s_add_u32 s{RG}, s{RG}, {LS}
    s_addc_u32 s{RG+1}, s{RG+1}, 0
    s_sub_u32 s{sXO}, s{sXO}, {LS - XLS}
    s_mov_b32 s{sALT}, s{sNF}
    v_add_u32 v{vQL}, {QP1 - LS}, v{vL16}
    s_lshl_b32 s{sT2}, s{sKQ}, 11
    s_lshl_b32 s{sM}, s{sCG}, 8
    s_add_u32 s{sT2}, s{sT2}, s{sM}
    s_lshl_b32 s{sM}, s{sW}, 6
    s_add_u32 s{sT2}, s{sT2}, s{sM}
    s_add_u32 s{sT2}, s{sT2}, {QP1 - LS}
    v_add_u32 v{vQPA}, s{sT2}, v{vB16}
    v_and_b32 v1, 0xf8, v{vL8}
    v_add_u32 v{vQGA}, {QS1 - LS}, v1
    s_lshl_b32 s{sT2}, s{sI}, 3
    s_add_u32 s{sT2}, s{sT2}, {QS1 - LS}
    v_mov_b32 v{vQSA}, s{sT2}
    s_mov_b32 s{sPUBM}, 0x00010001
    s_mov_b32 s{sPUBM+1}, 0x00010001
    s_mov_b32 s{sLAY}, 1""")
a(f"""
s_cmp_eq_u32 s{sW}, 0
s_cbranch_scc0 L_Aside
""")
if BELL and int(opts["bell0"]): bell_ring(0)
a(f"""
s_cmp_eq_u32 s{sLAY}, 0
s_cbranch_scc0 L_Dq
""")
wd_issue()
a(f"""
s_waitcnt vmcnt(0)
""")
wd_reads()
stamp("wd")
a(f"""
s_mov_b32 s{sT}, {HCS - HP}
L_HC:
""")
for k in range(4): a(f"buffer_load_dwordx4 {V4(8+4*k)}, v{vHGA}, s[{RG}:{RG+3}], s{sT} offen offset:{1024*k} sc1")
a(f"""
s_waitcnt vmcnt(0)
v_max3_u32 v44, v8, v12, v16
v_max_u32 v44, v44, v20
v_cmp_eq_u32 vcc, -1, v44
v_pk_add_f32 v[8:9], v[8:9], v[12:13]
v_pk_add_f32 v[10:11], v[10:11], v[14:15]
v_pk_add_f32 v[16:17], v[16:17], v[20:21]
v_pk_add_f32 v[18:19], v[18:19], v[22:23]
v_pk_add_f32 v[{vHCS}:{vHCS+1}], v[8:9], v[16:17]
v_pk_add_f32 v[{vHCS+2}:{vHCS+3}], v[10:11], v[18:19]
s_cbranch_vccz L_Dp0
""")
spin("L_HC", "L_Dp")
a("L_Dq:")
if BELL and not int(opts["bell0"]): bell_ring(0)
if int(opts["sd"]): a(f"s_sleep {opts['sd']}")
a("L_Dp0:")
stamp("hc")
a(f"""
L_Dp:
buffer_load_dwordx2 v[48:49], v{vHSA}, s[{RG}:{RG+3}], 0 offen sc1
""")
for k in range(4): a(f"buffer_load_dwordx4 {V4(8+4*k)}, v{vHGA}, s[{RG}:{RG+3}], 0 offen offset:{1024*k} sc1")
a(f"""
s_waitcnt vmcnt(4)
v_cmp_eq_u32 vcc, -1, v48
v_add_f32_dpp v46, v48, v48 quad_perm:[1,0,3,2] {DPPALL}
v_add_f32_dpp v47, v49, v49 quad_perm:[1,0,3,2] {DPPALL}
s_cbranch_vccnz L_Dretry
L_D2:
""")
stamp("d2")
a(f"""
v_add_f32_dpp v46, v46, v46 quad_perm:[2,3,0,1] {DPPALL}
v_add_f32_dpp v47, v47, v47 quad_perm:[2,3,0,1] {DPPALL}
v_mul_f32 v45, {f32(1/512)}, v46
v_mul_f32 v46, {f32(-1/512)}, v47
v_fma_f32 v45, -v46, v46, v45
v_max_f32 v45, 0, v45
v_add_f32 v45, {f32(1e-5)}, v45
v_rcp_f32 v45, v45
s_waitcnt vmcnt(2)
v_max_u32 v44, v8, v12
v_pk_fma_f32 v[8:9], v[{vHCS}:{vHCS+1}], v[46:47], v[8:9] op_sel_hi:[1,0,1]
v_pk_fma_f32 v[10:11], v[{vHCS+2}:{vHCS+3}], v[46:47], v[10:11] op_sel_hi:[1,0,1]
""")
for k in range(1, 4):
    if k > 1: a(f"s_waitcnt vmcnt({3-k})")
    a(f"v_pk_add_f32 v[8:9], v[8:9], v[{8+4*k}:{9+4*k}]\nv_pk_add_f32 v[10:11], v[10:11], v[{10+4*k}:{11+4*k}]")
    if k > 1: a(f"v_max_u32 v44, v44, v{8+4*k}")
a(f"""
v_cmp_eq_u32 vcc, -1, v44
v_permlane32_swap_b32 v8, v10
v_permlane32_swap_b32 v9, v11
v_mul_f32 v8, v8, v45
v_mul_f32 v9, v9, v45
v_mul_f32 v8, v8, v10
v_mul_f32 v9, v9, v11
v_cvt_pk_bf16_f32 v8, v8, v9
ds_write_b32 v{vHWR}, v8 offset:{L_HB}
s_cbranch_vccnz L_D2retry
L_Dm:
s_add_u32 s{sT}, s{sXO}, {X2}
s_cmp_ge_u32 s{sW}, 2
s_waitcnt lgkmcnt(0)
s_barrier
s_cbranch_scc1 L_Ddone
""")
stamp("h")
for s in range(4): a(f"ds_read_b128 {V4(8+4*s)}, v{vB16} offset:{L_HB + 64*s}")
for s in range(4):
    a(f"s_waitcnt lgkmcnt({LG(3-s)})")
    for t in range(2): a(mfma(24+4*t, A4(aWD+16*t+4*s), V4(8+4*s), s == 0))
a(f"""
s_mov_b64 exec, s[{sDM}:{sDM+1}]
s_nop 6
v_mov_b32 v24, v28
v_mov_b32 v25, v29
v_mov_b32 v26, v30
v_mov_b32 v27, v31
s_mov_b32 exec_lo, 0x00030003
s_mov_b32 exec_hi, 0x00030003
buffer_store_dwordx4 v[24:27], v{vDPA}, s[{RG}:{RG+3}], s{sT} offen sc1
s_mov_b64 exec, -1
L_Ddone:
""")
stamp("x2pub")
stamp_flush()
set_rx(X2)
a(f"""
ds_read_b32 v{vXW}, v{vHWR} offset:512
s_waitcnt lgkmcnt(0)
v_lshlrev_b32 v{vR0}, 16, v{vXW}
v_and_b32 v{vR1}, 0xffff0000, v{vXW}
s_cmp_eq_u32 s{sLAY}, 0
s_cbranch_scc1 L_Anext
s_mov_b32 s{sPH}, 3
s_cmp_eq_u32 s{sFIN}, 1
s_cbranch_scc0 L_exit
s_cmp_eq_u32 s{sW}, 0
s_cbranch_scc0 L_exit
""")
for _ in range(int(opts["fbell"])):
    if _ == 0: bell_ring(256)
    bell_wait(256)
a(f"""
s_branch L_G
L_Anext:
""")
if int(opts["bell2"]):
    a(f"s_cmp_eq_u32 s{sW}, 0\ns_cbranch_scc0 L_next")
    bell_ring(256)
    if int(opts["abell"]): bell_wait(256)
a(f"""
s_branch L_next
L_Aside:
s_cmp_eq_u32 s{sW}, 2
s_cbranch_scc1 L_A2
s_cmp_eq_u32 s{sW}, 1
s_cbranch_scc0 L_Dm
s_cmp_eq_u32 s{sLAY}, 0
s_cbranch_scc0 L_Dm
""")
wd_issue()
a("s_waitcnt vmcnt(0)")
wd_reads()
a(f"""
s_branch L_Dm
L_A2:
s_mov_b32 s{sPH}, 2
s_cmp_eq_u32 s{sLAY}, 0
s_cbranch_scc1 L_A20
s_cmp_eq_u32 s{sFIN}, 1
s_cbranch_scc0 L_Dm
ds_read_b32 v{vXW}, v{vHWR}
s_waitcnt lgkmcnt(0)
v_lshlrev_b32 v{vR0}, 16, v{vXW}
v_and_b32 v{vR1}, 0xffff0000, v{vXW}
s_branch L_A21
L_A20:
""")
qc_gather()
gd_wait()
a("L_A21:")
bell_wait()
set_rx(X1)
a(f"""
s_branch L_G
L_Gother:
s_cmp_eq_u32 s{sPH}, 2
s_cbranch_scc1 L_Dm
L_final:
s_lshl_b32 s{sT}, s{sKQ}, 8
v_add_u32 v1, s{sT}, v{vHWR}
global_store_dword v1, v{vXW}, s[{sOUT}:{sOUT+1}]
s_cmp_eq_u32 s2, 0
s_cbranch_scc0 L_fin2
s_add_u32 s{sT}, s{sNON}, 1
v_mov_b32 v1, {NONCE}
v_mov_b32 v2, s{sT}
s_mov_b64 exec, 1
global_store_dword v1, v2, s[{sWS}:{sWS+1}]
s_mov_b64 exec, -1
L_fin2:
""")
if STAMP:
    a(f"s_memrealtime s[{sST}:{sST+1}]\ns_waitcnt lgkmcnt(0)\nv_writelane_b32 v{vSTMP}, s{sST}, 16")
    if int(opts.get("dbgout", 0)):
        a(f"""v_writelane_b32 v{vSTMP}, s{sST}, 15
        s_nop 4
        v_readlane_b32 s{sT}, v{vSTMP}, 0
        s_nop 4
        v_subrev_u32 v4, s{sT}, v{vSTMP}
        v_lshrrev_b32 v5, 1, v{vL8}
        s_cmp_eq_u32 s2, 0
        s_cbranch_scc0 L_exit
        s_mov_b64 exec, 0xffff
        global_store_dword v5, v4, s[{sDBG}:{sDBG+1}]
        s_mov_b64 exec, -1""")
a("s_branch L_exit")
a(f"""
L_B:
s_mov_b32 s{sPH}, 1
s_cmp_eq_u32 s{sLAY}, 0
s_cbranch_scc0 L_B1
""")
if opts["gu"] == "rec":
    if int(opts["g2"]):
        a(f"""s_cmp_eq_u32 s{sW}, 0
        s_cbranch_scc0 L_Bg
        s_waitcnt vmcnt(2)
        v_cmp_ne_u32 vcc, s{sTAG}, v{vJUNK+3}
        s_cbranch_vccz L_Bg""")
        gd_wait(0 if int(opts["g2q"]) else 64)
        a("L_Bg:\ns_barrier")
    b_issue("L_Bs")
a(f"""L_Bs:
s_mov_b32 s{sPUBM}, 0x00010001
s_mov_b32 s{sPUBM+1}, 0x00010001
v_and_b32 v1, 7, v0
v_lshlrev_b32 v1, 7, v1
v_add_u32 v1, {GD}, v1
global_load_dword v{vJUNK+2}, v1, s[{sWS}:{sWS+1}] sc1
s_cmp_eq_u32 s{sW}, 3
s_cbranch_scc0 L_Bu""")
wd_base(False)
a(f"""v_lshlrev_b32 v4, 6, v{vL16}
global_load_dword v{vJUNK}, v4, s[{sWD}:{sWD+1}] {POL}
v_add_u32 v4, 0x10000, v4
v_subrev_u32 v4, s{sT2}, v4
global_load_dword v{vJUNK+1}, v4, s[{sWD}:{sWD+1}] {POL}
s_waitcnt vmcnt(2)
s_branch L_Bw
L_Bu:
s_waitcnt vmcnt(0)""")
a(f"""L_Bw:
s_cmp_eq_u32 s{sDUM}, 7
s_cbranch_scc0 L_Bload
""")
for k in range(32): a(f"v_accvgpr_write_b32 a{aW2+k}, 0")
a("s_branch L_B0\nL_Bload:")
a(f"""
s_lshl_b32 s{sT}, s{sW}, 5
v_xor_b32 v6, s{sT}, v{vTR0}
v_xor_b32 v7, 32, v6
v_add_u32 v7, {512 + L_W2}, v7
v_add_u32 v6, {L_W2}, v6
s_barrier
""")
trW(aW2, 0, 6, 7)
trW(aW2 + 16, 0x4000, 6, 7)
a(f"""
L_B0:
v_mov_b32 v8, v{vONE}
v_mov_b32 v9, v{vONE}
v_mov_b32 v10, v{vONE}
v_mov_b32 v11, v{vONE}
s_waitcnt lgkmcnt(0)
s_nop 0
""")
for s_ in range(4):
    for m in range(2): a(mfma(24+4*m, A4(aW2+16*m+4*s_), V4(8), s_ == 0))
a(f"""
s_mov_b32 s{sT}, {HCS - HP}
s_mov_b64 exec, s[{sPUBM}:{sPUBM+1}]
s_cmp_eq_u32 s{sNF}, 0
s_cbranch_scc0 L_B0s
s_nop 3
buffer_store_dwordx4 v[24:27], v{vPUBA}, s[{RG}:{RG+3}], s{sT} offen
buffer_store_dwordx4 v[28:31], v{vPUBA}, s[{RG}:{RG+3}], s{sT} offen offset:512
s_branch L_B0d
L_B0s:
s_nop 3
buffer_store_dwordx4 v[24:27], v{vPUBA}, s[{RG}:{RG+3}], s{sT} offen sc1
buffer_store_dwordx4 v[28:31], v{vPUBA}, s[{RG}:{RG+3}], s{sT} offen offset:512 sc1
L_B0d:
s_mov_b64 exec, -1
""")
stamp("wd")
a(f"s_cmp_eq_u32 s{sW}, 1\ns_cbranch_scc0 L_Bv")
qc_gather()
a(f"""s_branch L_TU
L_Bv:
s_cmp_eq_u32 s{sW}, 0
s_cbranch_scc0 L_TU
v_cmp_ne_u32 vcc, s{sTAG}, v{vJUNK+2}
s_cbranch_vccz L_B1""")
gd_wait()
a(f"""
L_B1:
s_cmp_eq_u32 s{sW}, 0
s_cbranch_scc0 L_TU
""")
bell_wait()
if int(opts["sb"]): a(f"s_cmp_eq_u32 s{sLAY}, 0\ns_cbranch_scc1 L_B2\ns_sleep {opts['sb']}\nL_B2:")
set_rx(X1)
a("s_branch L_G")
a(f"""
L_TU:
s_cmp_lg_u32 s{sW}, 0
s_waitcnt lgkmcnt(0)
s_barrier
""")
stamp("x1pub")
for s in range(4): a(f"ds_read_b128 {V4(8+4*s)}, v{vXRD} offset:{512 + 64*s}")
stats()
for s in range(4):
    a(f"s_waitcnt lgkmcnt({LG(3-s)})")
    for m in range(2): a(mfma(24+4*m, A4(aW2+16*m+4*s), V4(8+4*s), s == 0))
def tu_tail(fl, done):
    a(f"""s_mov_b64 exec, s[{sPUBM}:{sPUBM+1}]
    s_cmp_lg_u32 s{sW}, 0
    s_nop 2
    buffer_store_dwordx4 v[24:27], v{vPUBA}, s[{RG}:{RG+3}], 0 offen{fl}
    buffer_store_dwordx4 v[28:31], v{vPUBA}, s[{RG}:{RG+3}], 0 offen offset:512{fl}
    s_cbranch_scc1 {done}
    s_mov_b64 exec, s[{sSTM}:{sSTM+1}]
    buffer_store_dwordx2 v[{vSTG}:{vSTG+1}], v{vHSA}, s[{RG}:{RG+3}], 0 offen{fl}""")
a(f"s_cmp_eq_u32 s{sNF}, 0\ns_cbranch_scc0 L_TUsafe")
tu_tail("", "L_TUd")
a("L_TUd:\ns_mov_b64 exec, -1")
stamp("h")
stamp_flush()
a(f"""
s_cmp_eq_u32 s{sLAY}, 0
s_cbranch_scc0 L_exit
""")
if int(opts["sx"]): a(f"s_sleep {opts['sx']}")
if int(opts["bell2"]):
    a(f"s_cmp_eq_u32 s{sW}, 0\ns_cbranch_scc0 L_B3")
    bell_wait(256)
    a("L_B3:")
set_rx(X2)
a(f"""L_next:
ds_read_b128 {V4(vQCS)}, v{vL16} offset:{L_CS}
ds_read_b128 {V4(vQCS+4)}, v{vL16} offset:{L_CS+1024}""")
next_layer()
a(f"""
s_mov_b32 s{sPH}, 0
s_cmp_eq_u32 s{sW}, 0
s_cbranch_scc1 L_G
s_branch L_TQ
""")
a("L_Gretry:")
if DBG: a(f"s_mov_b64 exec, 1\nv_mov_b32 v45, s{sLAY}\nv_lshlrev_b32 v45, 2, v45\nv_add_u32 v45, s{sPH}, v45\nv_lshlrev_b32 v45, 2, v45\nv_add_u32 v45, 128, v45\nv_mov_b32 v46, 1\nglobal_atomic_add v45, v46, s[{sDBG}:{sDBG+1}]\ns_mov_b64 exec, -1")
spin("L_Gp", "L_Gok")
a("L_QFretry:");  spin("L_QFp", "L_QF2")
a("L_QF2retry:"); spin("L_QFp", "L_S")
for t_ in tails: a(t_)
a("L_RECsafe:"); rec_tail(" sc1"); a("s_branch L_RECd")
a("L_TUsafe:"); tu_tail(" sc1", "L_TUd"); a("s_branch L_TUd")
a(f"""
L_Sbig:
s_mov_b64 exec, -1
v_max3_f32 v32, v24, v25, v26
v_max_f32 v32, v32, v27
v_max3_f32 v32, v32, v28, v29
v_max3_f32 v32, v32, v30, v31
v_mov_b32 v33, v32
s_nop 1
v_permlane32_swap_b32 v32, v33
v_max_f32 v32, v32, v33
v_mov_b32 v33, v32
s_nop 1
v_permlane16_swap_b32 v32, v33
v_max_f32 v32, v32, v33
""")
for k in range(8): a(f"v_sub_f32 v{40+k}, v{24+k}, v32")
for k in range(8): a(f"v_exp_f32 v{40+k}, v{40+k}")
p_tail()
a(f"""
s_nop 2
ds_write_b64 v{vMWR}, v[32:33] offset:{L_MB}
s_branch L_Sp
L_PVbig:
s_nop 7
{mfma(24, V4(8), A4(aV), True)}
{mfma(28, V4(8), A4(aV+4), True)}
{mfma(40, V4(12), A4(aV+8), True)}
{mfma(44, V4(12), A4(aV+12), True)}
{mfma(48, V4(16), A4(aV+16), True)}
{mfma(8, V4(16), A4(aV+20), True)}
{mfma(12, V4(20), A4(aV+24), True)}
{mfma(16, V4(20), A4(aV+28), True)}
v_max_f32_dpp v34, v32, v32 row_ror:4 {DPPALL}
s_nop 1
v_max_f32_dpp v34, v34, v34 row_ror:8 {DPPALL}
v_sub_f32 v32, v32, v34
v_exp_f32 v32, v32
s_nop 0
v_mul_f32 v35, v32, v33
s_nop 1
v_add_f32_dpp v35, v35, v35 row_ror:1 {DPPALL}
v_mul_f32_dpp v36, v32, v24 row_newbcast:0 {DPPALL}
v_mul_f32_dpp v37, v32, v28 row_newbcast:0 {DPPALL}
v_add_f32_dpp v35, v35, v35 row_ror:2 {DPPALL}
v_fmac_f32_dpp v36, v32, v40 row_newbcast:4 {DPPALL}
v_fmac_f32_dpp v37, v32, v44 row_newbcast:4 {DPPALL}
v_add_f32_dpp v35, v35, v35 row_ror:4 {DPPALL}
v_fmac_f32_dpp v36, v32, v48 row_newbcast:8 {DPPALL}
v_fmac_f32_dpp v37, v32, v8 row_newbcast:8 {DPPALL}
v_add_f32_dpp v35, v35, v35 row_ror:8 {DPPALL}
v_fmac_f32_dpp v36, v32, v12 row_newbcast:12 {DPPALL}
v_fmac_f32_dpp v37, v32, v16 row_newbcast:12 {DPPALL}
v_cvt_pk_bf16_f32 v36, v36, v37
s_nop 1
s_branch L_PVt
L_Obig:
; some producer shifted its scores: weight every record to the head's common maximum
v_max_f32_dpp v6, v4, v4 quad_perm:[1,0,3,2] {DPPALL}
s_nop 1
v_max_f32_dpp v6, v6, v6 quad_perm:[2,3,0,1] {DPPALL}
s_nop 1
v_max_f32_dpp v6, v6, v6 row_half_mirror {DPPALL}
v_mov_b32 v7, v6
s_nop 1
v_permlane32_swap_b32 v6, v7
v_max_f32 v6, v6, v7
v_mov_b32 v7, v6
s_nop 1
v_permlane16_swap_b32 v6, v7
v_max_f32 v6, v6, v7
v_sub_f32 v4, v4, v6
v_exp_f32 v4, v4
s_nop 0
v_mul_f32 v6, v4, v5
s_nop 1
v_add_f32_dpp v6, v6, v6 quad_perm:[1,0,3,2] {DPPALL}
s_nop 1
v_add_f32_dpp v6, v6, v6 quad_perm:[2,3,0,1] {DPPALL}
s_nop 1
v_add_f32_dpp v6, v6, v6 row_half_mirror {DPPALL}
v_mov_b32 v7, v6
s_nop 1
v_permlane32_swap_b32 v6, v7
v_add_f32 v6, v6, v7
v_mov_b32 v7, v6
s_nop 1
v_permlane16_swap_b32 v6, v7
v_add_f32 v6, v6, v7
v_rcp_f32 v6, v6
""")
for t in range(4):
    a(f"v_mul_f32_dpp v{40+t}, v4, v{24+4*t} row_newbcast:0 {DPPALL}")
    for r in range(1, 4): a(f"v_fmac_f32_dpp v{40+t}, v4, v{24+4*t+r} row_newbcast:{r} {DPPALL}")
a("s_branch L_Ot")
a(f"""
L_TQalt:
s_cmp_eq_u32 s{sLAY}, 0
s_cbranch_scc1 L_TQ0
""")
tq_tail(" sc1")
a(f"""
s_branch L_QFe
L_TQ0:
s_nop 3
""")
for k in range(4): a(f"v_bfi_b32 v{24+k}, v{vMASK}, v{24+k}, s{sT0+k}")
K1 = int(opts["k1"])
def kreads():
    for s in range(4):
        a(f"v_xor_b32 v5, {64*s}, v3")
        for t in range(2): a(f"ds_read_b128 {A4(aK+16*t+4*s)}, v5 offset:{4096*t}")
def vreads():
    for w in range(4):
        for c in range(2):
            for e in range(2):
                r = aV + 8*w + 4*c + 2*e
                a(f"ds_read_b64_tr_b16 a[{r}:{r+1}], v{6+c} offset:{L_V + w*8192 + e*4096}")
def l0_addr():
    a(f"""v_bfe_u32 v34, v0, 2, 2
    v_bfe_u32 v35, v0, 4, 2
    v_lshl_add_u32 v36, v35, 2, v34
    v_and_b32 v37, 7, v36
    v_lshlrev_b32 v37, 1, v37
    v_bfe_u32 v38, v0, 1, 1
    s_lshl_b32 s{sT}, s{sW}, 2
    v_or_b32 v38, s{sT}, v38
    v_xor_b32 v37, v37, v38
    v_lshlrev_b32 v37, 4, v37
    v_lshl_add_u32 v36, v36, 8, v37
    v_and_b32 v37, 1, v0
    v_lshl_add_u32 v6, v37, 3, v36
    v_xor_b32 v7, 32, v6
    v_and_b32 v3, 15, v0
    v_xor_b32 v5, v35, v3
    v_lshlrev_b32 v5, 4, v5
    v_lshl_add_u32 v3, v3, 8, v5
    s_lshl_b32 s{sT}, s{sW}, 13
    s_add_u32 s{sT}, s{sT}, {L_K}
    v_add_u32 v3, s{sT}, v3""")
    if True:
        l = a.label("BS")
        a(f"s_cmp_lt_u32 s{sI}, 16\ns_cbranch_scc1 {l}")
        b_setup()
        a(f"{l}:")
def qloads():
    a(f"""buffer_load_dwordx4 v[48:51], v{vQGA}, s[{RT}:{RT+3}], 0 offen sc1
    buffer_load_dwordx4 v[8:11], v{vQL}, s[{RT}:{RT+3}], 0 offen sc1
    buffer_load_dwordx4 v[12:15], v{vQL}, s[{RT}:{RT+3}], 0 offen offset:2048 sc1""")
a(f"""
s_cmp_eq_u32 s{sW}, 0
s_cselect_b64 s[{sM}:{sM+1}], s[{sSTM}:{sSTM+1}], 0
s_mov_b64 exec, s[{sPUBM}:{sPUBM+1}]
buffer_store_dwordx4 v[24:27], v{vQPA}, s[{RT}:{RT+3}], 0 offen
s_mov_b64 exec, s[{sM}:{sM+1}]
buffer_store_dwordx4 {V4(vSTG)}, v{vQSA}, s[{RT}:{RT+3}], 0 offen
""")
H2N = int(opts["h2"])
if H2N:
    a(f"""s_add_u32 s{sT}, s{sI}, {H2}
    s_cmp_eq_u32 s{sW}, 0
    s_cselect_b64 exec, 0xff, 0
    v_lshlrev_b32 v5, 3, v{vL16}
    buffer_store_byte v{vSTG+2}, v5, s[{RT}:{RT+3}], s{sT} offen""")
a(f"""
s_mov_b64 exec, -1
s_mov_b32 s{sT2}, {BOFF}
""")
stamp("qpub")
kdma(0, 8)
a(f"""
s_mov_b64 exec, s[{sPUBM}:{sPUBM+1}]
buffer_store_dwordx4 v[24:27], v{vQPA}, s[{RT}:{RT+3}], s{sT2} offen sc1
s_mov_b64 exec, s[{sM}:{sM+1}]
buffer_store_dwordx4 {V4(vSTG)}, v{vQSA}, s[{RT}:{RT+3}], s{sT2} offen sc1
s_mov_b64 exec, -1
""")
l0_addr()
a(f"""
s_lshl_b32 s{sT}, s{sW}, 9
v_and_b32 v5, 0x1f0, v{vL16}
v_bfe_u32 v4, v0, 5, 1
v_lshl_add_u32 v5, v4, 12, v5
v_add_u32 v{vQL}, s{sT}, v5
s_lshl_b32 s{sT}, s{sW}, 8
v_add_u32 v{vMODE}, s{sT}, v{vHWR}
s_mul_i32 s{sT}, s{sW}, {7*128}
v_lshlrev_b32 v2, 3, v{vL16}
v_min_u32 v2, {6*128}, v2
v_add_u32 v2, s{sT}, v2
v_min_u32 v2, {CLR-128}, v2
s_lshl_b32 s{sT}, s{sG}, 7
s_add_u32 s{sT}, s{sT}, {GD + 1024}
v_mov_b32 v1, s{sT}
s_lshl_b32 s{sT}, s{sI}, 2
s_add_u32 s{sT}, s{sT}, s{sW}
s_cmp_eq_u32 s{sT}, 67
s_cselect_b64 s[{sM}:{sM+1}], 1, 0
s_mul_i32 s{sT2}, s{sI}, {CLR}
""")
VM = int(opts["vm"])
if not VM:
    a(f"s_waitcnt vmcnt({13 if H2N else 12})\ns_barrier")
    vreads()
if H2N:
    a(f"""s_cmp_eq_u32 s{sW}, 3
    s_cbranch_scc0 L_H2e
    s_mul_i32 s{sPH}, s{sT0}, 0x01010101
    s_movk_i32 s5, {H2}
    L_H2:
    s_load_dwordx8 s[{sGO}:{sGO+7}], s[{RT}:{RT+1}], s5
    s_add_u32 s5, s5, 128
    s_cmp_eq_u32 s5, {H2 + 128*H2N}
    s_waitcnt lgkmcnt(0)
    s_cbranch_scc1 L_H2d""")
    for k in range(8): a(f"s_xor_b32 s{sGO+k}, s{sGO+k}, s{sPH}")
    for k in range(1, 8): a(f"s_or_b32 s{sGO}, s{sGO}, s{sGO+k}")
    a(f"""s_cbranch_scc1 L_H2
    L_H2d:""")
    for gp in range(8): a(f"s_mov_b32 s{sGO+gp}, {gp*GS}")
    a("L_H2e:")
a(f"s_waitcnt vmcnt({2 + int(opts['kw'])})")
if H2N: a("s_barrier")
stamp("kw")
qloads()
if not H2N or int(opts.get("bb", 0)): a("s_barrier")
a(f"""
buffer_load_dword v{vJUNK}, v2, s[{RG}:{RG+3}], s{sT2} offen sc1
s_mov_b64 exec, s[{sM}:{sM+1}]
global_store_dword v1, v{vSTG+2}, s[{sWS}:{sWS+1}] sc1
s_mov_b64 exec, -1
s_cmp_ge_u32 s{sI}, 16
s_cbranch_scc1 L_K1""")
wo_issue()
if VM: vreads()
a("s_waitcnt vmcnt(13)")
kreads()
a("s_waitcnt vmcnt(10)\ns_branch L_Q01\nL_K1:")
if VM: vreads()
a("s_waitcnt vmcnt(5)")
kreads()
a("s_waitcnt vmcnt(2)")
a("L_Q01:")
stamp("qf2")
xor_acc(8, True); xor_acc(12, False)
a(f"""
v_pk_add_f32 v[8:9], v[8:9], v[12:13]
v_pk_add_f32 v[10:11], v[10:11], v[14:15]
v_xor_b32 v45, s{sTAG}, v50
v_and_or_b32 v44, v44, v{vMASK+2}, v45
v_permlane32_swap_b32 v8, v10
v_permlane32_swap_b32 v9, v11
v_cmp_ne_u32 vcc, 0, v44
v_add_f32 v8, v8, v10
v_add_f32 v9, v9, v11
v_cvt_pk_bf16_f32 v8, v8, v9
ds_write_b32 v{vMODE}, v8 offset:{L_QB}
s_cbranch_vccnz L_Q0retry
L_Q0ok:
""")
stamp("qfok")
a(f"""
v_cmp_ne_u32 vcc, v51, v{vSTG+3}
s_cmp_lg_u64 vcc, 0
s_cselect_b32 s{sNF}, 1, 0
s_cmp_lt_u32 s{sI}, 16
s_cbranch_scc1 L_Q0a
v_lshlrev_b32 v5, 3, v{vL16}
v_and_b32 v5, 0x380, v5
global_load_dword v{vJUNK+3}, v5, s[{sWS}:{sWS+1}] offset:{GD + (0 if int(opts["g2q"]) else 1024)} sc1
L_Q0a:
s_cmp_eq_u32 s{sW}, 0
s_cbranch_scc0 L_S
s_cmp_eq_u32 s{sNF}, 0
s_cbranch_scc0 L_slow
L_slowdone:
s_cmp_eq_u32 s{sI}, 0
s_cbranch_scc0 L_S
s_lshl_b32 s{sT}, s{sG}, 7
s_add_u32 s{sT}, s{sT}, {GD}
v_mov_b32 v9, s{sT}
s_mov_b64 exec, 1
global_store_dword v9, v{vSTG+2}, s[{sWS}:{sWS+1}] sc1
s_branch L_S
L_Q0p:
""")
qloads()
a("s_waitcnt vmcnt(0)\ns_branch L_Q01")
def qretry(giveup):
    l = a.label("QR")
    if DBG: a(f"s_mov_b64 exec, 1\nv_mov_b32 v45, 0\nv_mov_b32 v46, 1\nglobal_atomic_add v45, v46, s[{sDBG}:{sDBG+1}]\ns_mov_b64 exec, -1")
    a(f"""s_sub_u32 s{sTRY}, s{sTRY}, 1
    s_cmp_eq_u32 s{sTRY}, 0
    s_cbranch_scc0 {l}
    s_add_u32 s{RT}, s{RT}, {BOFF}
    s_addc_u32 s{RT+1}, s{RT+1}, 0
    {l}:""")
    spin("L_Q0p", giveup)
a("L_Q0retry:");  qretry("L_Q0ok")
a(f"""
L_slow:
s_mul_i32 s{sT}, s{sI}, {CLR}
v_mov_b32 v12, -1
v_mov_b32 v13, -1
v_mov_b32 v14, -1
v_mov_b32 v15, -1
v_min_u32 v9, {CLR - 3072 - 16}, v{vL16}
buffer_store_dwordx4 v[12:15], v{vL16}, s[{RG}:{RG+3}], s{sT} offen sc1
buffer_store_dwordx4 v[12:15], v{vL16}, s[{RG}:{RG+3}], s{sT} offen offset:1024 sc1
buffer_store_dwordx4 v[12:15], v{vL16}, s[{RG}:{RG+3}], s{sT} offen offset:2048 sc1
buffer_store_dwordx4 v[12:15], v9, s[{RG}:{RG+3}], s{sT} offen offset:3072 sc1
s_mul_i32 s{sT}, s{sG}, {TGS}
s_add_u32 s{sT}, s{sT}, {TG + FL}
s_lshl_b32 s{sT2}, s{sI}, 4
s_add_u32 s{sT2}, s{sT2}, s{sT}
v_mov_b32 v9, s{sT2}
s_waitcnt vmcnt(0)
s_mov_b64 exec, 1
global_store_dword v9, v{vSTG+2}, s[{sWS}:{sWS+1}] sc1
s_mov_b64 exec, -1
v_and_b32 v9, 0x1f0, v{vL16}
v_add_u32 v9, s{sT}, v9
L_slowp:
global_load_dword v8, v9, s[{sWS}:{sWS+1}] sc1
s_waitcnt vmcnt(0)
v_cmp_ne_u32 vcc, s{sTAG}, v8
s_cbranch_vccz L_slowdone
""")
spin("L_slowp", "L_slowdone")
if OM in ("bell", "bell2"):
    a("L_Obretry:"); spin("L_Ob", "L_Op")
def cnt(k):
    if DBG: a(f"s_mov_b64 exec, 1\nv_mov_b32 v45, s{sLAY}\nv_lshlrev_b32 v45, 2, v45\nv_add_u32 v45, {4*k}, v45\nv_mov_b32 v46, 1\nglobal_atomic_add v45, v46, s[{sDBG}:{sDBG+1}]\ns_mov_b64 exec, -1")
a("L_Oretry:");   cnt(40); spin("L_Op", "L_O2")
a("L_O2retry:");  cnt(42); spin("L_Op", "L_Ook")
a("L_Dretry:");   spin("L_Dp", "L_D2")
a("L_D2retry:");  spin("L_Dp", "L_Dm")
a("L_exit:")
if int(opts.get("xdirty", 0)):
    a(f"s_mov_b64 exec, -1\ns_lshl_b32 s{sT}, s2, 16\ns_add_u32 s{sT}, s{sT}, 0x1000000\nv_lshlrev_b32 v1, 4, v0\nv_add_u32 v1, s{sT}, v1")
    for j in range(int(opts["xdirty"])):
        a(f"global_store_dwordx4 v1, v[8:11], s[{sWS}:{sWS+1}]\nv_add_u32 v1, 4096, v1")
stamp_store()
a("L_end:\ns_endpgm")

txt = a.text()
if int(opts.get("solo", 0)):
    import re
    txt = re.sub(r"s_cbranch_vccnz L_\w*retry", "s_nop 0", txt)
    txt = re.sub(r"s_cbranch_vccz (\w+)\n", r"s_branch \1\n", txt)
    txt = txt.replace("s_cbranch_scc0 L_slow\n", "s_nop 0\n")
    for br in ("s_cbranch_vccnz L_Sbig", "s_cbranch_vccnz L_PVbig", "s_cbranch_scc1 L_Obig"): txt = txt.replace(br, "s_nop 0")
    txt = txt.replace("s_memrealtime", "s_memtime").replace(f"s_cselect_b32 s{sNF}, 1, 0", f"s_mov_b32 s{sNF}, 0")
open(sys.argv[1], "w").write(wrap(txt, 256, 256, LDS_SIZE, NVGPR + NAGPR, accum=NVGPR))
if STAMP: print(",".join(stamp_names))
if DBG: print(list(enumerate(spin_ids, 1)))
```

```python
import sys, math, struct
from asmlib import *

opts = dict(stamp=0, pol="nt", dbg=0, wo="spec", kw=6, v1=4, k1=8, om="ack", xack=1, bgd=0, vearly=1, il=1, kup=0, sd=0, sb=0, sx=0, bell=1, bell0=0, bell2=1, abell=1, fbell=0, og=10, wo2="k", bx=-1, bx2=-1, wdp=1, gu="rec", g2=16, h2=8, bb=1, vm=1, g2q=0, wb=0, wop=64, dp=1, qp=0, rl=0)
for x in sys.argv[2:]:
    k, v = x.split("="); opts[k] = v
STAMP = int(opts["stamp"]); DBG = int(opts["dbg"]); POL = opts["pol"].replace("def", "").replace("_", " ")

RL = int(opts["rl"])
IL = int(opts["il"])
VSTEP, KSTEP, KWSH, ISH = (131072, 32768, 18, 10) if IL else (4096, 1024, 13, 15)
a = Asm()
NONCE = 0x0
GD = 0x400
GB = 0x2000
GS = 0x1F400
LS = 0xA800
REC, ML, HP, HS, BL = 0x0, 0x8000, 0x8400, 0xA400, 0xA600
HCS = 2 * LS
QP1 = HCS + 0x2000
QS1 = QP1 + 0x2000
CLR = 3328
XR = 32 * CLR
X1, X2, XLS = XR, XR + 5120, 10240
assert HS + 512 <= LS and QS1 + 256 <= XR and XR + 2 * XLS <= GS
TG = 0x200000
QP, QS, QCS = 0x0, 0x2000, 0x2400
FL = QCS + 0x2000
H2 = FL + 0x200
BOFF = 0x5000
TGS = 2 * BOFF + 0x400
WSSIZE = 0x400000
L_X = 0x0
L_HB, L_QB, L_PB, L_MB, L_YB, L_CS = 0x400, 0x500, 0xA00, 0xE00, 0x1000, 0x1800
QH = 320
L_WQ, L_V, L_W2, L_WD = 0x2000, 0x6000, 0xE000, 0x2000
L_K = 0x16000
LDS_SIZE = 0x1E000
sX, sK, sV, sWQ, sWO, sWG, sWU, sWD, sOUT, sDBG, sWS = 4, 6, 8, 10, 12, 16, 18, 20, 22, 24, 26
sG, sI, sW, sKQ, sCG, sA4 = 28, 29, 30, 31, 32, 33
sLAY, sXO = 34, 35
RG = 36
RX = 40
sGO = 44
RT = 52
sTAG, sT0 = 56, 57
sSPIN, sPH, sT, sT2, sNON = 61, 62, 63, 64, 65
sQUADM, sMLM, sPUBM, sDM, sM = 66, 68, 70, 72, 74
sTH = 3
sFIN, sTRY = 76, 77
sQH = 5
sDUM = 4
sNF, sALT = 14, 15
sSTM = 78
sST = 80
aK, aV, aWQ, aW2, aWD = 0, 32, 64, 80, 144
NAGPR = 176
vSTG = 52
vMASK, vONE, vJUNK = 56, 57, 60
vCS = 64
(vQCS, vHCS) = (96, 104)
(vR0, vR1, vXW, vXRD, vXWR, vGA, vQPA, vQGA, vQSA, vRECA, vMLA, vOA, vOML, vHGA, vPUBA, vROW, vPC16, vTR0,
 vSTMP, vL16, vL8, vQRD, vPRD, vPWR, vMWR, vMRD, vYWR, vB16, vHWR, vHSA, vDPA, vMODE, vVA, vQL, vKA) = range(108, 143)
NVGPR = 176 if int(opts["qp"]) else 144
ONES = 0x3F803F80
QSCALE = math.log2(math.e) / math.sqrt(128.0)
def f32(x): return "0x%08x" % struct.unpack("<I", struct.pack("<f", x))[0]
DPPALL = "row_mask:0xf bank_mask:0xf"
LG = lambda n: n

stamp_names = []; spin_ids = []
SEL = opts.get("sel", "start,wq,xq,qpub,q,p,rec,x1pub,h,x2pub").split(",")
def stamp(name):
    if not STAMP or name not in SEL: return
    if name not in stamp_names: stamp_names.append(name)
    k = stamp_names.index(name); assert k < 11
    a(f"s_memrealtime s[{sST+2*k}:{sST+2*k+1}]")
def stamp_flush():
    if not STAMP: return
    l1 = a.label("SF"); l2 = a.label("SF")
    a("s_waitcnt lgkmcnt(0)")
    a(f"s_cmp_eq_u32 s{sLAY}, 0\ns_cbranch_scc0 {l1}")
    for k in range(11): a(f"v_writelane_b32 v{vSTMP}, s{sST+2*k}, {k}")
    a(f"s_branch {l2}\n{l1}:")
    for k in range(11): a(f"v_writelane_b32 v{vSTMP}, s{sST+2*k}, {k+16}")
    a(f"{l2}:")
def stamp_store():
    if not STAMP: return
    l1 = a.label("SS")
    a(f"""s_cmp_eq_u32 s{sW}, {opts.get("sw", 0)}
    s_cbranch_scc0 {l1}
    s_mov_b32 exec_lo, -1
    s_mov_b32 exec_hi, 0
    s_lshl_b32 s{sT}, s2, 8
    s_add_u32 s{sM}, s{sWS}, s{sT}
    s_addc_u32 s{sM+1}, s{sWS+1}, 0
    s_add_u32 s{sM}, s{sM}, 0x10000000
    s_addc_u32 s{sM+1}, s{sM+1}, 0
    v_mov_b32 v4, v{vSTMP}
    v_mov_b32 v5, 0
    global_store_dwordx2 v{vL8}, v[4:5], s[{sM}:{sM+1}]
    {l1}:""")

def spin(lab_retry, lab_giveup):
    a(f"s_sub_u32 s{sSPIN}, s{sSPIN}, 1\ns_cbranch_scc0 {lab_retry}\ns_mov_b32 s{sSPIN}, 0")
    if DBG:
        spin_ids.append(lab_retry)
        a(f"s_mov_b64 s[{sM}:{sM+1}], exec\ns_mov_b64 exec, 1\nv_mov_b32 v45, {4*len(spin_ids)}\nv_mov_b32 v46, 1\nglobal_atomic_add v45, v46, s[{sDBG}:{sDBG+1}]\ns_mov_b64 exec, s[{sM}:{sM+1}]")
    a(f"s_branch {lab_giveup}")

def dma(ptr, voff, lds_base, n, gstep):
    a(f"s_lshl_b32 s{sT}, s{sW}, 10\ns_add_u32 m0, s{sT}, {lds_base}")
    for j in range(n):
        if j == 0: a("s_nop 0")
        a(f"global_load_lds_dwordx4 v{voff}, s[{ptr}:{ptr+1}] {POL}")
        if j + 1 < n:
            a(f"s_add_u32 m0, m0, 4096\ns_add_u32 s{ptr}, s{ptr}, {gstep}\ns_addc_u32 s{ptr+1}, s{ptr+1}, 0")

def trW(dst, base, vA, vB):
    for s in range(4):
        a(f"ds_read_b64_tr_b16 a[{dst+4*s}:{dst+4*s+1}], v{vA} offset:{base + s*4096}")
        a(f"ds_read_b64_tr_b16 a[{dst+4*s+2}:{dst+4*s+3}], v{vB} offset:{base + s*4096}")
def mfma(d, A, B, first):
    return f"v_mfma_f32_16x16x32_bf16 v[{d}:{d+3}], {A}, {B}, {'0' if first else f'v[{d}:{d+3}]'}"
V4 = lambda r: f"v[{r}:{r+3}]"
A4 = lambda r: f"a[{r}:{r+3}]"

def wo_base():
    a(f"""
    s_lshl_b32 s{sT}, s{sG}, 1
    s_lshr_b32 s{sT2}, s{sA4}, 3
    s_add_u32 s{sT}, s{sT}, s{sT2}
    s_lshl_b32 s{sT}, s{sT}, 18
    s_and_b32 s{sT2}, s{sA4}, 7
    s_lshl_b32 s{sT2}, s{sT2}, 7
    s_add_u32 s{sT}, s{sT}, s{sT2}
    s_add_u32 s{sWO}, s{sWO}, s{sT}
    s_addc_u32 s{sWO+1}, s{sWO+1}, 0
    """)
def wo_issue():
    wo_base()
    a(f"v_lshl_add_u32 v4, v{vROW}, 10, v{vPC16}")
    dma(sWO, 4, L_W2, 8, 32 * 1024)

def b_setup():
    a(f"""; layer 0: gate/up blocks [128 rows x 64 cols]; the 4th column group of an odd group does not exist
s_and_b32 s{sM}, s{sCG}, 3
s_lshr_b32 s{sT}, s{sG}, 1
s_mul_i32 s{sT}, s{sT}, 7
s_and_b32 s{sT2}, s{sG}, 1
s_lshl_b32 s{sM+1}, s{sT2}, 2
s_add_u32 s{sT}, s{sT}, s{sM+1}
s_add_u32 s{sT}, s{sT}, s{sM}
s_lshl_b32 s{sT}, s{sT}, 7
s_mul_i32 s{sM+1}, s{sKQ}, {128*3584}
s_add_u32 s{sT}, s{sT}, s{sM+1}
s_add_u32 s{sWG}, s{sWG}, s{sT}
s_addc_u32 s{sWG+1}, s{sWG+1}, 0
s_add_u32 s{sWU}, s{sWU}, s{sT}
s_addc_u32 s{sWU+1}, s{sWU+1}, 0
s_lshl_b32 s{sT2}, s{sT2}, 2
s_or_b32 s{sT2}, s{sT2}, s{sM}
s_lshr_b32 s{sT}, s{sM}, 1
s_lshl_b32 s{sT}, s{sT}, 2
s_add_u32 s{sT}, s{sT}, s{sKQ}
s_lshl_b32 s{sT}, s{sT}, 10
s_and_b32 s{sM}, s{sM}, 1
s_lshl_b32 s{sM}, s{sM}, 8
s_add_u32 s{sT}, s{sT}, s{sM}
s_lshl_b32 s{sM}, s{sW}, 6
s_add_u32 s{sT}, s{sT}, s{sM}
s_add_u32 s{sT}, s{sT}, {HP}
v_add_u32 v{vPUBA}, s{sT}, v{vB16}
s_lshl_b32 s{sT}, s{sA4}, 4
s_add_u32 s{sT}, s{sT}, {HS}
v_mov_b32 v{vHSA}, s{sT}
s_mov_b32 s{sDUM}, s{sT2}
s_movk_i32 s{sT}, 3584
v_mul_lo_u32 v{vVA}, v{vROW}, s{sT}
v_add_u32 v{vVA}, v{vVA}, v{vPC16}""")
def b_issue(skip):
    a(f"s_cmp_eq_u32 s{sDUM}, 7\ns_cbranch_scc1 {skip}")
    dma(sWG, vVA, L_W2, 4, 32 * 3584)
    dma(sWU, vVA, L_W2 + 0x4000, 4, 32 * 3584)
OA_TXT = f"v_add_u32 v{vOA}, s{sT2}, v{vL16}" if not RL else "\n".join([
    "v_lshrrev_b32 v7, 1, v2", "v_lshlrev_b32 v7, 9, v7", "v_lshl_add_u32 v7, v1, 5, v7", "v_and_b32 v10, 1, v2",
    "v_lshl_add_u32 v7, v10, 4, v7", f"v_add_u32 v{vOA}, s{sT2}, v7"])
stamp("start")
a(f"""
s_cmp_ge_u32 s2, 256
s_cbranch_scc1 L_end
s_getpc_b64 s[{sSTM}:{sSTM+1}]
L_pc:
s_load_dwordx16 s[4:19], s[0:1], 0
s_load_dwordx8 s[20:27], s[0:1], 64
v_lshlrev_b32 v1, 7, v0
v_min_u32 v1, L_end-L_pc, v1
global_load_dword v{vJUNK}, v1, s[{sSTM}:{sSTM+1}]
v_lshrrev_b32 v3, 6, v0
v_lshrrev_b32 v4, 1, v0
v_readfirstlane_b32 s{sW}, v3
v_xor_b32 v4, v4, v0
v_lshlrev_b32 v5, 1, v4
v_and_b32 v5, 32, v5
v_and_or_b32 v5, v4, 64, v5
v_lshlrev_b32 v11, 4, v0
v_and_b32 v6, 0x70, v11
v_xor_b32 v{vPC16}, v5, v6
v_lshrrev_b32 v{vROW}, 3, v0
v_lshl_add_u32 v7, v{vROW}, 13, v{vPC16}
s_and_b32 s{sG}, s2, 7
s_lshr_b32 s{sI}, s2, 3
s_and_b32 s{sKQ}, s{sI}, 3
s_lshr_b32 s{sCG}, s{sI}, 2
s_lshl_b32 s{sT}, s{sKQ}, 20
s_lshl_b32 s{sT2}, s{sG}, 10
s_lshl3_add_u32 s{sT2}, s{sCG}, s{sT2}
s_lshl_b32 s{sM}, s{sW}, 10
s_add_u32 m0, s{sM}, {L_WQ}
s_mul_i32 s{sA4}, s{sCG}, 120
s_add_u32 s{sT}, s{sT}, s{sT2}
s_add_u32 s{sT}, s{sT}, s{sA4}
s_waitcnt lgkmcnt(0)
s_add_u32 s{sWQ}, s{sWQ}, s{sT}
s_addc_u32 s{sWQ+1}, s{sWQ+1}, 0
""")
stamp("karg")
for j in range(4):
    a(f"global_load_lds_dwordx4 v7, s[{sWQ}:{sWQ+1}] {POL}")
    if j < 3: a(f"s_add_u32 m0, m0, 4096\nv_add_u32 v7, {32*8192}, v7")
a(f"""
s_load_dword s{sNON}, s[{sWS}:{sWS+1}], {NONCE}
v_lshlrev_b32 v5, 1, v0
v_and_b32 v5, 0xe0, v5
v_xor_b32 v{vVA}, v11, v5
{f"v_and_b32 v{vVA}, 0x3ff, v{vVA}" if IL else ""}
{f"v_lshl_add_u32 v{vVA}, v3, 15, v{vVA}" if IL else ""}
s_lshl_b32 s{sT}, s{sG}, 24
s_lshl_b32 s{sT2}, s{sI}, {ISH}
s_add_u32 s{sT}, s{sT}, s{sT2}
s_add_u32 s{sT}, s{sT}, 0xF00000
s_add_u32 s{sV}, s{sV}, s{sT}
s_addc_u32 s{sV+1}, s{sV+1}, 0
s_add_u32 m0, s{sM}, {L_V}
s_add_u32 s{sK}, s{sK}, s{sT}
s_addc_u32 s{sK+1}, s{sK+1}, 0
global_load_lds_dwordx4 v{vVA}, s[{sV}:{sV+1}] {POL}
; x (own quarter and all of it), slot clearing, L2 warm-up of the tagged slots
v_and_b32 v8, 31, v0
v_bfe_u32 v9, v0, 5, 1
v_lshlrev_b32 v8, 3, v8
v_lshl_or_b32 v{vHWR}, v9, 2, v8
s_lshl_b32 s{sT}, s{sKQ}, 8
v_add_u32 v10, s{sT}, v{vHWR}
global_load_dword v{vXW}, v10, s[{sX}:{sX+1}]
v_and_b32 v{vL16}, 0x3f0, v11
global_load_dwordx4 v[20:23], v{vL16}, s[{sX}:{sX+1}]
s_mul_i32 s{sT}, s{sG}, {GS}
s_add_u32 s{sT}, s{sT}, {GB}
s_add_u32 s{RG}, s{sWS}, s{sT}
s_addc_u32 s{RG+1}, s{sWS+1}, 0
s_mul_i32 s{sT}, s{sG}, {TGS}
s_add_u32 s{sT}, s{sT}, {TG}
s_add_u32 s{RT}, s{sWS}, s{sT}
s_addc_u32 s{RT+1}, s{sWS+1}, 0
s_lshl_b32 s{sT}, s{sI}, 10
v_lshl_add_u32 v6, v6, 3, s{sT}
global_load_dword v{vJUNK+1}, v6, s[{RT}:{RT+1}] sc1
v_mov_b32 v12, -1
v_mov_b32 v13, -1
v_mov_b32 v14, -1
v_mov_b32 v15, -1
s_mul_i32 s{sT}, s{sI}, {CLR}
v_min_u32 v10, {CLR-16}, v11
v_add_u32 v10, s{sT}, v10
global_store_dwordx4 v10, v[12:15], s[{RG}:{RG+1}]
s_cmp_eq_u32 s{sW}, 3
s_cbranch_scc0 L_clrd
s_mul_i32 s{sT}, s{sI}, 640
s_add_u32 s{sT}, s{sT}, {XR}
v_min_u32 v10, 624, v{vL16}
v_add_u32 v10, s{sT}, v10
global_store_dwordx4 v10, v[12:15], s[{RG}:{RG+1}] sc1
L_clrd:
""")
NV1 = int(opts["v1"])
for j in range(1, NV1):
    a(f"s_add_u32 m0, m0, 4096\nv_add_u32 v{vVA}, {VSTEP}, v{vVA}\nglobal_load_lds_dwordx4 v{vVA}, s[{sV}:{sV+1}] {POL}")
a(f"""
v_and_b32 v1, 15, v0
v_bfe_u32 v2, v0, 4, 2
""")
stamp("iss")
a(f"""
s_mov_b32 s{RG+2}, 0x20000
s_mov_b32 s{RG+3}, 0x20000
s_mov_b32 s{RX+2}, {WSSIZE}
s_mov_b32 s{RX+3}, 0x20000
s_mov_b32 s{RT+2}, {2*BOFF}
s_mov_b32 s{RT+3}, 0x20000
s_mov_b32 s{sLAY}, 0
s_mov_b32 s{sALT}, 1
s_mov_b32 s{sNF}, 1
s_mov_b32 s{sTH}, 0x42000000
s_movk_i32 s{sTRY}, 64
s_mov_b32 s{sSPIN}, 0x20000
s_mov_b32 s{sQUADM}, 0x11111111
s_mov_b32 s{sQUADM+1}, 0x11111111
s_mov_b32 s{sDM}, 0x00020002
s_mov_b32 s{sDM+1}, 0x00020002
s_mov_b32 s{sPUBM}, 0x00110011
s_mov_b32 s{sPUBM+1}, 0x00110011
s_lshl_b32 s{sT}, s{sW}, 4
s_lshl_b64 s[{sMLM}:{sMLM+1}], 1, s{sT}
s_and_b32 s{sA4}, s{sI}, 15
s_or_b32 s{sT}, s{sG}, s{sCG}
s_cmp_eq_u32 s{sT}, 0
s_cselect_b32 s{sFIN}, 1, 0
s_mov_b32 s{sSTM}, 0
s_brev_b32 s{sSTM+1}, 1
s_lshr_b32 s{sXO}, s{sA4}, 3
s_mul_i32 s{sXO}, s{sXO}, 2560
s_and_b32 s{sT2}, s{sA4}, 7
s_lshl_b32 s{sT2}, s{sT2}, 8
s_add_u32 s{sXO}, s{sXO}, s{sT2}
""")
for gp in range(8):
    a(f"s_mov_b32 s{sGO+gp}, {gp*GS}")
a(f"""
v_bfe_u32 v3, v0, 2, 2
v_and_b32 v4, 3, v0
v_lshrrev_b32 v{vL8}, 1, v{vL16}
v_lshlrev_b32 v{vB16}, 4, v2
v_add_u32 v5, 256, v{vB16}
v_cmp_eq_u32 vcc, 1, v3
v_mov_b32 v{vXWR}, v{vHWR}
v_mov_b32 v{vONE}, {ONES}
v_cndmask_b32 v{vXRD}, v{vB16}, v5, vcc
v_lshlrev_b32 v5, 1, v8
s_lshl_b32 s{sT}, s{sKQ}, 9
v_add_u32 v{vGA}, s{sT}, v5
v_mul_u32_u24 v6, 2560, v9
v_add_u32 v{vGA}, v{vGA}, v6
s_lshr_b32 s{sT}, s{sA4}, 3
s_lshl_b32 s{sT}, s{sT}, 12
s_add_u32 s{sT}, s{sT}, {HP}
v_lshl_add_u32 v{vHGA}, v9, 9, v5
v_add_u32 v{vHGA}, s{sT}, v{vHGA}
v_lshlrev_b32 v{vHSA}, 4, v4
v_add_u32 v{vHSA}, {HS}, v{vHSA}
s_lshl_b32 s{sT}, s{sKQ}, 11
s_lshl_b32 s{sT2}, s{sCG}, 8
s_add_u32 s{sT}, s{sT}, s{sT2}
s_lshl_b32 s{sT2}, s{sW}, 6
s_add_u32 s{sT}, s{sT}, s{sT2}
v_add_u32 v{vQPA}, s{sT}, v{vB16}
v_add_u32 v7, {QCS}, v{vQPA}
v_cndmask_b32 v{vQPA}, v{vQPA}, v7, vcc
v_add_u32 v{vQGA}, {QS}, v5
s_lshl_b32 s{sT}, s{sI}, 4
s_add_u32 s{sT}, s{sT}, {QS}
v_mov_b32 v{vQSA}, s{sT}
s_lshr_b32 s{sT}, s{sI}, 4
s_lshl_b32 s{sT}, s{sT}, 12
s_lshl_b32 s{sT2}, s{sW}, 10
s_add_u32 s{sT}, s{sT}, s{sT2}
s_lshl_b32 s{sT2}, s{sA4}, {5 if RL else 4}
s_add_u32 s{sT}, s{sT}, s{sT2}
v_lshlrev_b32 v7, 13, v2
{"v_lshrrev_b32 v10, 1, v3" if RL else ""}
{"v_lshl_add_u32 v7, v10, 9, v7" if RL else "v_lshl_add_u32 v7, v3, 8, v7"}
{"v_and_b32 v10, 1, v3" if RL else ""}
{"v_lshl_add_u32 v7, v10, 4, v7" if RL else ""}
v_add_u32 v{vRECA}, s{sT}, v7
s_lshl_b32 s{sT}, s{sI}, 3
s_add_u32 s{sT}, s{sT}, {ML}
v_lshlrev_b32 v7, 8, v2
v_add_u32 v{vMLA}, s{sT}, v7
s_lshr_b32 s{sT}, s{sA4}, 3
s_lshl_b32 s{sT}, s{sT}, 2
s_add_u32 s{sT}, s{sT}, s{sW}
s_lshl_b32 s{sT2}, s{sT}, 12
{OA_TXT}
s_lshr_b32 s{sT2}, s{sT}, 1
s_lshl_b32 s{sT2}, s{sT2}, 8
s_add_u32 s{sT2}, s{sT2}, {ML}
s_and_b32 s{sT}, s{sT}, 1
v_and_b32 v7, 1, v3
v_xor_b32 v7, s{sT}, v7
v_lshlrev_b32 v7, 4, v7
v_lshl_add_u32 v7, v2, 2, v7
v_add_u32 v7, v7, v4
v_lshlrev_b32 v7, 3, v7
v_add_u32 v{vOML}, s{sT2}, v7
v_lshl_add_u32 v7, v2, 3, v3
v_lshlrev_b32 v7, 7, v7
v_lshrrev_b32 v10, 1, v2
v_xor_b32 v10, v10, v2
v_and_b32 v10, 1, v10
v_lshrrev_b32 v11, 1, v3
v_lshl_or_b32 v10, v10, 1, v11
v_lshlrev_b32 v10, 5, v10
v_lshl_or_b32 v10, v4, 3, v10
v_or_b32 v{vTR0}, v7, v10
v_mul_u32_u24 v{vQRD}, {QH}, v3
v_add_u32 v{vQRD}, v{vQRD}, v{vB16}
v_lshl_add_u32 v{vPRD}, v3, 6, v{vB16}
s_lshl_b32 s{sT}, s{sW}, 8
v_add_u32 v{vPWR}, s{sT}, v{vPRD}
v_lshrrev_b32 v7, 1, v2
v_and_b32 v10, 1, v2
v_lshl_or_b32 v7, v10, 1, v7
v_lshlrev_b32 v7, 6, v7
v_lshl_add_u32 v7, v1, 2, v7
v_add_u32 v{vYWR}, s{sT}, v7
s_lshl_b32 s{sT}, s{sW}, 5
v_lshlrev_b32 v7, 3, v2
v_lshl_add_u32 v7, v3, 7, v7
v_add_u32 v{vMWR}, s{sT}, v7
v_lshlrev_b32 v7, 3, v1
v_lshl_add_u32 v{vMRD}, v2, 7, v7
s_lshl_b32 s{sT}, s{sW}, 7
v_lshl_add_u32 v7, v1, 6, v{vB16}
v_add_u32 v{vDPA}, s{sT}, v7
v_mov_b32 v{vPUBA}, 0
v_mov_b32 v{vQL}, 0
v_mov_b32 v{vMASK}, 0xffffff00
v_mov_b32 v{vMASK+2}, 255
v_lshrrev_b32 v11, 1, v{vL8}
ds_write_b32 v11, v{vONE} offset:{L_X+256}
ds_write_b32 v11, v{vONE} offset:{L_X+768}
s_getreg_b32 s{sT2}, hwreg(HW_REG_XCC_ID)
s_and_b32 s{sT2}, s{sT2}, 15
v_mov_b32 v{vSTG+3}, s{sT2}
s_waitcnt lgkmcnt(0)
s_mul_i32 s{sTAG}, s{sNON}, 0x9E3779B1
s_add_u32 s{sTAG}, s{sTAG}, 0x7F4A7C15
s_and_b32 s{sT0}, s{sTAG}, 255
s_bfe_u32 s{sT0+1}, s{sTAG}, 0x80008
s_bfe_u32 s{sT0+2}, s{sTAG}, 0x80010
s_lshr_b32 s{sT0+3}, s{sTAG}, 24
v_mov_b32 v{vSTG+2}, s{sTAG}
s_lshl_b32 s{sT}, s{sW}, 5
v_xor_b32 v10, s{sT}, v{vTR0}
v_xor_b32 v11, 32, v10
v_add_u32 v11, 512, v11
""")
stamp("setup")
for j in range(NV1, 8):
    a(f"s_add_u32 m0, m0, 4096\nv_add_u32 v{vVA}, {VSTEP}, v{vVA}\nglobal_load_lds_dwordx4 v{vVA}, s[{sV}:{sV+1}] {POL}")
KUP = int(opts["kup"])
def kdma(j0, j1):
    for j in range(j0, j1):
        a(f"v_xor_b32 v5, {64*(j&3)}, v{vKA}\nglobal_load_lds_dwordx4 v5, s[{sK}:{sK+1}] {POL}")
        if j < 7: a(f"s_add_u32 m0, m0, 1024\ns_add_u32 s{sK}, s{sK}, {KSTEP}\ns_addc_u32 s{sK+1}, s{sK+1}, 0")
a(f"""v_xor_b32 v{vKA}, v{vB16}, v{vL16}
s_lshl_b32 s{sT}, s{sW}, {KWSH}
v_add_u32 v{vKA}, s{sT}, v{vKA}
s_lshl_b32 s{sT}, s{sW}, 13
s_add_u32 m0, s{sT}, {L_K}""")
kdma(0, KUP)
stamp("iss2")
a(f"""
s_waitcnt vmcnt(7)
v_dot2_f32_bf16 v24, v20, v{vONE}, 0
v_dot2_f32_bf16 v25, v20, v20, 0
v_dot2_f32_bf16 v24, v21, v{vONE}, v24
v_dot2_f32_bf16 v25, v21, v21, v25
v_dot2_f32_bf16 v24, v22, v{vONE}, v24
v_dot2_f32_bf16 v25, v22, v22, v25
v_dot2_f32_bf16 v24, v23, v{vONE}, v24
v_dot2_f32_bf16 v25, v23, v23, v25
v_lshlrev_b32 v{vR0}, 16, v{vXW}
v_and_b32 v{vR1}, 0xffff0000, v{vXW}
s_nop 0
""")
for r_ in (1, 2, 4, 8):
    a(f"v_add_f32_dpp v24, v24, v24 row_ror:{r_} {DPPALL}\nv_add_f32_dpp v25, v25, v25 row_ror:{r_} {DPPALL}\ns_nop 0")
for sw in (32, 16):
    a(f"""v_mov_b32 v26, v24
    v_mov_b32 v27, v25
    s_nop 0
    v_permlane{sw}_swap_b32 v24, v26
    v_permlane{sw}_swap_b32 v25, v27
    v_add_f32 v24, v24, v26
    v_add_f32 v25, v25, v27""")
a(f"""
v_mul_f32 v24, {f32(-1/512)}, v24
v_mul_f32 v25, {f32(1/512)}, v25
v_fma_f32 v25, -v24, v24, v25
v_max_f32 v25, 0, v25
v_add_f32 v25, {f32(1e-5)}, v25
v_rsq_f32 v25, v25
v_add_f32 v26, v24, v{vR0}
v_add_f32 v27, v24, v{vR1}
v_mul_f32 v25, {f32(QSCALE)}, v25
v_mul_f32 v26, v26, v25
v_mul_f32 v27, v27, v25
v_cvt_pk_bf16_f32 v{vXW}, v26, v27
ds_write_b32 v{vXWR}, v{vXW}
s_barrier
""")
stamp("wq")
if STAMP: a(f"v_mov_b32 v{vSTMP}, 0")
trW(aWQ, L_WQ, 10, 11)
a("s_branch L_TQ")

a(f"""
L_G:
""")
if int(opts["xack"]): a("s_waitcnt vmcnt(0)")
stamp("g0")
a("L_Gp:")
for j in range(8):
    a(f"buffer_load_dwordx4 {V4(8+4*j)}, v{vGA}, s[{RX}:{RX+3}], s{sGO+j} offen sc1")
a("s_waitcnt vmcnt(6)")
a("v_pk_add_f32 v[40:41], v[8:9], v[12:13]\nv_pk_add_f32 v[42:43], v[10:11], v[14:15]\nv_max_u32 v44, v8, v12")
for j in range(2, 8):
    a(f"s_waitcnt vmcnt({7-j})")
    a(f"v_pk_add_f32 v[40:41], v[40:41], v[{8+4*j}:{9+4*j}]\nv_pk_add_f32 v[42:43], v[42:43], v[{10+4*j}:{11+4*j}]")
    a(f"v_max_u32 v44, v44, v{8+4*j}")
a(f"""
v_cmp_eq_u32 vcc, -1, v44
v_permlane32_swap_b32 v40, v42
v_permlane32_swap_b32 v41, v43
v_add_f32 v40, v40, v42
v_add_f32 v41, v41, v43
v_add_f32 v40, v40, v{vR0}
v_add_f32 v41, v41, v{vR1}
v_cvt_pk_bf16_f32 v{vXW}, v40, v41
ds_write_b32 v{vXWR}, v{vXW}
s_cbranch_vccnz L_Gretry
L_Gok:
""")
stamp("gok")
a(f"""
v_lshlrev_b32 v{vR0}, 16, v{vXW}
v_and_b32 v{vR1}, 0xffff0000, v{vXW}
s_cmp_eq_u32 s{sPH}, 1
s_cbranch_scc1 L_TU
s_cmp_eq_u32 s{sPH}, 0
s_cbranch_scc0 L_Gother
""")

def gemv_stats(step):
    a(f"""v_dot2_f32_bf16 v46, v{vXW}, v{vXW}, 0
    v_dot2_f32_bf16 v47, v{vXW}, v{vONE}, 0
    s_nop 2
    v_permlane32_swap_b32 v47, v46
    v_add_f32 v46, v46, v47
    s_nop 1
    v_add_f32_dpp v46, v46, v46 row_ror:1 {DPPALL}
    s_nop 1
    v_add_f32_dpp v46, v46, v46 row_ror:2 {DPPALL}""")
    rest = [f"v_add_f32_dpp v46, v46, v46 row_ror:4 {DPPALL}", f"v_add_f32_dpp v46, v46, v46 row_ror:8 {DPPALL}",
            "v_add_f32_dpp v46, v46, v46 row_bcast:15 row_mask:0xa bank_mask:0xf",
            f"v_mov_b32 v{vSTG}, v46\nv_mov_b32_dpp v{vSTG+1}, v46 row_bcast:31 row_mask:0xc bank_mask:0xf"]
    for s in range(4):
        a(f"s_waitcnt lgkmcnt({3-s})"); step(s); a(rest[s])
def gemv_plain(step):
    for s in range(4):
        a(f"s_waitcnt lgkmcnt({3-s})"); step(s)

a(f"""
L_TQ:
s_cmp_lg_u32 s{sW}, 0
s_waitcnt lgkmcnt(0)
s_barrier
""")
stamp("xq")
for s in range(4): a(f"ds_read_b128 {V4(8+4*s)}, v{vXRD} offset:{64*s}")
tq_step = lambda s: a(mfma(24, A4(aWQ+4*s), V4(8+4*s), s == 0))
def tq_tail(fl):
    a(f"""s_mov_b64 exec, s[{sPUBM}:{sPUBM+1}]
    s_cmp_lg_u32 s{sW}, 0
    s_nop 3
    buffer_store_dwordx4 v[24:27], v{vQPA}, s[{RG}:{RG+3}], 0 offen{fl}
    s_cbranch_scc1 L_S
    s_mov_b64 exec, s[{sSTM}:{sSTM+1}]
    buffer_store_dwordx2 v[{vSTG}:{vSTG+1}], v{vQSA}, s[{RG}:{RG+3}], 0 offen{fl}
    s_mov_b64 exec, -1""")
a("s_cbranch_scc1 L_TQw")
gemv_stats(tq_step)
a(f"""s_cmp_eq_u32 s{sALT}, 0
s_cbranch_scc0 L_TQalt
s_mov_b64 exec, s[{sPUBM}:{sPUBM+1}]
s_nop 2
buffer_store_dwordx4 v[24:27], v{vQPA}, s[{RG}:{RG+3}], 0 offen
s_mov_b64 exec, s[{sSTM}:{sSTM+1}]
buffer_store_dwordx2 v[{vSTG}:{vSTG+1}], v{vQSA}, s[{RG}:{RG+3}], 0 offen
s_mov_b64 exec, -1""")
stamp("qpub")
QPI = int(opts["qp"])
def q_issue(B, S):
    a(f"buffer_load_dwordx2 v[{S}:{S+1}], v{vQGA}, s[{RG}:{RG+3}], 0 offen sc1")
    for u in range(2):
        for k in range(4):
            so = "0" if k < 2 else f"s{sT}"
            a(f"buffer_load_dwordx4 {V4(B+16*u+4*k)}, v{vQL}, s[{RG}:{RG+3}], {so} offen offset:{(k&1)*2048+u*1024} sc1")
def q_head(S, x, fail):
    a(f"""s_waitcnt vmcnt({8+x})
    v_cmp_eq_u32 vcc, -1, v{S}
    v_add_f32_dpp v38, v{S}, v{S} quad_perm:[1,0,3,2] {DPPALL}
    v_add_f32_dpp v39, v{S+1}, v{S+1} quad_perm:[1,0,3,2] {DPPALL}
    s_cbranch_vccnz {fail}""")
def q_body(B, x, fail):
    P = lambda r: f"v[{B+r}:{B+r+1}]"
    a(f"""
    v_add_f32_dpp v38, v38, v38 quad_perm:[2,3,0,1] {DPPALL}
    v_add_f32_dpp v39, v39, v39 quad_perm:[2,3,0,1] {DPPALL}
    v_mul_f32 v38, {f32(1/512)}, v38
    v_mul_f32 v46, {f32(-1/512)}, v39
    v_fma_f32 v38, -v46, v46, v38
    v_max_f32 v38, 0, v38
    v_add_f32 v38, {f32(1e-5)}, v38
    v_rsq_f32 v38, v38
    s_waitcnt vmcnt({6+x})
    v_pk_add_f32 v[40:41], {P(0)}, {P(4)}
    v_pk_add_f32 v[42:43], {P(2)}, {P(6)}
    v_mul_f32 v38, {f32(QSCALE)}, v38
    s_waitcnt vmcnt({5+x})
    v_pk_add_f32 v[40:41], v[40:41], {P(8)}
    v_pk_add_f32 v[42:43], v[42:43], {P(10)}
    v_max3_u32 v44, v{B}, v{B+4}, v{B+8}
    v_pk_fma_f32 v[40:41], v[{vQCS}:{vQCS+1}], v[46:47], v[40:41] op_sel_hi:[1,0,1]
    v_pk_fma_f32 v[42:43], v[{vQCS+2}:{vQCS+3}], v[46:47], v[42:43] op_sel_hi:[1,0,1]
    s_waitcnt vmcnt({3+x})
    v_pk_add_f32 v[40:41], v[40:41], {P(12)}
    v_pk_add_f32 v[42:43], v[42:43], {P(14)}
    v_max3_u32 v44, v44, v{B+12}, v{B+16}
    v_pk_fma_f32 v[24:25], v[{vQCS+4}:{vQCS+5}], v[46:47], {P(16)} op_sel_hi:[1,0,1]
    v_pk_fma_f32 v[26:27], v[{vQCS+6}:{vQCS+7}], v[46:47], {P(18)} op_sel_hi:[1,0,1]
    v_pk_mul_f32 v[40:41], v[40:41], v[38:39] op_sel_hi:[1,0]
    v_pk_mul_f32 v[42:43], v[42:43], v[38:39] op_sel_hi:[1,0]
    s_waitcnt vmcnt({2+x})
    v_pk_add_f32 v[24:25], v[24:25], {P(20)}
    v_pk_add_f32 v[26:27], v[26:27], {P(22)}
    v_cvt_pk_bf16_f32 v40, v40, v41
    v_cvt_pk_bf16_f32 v41, v42, v43
    s_waitcnt vmcnt({1+x})
    v_pk_add_f32 v[24:25], v[24:25], {P(24)}
    v_pk_add_f32 v[26:27], v[26:27], {P(26)}
    ds_write_b64 v{vMODE}, v[40:41] offset:{L_QB}
    v_max3_u32 v44, v44, v{B+20}, v{B+24}
    s_waitcnt vmcnt({x})
    v_pk_add_f32 v[24:25], v[24:25], {P(28)}
    v_pk_add_f32 v[26:27], v[26:27], {P(30)}
    v_pk_mul_f32 v[24:25], v[24:25], v[38:39] op_sel_hi:[1,0]
    v_pk_mul_f32 v[26:27], v[26:27], v[38:39] op_sel_hi:[1,0]
    v_cvt_pk_bf16_f32 v24, v24, v25
    v_cvt_pk_bf16_f32 v25, v26, v27
    ds_write_b64 v{vMODE}, v[24:25] offset:{L_QB+2*QH}
    v_max_u32 v44, v44, v{B+28}
    v_cmp_eq_u32 vcc, -1, v44
    s_cbranch_vccnz {fail}""")
a(f"L_QFe:\ns_movk_i32 s{sT}, 4096")
if not QPI:
    a("L_QFp:"); q_issue(64, 48); q_head(48, 0, "L_QFretry"); a("L_QF2:"); stamp("qf2"); q_body(64, 0, "L_QF2retry")
else:
    q_issue(144, 50)
    a("L_QFp:"); q_issue(64, 48); q_head(50, 9, "L_QFn"); q_body(144, 9, "L_QFn"); a("s_branch L_S\nL_QFn:")
    q_issue(144, 50); q_head(48, 9, "L_QFretry"); stamp("qf2"); q_body(64, 9, "L_QFretry")
stamp("qfok")
a(f"""
L_S:
s_mov_b64 exec, -1
s_waitcnt lgkmcnt(0)
s_barrier
""")
stamp("q")
for s in range(4): a(f"ds_read_b128 {V4(8+4*s)}, v{vQRD} offset:{L_QB + 64*s}")
for s in range(4):
    a(f"s_waitcnt lgkmcnt({LG(3-s)})")
    for t in range(2): a(mfma(24+4*t, A4(aK+16*t+4*s), V4(8+4*s), s == 0))
a(f"""
v_mov_b32 v32, 0
s_nop 5
""")
stamp("smm")
for k in range(8): a(f"v_exp_f32 v{40+k}, v{24+k}")
def p_tail():
    a(f"""
    v_cvt_pk_bf16_f32 v36, v40, v41
    v_cvt_pk_bf16_f32 v37, v42, v43
    v_cvt_pk_bf16_f32 v38, v44, v45
    v_cvt_pk_bf16_f32 v39, v46, v47
    s_mov_b64 exec, s[{sQUADM}:{sQUADM+1}]
    ds_write_b128 v{vPWR}, v[36:39] offset:{L_PB}
    v_dot2_f32_bf16 v33, v36, v{vONE}, 0
    v_dot2_f32_bf16 v33, v37, v{vONE}, v33
    v_dot2_f32_bf16 v33, v38, v{vONE}, v33
    v_dot2_f32_bf16 v33, v39, v{vONE}, v33""")
p_tail()
a(f"""
v_max3_f32 v34, v24, v25, v26
v_max3_f32 v35, v27, v28, v29
v_max3_f32 v34, v34, v30, v31
ds_write_b64 v{vMWR}, v[32:33] offset:{L_MB}
v_max_f32 v34, v34, v35
v_cmp_nle_f32 vcc, |v34|, s{sTH}
s_cbranch_vccnz L_Sbig
L_Sp:
s_mov_b64 exec, -1
s_cmp_eq_u32 s{sNF}, 0
s_waitcnt lgkmcnt(0)
s_barrier
""")
stamp("p")
for w in range(4): a(f"ds_read_b128 {V4(8+4*w)}, v{vPRD} offset:{L_PB + 256*w}")
a(f"ds_read_b64 v[32:33], v{vMRD} offset:{L_MB}")
for w in range(4):
    a(f"s_waitcnt lgkmcnt({LG(4-w)})")
    for c in range(2): a(mfma(24+4*c, V4(8+4*w), A4(aV+8*w+4*c), w == 0))
a(f"""
s_waitcnt lgkmcnt(0)
v_add_f32_dpp v35, v33, v33 row_ror:1 {DPPALL}
v_cmp_neq_f32 vcc, 0, v32
v_mov_b32 v34, 0
v_add_f32_dpp v35, v35, v35 row_ror:2 {DPPALL}
s_cbranch_vccnz L_PVbig
s_nop 0
v_add_f32_dpp v35, v35, v35 row_ror:4 {DPPALL}
v_cvt_pk_bf16_f32 v36, v24, v28
s_nop 0
v_add_f32_dpp v35, v35, v35 row_ror:8 {DPPALL}
L_PVt:
v_mov_b32_dpp v37, v36 quad_perm:[1,1,1,1] {DPPALL}
v_mov_b32_dpp v38, v36 quad_perm:[2,2,2,2] {DPPALL}
v_mov_b32_dpp v39, v36 quad_perm:[3,3,3,3] {DPPALL}
s_mov_b64 exec, s[{sQUADM}:{sQUADM+1}]
s_cbranch_scc0 L_RECsafe
""")
def rec_tail(fl):
    a(f"""buffer_store_dwordx4 v[36:39], v{vRECA}, s[{RG}:{RG+3}], 0 offen{fl}
    s_mov_b64 exec, s[{sMLM}:{sMLM+1}]
    buffer_store_dwordx2 v[34:35], v{vMLA}, s[{RG}:{RG+3}], 0 offen{fl}""")
rec_tail("")
a(f"""L_RECd:
s_mov_b64 exec, -1""")
stamp("rec")
a(f"""
s_cmp_ge_u32 s{sI}, 16
s_cbranch_scc1 L_B
""")
a(f"""
s_cmp_eq_u32 s{sLAY}, 0
s_cbranch_scc0 L_O
""")
if opts["wo2"] == "all": wo_issue()
if opts["wo2"] == "rec":
    a(f"s_cmp_eq_u32 s{sW}, 0\ns_cbranch_scc0 L_W0")
    wo_issue()
    a("L_W0:")
a(f"""
v_bfe_u32 v1, v0, 2, 1
v_bfe_u32 v2, v0, 3, 1
v_bfe_u32 v3, v0, 4, 2
v_lshl_add_u32 v5, v3, 2, v2
v_lshl_add_u32 v5, v1, 4, v5
v_lshlrev_b32 v5, 7, v5
v_bfe_u32 v6, v0, 5, 1
v_xor_b32 v6, v6, v1
v_and_b32 v7, 1, v3
v_lshl_or_b32 v6, v6, 1, v7
v_lshlrev_b32 v6, 5, v6
v_and_b32 v7, 3, v0
v_lshl_or_b32 v6, v7, 3, v6
v_or_b32 v5, v5, v6
s_lshr_b32 s{sT}, s{sW}, 1
s_lshl_b32 s{sT}, s{sT}, 14
s_add_u32 s{sT}, s{sT}, {L_W2}
v_add_u32 v5, s{sT}, v5
s_waitcnt vmcnt(0)
s_barrier
""")
for t in range(4):
    a(f"v_xor_b32 v6, {32*t}, v5\nv_xor_b32 v7, 32, v6\nv_add_u32 v7, 256, v7")
    trW(aW2 + 16*t, 0, 6, 7)
OM = opts["om"]
a("L_O:")
if OM == "ack": a("s_waitcnt vmcnt(0)")
if OM in ("bell", "bell2"):
    a(f"""L_Ob:
    buffer_load_dwordx2 v[4:5], v{vOML}, s[{RG}:{RG+3}], 0 offen sc1
    s_waitcnt vmcnt(0)
    v_cmp_eq_u32 vcc, -1, v5
    s_cbranch_vccnz L_Obretry""")
a(f"""
L_Op:
buffer_load_dwordx2 v[4:5], v{vOML}, s[{RG}:{RG+3}], 0 offen sc1
""")
OG = int(opts["og"])
for s in range(4):
    a(f"buffer_load_dwordx4 {V4(8+4*s)}, v{vOA}, s[{RG}:{RG+3}], 0 offen offset:{1024*s} sc1")
    if OG and s < 3: a(f"s_nop {OG-1}")
mo = lambda t, s: mfma(24+4*t, V4(8+4*s), A4(aW2+16*t+4*s), s == 0)
a(f"""
s_waitcnt vmcnt(4) lgkmcnt(0)
v_cmp_eq_u32 vcc, -1, v5
s_cbranch_vccnz L_Oretry
L_O2:
""")
stamp("o2")
a(f"""
s_waitcnt vmcnt(3)
{mo(0,0)}
{mo(1,0)}
{mo(2,0)}
{mo(3,0)}
s_waitcnt vmcnt(2)
{mo(0,1)}
{mo(1,1)}
{mo(2,1)}
{mo(3,1)}
s_waitcnt vmcnt(1)
{mo(0,2)}
v_add_f32_dpp v6, v5, v5 quad_perm:[1,0,3,2] {DPPALL}
v_max3_u32 v44, v8, v12, v16
{mo(1,2)}
v_add_f32_dpp v6, v6, v6 quad_perm:[2,3,0,1] {DPPALL}
v_cmp_neq_f32 s[{sM}:{sM+1}], 0, v4
{mo(2,2)}
v_add_f32_dpp v6, v6, v6 row_half_mirror {DPPALL}
v_mov_b32 v7, v6
{mo(3,2)}
s_waitcnt vmcnt(0)
v_permlane32_swap_b32 v6, v7
{mo(0,3)}
v_add_f32 v6, v6, v7
v_mov_b32 v7, v6
{mo(1,3)}
v_max_u32 v44, v44, v20
v_permlane16_swap_b32 v6, v7
{mo(2,3)}
v_cmp_eq_u32 vcc, -1, v44
v_add_f32 v6, v6, v7
{mo(3,3)}
v_rcp_f32 v6, v6
s_cbranch_vccnz L_O2retry
L_Ook:
""")
stamp("ook")
a(f"""
s_cmp_lg_u64 s[{sM}:{sM+1}], 0
s_cbranch_scc1 L_Obig
v_pk_add_f32 v[24:25], v[24:25], v[26:27]
v_pk_add_f32 v[28:29], v[28:29], v[30:31]
v_add_f32 v40, v24, v25
v_add_f32 v41, v28, v29
v_pk_add_f32 v[32:33], v[32:33], v[34:35]
v_pk_add_f32 v[36:37], v[36:37], v[38:39]
v_add_f32 v42, v32, v33
v_add_f32 v43, v36, v37
L_Ot:
v_permlane32_swap_b32 v40, v41
v_add_f32 v40, v40, v41
v_permlane32_swap_b32 v42, v43
v_add_f32 v42, v42, v43
s_add_u32 s{sT}, s{sXO}, {X1}
s_cmp_eq_u32 s{sW}, 0
v_permlane16_swap_b32 v40, v42
v_add_f32 v40, v40, v42
v_mul_f32 v40, v40, v6
ds_write_b32 v{vYWR}, v40 offset:{L_YB}
s_waitcnt lgkmcnt(0)
s_barrier
s_cbranch_scc0 L_Odone
s_mov_b64 exec, 0xffff
""")
stamp("ob")
for w in range(4): a(f"ds_read_b128 {V4(8+4*w)}, v{vL16} offset:{L_YB + 256*w}")
a(f"""
s_waitcnt lgkmcnt({LG(2)})
v_pk_add_f32 v[8:9], v[8:9], v[12:13]
v_pk_add_f32 v[10:11], v[10:11], v[14:15]
s_waitcnt lgkmcnt({LG(1)})
v_pk_add_f32 v[8:9], v[8:9], v[16:17]
v_pk_add_f32 v[10:11], v[10:11], v[18:19]
s_waitcnt lgkmcnt(0)
v_pk_add_f32 v[8:9], v[8:9], v[20:21]
v_pk_add_f32 v[10:11], v[10:11], v[22:23]
buffer_store_dwordx4 v[8:11], v{vL16}, s[{RG}:{RG+3}], s{sT} offen sc1
s_mov_b64 exec, -1
L_Odone:
""")
stamp("x1pub")
def xor_acc(base, first, acc=44):
    for k in range(4): a(f"v_xor_b32 v{base+k}, s{sT0+k}, v{base+k}")
    if first:
        a(f"v_or3_b32 v{acc}, v{base}, v{base+1}, v{base+2}\nv_or_b32 v{acc}, v{acc}, v{base+3}")
    else:
        a(f"v_or3_b32 v{acc}, v{acc}, v{base}, v{base+1}\nv_or3_b32 v{acc}, v{acc}, v{base+2}, v{base+3}")
def wd_base(own):
    a(f"""s_lshr_b32 s{sT}, s{sG}, 1
    s_mul_i32 s{sT}, s{sT}, 7
    s_and_b32 s{sT2}, s{sG}, 1
    s_lshl_b32 s{sM}, s{sT2}, 2
    s_add_u32 s{sT}, s{sT}, s{sM}
    s_lshr_b32 s{sM}, s{sA4}, 3
    s_and_b32 s{sT2}, s{sT2}, s{sM}
    s_lshl_b32 s{sM}, s{sM}, 1
    s_add_u32 s{sT}, s{sT}, s{sM}
    s_lshl_b32 s{sT}, s{sT}, 16
    s_and_b32 s{sM}, s{sA4}, 7
    s_lshl_b32 s{sM}, s{sM}, 1
    {f"s_add_u32 s{sM}, s{sM}, s{sW}" if own else ""}
    s_lshl_b32 s{sM}, s{sM}, 6
    s_add_u32 s{sT}, s{sT}, s{sM}
    s_add_u32 s{sWD}, s{sWD}, s{sT}
    s_addc_u32 s{sWD+1}, s{sWD+1}, 0
    s_lshl_b32 s{sT2}, s{sT2}, 16""")
def wd_issue():
    wd_base(True)
    a(f"""s_lshl_b32 s{sT}, s{sW}, 13
    s_add_u32 m0, s{sT}, {L_WD}
    v_bfe_u32 v4, v0, 2, 4
    v_and_b32 v5, 32, v0
    v_and_b32 v6, 48, v{vL16}
    v_xor_b32 v5, v5, v6
    v_lshl_add_u32 v4, v4, 10, v5""")
    for j in range(8):
        a(f"global_load_lds_dwordx4 v4, s[{sWD}:{sWD+1}] {POL}")
        if j < 7: a(f"s_add_u32 m0, m0, 1024\nv_add_u32 v4, 0x4000, v4")
        if j == 3: a(f"v_subrev_u32 v4, s{sT2}, v4")
    a(f"""v_bfe_u32 v4, v0, 2, 2
    v_bfe_u32 v5, v0, 4, 2
    v_lshl_add_u32 v4, v5, 3, v4
    v_lshlrev_b32 v4, 6, v4
    v_and_b32 v5, 1, v5
    v_lshl_add_u32 v4, v5, 5, v4
    v_and_b32 v5, 3, v0
    v_lshl_add_u32 v4, v5, 3, v4
    v_add_u32 v6, s{sT}, v4
    v_xor_b32 v7, 32, v6""")
def wd_reads():
    for t in range(2):
        for s_ in range(4):
            for e in range(2):
                r = aWD + 16*t + 4*s_ + 2*e
                a(f"ds_read_b64_tr_b16 a[{r}:{r+1}], v{6+t} offset:{L_WD + s_*2048 + e*256}")
def qc_gather():
    l3 = a.label("QC"); l4 = a.label("QC")
    a(f"""s_mul_i32 s{sT2}, s{sNF}, {BOFF}
    s_mul_i32 s{sT}, s{sG}, {TGS}
    s_add_u32 s{sT2}, s{sT2}, s{sT}
    s_add_u32 s{sT2}, s{sT2}, {TG}
    s_add_u32 s{RT}, s{sWS}, s{sT2}
    s_addc_u32 s{RT+1}, s{sWS+1}, 0
    {l3}:""")
    for k in range(4):
        a(f"s_mov_b32 s{sT2}, {QCS + k*2048}")
        for u in range(2):
            a(f"buffer_load_dwordx4 {V4(8+16*u+4*k)}, v{vL16}, s[{RT}:{RT+3}], s{sT2} offen offset:{u*1024} sc1")
    a("s_waitcnt vmcnt(0)")
    for u in range(2):
        for k in range(4): xor_acc(8+16*u+4*k, u == 0 and k == 0)
        for h in range(2):
            r = 8 + 16*u + 2*h
            a(f"v_pk_add_f32 v[{r}:{r+1}], v[{r}:{r+1}], v[{r+4}:{r+5}]\nv_pk_add_f32 v[{r+8}:{r+9}], v[{r+8}:{r+9}], v[{r+12}:{r+13}]")
            a(f"v_pk_add_f32 v[{vQCS+4*u+2*h}:{vQCS+4*u+2*h+1}], v[{r}:{r+1}], v[{r+8}:{r+9}]")
    a(f"v_and_b32 v44, 255, v44\nv_cmp_ne_u32 vcc, 0, v44\ns_cbranch_vccz {l4}")
    spin(l3, l4)
    a(f"""{l4}:
    ds_write_b128 v{vL16}, {V4(vQCS)} offset:{L_CS}
    ds_write_b128 v{vL16}, {V4(vQCS+4)} offset:{L_CS+1024}""")
BELL = int(opts["bell"])
def bell_ring(off):
    l1 = a.label("BR"); l2 = a.label("BR")
    a(f"""s_lshl_b32 s{sT2}, s{sA4}, 4
    s_add_u32 s{sT2}, s{sT2}, {BL + off}
    v_mov_b32 v1, 0
    s_mov_b64 exec, 1
    s_cmp_eq_u32 s{sNF}, 0
    {"s_waitcnt vmcnt(0)" if int(opts["bx2" if off else "bx"]) < 0 else ""}
    s_cbranch_scc0 {l1}
    buffer_store_dword v1, v1, s[{RG}:{RG+3}], s{sT2} offen
    {l2}:
    s_mov_b64 exec, -1""")
    tails.append(f"{l1}:\nbuffer_store_dword v1, v1, s[{RG}:{RG+3}], s{sT2} offen sc1\ns_branch {l2}")
tails = []
def bell_wait(off=0):
    if not BELL: return
    l1 = a.label("BW"); l2 = a.label("BW")
    if off == 0 and not int(opts["bell0"]): a(f"s_cmp_eq_u32 s{sLAY}, 0\ns_cbranch_scc1 {l2}")
    a(f"""s_lshl_b32 s{sT2}, s{sA4}, 4
    s_add_u32 s{sT2}, s{sT2}, {BL + off}
    v_mov_b32 v1, 0
    {l1}:
    buffer_load_dword v2, v1, s[{RG}:{RG+3}], s{sT2} offen sc1
    s_waitcnt vmcnt(0)
    v_cmp_eq_u32 vcc, -1, v2
    s_cbranch_vccz {l2}""")
    spin(l1, l2)
    a(f"{l2}:")
    bx = int(opts["bx2" if off else "bx"])
    if bx > 0: a(f"s_sleep {bx}")
def gd_wait(off=0):
    l1 = a.label("GD"); l2 = a.label("GD")
    a(f"""v_and_b32 v1, 7, v0
    v_lshlrev_b32 v1, 7, v1
    v_add_u32 v1, {GD + off*16}, v1
    {l1}:
    global_load_dword v2, v1, s[{sWS}:{sWS+1}] sc1
    s_waitcnt vmcnt(0)
    v_cmp_ne_u32 vcc, s{sTAG}, v2
    s_cbranch_vccz {l2}""")
    spin(l1, l2)
    a(f"{l2}:")
def set_rx(off):
    a(f"""v_add_u32 v{vXWR}, {512 if off == X1 else 0}, v{vHWR}
    s_mul_i32 s{sT}, s{sLAY}, {XLS}
    s_add_u32 s{sT}, s{sT}, {off + GB}
    s_add_u32 s{RX}, s{sWS}, s{sT}
    s_addc_u32 s{RX+1}, s{sWS+1}, 0""")
def next_layer():
    a(f"""s_add_u32 s{RG}, s{RG}, {LS}
    s_addc_u32 s{RG+1}, s{RG+1}, 0
    s_sub_u32 s{sXO}, s{sXO}, {LS - XLS}
    s_mov_b32 s{sALT}, s{sNF}
    s_movk_i32 s{sQH}, {QH}
    v_add_u32 v{vQL}, {QP1 - LS}, v{vL16}
    s_lshl_b32 s{sT2}, s{sKQ}, 11
    s_lshl_b32 s{sM}, s{sCG}, 8
    s_add_u32 s{sT2}, s{sT2}, s{sM}
    s_lshl_b32 s{sM}, s{sW}, 6
    s_add_u32 s{sT2}, s{sT2}, s{sM}
    s_add_u32 s{sT2}, s{sT2}, {QP1 - LS}
    v_add_u32 v{vQPA}, s{sT2}, v{vB16}
    v_and_b32 v1, 0xf8, v{vL8}
    v_add_u32 v{vQGA}, {QS1 - LS}, v1
    v_bfe_u32 v2, v0, 5, 1
    v_mad_u32_u24 v{vMODE}, v2, s{sQH}, v1
    s_lshl_b32 s{sT2}, s{sI}, 3
    s_add_u32 s{sT2}, s{sT2}, {QS1 - LS}
    v_mov_b32 v{vQSA}, s{sT2}
    s_mov_b32 s{sPUBM}, 0x00010001
    s_mov_b32 s{sPUBM+1}, 0x00010001
    s_mov_b32 s{sLAY}, 1""")
a(f"""
s_cmp_eq_u32 s{sW}, 0
s_cbranch_scc0 L_Aside
""")
if BELL and int(opts["bell0"]): bell_ring(0)
a(f"""
s_cmp_eq_u32 s{sLAY}, 0
s_cbranch_scc0 L_Dq
""")
wd_issue()
a(f"""
s_waitcnt vmcnt(0)
""")
wd_reads()
stamp("wd")
a(f"""
s_mov_b32 s{sT}, {HCS - HP}
L_HC:
""")
for k in range(4): a(f"buffer_load_dwordx4 {V4(8+4*k)}, v{vHGA}, s[{RG}:{RG+3}], s{sT} offen offset:{1024*k} sc1")
a(f"""
s_waitcnt vmcnt(0)
v_max3_u32 v44, v8, v12, v16
v_max_u32 v44, v44, v20
v_cmp_eq_u32 vcc, -1, v44
v_pk_add_f32 v[8:9], v[8:9], v[12:13]
v_pk_add_f32 v[10:11], v[10:11], v[14:15]
v_pk_add_f32 v[16:17], v[16:17], v[20:21]
v_pk_add_f32 v[18:19], v[18:19], v[22:23]
v_pk_add_f32 v[{vHCS}:{vHCS+1}], v[8:9], v[16:17]
v_pk_add_f32 v[{vHCS+2}:{vHCS+3}], v[10:11], v[18:19]
s_cbranch_vccz L_Dp0
""")
spin("L_HC", "L_Dp")
a("L_Dq:")
if BELL and not int(opts["bell0"]): bell_ring(0)
if int(opts["sd"]): a(f"s_sleep {opts['sd']}")
a("L_Dp0:")
stamp("hc")
DP = int(opts["dp"])
def d_issue(B, S):
    a(f"buffer_load_dwordx2 v[{S}:{S+1}], v{vHSA}, s[{RG}:{RG+3}], 0 offen sc1")
    for k in range(4): a(f"buffer_load_dwordx4 {V4(B+4*k)}, v{vHGA}, s[{RG}:{RG+3}], 0 offen offset:{1024*k} sc1")
def d_head(S, x, fail):
    a(f"""s_waitcnt vmcnt({4+x})
    v_cmp_eq_u32 vcc, -1, v{S}
    v_add_f32_dpp v46, v{S}, v{S} quad_perm:[1,0,3,2] {DPPALL}
    v_add_f32_dpp v47, v{S+1}, v{S+1} quad_perm:[1,0,3,2] {DPPALL}
    s_cbranch_vccnz {fail}""")
def d_body(B, x, fail):
    a(f"""
    v_add_f32_dpp v46, v46, v46 quad_perm:[2,3,0,1] {DPPALL}
    v_add_f32_dpp v47, v47, v47 quad_perm:[2,3,0,1] {DPPALL}
    v_mul_f32 v45, {f32(1/512)}, v46
    v_mul_f32 v46, {f32(-1/512)}, v47
    v_fma_f32 v45, -v46, v46, v45
    v_max_f32 v45, 0, v45
    v_add_f32 v45, {f32(1e-5)}, v45
    v_rcp_f32 v45, v45
    s_waitcnt vmcnt({2+x})
    v_max_u32 v44, v{B}, v{B+4}
    v_pk_fma_f32 v[40:41], v[{vHCS}:{vHCS+1}], v[46:47], v[{B}:{B+1}] op_sel_hi:[1,0,1]
    v_pk_fma_f32 v[42:43], v[{vHCS+2}:{vHCS+3}], v[46:47], v[{B+2}:{B+3}] op_sel_hi:[1,0,1]
    """)
    for k in range(1, 4):
        if k > 1: a(f"s_waitcnt vmcnt({3-k+x})")
        a(f"v_pk_add_f32 v[40:41], v[40:41], v[{B+4*k}:{B+4*k+1}]\nv_pk_add_f32 v[42:43], v[42:43], v[{B+4*k+2}:{B+4*k+3}]")
        if k > 1: a(f"v_max_u32 v44, v44, v{B+4*k}")
    a(f"""
    v_cmp_eq_u32 vcc, -1, v44
    v_permlane32_swap_b32 v40, v42
    v_permlane32_swap_b32 v41, v43
    v_mul_f32 v40, v40, v45
    v_mul_f32 v41, v41, v45
    v_mul_f32 v40, v40, v42
    v_mul_f32 v41, v41, v43
    v_cvt_pk_bf16_f32 v40, v40, v41
    ds_write_b32 v{vHWR}, v40 offset:{L_HB}
    s_cbranch_vccnz {fail}""")
if not DP:
    a("L_Dp:"); d_issue(8, 48); d_head(48, 0, "L_Dretry"); a("L_D2:"); stamp("d2"); d_body(8, 0, "L_D2retry")
else:
    a("L_Dp:"); d_issue(64, 48)
    a("L_DpB:"); d_issue(80, 50); d_head(48, 5, "L_Dretry"); a("L_D2:"); stamp("d2"); d_body(64, 5, "L_Dretry")
a(f"""
L_Dm:
s_add_u32 s{sT}, s{sXO}, {X2}
s_cmp_ge_u32 s{sW}, 2
s_waitcnt lgkmcnt(0)
s_barrier
s_cbranch_scc1 {"L_Dwb" if int(opts["wb"]) else "L_Ddone"}
""")
stamp("h")
for s in range(4): a(f"ds_read_b128 {V4(8+4*s)}, v{vB16} offset:{L_HB + 64*s}")
for s in range(4):
    a(f"s_waitcnt lgkmcnt({LG(3-s)})")
    for t in range(2): a(mfma(24+4*t, A4(aWD+16*t+4*s), V4(8+4*s), s == 0))
a(f"""
s_mov_b64 exec, s[{sDM}:{sDM+1}]
s_nop 6
v_mov_b32 v24, v28
v_mov_b32 v25, v29
v_mov_b32 v26, v30
v_mov_b32 v27, v31
s_mov_b32 exec_lo, 0x00030003
s_mov_b32 exec_hi, 0x00030003
buffer_store_dwordx4 v[24:27], v{vDPA}, s[{RG}:{RG+3}], s{sT} offen sc1
s_mov_b64 exec, -1
L_Ddone:
""")
stamp("x2pub")
stamp_flush()
set_rx(X2)
a(f"""
ds_read_b32 v{vXW}, v{vHWR} offset:512
s_waitcnt lgkmcnt(0)
v_lshlrev_b32 v{vR0}, 16, v{vXW}
v_and_b32 v{vR1}, 0xffff0000, v{vXW}
s_cmp_eq_u32 s{sLAY}, 0
s_cbranch_scc1 L_Anext
s_mov_b32 s{sPH}, 3
""")
WX = int(opts.get("wx", 0))
if WX:
    a(f"""s_lshl_b32 s{sT2}, s{sI}, 2
    s_add_u32 s{sT2}, s{sT2}, s{sW}
    s_cmp_eq_u32 s{sT2}, 1
    s_cbranch_scc0 L_nowx
    s_waitcnt vmcnt(0)
    s_sleep {WX}
    buffer_wbl2 sc1
    s_branch L_exit
    L_nowx:""")
a(f"""
s_cmp_eq_u32 s{sFIN}, 1
s_cbranch_scc0 L_exit
s_cmp_eq_u32 s{sW}, 0
s_cbranch_scc0 L_exit
""")
for _ in range(int(opts["fbell"])):
    if _ == 0: bell_ring(256)
    bell_wait(256)
a(f"""
s_branch L_G
L_Anext:
""")
if int(opts["bell2"]):
    a(f"s_cmp_eq_u32 s{sW}, 0\ns_cbranch_scc0 L_next")
    bell_ring(256)
    if int(opts["abell"]): bell_wait(256)
a(f"""
s_branch L_next
L_Aside:
s_cmp_eq_u32 s{sW}, 2
s_cbranch_scc1 L_A2
s_cmp_eq_u32 s{sW}, 1
s_cbranch_scc0 L_Dm
s_cmp_eq_u32 s{sLAY}, 0
s_cbranch_scc0 L_Dm
""")
wd_issue()
a("s_waitcnt vmcnt(0)")
wd_reads()
a(f"""
s_branch L_Dm
L_A2:
s_mov_b32 s{sPH}, 2
s_cmp_eq_u32 s{sLAY}, 0
s_cbranch_scc1 L_A20
s_cmp_eq_u32 s{sFIN}, 1
s_cbranch_scc0 L_Dm
ds_read_b32 v{vXW}, v{vHWR}
s_waitcnt lgkmcnt(0)
v_lshlrev_b32 v{vR0}, 16, v{vXW}
v_and_b32 v{vR1}, 0xffff0000, v{vXW}
s_branch L_A21
L_A20:
""")
qc_gather()
gd_wait()
a("L_A21:")
bell_wait()
set_rx(X1)
a(f"""
s_branch L_G
L_Gother:
s_cmp_eq_u32 s{sPH}, 2
s_cbranch_scc1 L_Dm
L_final:
s_lshl_b32 s{sT}, s{sKQ}, 8
v_add_u32 v1, s{sT}, v{vHWR}
global_store_dword v1, v{vXW}, s[{sOUT}:{sOUT+1}]{" sc1" if int(opts["wb"]) or int(opts.get("wx", 0)) else ""}
s_cmp_eq_u32 s2, 0
s_cbranch_scc0 L_fin2
s_add_u32 s{sT}, s{sNON}, 1
v_mov_b32 v1, {NONCE}
v_mov_b32 v2, s{sT}
s_mov_b64 exec, 1
global_store_dword v1, v2, s[{sWS}:{sWS+1}]{" sc1" if int(opts["wb"]) or int(opts.get("wx", 0)) else ""}
s_mov_b64 exec, -1
L_fin2:
""")
if STAMP:
    a(f"s_memrealtime s[{sST}:{sST+1}]\ns_waitcnt lgkmcnt(0)\nv_writelane_b32 v{vSTMP}, s{sST}, 16")
    if int(opts.get("dbgout", 0)):
        a(f"""v_writelane_b32 v{vSTMP}, s{sST}, 15
        s_nop 4
        v_readlane_b32 s{sT}, v{vSTMP}, 0
        s_nop 4
        v_subrev_u32 v4, s{sT}, v{vSTMP}
        v_lshrrev_b32 v5, 1, v{vL8}
        s_cmp_eq_u32 s2, 0
        s_cbranch_scc0 L_exit
        s_mov_b64 exec, 0xffff
        global_store_dword v5, v4, s[{sDBG}:{sDBG+1}]
        s_mov_b64 exec, -1""")
a("s_branch L_exit")
a(f"""
L_B:
s_mov_b32 s{sPH}, 1
s_cmp_eq_u32 s{sLAY}, 0
s_cbranch_scc0 L_B1
""")
if opts["gu"] == "rec":
    if int(opts["g2"]):
        a(f"""s_cmp_eq_u32 s{sW}, 0
        s_cbranch_scc0 L_Bg
        s_waitcnt vmcnt(2)
        v_cmp_ne_u32 vcc, s{sTAG}, v{vJUNK+3}
        s_cbranch_vccz L_Bg""")
        gd_wait(0 if int(opts["g2q"]) else 64)
        a("L_Bg:\ns_barrier")
    b_issue("L_Bs")
a(f"""L_Bs:
s_mov_b32 s{sPUBM}, 0x00010001
s_mov_b32 s{sPUBM+1}, 0x00010001
v_and_b32 v1, 7, v0
v_lshlrev_b32 v1, 7, v1
v_add_u32 v1, {GD}, v1
global_load_dword v{vJUNK+2}, v1, s[{sWS}:{sWS+1}] sc1
s_cmp_eq_u32 s{sW}, 3
s_cbranch_scc0 L_Bu""")
wd_base(False)
a(f"""v_lshlrev_b32 v4, 6, v{vL16}
global_load_dword v{vJUNK}, v4, s[{sWD}:{sWD+1}] {POL}
v_add_u32 v4, 0x10000, v4
v_subrev_u32 v4, s{sT2}, v4
global_load_dword v{vJUNK+1}, v4, s[{sWD}:{sWD+1}] {POL}
s_waitcnt vmcnt(2)
s_branch L_Bw
L_Bu:
s_waitcnt vmcnt(0)""")
a(f"""L_Bw:
s_cmp_eq_u32 s{sDUM}, 7
s_cbranch_scc0 L_Bload
""")
for k in range(32): a(f"v_accvgpr_write_b32 a{aW2+k}, 0")
a("s_branch L_B0\nL_Bload:")
a(f"""
s_lshl_b32 s{sT}, s{sW}, 5
v_xor_b32 v6, s{sT}, v{vTR0}
v_xor_b32 v7, 32, v6
v_add_u32 v7, {512 + L_W2}, v7
v_add_u32 v6, {L_W2}, v6
s_barrier
""")
trW(aW2, 0, 6, 7)
trW(aW2 + 16, 0x4000, 6, 7)
a(f"""
L_B0:
v_mov_b32 v8, v{vONE}
v_mov_b32 v9, v{vONE}
v_mov_b32 v10, v{vONE}
v_mov_b32 v11, v{vONE}
s_waitcnt lgkmcnt(0)
s_nop 0
""")
for s_ in range(4):
    for m in range(2): a(mfma(24+4*m, A4(aW2+16*m+4*s_), V4(8), s_ == 0))
a(f"""
s_mov_b32 s{sT}, {HCS - HP}
s_mov_b64 exec, s[{sPUBM}:{sPUBM+1}]
s_cmp_eq_u32 s{sNF}, 0
s_cbranch_scc0 L_B0s
s_nop 3
buffer_store_dwordx4 v[24:27], v{vPUBA}, s[{RG}:{RG+3}], s{sT} offen
buffer_store_dwordx4 v[28:31], v{vPUBA}, s[{RG}:{RG+3}], s{sT} offen offset:512
s_branch L_B0d
L_B0s:
s_nop 3
buffer_store_dwordx4 v[24:27], v{vPUBA}, s[{RG}:{RG+3}], s{sT} offen sc1
buffer_store_dwordx4 v[28:31], v{vPUBA}, s[{RG}:{RG+3}], s{sT} offen offset:512 sc1
L_B0d:
s_mov_b64 exec, -1
""")
stamp("wd")
a(f"s_cmp_eq_u32 s{sW}, 1\ns_cbranch_scc0 L_Bv")
qc_gather()
a(f"""s_branch L_TU
L_Bv:
s_cmp_eq_u32 s{sW}, 0
s_cbranch_scc0 L_TU
v_cmp_ne_u32 vcc, s{sTAG}, v{vJUNK+2}
s_cbranch_vccz L_B1""")
gd_wait()
a(f"""
L_B1:
s_cmp_eq_u32 s{sW}, 0
s_cbranch_scc0 L_TU
""")
bell_wait()
if int(opts["sb"]): a(f"s_cmp_eq_u32 s{sLAY}, 0\ns_cbranch_scc1 L_B2\ns_sleep {opts['sb']}\nL_B2:")
set_rx(X1)
a("s_branch L_G")
a(f"""
L_TU:
s_cmp_lg_u32 s{sW}, 0
s_waitcnt lgkmcnt(0)
s_barrier
""")
stamp("x1pub")
for s in range(4): a(f"ds_read_b128 {V4(8+4*s)}, v{vXRD} offset:{512 + 64*s}")
def tu_step(s):
    for m in range(2): a(mfma(24+4*m, A4(aW2+16*m+4*s), V4(8+4*s), s == 0))
def tu_tail(fl, done):
    a(f"""s_mov_b64 exec, s[{sPUBM}:{sPUBM+1}]
    s_cmp_lg_u32 s{sW}, 0
    s_nop 2
    buffer_store_dwordx4 v[24:27], v{vPUBA}, s[{RG}:{RG+3}], 0 offen{fl}
    buffer_store_dwordx4 v[28:31], v{vPUBA}, s[{RG}:{RG+3}], 0 offen offset:512{fl}
    s_cbranch_scc1 {done}
    s_mov_b64 exec, s[{sSTM}:{sSTM+1}]
    buffer_store_dwordx2 v[{vSTG}:{vSTG+1}], v{vHSA}, s[{RG}:{RG+3}], 0 offen{fl}""")
a("s_cbranch_scc1 L_TUw")
gemv_stats(tu_step)
a(f"""s_cmp_eq_u32 s{sNF}, 0
s_cbranch_scc0 L_TUsafe
s_mov_b64 exec, s[{sPUBM}:{sPUBM+1}]
s_nop 1
buffer_store_dwordx4 v[24:27], v{vPUBA}, s[{RG}:{RG+3}], 0 offen
buffer_store_dwordx4 v[28:31], v{vPUBA}, s[{RG}:{RG+3}], 0 offen offset:512
s_mov_b64 exec, s[{sSTM}:{sSTM+1}]
buffer_store_dwordx2 v[{vSTG}:{vSTG+1}], v{vHSA}, s[{RG}:{RG+3}], 0 offen""")
a("L_TUd:\ns_mov_b64 exec, -1")
stamp("h")
stamp_flush()
a(f"""
s_cmp_eq_u32 s{sLAY}, 0
s_cbranch_scc0 L_exit
""")
if int(opts["sx"]): a(f"s_sleep {opts['sx']}")
if int(opts["bell2"]):
    a(f"s_cmp_eq_u32 s{sW}, 0\ns_cbranch_scc0 L_B3")
    bell_wait(256)
    a("L_B3:")
set_rx(X2)
a(f"""L_next:
ds_read_b128 {V4(vQCS)}, v{vL16} offset:{L_CS}
ds_read_b128 {V4(vQCS+4)}, v{vL16} offset:{L_CS+1024}""")
next_layer()
a(f"""
s_mov_b32 s{sPH}, 0
s_cmp_eq_u32 s{sW}, 0
s_cbranch_scc1 L_G
s_branch L_TQ
""")
a("L_Gretry:")
if DBG: a(f"s_mov_b64 exec, 1\nv_mov_b32 v45, s{sLAY}\nv_lshlrev_b32 v45, 2, v45\nv_add_u32 v45, s{sPH}, v45\nv_lshlrev_b32 v45, 2, v45\nv_add_u32 v45, 128, v45\nv_mov_b32 v46, 1\nglobal_atomic_add v45, v46, s[{sDBG}:{sDBG+1}]\ns_mov_b64 exec, -1")
spin("L_Gp", "L_Gok")
if not QPI:
    a("L_QFretry:");  spin("L_QFp", "L_QF2")
    a("L_QF2retry:"); spin("L_QFp", "L_S")
else:
    a("L_QFretry:");  spin("L_QFp", "L_S")
for t_ in tails: a(t_)
WB = int(opts["wb"])
if WB:
    a(f"""L_Dwb:
    s_and_b32 s{sT2}, s{sA4}, 7
    s_lshl_b32 s{sT2}, s{sT2}, 2
    s_add_u32 s{sT2}, s{sT2}, s{sW}
    s_cmp_eq_u32 s{sT2}, {4*3 + 3}
    s_cbranch_scc0 L_Ddone""")
    if not WB & 2: a(f"s_cmp_eq_u32 s{sLAY}, 1\ns_cbranch_scc0 L_Ddone")
    a("buffer_wbl2 sc1\ns_branch L_Ddone")
a("L_TQw:")
gemv_plain(tq_step)
a(f"""s_cmp_eq_u32 s{sALT}, 0
s_cbranch_scc0 L_TQalt
s_mov_b64 exec, s[{sPUBM}:{sPUBM+1}]
s_nop 4
buffer_store_dwordx4 v[24:27], v{vQPA}, s[{RG}:{RG+3}], 0 offen
s_branch L_S
L_TUw:""")
gemv_plain(tu_step)
a(f"""s_cmp_eq_u32 s{sNF}, 0
s_cbranch_scc0 L_TUsafe
s_mov_b64 exec, s[{sPUBM}:{sPUBM+1}]
s_nop 3
buffer_store_dwordx4 v[24:27], v{vPUBA}, s[{RG}:{RG+3}], 0 offen
buffer_store_dwordx4 v[28:31], v{vPUBA}, s[{RG}:{RG+3}], 0 offen offset:512
s_branch L_TUd""")
a("L_RECsafe:"); rec_tail(" sc1"); a("s_branch L_RECd")
if WB & 4:
    a(f"""L_TQwb:
    s_lshl_b32 s{sT2}, s{sI}, 2
    s_add_u32 s{sT2}, s{sT2}, s{sW}
    s_cmp_eq_u32 s{sT2}, {4*31 + 3}
    s_cbranch_scc0 L_S
    buffer_wbl2 sc1
    s_branch L_S""")
a("L_TUsafe:"); tu_tail(" sc1", "L_TUd"); a("s_branch L_TUd")
a(f"""
L_Sbig:
s_mov_b64 exec, -1
v_max3_f32 v32, v24, v25, v26
v_max_f32 v32, v32, v27
v_max3_f32 v32, v32, v28, v29
v_max3_f32 v32, v32, v30, v31
v_mov_b32 v33, v32
s_nop 1
v_permlane32_swap_b32 v32, v33
v_max_f32 v32, v32, v33
v_mov_b32 v33, v32
s_nop 1
v_permlane16_swap_b32 v32, v33
v_max_f32 v32, v32, v33
""")
for k in range(8): a(f"v_sub_f32 v{40+k}, v{24+k}, v32")
for k in range(8): a(f"v_exp_f32 v{40+k}, v{40+k}")
p_tail()
a(f"""
s_nop 2
ds_write_b64 v{vMWR}, v[32:33] offset:{L_MB}
s_branch L_Sp
L_PVbig:
s_nop 7
{mfma(24, V4(8), A4(aV), True)}
{mfma(28, V4(8), A4(aV+4), True)}
{mfma(40, V4(12), A4(aV+8), True)}
{mfma(44, V4(12), A4(aV+12), True)}
{mfma(4, V4(16), A4(aV+16), True)}
{mfma(8, V4(16), A4(aV+20), True)}
{mfma(12, V4(20), A4(aV+24), True)}
{mfma(16, V4(20), A4(aV+28), True)}
v_max_f32_dpp v34, v32, v32 row_ror:4 {DPPALL}
s_nop 1
v_max_f32_dpp v34, v34, v34 row_ror:8 {DPPALL}
v_sub_f32 v32, v32, v34
v_exp_f32 v32, v32
s_nop 0
v_mul_f32 v35, v32, v33
s_nop 1
v_add_f32_dpp v35, v35, v35 row_ror:1 {DPPALL}
v_mul_f32_dpp v36, v32, v24 row_newbcast:0 {DPPALL}
v_mul_f32_dpp v37, v32, v28 row_newbcast:0 {DPPALL}
v_add_f32_dpp v35, v35, v35 row_ror:2 {DPPALL}
v_fmac_f32_dpp v36, v32, v40 row_newbcast:4 {DPPALL}
v_fmac_f32_dpp v37, v32, v44 row_newbcast:4 {DPPALL}
v_add_f32_dpp v35, v35, v35 row_ror:4 {DPPALL}
v_fmac_f32_dpp v36, v32, v4 row_newbcast:8 {DPPALL}
v_fmac_f32_dpp v37, v32, v8 row_newbcast:8 {DPPALL}
v_add_f32_dpp v35, v35, v35 row_ror:8 {DPPALL}
v_fmac_f32_dpp v36, v32, v12 row_newbcast:12 {DPPALL}
v_fmac_f32_dpp v37, v32, v16 row_newbcast:12 {DPPALL}
v_cvt_pk_bf16_f32 v36, v36, v37
s_nop 1
s_branch L_PVt
L_Obig:
; some producer shifted its scores: weight every record to the head's common maximum
v_max_f32_dpp v6, v4, v4 quad_perm:[1,0,3,2] {DPPALL}
s_nop 1
v_max_f32_dpp v6, v6, v6 quad_perm:[2,3,0,1] {DPPALL}
s_nop 1
v_max_f32_dpp v6, v6, v6 row_half_mirror {DPPALL}
v_mov_b32 v7, v6
s_nop 1
v_permlane32_swap_b32 v6, v7
v_max_f32 v6, v6, v7
v_mov_b32 v7, v6
s_nop 1
v_permlane16_swap_b32 v6, v7
v_max_f32 v6, v6, v7
v_sub_f32 v4, v4, v6
v_exp_f32 v4, v4
s_nop 0
v_mul_f32 v6, v4, v5
s_nop 1
v_add_f32_dpp v6, v6, v6 quad_perm:[1,0,3,2] {DPPALL}
s_nop 1
v_add_f32_dpp v6, v6, v6 quad_perm:[2,3,0,1] {DPPALL}
s_nop 1
v_add_f32_dpp v6, v6, v6 row_half_mirror {DPPALL}
v_mov_b32 v7, v6
s_nop 1
v_permlane32_swap_b32 v6, v7
v_add_f32 v6, v6, v7
v_mov_b32 v7, v6
s_nop 1
v_permlane16_swap_b32 v6, v7
v_add_f32 v6, v6, v7
v_rcp_f32 v6, v6
""")
for t in range(4):
    a(f"v_mul_f32_dpp v{40+t}, v4, v{24+4*t} row_newbcast:0 {DPPALL}")
    for r in range(1, 4): a(f"v_fmac_f32_dpp v{40+t}, v4, v{24+4*t+r} row_newbcast:{r} {DPPALL}")
a("s_branch L_Ot")
a(f"""
L_TQalt:
s_cmp_eq_u32 s{sLAY}, 0
s_cbranch_scc1 L_TQ0
""")
tq_tail(" sc1")
a(f"""
s_branch L_QFe
L_TQ0:
s_nop 3
""")
for k in range(4): a(f"v_bfi_b32 v{24+k}, v{vMASK}, v{24+k}, s{sT0+k}")
K1 = int(opts["k1"])
def kreads():
    for s in range(4):
        a(f"v_xor_b32 v5, {64*s}, v3")
        for t in range(2): a(f"ds_read_b128 {A4(aK+16*t+4*s)}, v5 offset:{4096*t}")
def vreads():
    for w in range(4):
        for c in range(2):
            for e in range(2):
                r = aV + 8*w + 4*c + 2*e
                a(f"ds_read_b64_tr_b16 a[{r}:{r+1}], v{6+c} offset:{L_V + w*8192 + e*4096}")
def l0_addr():
    a(f"""v_bfe_u32 v34, v0, 2, 2
    v_bfe_u32 v35, v0, 4, 2
    v_lshl_add_u32 v36, v35, 2, v34
    v_and_b32 v37, 7, v36
    v_lshlrev_b32 v37, 1, v37
    v_bfe_u32 v38, v0, 1, 1
    s_lshl_b32 s{sT}, s{sW}, 2
    v_or_b32 v38, s{sT}, v38
    v_xor_b32 v37, v37, v38
    v_lshlrev_b32 v37, 4, v37
    v_lshl_add_u32 v36, v36, 8, v37
    v_and_b32 v37, 1, v0
    v_lshl_add_u32 v6, v37, 3, v36
    v_xor_b32 v7, 32, v6
    v_and_b32 v3, 15, v0
    v_xor_b32 v5, v35, v3
    v_lshlrev_b32 v5, 4, v5
    v_lshl_add_u32 v3, v3, 8, v5
    s_lshl_b32 s{sT}, s{sW}, 13
    s_add_u32 s{sT}, s{sT}, {L_K}
    v_add_u32 v3, s{sT}, v3""")
    if True:
        l = a.label("BS")
        a(f"s_cmp_lt_u32 s{sI}, 16\ns_cbranch_scc1 {l}")
        b_setup()
        a(f"{l}:")
def qloads():
    a(f"""buffer_load_dwordx4 v[48:51], v{vQGA}, s[{RT}:{RT+3}], 0 offen sc1
    buffer_load_dwordx4 v[8:11], v{vQL}, s[{RT}:{RT+3}], 0 offen sc1
    buffer_load_dwordx4 v[12:15], v{vQL}, s[{RT}:{RT+3}], 0 offen offset:2048 sc1""")
a(f"""
s_cmp_eq_u32 s{sW}, 0
s_cselect_b64 s[{sM}:{sM+1}], s[{sSTM}:{sSTM+1}], 0
s_mov_b64 exec, s[{sPUBM}:{sPUBM+1}]
buffer_store_dwordx4 v[24:27], v{vQPA}, s[{RT}:{RT+3}], 0 offen
s_mov_b64 exec, s[{sM}:{sM+1}]
buffer_store_dwordx4 {V4(vSTG)}, v{vQSA}, s[{RT}:{RT+3}], 0 offen
""")
H2N = int(opts["h2"])
if H2N:
    a(f"""s_add_u32 s{sT}, s{sI}, {H2}
    s_cmp_eq_u32 s{sW}, 0
    s_cselect_b64 exec, 0xff, 0
    v_lshlrev_b32 v5, 3, v{vL16}
    buffer_store_byte v{vSTG+2}, v5, s[{RT}:{RT+3}], s{sT} offen""")
a(f"""
s_mov_b64 exec, -1
s_mov_b32 s{sT2}, {BOFF}
""")
stamp("qpub")
kdma(0, 8)
a(f"""
s_mov_b64 exec, s[{sPUBM}:{sPUBM+1}]
buffer_store_dwordx4 v[24:27], v{vQPA}, s[{RT}:{RT+3}], s{sT2} offen sc1
s_mov_b64 exec, s[{sM}:{sM+1}]
buffer_store_dwordx4 {V4(vSTG)}, v{vQSA}, s[{RT}:{RT+3}], s{sT2} offen sc1
s_mov_b64 exec, -1
""")
l0_addr()
a(f"""
s_lshl_b32 s{sT}, s{sW}, 9
v_and_b32 v5, 0x1f0, v{vL16}
v_bfe_u32 v4, v0, 5, 1
v_lshl_add_u32 v5, v4, 12, v5
v_add_u32 v{vQL}, s{sT}, v5
s_mul_i32 s{sT}, s{sW}, {QH}
v_add_u32 v{vMODE}, s{sT}, v{vHWR}
v_mov_b32 v{vXRD}, v{vB16}
s_mul_i32 s{sT}, s{sW}, {7*128}
v_lshlrev_b32 v2, 3, v{vL16}
v_min_u32 v2, {6*128}, v2
v_add_u32 v2, s{sT}, v2
v_min_u32 v2, {CLR-128}, v2
s_lshl_b32 s{sT}, s{sG}, 7
s_add_u32 s{sT}, s{sT}, {GD + 1024}
v_mov_b32 v1, s{sT}
s_lshl_b32 s{sT}, s{sI}, 2
s_add_u32 s{sT}, s{sT}, s{sW}
s_cmp_eq_u32 s{sT}, 67
s_cselect_b64 s[{sM}:{sM+1}], 1, 0
s_mul_i32 s{sT2}, s{sI}, {CLR}
""")
VM = int(opts["vm"])
if not VM:
    a(f"s_waitcnt vmcnt({13 if H2N else 12})\ns_barrier")
    vreads()
if H2N:
    a(f"""s_cmp_eq_u32 s{sW}, 3
    s_cbranch_scc0 L_H2e
    s_mul_i32 s{sPH}, s{sT0}, 0x01010101
    s_movk_i32 s5, {H2}
    L_H2:
    s_load_dwordx8 s[{sGO}:{sGO+7}], s[{RT}:{RT+1}], s5
    s_add_u32 s5, s5, 128
    s_cmp_eq_u32 s5, {H2 + 128*H2N}
    s_waitcnt lgkmcnt(0)
    s_cbranch_scc1 L_H2d""")
    for k in range(8): a(f"s_xor_b32 s{sGO+k}, s{sGO+k}, s{sPH}")
    for k in range(1, 8): a(f"s_or_b32 s{sGO}, s{sGO}, s{sGO+k}")
    a(f"""s_cbranch_scc1 L_H2
    L_H2d:""")
    for gp in range(8): a(f"s_mov_b32 s{sGO+gp}, {gp*GS}")
    a("L_H2e:")
a(f"s_waitcnt vmcnt({2 + int(opts['kw'])})")
if H2N: a("s_barrier")
stamp("kw")
qloads()
if not H2N or int(opts.get("bb", 0)): a("s_barrier")
a(f"""
buffer_load_dword v{vJUNK}, v2, s[{RG}:{RG+3}], s{sT2} offen sc1
s_mov_b64 exec, s[{sM}:{sM+1}]
global_store_dword v1, v{vSTG+2}, s[{sWS}:{sWS+1}] sc1
s_mov_b64 exec, -1
s_cmp_ge_u32 s{sI}, 16
s_cbranch_scc1 L_K1""")
wo_issue()
if VM: vreads()
a("s_waitcnt vmcnt(13)")
kreads()
a("s_waitcnt vmcnt(10)\ns_branch L_Q01\nL_K1:")
WOP = int(opts["wop"])
if WOP:
    wo_base()
    a(f"""v_and_b32 v4, {WOP//4 - 1}, v0
    s_mul_i32 s{sT}, s{sW}, {WOP//4}
    s_add_u32 s{sT}, s{sT}, {256 - WOP}
    v_add_u32 v4, s{sT}, v4
    v_lshlrev_b32 v4, 10, v4
    global_load_dword v{vJUNK+1}, v4, s[{sWO}:{sWO+1}] {POL}""")
if VM: vreads()
a(f"s_waitcnt vmcnt({6 if WOP else 5})")
kreads()
a(f"s_waitcnt vmcnt({3 if WOP else 2})")
a("L_Q01:")
stamp("qf2")
xor_acc(8, True); xor_acc(12, False)
a(f"""
v_pk_add_f32 v[8:9], v[8:9], v[12:13]
v_pk_add_f32 v[10:11], v[10:11], v[14:15]
v_xor_b32 v45, s{sTAG}, v50
v_and_or_b32 v44, v44, v{vMASK+2}, v45
v_permlane32_swap_b32 v8, v10
v_permlane32_swap_b32 v9, v11
v_cmp_ne_u32 vcc, 0, v44
v_add_f32 v8, v8, v10
v_add_f32 v9, v9, v11
v_cvt_pk_bf16_f32 v8, v8, v9
ds_write_b32 v{vMODE}, v8 offset:{L_QB}
s_cbranch_vccnz L_Q0retry
L_Q0ok:
""")
stamp("qfok")
a(f"""
v_cmp_ne_u32 vcc, v51, v{vSTG+3}
s_cmp_lg_u64 vcc, 0
s_cselect_b32 s{sNF}, 1, 0
s_cmp_lt_u32 s{sI}, 16
s_cbranch_scc1 L_Q0a
v_lshlrev_b32 v5, 3, v{vL16}
v_and_b32 v5, 0x380, v5
global_load_dword v{vJUNK+3}, v5, s[{sWS}:{sWS+1}] offset:{GD + (0 if int(opts["g2q"]) else 1024)} sc1
L_Q0a:
s_cmp_eq_u32 s{sW}, 0
s_cbranch_scc0 L_S
s_cmp_eq_u32 s{sNF}, 0
s_cbranch_scc0 L_slow
L_slowdone:
s_cmp_eq_u32 s{sI}, 0
s_cbranch_scc0 L_S
s_lshl_b32 s{sT}, s{sG}, 7
s_add_u32 s{sT}, s{sT}, {GD}
v_mov_b32 v9, s{sT}
s_mov_b64 exec, 1
global_store_dword v9, v{vSTG+2}, s[{sWS}:{sWS+1}] sc1
s_branch L_S
L_Q0p:
""")
qloads()
a("s_waitcnt vmcnt(0)\ns_branch L_Q01")
def qretry(giveup):
    l = a.label("QR")
    if DBG: a(f"s_mov_b64 exec, 1\nv_mov_b32 v45, 0\nv_mov_b32 v46, 1\nglobal_atomic_add v45, v46, s[{sDBG}:{sDBG+1}]\ns_mov_b64 exec, -1")
    a(f"""s_sub_u32 s{sTRY}, s{sTRY}, 1
    s_cmp_eq_u32 s{sTRY}, 0
    s_cbranch_scc0 {l}
    s_add_u32 s{RT}, s{RT}, {BOFF}
    s_addc_u32 s{RT+1}, s{RT+1}, 0
    {l}:""")
    spin("L_Q0p", giveup)
a("L_Q0retry:");  qretry("L_Q0ok")
a(f"""
L_slow:
s_mul_i32 s{sT}, s{sI}, {CLR}
v_mov_b32 v12, -1
v_mov_b32 v13, -1
v_mov_b32 v14, -1
v_mov_b32 v15, -1
v_min_u32 v9, {CLR - 3072 - 16}, v{vL16}
buffer_store_dwordx4 v[12:15], v{vL16}, s[{RG}:{RG+3}], s{sT} offen sc1
buffer_store_dwordx4 v[12:15], v{vL16}, s[{RG}:{RG+3}], s{sT} offen offset:1024 sc1
buffer_store_dwordx4 v[12:15], v{vL16}, s[{RG}:{RG+3}], s{sT} offen offset:2048 sc1
buffer_store_dwordx4 v[12:15], v9, s[{RG}:{RG+3}], s{sT} offen offset:3072 sc1
s_mul_i32 s{sT}, s{sG}, {TGS}
s_add_u32 s{sT}, s{sT}, {TG + FL}
s_lshl_b32 s{sT2}, s{sI}, 4
s_add_u32 s{sT2}, s{sT2}, s{sT}
v_mov_b32 v9, s{sT2}
s_waitcnt vmcnt(0)
s_mov_b64 exec, 1
global_store_dword v9, v{vSTG+2}, s[{sWS}:{sWS+1}] sc1
s_mov_b64 exec, -1
v_and_b32 v9, 0x1f0, v{vL16}
v_add_u32 v9, s{sT}, v9
L_slowp:
global_load_dword v8, v9, s[{sWS}:{sWS+1}] sc1
s_waitcnt vmcnt(0)
v_cmp_ne_u32 vcc, s{sTAG}, v8
s_cbranch_vccz L_slowdone
""")
spin("L_slowp", "L_slowdone")
if OM in ("bell", "bell2"):
    a("L_Obretry:"); spin("L_Ob", "L_Op")
def cnt(k):
    if DBG: a(f"s_mov_b64 exec, 1\nv_mov_b32 v45, s{sLAY}\nv_lshlrev_b32 v45, 2, v45\nv_add_u32 v45, {4*k}, v45\nv_mov_b32 v46, 1\nglobal_atomic_add v45, v46, s[{sDBG}:{sDBG+1}]\ns_mov_b64 exec, -1")
a("L_Oretry:");   cnt(40); spin("L_Op", "L_O2")
a("L_O2retry:");  cnt(42); spin("L_Op", "L_Ook")
if not DP:
    a("L_Dretry:");   spin("L_Dp", "L_D2")
    a("L_D2retry:");  spin("L_Dp", "L_Dm")
else:
    a("L_Dretry:"); d_issue(64, 48); d_head(50, 5, "L_DretryB"); stamp("d2"); d_body(80, 5, "L_DretryB"); a("s_branch L_Dm")
    a("L_DretryB:"); spin("L_DpB", "L_Dm")
a("L_exit:")
if int(opts.get("xdirty", 0)):
    a(f"s_mov_b64 exec, -1\ns_lshl_b32 s{sT}, s2, 16\ns_add_u32 s{sT}, s{sT}, 0x1000000\nv_lshlrev_b32 v1, 4, v0\nv_add_u32 v1, s{sT}, v1")
    for j in range(int(opts["xdirty"])):
        a(f"global_store_dwordx4 v1, v[8:11], s[{sWS}:{sWS+1}]\nv_add_u32 v1, 4096, v1")
stamp_store()
a("L_end:\ns_endpgm")

txt = a.text()
if int(opts.get("solo", 0)):
    import re
    txt = re.sub(r"s_cbranch_vccnz L_\w*retry\w*", "s_nop 0", txt)
    txt = re.sub(r"s_cbranch_vccz (\w+)\n", r"s_branch \1\n", txt)
    txt = txt.replace("s_cbranch_scc0 L_slow\n", "s_nop 0\n")
    for br in ("s_cbranch_vccnz L_Sbig", "s_cbranch_vccnz L_PVbig", "s_cbranch_scc1 L_Obig"): txt = txt.replace(br, "s_nop 0")
    txt = txt.replace("s_memrealtime", "s_memtime").replace(f"s_cselect_b32 s{sNF}, 1, 0", f"s_mov_b32 s{sNF}, 0")
DOC = """
One persistent launch, 256 workgroups of 4 waves, one per CU.  Every weight, K and V byte is read from memory once
and stays in registers (AGPRs) for both layers; only small vectors travel between workgroups, through d_ws.

Workgroup id = 8*i + g.  Group g (32 workgroups) owns kv head g; i = 4*cg + kq.
  TQ  all   partial q = x[K quarter kq] . wq[quarter, 64 columns cg]; LayerNorm is applied afterwards by linearity:
            q = rstd * (sum of partials - mean * column sums)   (layer 0 normalises x up front, it is an input)
  S   all   128 keys x 4 heads: scores, exp2, P.V -> record (bf16) + {shift, sum}.  The shift is 0 while every
            score of the wave is within +-32 (checked at run time), else the true maximum; readers rescale.
  O   i<16  records of 32 producers as MFMA rows x wo[2 heads, 64 columns] -> partial attention output (X1)
  TU  i>=16 x1[quarter] . gate/up[quarter, 64 columns] -> partials (HP), LayerNorm again by linearity
  D   i<16  h = g*u for 128 hidden units . w_down[128, 64 columns] -> partial FFN output (X2)
  G         16 partial vectors + residual -> next x quarter (bf16)

Hand-offs carry their own validity: slots are set to 0xffffffff at the start and a reader repeats its loads until
no slot is still unset.  The first hand-off (layer-0 q) happens before anything is known to be cleared and carries a
32-bit tag derived from a launch counter in d_ws instead; it also tells each member that the whole group has cleared
its share and on which die every member runs.  Inside a group that shares one L2 the stores are plain, otherwise they
are written through (sc1), as they always are between groups; all reads of hand-offs bypass L1 (sc1).
Every wait is bounded.
"""
open(sys.argv[1], "w").write(wrap(txt, 256, 256, LDS_SIZE, NVGPR + NAGPR, accum=NVGPR, doc=DOC))
if STAMP: print(",".join(stamp_names))
if DBG: print(list(enumerate(spin_ids, 1)))
```

```python
import sys, math, struct
from asmlib import *

opts = dict(stamp=0, pol="nt", dbg=0, wo="spec", kw=6, v1=4, k1=8, om="ack", xack=2, bgd=0, vearly=1, il=1, kup=0, sd=0, sb=0, sx=0, bell=1, bell0=0, bell2=1, abell=1, fbell=0, og=6, wo2="k", bx=-1, bx2=-1, wdp=1, gu="rec", g2=16, h2=8, bb=1, vm=1, g2q=0, wb=0, wop=64, dp=1, qp=0, rl=0, wp=0, orb=0, ge=0, vl=0, gp=0, gs=0)
for x in sys.argv[2:]:
    k, v = x.split("="); opts[k] = v
STAMP = int(opts["stamp"]); DBG = int(opts["dbg"]); POL = opts["pol"].replace("def", "").replace("_", " ")

RL = int(opts["rl"])
IL = int(opts["il"])
VSTEP, KSTEP, KWSH, ISH = (131072, 32768, 18, 10) if IL else (4096, 1024, 13, 15)
a = Asm()
NONCE = 0x0
GD = 0x400
GB = 0x2000
GS = 0x1F400
LS = 0xA800
REC, ML, HP, HS, BL = 0x0, 0x8000, 0x8400, 0xA400, 0xA600
HCS = 2 * LS
QP1 = HCS + 0x2000
QS1 = QP1 + 0x2000
CLR = 3328
XR = 32 * CLR
X1, X2, XLS = XR, XR + 5120, 10240
assert HS + 512 <= LS and QS1 + 256 <= XR and XR + 2 * XLS <= GS
TG = 0x200000
QP, QS, QCS = 0x0, 0x2000, 0x2400
FL = QCS + 0x2000
H2 = FL + 0x200
BOFF = 0x5000
TGS = 2 * BOFF + 0x400
WSSIZE = 0x400000
L_X = 0x0
L_HB, L_QB, L_PB, L_MB, L_YB, L_CS = 0x400, 0x500, 0xA00, 0xE00, 0x1000, 0x1800
QH = 320
L_WQ, L_V, L_W2, L_WD = 0x2000, 0x6000, 0xE000, 0x2000
L_K = 0x16000
LDS_SIZE = 0x1E000
sX, sK, sV, sWQ, sWO, sWG, sWU, sWD, sOUT, sDBG, sWS = 4, 6, 8, 10, 12, 16, 18, 20, 22, 24, 26
sG, sI, sW, sKQ, sCG, sA4 = 28, 29, 30, 31, 32, 33
sLAY, sXO = 34, 35
RG = 36
RX = 40
sGO = 44
RT = 52
sTAG, sT0 = 56, 57
sSPIN, sPH, sT, sT2, sNON = 61, 62, 63, 64, 65
sQUADM, sMLM, sPUBM, sDM, sM = 66, 68, 70, 72, 74
sTH = 3
sFIN, sTRY = 76, 77
sQH = 5
sDUM = 4
sNF, sALT = 14, 15
sSTM = 78
sST = 80
aK, aV, aWQ, aW2, aWD = 0, 32, 64, 80, 144
NAGPR = 176
vSTG = 52
vMASK, vONE, vJUNK = 56, 57, 60
GB0 = 64
vCS = 64
(vQCS, vHCS) = (96, 104)
(vR0, vR1, vXW, vXRD, vXWR, vGA, vQPA, vQGA, vQSA, vRECA, vMLA, vOA, vOML, vHGA, vPUBA, vROW, vPC16, vTR0,
 vSTMP, vL16, vL8, vQRD, vPRD, vPWR, vMWR, vMRD, vYWR, vB16, vHWR, vHSA, vDPA, vMODE, vVA, vQL, vKA) = range(108, 143)
NVGPR = 176 if int(opts["qp"]) else 144
ONES = 0x3F803F80
QSCALE = math.log2(math.e) / math.sqrt(128.0)
def f32(x): return "0x%08x" % struct.unpack("<I", struct.pack("<f", x))[0]
DPPALL = "row_mask:0xf bank_mask:0xf"
LG = lambda n: n

stamp_names = []; spin_ids = []
SEL = opts.get("sel", "start,wq,xq,qpub,q,p,rec,x1pub,h,x2pub").split(",")
def stamp(name):
    if not STAMP or name not in SEL: return
    if name not in stamp_names: stamp_names.append(name)
    k = stamp_names.index(name); assert k < 11
    a(f"s_memrealtime s[{sST+2*k}:{sST+2*k+1}]")
def stamp_flush():
    if not STAMP: return
    l1 = a.label("SF"); l2 = a.label("SF")
    a("s_waitcnt lgkmcnt(0)")
    a(f"s_cmp_eq_u32 s{sLAY}, 0\ns_cbranch_scc0 {l1}")
    for k in range(11): a(f"v_writelane_b32 v{vSTMP}, s{sST+2*k}, {k}")
    a(f"s_branch {l2}\n{l1}:")
    for k in range(11): a(f"v_writelane_b32 v{vSTMP}, s{sST+2*k}, {k+16}")
    a(f"{l2}:")
def stamp_store():
    if not STAMP: return
    l1 = a.label("SS")
    a(f"""s_cmp_eq_u32 s{sW}, {opts.get("sw", 0)}
    s_cbranch_scc0 {l1}
    s_mov_b32 exec_lo, -1
    s_mov_b32 exec_hi, 0
    s_lshl_b32 s{sT}, s2, 8
    s_add_u32 s{sM}, s{sWS}, s{sT}
    s_addc_u32 s{sM+1}, s{sWS+1}, 0
    s_add_u32 s{sM}, s{sM}, 0x10000000
    s_addc_u32 s{sM+1}, s{sM+1}, 0
    v_mov_b32 v4, v{vSTMP}
    v_mov_b32 v5, 0
    global_store_dwordx2 v{vL8}, v[4:5], s[{sM}:{sM+1}]
    {l1}:""")

def spin(lab_retry, lab_giveup):
    a(f"s_sub_u32 s{sSPIN}, s{sSPIN}, 1\ns_cbranch_scc0 {lab_retry}\ns_mov_b32 s{sSPIN}, 0")
    if DBG:
        spin_ids.append(lab_retry)
        a(f"s_mov_b64 s[{sM}:{sM+1}], exec\ns_mov_b64 exec, 1\nv_mov_b32 v45, {4*len(spin_ids)}\nv_mov_b32 v46, 1\nglobal_atomic_add v45, v46, s[{sDBG}:{sDBG+1}]\ns_mov_b64 exec, s[{sM}:{sM+1}]")
    a(f"s_branch {lab_giveup}")

def dma(ptr, voff, lds_base, n, gstep):
    a(f"s_lshl_b32 s{sT}, s{sW}, 10\ns_add_u32 m0, s{sT}, {lds_base}")
    for j in range(n):
        if j == 0: a("s_nop 0")
        a(f"global_load_lds_dwordx4 v{voff}, s[{ptr}:{ptr+1}] {POL}")
        if j + 1 < n:
            a(f"s_add_u32 m0, m0, 4096\ns_add_u32 s{ptr}, s{ptr}, {gstep}\ns_addc_u32 s{ptr+1}, s{ptr+1}, 0")

def trW(dst, base, vA, vB):
    for s in range(4):
        a(f"ds_read_b64_tr_b16 a[{dst+4*s}:{dst+4*s+1}], v{vA} offset:{base + s*4096}")
        a(f"ds_read_b64_tr_b16 a[{dst+4*s+2}:{dst+4*s+3}], v{vB} offset:{base + s*4096}")
def mfma(d, A, B, first):
    return f"v_mfma_f32_16x16x32_bf16 v[{d}:{d+3}], {A}, {B}, {'0' if first else f'v[{d}:{d+3}]'}"
V4 = lambda r: f"v[{r}:{r+3}]"
A4 = lambda r: f"a[{r}:{r+3}]"

def wo_base():
    a(f"""
    s_lshl_b32 s{sT}, s{sG}, 1
    s_lshr_b32 s{sT2}, s{sA4}, 3
    s_add_u32 s{sT}, s{sT}, s{sT2}
    s_lshl_b32 s{sT}, s{sT}, 18
    s_and_b32 s{sT2}, s{sA4}, 7
    s_lshl_b32 s{sT2}, s{sT2}, 7
    s_add_u32 s{sT}, s{sT}, s{sT2}
    s_add_u32 s{sWO}, s{sWO}, s{sT}
    s_addc_u32 s{sWO+1}, s{sWO+1}, 0
    """)
def wo_issue():
    wo_base()
    a(f"v_lshl_add_u32 v4, v{vROW}, 10, v{vPC16}")
    if not int(opts["wp"]):
        dma(sWO, 4, L_W2, 8, 32 * 1024); return
    a(f"s_lshl_b32 s{sT}, s{sW}, 10\ns_add_u32 m0, s{sT}, {L_W2}\nv_add_u32 v5, {4*32*1024}, v4")
    for j in range(4):
        a(f"global_load_lds_dwordx4 v4, s[{sWO}:{sWO+1}] {POL}\ns_add_u32 m0, m0, 16384\nv_add_u32 v4, {32*1024}, v4")
        a(f"global_load_lds_dwordx4 v5, s[{sWO}:{sWO+1}] {POL}")
        if j < 3: a(f"s_sub_u32 m0, m0, {16384 - 4096}\nv_add_u32 v5, {32*1024}, v5")

def a_setup():
    a(f"""
    v_bfe_u32 v1, v0, 2, 1
    v_bfe_u32 v2, v0, 3, 1
    v_bfe_u32 v4, v0, 4, 2
    v_lshl_add_u32 v5, v4, 2, v2
    v_lshl_add_u32 v5, v1, 4, v5
    v_lshlrev_b32 v5, 7, v5
    v_bfe_u32 v6, v0, 5, 1
    v_xor_b32 v6, v6, v1
    v_and_b32 v7, 1, v4
    v_lshl_or_b32 v6, v6, 1, v7
    v_lshlrev_b32 v6, 5, v6
    v_and_b32 v7, 3, v0
    v_lshl_or_b32 v6, v7, 3, v6
    v_or_b32 v5, v5, v6
    s_lshr_b32 s{sT}, s{sW}, 1
    s_lshl_b32 s{sT}, s{sT}, 14
    s_add_u32 s{sT}, s{sT}, {L_W2}
    v_add_u32 v{vVA}, s{sT}, v5
    """)
def b_setup():
    a(f"""; layer 0: gate/up blocks [128 rows x 64 cols]; the 4th column group of an odd group does not exist
s_and_b32 s{sM}, s{sCG}, 3
s_lshr_b32 s{sT}, s{sG}, 1
s_mul_i32 s{sT}, s{sT}, 7
s_and_b32 s{sT2}, s{sG}, 1
s_lshl_b32 s{sM+1}, s{sT2}, 2
s_add_u32 s{sT}, s{sT}, s{sM+1}
s_add_u32 s{sT}, s{sT}, s{sM}
s_lshl_b32 s{sT}, s{sT}, 7
s_mul_i32 s{sM+1}, s{sKQ}, {128*3584}
s_add_u32 s{sT}, s{sT}, s{sM+1}
s_add_u32 s{sWG}, s{sWG}, s{sT}
s_addc_u32 s{sWG+1}, s{sWG+1}, 0
s_add_u32 s{sWU}, s{sWU}, s{sT}
s_addc_u32 s{sWU+1}, s{sWU+1}, 0
s_lshl_b32 s{sT2}, s{sT2}, 2
s_or_b32 s{sT2}, s{sT2}, s{sM}
s_lshr_b32 s{sT}, s{sM}, 1
s_lshl_b32 s{sT}, s{sT}, 2
s_add_u32 s{sT}, s{sT}, s{sKQ}
s_lshl_b32 s{sT}, s{sT}, 10
s_and_b32 s{sM}, s{sM}, 1
s_lshl_b32 s{sM}, s{sM}, 8
s_add_u32 s{sT}, s{sT}, s{sM}
s_lshl_b32 s{sM}, s{sW}, 6
s_add_u32 s{sT}, s{sT}, s{sM}
s_add_u32 s{sT}, s{sT}, {HP}
v_add_u32 v{vPUBA}, s{sT}, v{vB16}
s_lshl_b32 s{sT}, s{sA4}, 4
s_add_u32 s{sT}, s{sT}, {HS}
v_mov_b32 v{vHSA}, s{sT}
s_mov_b32 s{sDUM}, s{sT2}
s_movk_i32 s{sT}, 3584
v_mul_lo_u32 v{vVA}, v{vROW}, s{sT}
v_add_u32 v{vVA}, v{vVA}, v{vPC16}""")
def b_issue(skip, parts="gu"):
    a(f"s_cmp_eq_u32 s{sDUM}, 7\ns_cbranch_scc1 {skip}")
    if "g" in parts: dma(sWG, vVA, L_W2, 4, 32 * 3584)
    if "u" in parts: dma(sWU, vVA, L_W2 + 0x4000, 4, 32 * 3584)
OA_TXT = f"v_add_u32 v{vOA}, s{sT2}, v{vL16}" if not RL else "\n".join([
    "v_lshrrev_b32 v7, 1, v2", "v_lshlrev_b32 v7, 9, v7", "v_lshl_add_u32 v7, v1, 5, v7", "v_and_b32 v10, 1, v2",
    "v_lshl_add_u32 v7, v10, 4, v7", f"v_add_u32 v{vOA}, s{sT2}, v7"])
stamp("start")
a(f"""
s_cmp_ge_u32 s2, 256
s_cbranch_scc1 L_end
s_getpc_b64 s[{sSTM}:{sSTM+1}]
L_pc:
s_load_dwordx16 s[4:19], s[0:1], 0
s_load_dwordx8 s[20:27], s[0:1], 64
v_lshlrev_b32 v1, 7, v0
v_min_u32 v1, L_end-L_pc, v1
global_load_dword v{vJUNK}, v1, s[{sSTM}:{sSTM+1}]
v_lshrrev_b32 v3, 6, v0
v_lshrrev_b32 v4, 1, v0
v_readfirstlane_b32 s{sW}, v3
v_xor_b32 v4, v4, v0
v_lshlrev_b32 v5, 1, v4
v_and_b32 v5, 32, v5
v_and_or_b32 v5, v4, 64, v5
v_lshlrev_b32 v11, 4, v0
v_and_b32 v6, 0x70, v11
v_xor_b32 v{vPC16}, v5, v6
v_lshrrev_b32 v{vROW}, 3, v0
v_lshl_add_u32 v7, v{vROW}, 13, v{vPC16}
s_and_b32 s{sG}, s2, 7
s_lshr_b32 s{sI}, s2, 3
s_and_b32 s{sKQ}, s{sI}, 3
s_lshr_b32 s{sCG}, s{sI}, 2
s_lshl_b32 s{sT}, s{sKQ}, 20
s_lshl_b32 s{sT2}, s{sG}, 10
s_lshl3_add_u32 s{sT2}, s{sCG}, s{sT2}
s_lshl_b32 s{sM}, s{sW}, 10
s_add_u32 m0, s{sM}, {L_WQ}
s_mul_i32 s{sA4}, s{sCG}, 120
s_add_u32 s{sT}, s{sT}, s{sT2}
s_add_u32 s{sT}, s{sT}, s{sA4}
s_waitcnt lgkmcnt(0)
s_add_u32 s{sWQ}, s{sWQ}, s{sT}
s_addc_u32 s{sWQ+1}, s{sWQ+1}, 0
""")
stamp("karg")
for j in range(4):
    a(f"global_load_lds_dwordx4 v7, s[{sWQ}:{sWQ+1}] {POL}")
    if j < 3: a(f"s_add_u32 m0, m0, 4096\nv_add_u32 v7, {32*8192}, v7")
a(f"""
s_load_dword s{sNON}, s[{sWS}:{sWS+1}], {NONCE}
v_lshlrev_b32 v5, 1, v0
v_and_b32 v5, 0xe0, v5
v_xor_b32 v{vVA}, v11, v5
{f"v_and_b32 v{vVA}, 0x3ff, v{vVA}" if IL else ""}
{f"v_lshl_add_u32 v{vVA}, v3, 15, v{vVA}" if IL else ""}
s_lshl_b32 s{sT}, s{sG}, 24
s_lshl_b32 s{sT2}, s{sI}, {ISH}
s_add_u32 s{sT}, s{sT}, s{sT2}
s_add_u32 s{sT}, s{sT}, 0xF00000
s_add_u32 s{sV}, s{sV}, s{sT}
s_addc_u32 s{sV+1}, s{sV+1}, 0
s_add_u32 m0, s{sM}, {L_V}
s_add_u32 s{sK}, s{sK}, s{sT}
s_addc_u32 s{sK+1}, s{sK+1}, 0
global_load_lds_dwordx4 v{vVA}, s[{sV}:{sV+1}] {POL}
; x (own quarter and all of it), slot clearing, L2 warm-up of the tagged slots
v_and_b32 v8, 31, v0
v_bfe_u32 v9, v0, 5, 1
v_lshlrev_b32 v8, 3, v8
v_lshl_or_b32 v{vHWR}, v9, 2, v8
s_lshl_b32 s{sT}, s{sKQ}, 8
v_add_u32 v10, s{sT}, v{vHWR}
global_load_dword v{vXW}, v10, s[{sX}:{sX+1}]
v_and_b32 v{vL16}, 0x3f0, v11
global_load_dwordx4 v[20:23], v{vL16}, s[{sX}:{sX+1}]
s_mul_i32 s{sT}, s{sG}, {GS}
s_add_u32 s{sT}, s{sT}, {GB}
s_add_u32 s{RG}, s{sWS}, s{sT}
s_addc_u32 s{RG+1}, s{sWS+1}, 0
s_mul_i32 s{sT}, s{sG}, {TGS}
s_add_u32 s{sT}, s{sT}, {TG}
s_add_u32 s{RT}, s{sWS}, s{sT}
s_addc_u32 s{RT+1}, s{sWS+1}, 0
s_lshl_b32 s{sT}, s{sI}, 10
v_lshl_add_u32 v6, v6, 3, s{sT}
global_load_dword v{vJUNK+1}, v6, s[{RT}:{RT+1}] sc1
v_mov_b32 v12, -1
v_mov_b32 v13, -1
v_mov_b32 v14, -1
v_mov_b32 v15, -1
s_mul_i32 s{sT}, s{sI}, {CLR}
v_min_u32 v10, {CLR-16}, v11
v_add_u32 v10, s{sT}, v10
global_store_dwordx4 v10, v[12:15], s[{RG}:{RG+1}]
s_cmp_eq_u32 s{sW}, 3
s_cbranch_scc0 L_clrd
s_mul_i32 s{sT}, s{sI}, 640
s_add_u32 s{sT}, s{sT}, {XR}
v_min_u32 v10, 624, v{vL16}
v_add_u32 v10, s{sT}, v10
global_store_dwordx4 v10, v[12:15], s[{RG}:{RG+1}] sc1
L_clrd:
""")
NV1 = int(opts["v1"])
for j in range(1, NV1):
    a(f"s_add_u32 m0, m0, 4096\nv_add_u32 v{vVA}, {VSTEP}, v{vVA}\nglobal_load_lds_dwordx4 v{vVA}, s[{sV}:{sV+1}] {POL}")
a(f"""
v_and_b32 v1, 15, v0
v_bfe_u32 v2, v0, 4, 2
""")
stamp("iss")
a(f"""
s_mov_b32 s{RG+2}, 0x20000
s_mov_b32 s{RG+3}, 0x20000
s_mov_b64 s[{RX}:{RX+1}], s[{sWS}:{sWS+1}]
s_mov_b32 s{RX+2}, {WSSIZE}
s_mov_b32 s{RX+3}, 0x20000
s_mov_b32 s{RT+2}, {2*BOFF}
s_mov_b32 s{RT+3}, 0x20000
s_mov_b32 s{sLAY}, 0
s_mov_b32 s{sALT}, 1
s_mov_b32 s{sNF}, 1
s_mov_b32 s{sTH}, 0x42000000
s_movk_i32 s{sTRY}, 64
s_mov_b32 s{sSPIN}, 0x20000
s_mov_b32 s{sQUADM}, 0x11111111
s_mov_b32 s{sQUADM+1}, 0x11111111
s_mov_b32 s{sDM}, 0x00020002
s_mov_b32 s{sDM+1}, 0x00020002
s_mov_b32 s{sPUBM}, 0x00110011
s_mov_b32 s{sPUBM+1}, 0x00110011
s_lshl_b32 s{sT}, s{sW}, 4
s_lshl_b64 s[{sMLM}:{sMLM+1}], 1, s{sT}
s_and_b32 s{sA4}, s{sI}, 15
s_or_b32 s{sT}, s{sG}, s{sCG}
s_cmp_eq_u32 s{sT}, 0
s_cselect_b32 s{sFIN}, 1, 0
s_mov_b32 s{sSTM}, 0
s_brev_b32 s{sSTM+1}, 1
s_lshr_b32 s{sXO}, s{sA4}, 3
s_mul_i32 s{sXO}, s{sXO}, 2560
s_and_b32 s{sT2}, s{sA4}, 7
s_lshl_b32 s{sT2}, s{sT2}, 8
s_add_u32 s{sXO}, s{sXO}, s{sT2}
""")
for gp in range(8):
    a(f"s_mov_b32 s{sGO+gp}, {gp*GS}")
a(f"""
v_bfe_u32 v3, v0, 2, 2
v_and_b32 v4, 3, v0
v_lshrrev_b32 v{vL8}, 1, v{vL16}
v_lshlrev_b32 v{vB16}, 4, v2
v_add_u32 v5, 256, v{vB16}
v_cmp_eq_u32 vcc, 1, v3
v_mov_b32 v{vXWR}, v{vHWR}
v_mov_b32 v{vONE}, {ONES}
v_cndmask_b32 v{vXRD}, v{vB16}, v5, vcc
v_lshlrev_b32 v5, 1, v8
s_lshl_b32 s{sT}, s{sKQ}, 9
v_add_u32 v{vGA}, s{sT}, v5
v_mul_u32_u24 v6, 2560, v9
v_add_u32 v{vGA}, v{vGA}, v6
s_lshr_b32 s{sT}, s{sA4}, 3
s_lshl_b32 s{sT}, s{sT}, 12
s_add_u32 s{sT}, s{sT}, {HP}
v_lshl_add_u32 v{vHGA}, v9, 9, v5
v_add_u32 v{vHGA}, s{sT}, v{vHGA}
v_lshlrev_b32 v{vHSA}, 4, v4
v_add_u32 v{vHSA}, {HS}, v{vHSA}
s_lshl_b32 s{sT}, s{sKQ}, 11
s_lshl_b32 s{sT2}, s{sCG}, 8
s_add_u32 s{sT}, s{sT}, s{sT2}
s_lshl_b32 s{sT2}, s{sW}, 6
s_add_u32 s{sT}, s{sT}, s{sT2}
v_add_u32 v{vQPA}, s{sT}, v{vB16}
v_add_u32 v7, {QCS}, v{vQPA}
v_cndmask_b32 v{vQPA}, v{vQPA}, v7, vcc
v_add_u32 v{vQGA}, {QS}, v5
s_lshl_b32 s{sT}, s{sI}, 4
s_add_u32 s{sT}, s{sT}, {QS}
v_mov_b32 v{vQSA}, s{sT}
s_lshr_b32 s{sT}, s{sI}, 4
s_lshl_b32 s{sT}, s{sT}, 12
s_lshl_b32 s{sT2}, s{sW}, 10
s_add_u32 s{sT}, s{sT}, s{sT2}
s_lshl_b32 s{sT2}, s{sA4}, {5 if RL else 4}
s_add_u32 s{sT}, s{sT}, s{sT2}
v_lshlrev_b32 v7, 13, v2
{"v_lshrrev_b32 v10, 1, v3" if RL else ""}
{"v_lshl_add_u32 v7, v10, 9, v7" if RL else "v_lshl_add_u32 v7, v3, 8, v7"}
{"v_and_b32 v10, 1, v3" if RL else ""}
{"v_lshl_add_u32 v7, v10, 4, v7" if RL else ""}
v_add_u32 v{vRECA}, s{sT}, v7
s_lshl_b32 s{sT}, s{sI}, 3
s_add_u32 s{sT}, s{sT}, {ML}
v_lshlrev_b32 v7, 8, v2
v_add_u32 v{vMLA}, s{sT}, v7
s_lshr_b32 s{sT}, s{sA4}, 3
s_lshl_b32 s{sT}, s{sT}, 2
s_add_u32 s{sT}, s{sT}, s{sW}
s_lshl_b32 s{sT2}, s{sT}, 12
{OA_TXT}
s_lshr_b32 s{sT2}, s{sT}, 1
s_lshl_b32 s{sT2}, s{sT2}, 8
s_add_u32 s{sT2}, s{sT2}, {ML}
s_and_b32 s{sT}, s{sT}, 1
v_and_b32 v7, 1, v3
v_xor_b32 v7, s{sT}, v7
v_lshlrev_b32 v7, 4, v7
v_lshl_add_u32 v7, v2, 2, v7
v_add_u32 v7, v7, v4
v_lshlrev_b32 v7, 3, v7
v_add_u32 v{vOML}, s{sT2}, v7
v_lshl_add_u32 v7, v2, 3, v3
v_lshlrev_b32 v7, 7, v7
v_lshrrev_b32 v10, 1, v2
v_xor_b32 v10, v10, v2
v_and_b32 v10, 1, v10
v_lshrrev_b32 v11, 1, v3
v_lshl_or_b32 v10, v10, 1, v11
v_lshlrev_b32 v10, 5, v10
v_lshl_or_b32 v10, v4, 3, v10
v_or_b32 v{vTR0}, v7, v10
v_mul_u32_u24 v{vQRD}, {QH}, v3
v_add_u32 v{vQRD}, v{vQRD}, v{vB16}
v_lshl_add_u32 v{vPRD}, v3, 6, v{vB16}
s_lshl_b32 s{sT}, s{sW}, 8
v_add_u32 v{vPWR}, s{sT}, v{vPRD}
v_lshrrev_b32 v7, 1, v2
v_and_b32 v10, 1, v2
v_lshl_or_b32 v7, v10, 1, v7
v_lshlrev_b32 v7, 6, v7
v_lshl_add_u32 v7, v1, 2, v7
v_add_u32 v{vYWR}, s{sT}, v7
s_lshl_b32 s{sT}, s{sW}, 5
v_lshlrev_b32 v7, 3, v2
v_lshl_add_u32 v7, v3, 7, v7
v_add_u32 v{vMWR}, s{sT}, v7
v_lshlrev_b32 v7, 3, v1
v_lshl_add_u32 v{vMRD}, v2, 7, v7
s_lshl_b32 s{sT}, s{sW}, 7
v_lshl_add_u32 v7, v1, 6, v{vB16}
v_add_u32 v{vDPA}, s{sT}, v7
v_mov_b32 v{vPUBA}, 0
v_mov_b32 v{vQL}, 0
v_mov_b32 v{vMASK}, 0xffffff00
v_mov_b32 v{vMASK+2}, 255
v_lshrrev_b32 v11, 1, v{vL8}
ds_write_b32 v11, v{vONE} offset:{L_X+256}
ds_write_b32 v11, v{vONE} offset:{L_X+768}
s_getreg_b32 s{sT2}, hwreg(HW_REG_XCC_ID)
s_and_b32 s{sT2}, s{sT2}, 15
v_mov_b32 v{vSTG+3}, s{sT2}
s_waitcnt lgkmcnt(0)
s_mul_i32 s{sTAG}, s{sNON}, 0x9E3779B1
s_add_u32 s{sTAG}, s{sTAG}, 0x7F4A7C15
s_and_b32 s{sT0}, s{sTAG}, 255
s_bfe_u32 s{sT0+1}, s{sTAG}, 0x80008
s_bfe_u32 s{sT0+2}, s{sTAG}, 0x80010
s_lshr_b32 s{sT0+3}, s{sTAG}, 24
v_mov_b32 v{vSTG+2}, s{sTAG}
s_lshl_b32 s{sT}, s{sW}, 5
v_xor_b32 v10, s{sT}, v{vTR0}
v_xor_b32 v11, 32, v10
v_add_u32 v11, 512, v11
""")
stamp("setup")
VL = int(opts["vl"])
for j in range(NV1, 8 - VL):
    a(f"s_add_u32 m0, m0, 4096\nv_add_u32 v{vVA}, {VSTEP}, v{vVA}\nglobal_load_lds_dwordx4 v{vVA}, s[{sV}:{sV+1}] {POL}")
KUP = int(opts["kup"])
def kdma(j0, j1):
    for j in range(j0, j1):
        a(f"v_xor_b32 v5, {64*(j&3)}, v{vKA}\nglobal_load_lds_dwordx4 v5, s[{sK}:{sK+1}] {POL}")
        if j < 7: a(f"s_add_u32 m0, m0, 1024\ns_add_u32 s{sK}, s{sK}, {KSTEP}\ns_addc_u32 s{sK+1}, s{sK+1}, 0")
a(f"""v_xor_b32 v{vKA}, v{vB16}, v{vL16}
s_lshl_b32 s{sT}, s{sW}, {KWSH}
v_add_u32 v{vKA}, s{sT}, v{vKA}""")
if not VL: a(f"s_lshl_b32 s{sT}, s{sW}, 13\ns_add_u32 m0, s{sT}, {L_K}")
kdma(0, KUP)
stamp("iss2")
a(f"""
s_waitcnt vmcnt({7 + KUP - VL})
v_dot2_f32_bf16 v24, v20, v{vONE}, 0
v_dot2_f32_bf16 v25, v20, v20, 0
v_dot2_f32_bf16 v24, v21, v{vONE}, v24
v_dot2_f32_bf16 v25, v21, v21, v25
v_dot2_f32_bf16 v24, v22, v{vONE}, v24
v_dot2_f32_bf16 v25, v22, v22, v25
v_dot2_f32_bf16 v24, v23, v{vONE}, v24
v_dot2_f32_bf16 v25, v23, v23, v25
v_lshlrev_b32 v{vR0}, 16, v{vXW}
v_and_b32 v{vR1}, 0xffff0000, v{vXW}
s_nop 0
""")
for r_ in (1, 2, 4, 8):
    a(f"v_add_f32_dpp v24, v24, v24 row_ror:{r_} {DPPALL}\nv_add_f32_dpp v25, v25, v25 row_ror:{r_} {DPPALL}\ns_nop 0")
for sw in (32, 16):
    a(f"""v_mov_b32 v26, v24
    v_mov_b32 v27, v25
    s_nop 0
    v_permlane{sw}_swap_b32 v24, v26
    v_permlane{sw}_swap_b32 v25, v27
    v_add_f32 v24, v24, v26
    v_add_f32 v25, v25, v27""")
a(f"""
v_mul_f32 v24, {f32(-1/512)}, v24
v_mul_f32 v25, {f32(1/512)}, v25
v_fma_f32 v25, -v24, v24, v25
v_max_f32 v25, 0, v25
v_add_f32 v25, {f32(1e-5)}, v25
v_rsq_f32 v25, v25
v_add_f32 v26, v24, v{vR0}
v_add_f32 v27, v24, v{vR1}
v_mul_f32 v25, {f32(QSCALE)}, v25
v_mul_f32 v26, v26, v25
v_mul_f32 v27, v27, v25
v_cvt_pk_bf16_f32 v{vXW}, v26, v27
ds_write_b32 v{vXWR}, v{vXW}
s_barrier
""")
stamp("wq")
if STAMP: a(f"v_mov_b32 v{vSTMP}, 0")
trW(aWQ, L_WQ, 10, 11)
a("s_branch L_TQ")

a(f"""
L_G:
""")
if int(opts["xack"]) == 1: a("s_waitcnt vmcnt(0)")
stamp("g0")
a("L_Gp:")
def g_issue():
    for j in range(8):
        a(f"buffer_load_dwordx4 {V4(GB0+4*j)}, v{vGA}, s[{RX}:{RX+3}], s{sGO+j} offen sc1")
g_issue()
a("L_G1:\ns_waitcnt vmcnt(6)")
a(f"v_pk_add_f32 v[40:41], v[{GB0}:{GB0+1}], v[{GB0+4}:{GB0+5}]\nv_pk_add_f32 v[42:43], v[{GB0+2}:{GB0+3}], v[{GB0+6}:{GB0+7}]\nv_max_u32 v44, v{GB0}, v{GB0+4}")
for j in range(2, 8):
    a(f"s_waitcnt vmcnt({7-j})")
    a(f"v_pk_add_f32 v[40:41], v[40:41], v[{GB0+4*j}:{GB0+1+4*j}]\nv_pk_add_f32 v[42:43], v[42:43], v[{GB0+2+4*j}:{GB0+3+4*j}]")
    a(f"v_max_u32 v44, v44, v{GB0+4*j}")
a(f"""
v_cmp_eq_u32 vcc, -1, v44
v_permlane32_swap_b32 v40, v42
v_permlane32_swap_b32 v41, v43
v_add_f32 v40, v40, v42
v_add_f32 v41, v41, v43
v_add_f32 v40, v40, v{vR0}
v_add_f32 v41, v41, v{vR1}
v_cvt_pk_bf16_f32 v{vXW}, v40, v41
ds_write_b32 v{vXWR}, v{vXW}
s_cbranch_vccnz L_Gretry
L_Gok:
""")
stamp("gok")
a(f"""
v_lshlrev_b32 v{vR0}, 16, v{vXW}
v_and_b32 v{vR1}, 0xffff0000, v{vXW}
s_cmp_eq_u32 s{sPH}, 1
s_cbranch_scc1 L_TU
s_cmp_eq_u32 s{sPH}, 0
s_cbranch_scc0 L_Gother
""")

def gemv_stats(step):
    a(f"""v_dot2_f32_bf16 v46, v{vXW}, v{vXW}, 0
    v_dot2_f32_bf16 v47, v{vXW}, v{vONE}, 0
    s_nop 2
    v_permlane32_swap_b32 v47, v46
    v_add_f32 v46, v46, v47
    s_nop 1
    v_add_f32_dpp v46, v46, v46 row_ror:1 {DPPALL}
    s_nop 1
    v_add_f32_dpp v46, v46, v46 row_ror:2 {DPPALL}""")
    rest = [f"v_add_f32_dpp v46, v46, v46 row_ror:4 {DPPALL}", f"v_add_f32_dpp v46, v46, v46 row_ror:8 {DPPALL}",
            "v_add_f32_dpp v46, v46, v46 row_bcast:15 row_mask:0xa bank_mask:0xf",
            f"v_mov_b32 v{vSTG}, v46\nv_mov_b32_dpp v{vSTG+1}, v46 row_bcast:31 row_mask:0xc bank_mask:0xf"]
    for s in range(4):
        a(f"s_waitcnt lgkmcnt({3-s})"); step(s); a(rest[s])
def gemv_plain(step):
    for s in range(4):
        a(f"s_waitcnt lgkmcnt({3-s})"); step(s)

a(f"""
L_TQ:
s_cmp_lg_u32 s{sW}, 0
s_waitcnt lgkmcnt(0)
s_barrier
""")
stamp("xq")
for s in range(4): a(f"ds_read_b128 {V4(8+4*s)}, v{vXRD} offset:{64*s}")
tq_step = lambda s: a(mfma(24, A4(aWQ+4*s), V4(8+4*s), s == 0))
def tq_tail(fl):
    a(f"""s_mov_b64 exec, s[{sPUBM}:{sPUBM+1}]
    s_cmp_lg_u32 s{sW}, 0
    s_nop 3
    buffer_store_dwordx4 v[24:27], v{vQPA}, s[{RG}:{RG+3}], 0 offen{fl}
    s_cbranch_scc1 L_S
    s_mov_b64 exec, s[{sSTM}:{sSTM+1}]
    buffer_store_dwordx2 v[{vSTG}:{vSTG+1}], v{vQSA}, s[{RG}:{RG+3}], 0 offen{fl}
    s_mov_b64 exec, -1""")
a("s_cbranch_scc1 L_TQw")
gemv_stats(tq_step)
a(f"""s_cmp_eq_u32 s{sALT}, 0
s_cbranch_scc0 L_TQalt
s_mov_b64 exec, s[{sPUBM}:{sPUBM+1}]
s_nop 2
buffer_store_dwordx4 v[24:27], v{vQPA}, s[{RG}:{RG+3}], 0 offen
s_mov_b64 exec, s[{sSTM}:{sSTM+1}]
buffer_store_dwordx2 v[{vSTG}:{vSTG+1}], v{vQSA}, s[{RG}:{RG+3}], 0 offen
s_mov_b64 exec, -1""")
stamp("qpub")
QPI = int(opts["qp"])
def q_issue(B, S):
    a(f"buffer_load_dwordx2 v[{S}:{S+1}], v{vQGA}, s[{RG}:{RG+3}], 0 offen sc1")
    for u in range(2):
        for k in range(4):
            so = "0" if k < 2 else f"s{sT}"
            a(f"buffer_load_dwordx4 {V4(B+16*u+4*k)}, v{vQL}, s[{RG}:{RG+3}], {so} offen offset:{(k&1)*2048+u*1024} sc1")
def q_head(S, x, fail):
    a(f"""s_waitcnt vmcnt({8+x})
    v_cmp_eq_u32 vcc, -1, v{S}
    v_add_f32_dpp v38, v{S}, v{S} quad_perm:[1,0,3,2] {DPPALL}
    v_add_f32_dpp v39, v{S+1}, v{S+1} quad_perm:[1,0,3,2] {DPPALL}
    s_cbranch_vccnz {fail}""")
def q_body(B, x, fail):
    P = lambda r: f"v[{B+r}:{B+r+1}]"
    a(f"""
    v_add_f32_dpp v38, v38, v38 quad_perm:[2,3,0,1] {DPPALL}
    v_add_f32_dpp v39, v39, v39 quad_perm:[2,3,0,1] {DPPALL}
    v_mul_f32 v38, {f32(1/512)}, v38
    v_mul_f32 v46, {f32(-1/512)}, v39
    v_fma_f32 v38, -v46, v46, v38
    v_max_f32 v38, 0, v38
    v_add_f32 v38, {f32(1e-5)}, v38
    v_rsq_f32 v38, v38
    s_waitcnt vmcnt({6+x})
    v_pk_add_f32 v[40:41], {P(0)}, {P(4)}
    v_pk_add_f32 v[42:43], {P(2)}, {P(6)}
    v_mul_f32 v38, {f32(QSCALE)}, v38
    s_waitcnt vmcnt({5+x})
    v_pk_add_f32 v[40:41], v[40:41], {P(8)}
    v_pk_add_f32 v[42:43], v[42:43], {P(10)}
    v_max3_u32 v44, v{B}, v{B+4}, v{B+8}
    v_pk_fma_f32 v[40:41], v[{vQCS}:{vQCS+1}], v[46:47], v[40:41] op_sel_hi:[1,0,1]
    v_pk_fma_f32 v[42:43], v[{vQCS+2}:{vQCS+3}], v[46:47], v[42:43] op_sel_hi:[1,0,1]
    s_waitcnt vmcnt({3+x})
    v_pk_add_f32 v[40:41], v[40:41], {P(12)}
    v_pk_add_f32 v[42:43], v[42:43], {P(14)}
    v_max3_u32 v44, v44, v{B+12}, v{B+16}
    v_pk_fma_f32 v[24:25], v[{vQCS+4}:{vQCS+5}], v[46:47], {P(16)} op_sel_hi:[1,0,1]
    v_pk_fma_f32 v[26:27], v[{vQCS+6}:{vQCS+7}], v[46:47], {P(18)} op_sel_hi:[1,0,1]
    v_pk_mul_f32 v[40:41], v[40:41], v[38:39] op_sel_hi:[1,0]
    v_pk_mul_f32 v[42:43], v[42:43], v[38:39] op_sel_hi:[1,0]
    s_waitcnt vmcnt({2+x})
    v_pk_add_f32 v[24:25], v[24:25], {P(20)}
    v_pk_add_f32 v[26:27], v[26:27], {P(22)}
    v_cvt_pk_bf16_f32 v40, v40, v41
    v_cvt_pk_bf16_f32 v41, v42, v43
    s_waitcnt vmcnt({1+x})
    v_pk_add_f32 v[24:25], v[24:25], {P(24)}
    v_pk_add_f32 v[26:27], v[26:27], {P(26)}
    ds_write_b64 v{vMODE}, v[40:41] offset:{L_QB}
    v_max3_u32 v44, v44, v{B+20}, v{B+24}
    s_waitcnt vmcnt({x})
    v_pk_add_f32 v[24:25], v[24:25], {P(28)}
    v_pk_add_f32 v[26:27], v[26:27], {P(30)}
    v_pk_mul_f32 v[24:25], v[24:25], v[38:39] op_sel_hi:[1,0]
    v_pk_mul_f32 v[26:27], v[26:27], v[38:39] op_sel_hi:[1,0]
    v_cvt_pk_bf16_f32 v24, v24, v25
    v_cvt_pk_bf16_f32 v25, v26, v27
    ds_write_b64 v{vMODE}, v[24:25] offset:{L_QB+2*QH}
    v_max_u32 v44, v44, v{B+28}
    v_cmp_eq_u32 vcc, -1, v44
    s_cbranch_vccnz {fail}""")
a(f"L_QFe:\ns_movk_i32 s{sT}, 4096")
if not QPI:
    a("L_QFp:"); q_issue(64, 48); q_head(48, 0, "L_QFretry"); a("L_QF2:"); stamp("qf2"); q_body(64, 0, "L_QF2retry")
else:
    q_issue(144, 50)
    a("L_QFp:"); q_issue(64, 48); q_head(50, 9, "L_QFn"); q_body(144, 9, "L_QFn"); a("s_branch L_S\nL_QFn:")
    q_issue(144, 50); q_head(48, 9, "L_QFretry"); stamp("qf2"); q_body(64, 9, "L_QFretry")
stamp("qfok")
a(f"""
L_S:
s_mov_b64 exec, -1
s_waitcnt lgkmcnt(0)
s_barrier
""")
stamp("q")
for s in range(4): a(f"ds_read_b128 {V4(8+4*s)}, v{vQRD} offset:{L_QB + 64*s}")
for s in range(4):
    a(f"s_waitcnt lgkmcnt({LG(3-s)})")
    for t in range(2): a(mfma(24+4*t, A4(aK+16*t+4*s), V4(8+4*s), s == 0))
a(f"""
v_mov_b32 v32, 0
s_nop 5
""")
stamp("smm")
for k in range(8): a(f"v_exp_f32 v{40+k}, v{24+k}")
def p_tail():
    a(f"""
    v_cvt_pk_bf16_f32 v36, v40, v41
    v_cvt_pk_bf16_f32 v37, v42, v43
    v_cvt_pk_bf16_f32 v38, v44, v45
    v_cvt_pk_bf16_f32 v39, v46, v47
    s_mov_b64 exec, s[{sQUADM}:{sQUADM+1}]
    ds_write_b128 v{vPWR}, v[36:39] offset:{L_PB}
    v_dot2_f32_bf16 v33, v36, v{vONE}, 0
    v_dot2_f32_bf16 v33, v37, v{vONE}, v33
    v_dot2_f32_bf16 v33, v38, v{vONE}, v33
    v_dot2_f32_bf16 v33, v39, v{vONE}, v33""")
p_tail()
a(f"""
v_max3_f32 v34, v24, v25, v26
v_max3_f32 v35, v27, v28, v29
v_max3_f32 v34, v34, v30, v31
ds_write_b64 v{vMWR}, v[32:33] offset:{L_MB}
v_max_f32 v34, v34, v35
v_cmp_nle_f32 vcc, |v34|, s{sTH}
s_cbranch_vccnz L_Sbig
L_Sp:
s_mov_b64 exec, -1
s_cmp_eq_u32 s{sNF}, 0
s_waitcnt lgkmcnt(0)
s_barrier
""")
stamp("p")
for w in range(4): a(f"ds_read_b128 {V4(8+4*w)}, v{vPRD} offset:{L_PB + 256*w}")
a(f"ds_read_b64 v[32:33], v{vMRD} offset:{L_MB}")
for w in range(4):
    a(f"s_waitcnt lgkmcnt({LG(4-w)})")
    for c in range(2): a(mfma(24+4*c, V4(8+4*w), A4(aV+8*w+4*c), w == 0))
a(f"""
s_waitcnt lgkmcnt(0)
v_add_f32_dpp v35, v33, v33 row_ror:1 {DPPALL}
v_cmp_neq_f32 vcc, 0, v32
v_mov_b32 v34, 0
v_add_f32_dpp v35, v35, v35 row_ror:2 {DPPALL}
s_cbranch_vccnz L_PVbig
s_nop 0
v_add_f32_dpp v35, v35, v35 row_ror:4 {DPPALL}
v_cvt_pk_bf16_f32 v36, v24, v28
s_nop 0
v_add_f32_dpp v35, v35, v35 row_ror:8 {DPPALL}
L_PVt:
v_mov_b32_dpp v37, v36 quad_perm:[1,1,1,1] {DPPALL}
v_mov_b32_dpp v38, v36 quad_perm:[2,2,2,2] {DPPALL}
v_mov_b32_dpp v39, v36 quad_perm:[3,3,3,3] {DPPALL}
s_mov_b64 exec, s[{sQUADM}:{sQUADM+1}]
s_cbranch_scc0 L_RECsafe
""")
def rec_tail(fl):
    a(f"""buffer_store_dwordx4 v[36:39], v{vRECA}, s[{RG}:{RG+3}], 0 offen{fl}
    s_mov_b64 exec, s[{sMLM}:{sMLM+1}]
    buffer_store_dwordx2 v[34:35], v{vMLA}, s[{RG}:{RG+3}], 0 offen{fl}""")
rec_tail("")
a(f"""L_RECd:
s_mov_b64 exec, -1""")
stamp("rec")
a(f"""
s_cmp_ge_u32 s{sI}, 16
s_cbranch_scc1 L_B
""")
a(f"""
s_cmp_eq_u32 s{sLAY}, 0
s_cbranch_scc0 L_O
""")
if opts["wo2"] == "all": wo_issue()
if opts["wo2"] == "rec":
    a(f"s_cmp_eq_u32 s{sW}, 0\ns_cbranch_scc0 L_W0")
    wo_issue()
    a("L_W0:")
WP = int(opts["wp"])
def wo_reads(steps):
    for t in range(4):
        a(f"v_xor_b32 v6, {32*t}, v{vVA}\nv_xor_b32 v7, 32, v6\nv_add_u32 v7, 256, v7")
        for s in steps:
            d = aW2 + 16*t + 4*s
            a(f"ds_read_b64_tr_b16 a[{d}:{d+1}], v6 offset:{s*4096}\nds_read_b64_tr_b16 a[{d+2}:{d+3}], v7 offset:{s*4096}")
def oloads(gap):
    a(f"buffer_load_dwordx2 v[4:5], v{vOML}, s[{RG}:{RG+3}], 0 offen sc1")
    for s in range(4):
        a(f"buffer_load_dwordx4 {V4(8+4*s)}, v{vOA}, s[{RG}:{RG+3}], 0 offen offset:{1024*s} sc1")
        if gap and s < 3: a(f"s_nop {gap-1}")
if not WP:
    a("s_waitcnt vmcnt(2)"); stamp("wl"); a("s_barrier"); stamp("wb"); wo_reads(range(4)); stamp("wt")
else:
    a("s_waitcnt vmcnt(4)\ns_barrier")
    oloads(0)
    wo_reads(range(3))
    a("s_waitcnt vmcnt(7)\ns_barrier")
    wo_reads([3])
    a("s_branch L_O1")
OM = opts["om"]
a("L_O:")
if OM == "ack": a("s_waitcnt vmcnt(0)")
if OM in ("bell", "bell2"):
    a(f"""L_Ob:
    buffer_load_dwordx2 v[4:5], v{vOML}, s[{RG}:{RG+3}], 0 offen sc1
    s_waitcnt vmcnt(0)
    v_cmp_eq_u32 vcc, -1, v5
    s_cbranch_vccnz L_Obretry""")
a("L_Op:")
oloads(int(opts["og"]))
a("L_O1:")
mo = lambda t, s: mfma(24+4*t, V4(8+4*s), A4(aW2+16*t+4*s), s == 0)
a(f"""
s_waitcnt vmcnt(4) lgkmcnt(0)
v_cmp_eq_u32 vcc, -1, v5
s_cbranch_vccnz L_Oretry
L_O2:
""")
stamp("o2")
a(f"""
s_waitcnt vmcnt(3)
{mo(0,0)}
{mo(1,0)}
{mo(2,0)}
{mo(3,0)}
s_waitcnt vmcnt(2)
{mo(0,1)}
{mo(1,1)}
{mo(2,1)}
{mo(3,1)}
s_waitcnt vmcnt(1)
{mo(0,2)}
v_add_f32_dpp v6, v5, v5 quad_perm:[1,0,3,2] {DPPALL}
v_max3_u32 v44, v8, v12, v16
{mo(1,2)}
v_add_f32_dpp v6, v6, v6 quad_perm:[2,3,0,1] {DPPALL}
v_cmp_neq_f32 s[{sM}:{sM+1}], 0, v4
{mo(2,2)}
v_add_f32_dpp v6, v6, v6 row_half_mirror {DPPALL}
v_mov_b32 v7, v6
{mo(3,2)}
s_waitcnt vmcnt(0)
v_permlane32_swap_b32 v6, v7
{mo(0,3)}
v_add_f32 v6, v6, v7
v_mov_b32 v7, v6
{mo(1,3)}
v_max_u32 v44, v44, v20
v_permlane16_swap_b32 v6, v7
{mo(2,3)}
v_cmp_eq_u32 vcc, -1, v44
v_add_f32 v6, v6, v7
{mo(3,3)}
v_rcp_f32 v6, v6
s_cbranch_vccnz L_O2retry
L_Ook:
""")
stamp("ook")
a(f"""
s_cmp_lg_u64 s[{sM}:{sM+1}], 0
s_cbranch_scc1 L_Obig
v_pk_add_f32 v[24:25], v[24:25], v[26:27]
v_pk_add_f32 v[28:29], v[28:29], v[30:31]
v_add_f32 v40, v24, v25
v_add_f32 v41, v28, v29
v_pk_add_f32 v[32:33], v[32:33], v[34:35]
v_pk_add_f32 v[36:37], v[36:37], v[38:39]
v_add_f32 v42, v32, v33
v_add_f32 v43, v36, v37
L_Ot:
v_permlane32_swap_b32 v40, v41
v_add_f32 v40, v40, v41
v_permlane32_swap_b32 v42, v43
v_add_f32 v42, v42, v43
s_add_u32 s{sT}, s{sXO}, {X1}
s_cmp_eq_u32 s{sW}, 0
v_permlane16_swap_b32 v40, v42
v_add_f32 v40, v40, v42
v_mul_f32 v40, v40, v6
ds_write_b32 v{vYWR}, v40 offset:{L_YB}
s_waitcnt lgkmcnt(0)
s_barrier
s_cbranch_scc0 L_Odone
s_mov_b64 exec, 0xffff
""")
stamp("ob")
for w in range(4): a(f"ds_read_b128 {V4(8+4*w)}, v{vL16} offset:{L_YB + 256*w}")
a(f"""
s_waitcnt lgkmcnt({LG(2)})
v_pk_add_f32 v[8:9], v[8:9], v[12:13]
v_pk_add_f32 v[10:11], v[10:11], v[14:15]
s_waitcnt lgkmcnt({LG(1)})
v_pk_add_f32 v[8:9], v[8:9], v[16:17]
v_pk_add_f32 v[10:11], v[10:11], v[18:19]
s_waitcnt lgkmcnt(0)
v_pk_add_f32 v[8:9], v[8:9], v[20:21]
v_pk_add_f32 v[10:11], v[10:11], v[22:23]
buffer_store_dwordx4 v[8:11], v{vL16}, s[{RG}:{RG+3}], s{sT} offen sc1
s_mov_b64 exec, -1
L_Odone:
""")
stamp("x1pub")
def xor_acc(base, first, acc=44):
    for k in range(4): a(f"v_xor_b32 v{base+k}, s{sT0+k}, v{base+k}")
    if first:
        a(f"v_or3_b32 v{acc}, v{base}, v{base+1}, v{base+2}\nv_or_b32 v{acc}, v{acc}, v{base+3}")
    else:
        a(f"v_or3_b32 v{acc}, v{acc}, v{base}, v{base+1}\nv_or3_b32 v{acc}, v{acc}, v{base+2}, v{base+3}")
def wd_base(own):
    a(f"""s_lshr_b32 s{sT}, s{sG}, 1
    s_mul_i32 s{sT}, s{sT}, 7
    s_and_b32 s{sT2}, s{sG}, 1
    s_lshl_b32 s{sM}, s{sT2}, 2
    s_add_u32 s{sT}, s{sT}, s{sM}
    s_lshr_b32 s{sM}, s{sA4}, 3
    s_and_b32 s{sT2}, s{sT2}, s{sM}
    s_lshl_b32 s{sM}, s{sM}, 1
    s_add_u32 s{sT}, s{sT}, s{sM}
    s_lshl_b32 s{sT}, s{sT}, 16
    s_and_b32 s{sM}, s{sA4}, 7
    s_lshl_b32 s{sM}, s{sM}, 1
    {f"s_add_u32 s{sM}, s{sM}, s{sW}" if own else ""}
    s_lshl_b32 s{sM}, s{sM}, 6
    s_add_u32 s{sT}, s{sT}, s{sM}
    s_add_u32 s{sWD}, s{sWD}, s{sT}
    s_addc_u32 s{sWD+1}, s{sWD+1}, 0
    s_lshl_b32 s{sT2}, s{sT2}, 16""")
def wd_issue():
    wd_base(True)
    a(f"""s_lshl_b32 s{sT}, s{sW}, 13
    s_add_u32 m0, s{sT}, {L_WD}
    v_bfe_u32 v4, v0, 2, 4
    v_and_b32 v5, 32, v0
    v_and_b32 v6, 48, v{vL16}
    v_xor_b32 v5, v5, v6
    v_lshl_add_u32 v4, v4, 10, v5""")
    for j in range(8):
        a(f"global_load_lds_dwordx4 v4, s[{sWD}:{sWD+1}] {POL}")
        if j < 7: a(f"s_add_u32 m0, m0, 1024\nv_add_u32 v4, 0x4000, v4")
        if j == 3: a(f"v_subrev_u32 v4, s{sT2}, v4")
    a(f"""v_bfe_u32 v4, v0, 2, 2
    v_bfe_u32 v5, v0, 4, 2
    v_lshl_add_u32 v4, v5, 3, v4
    v_lshlrev_b32 v4, 6, v4
    v_and_b32 v5, 1, v5
    v_lshl_add_u32 v4, v5, 5, v4
    v_and_b32 v5, 3, v0
    v_lshl_add_u32 v4, v5, 3, v4
    v_add_u32 v6, s{sT}, v4
    v_xor_b32 v7, 32, v6""")
def wd_reads():
    for t in range(2):
        for s_ in range(4):
            for e in range(2):
                r = aWD + 16*t + 4*s_ + 2*e
                a(f"ds_read_b64_tr_b16 a[{r}:{r+1}], v{6+t} offset:{L_WD + s_*2048 + e*256}")
def qc_gather():
    l3 = a.label("QC"); l4 = a.label("QC")
    a(f"""s_mul_i32 s{sT2}, s{sNF}, {BOFF}
    s_mul_i32 s{sT}, s{sG}, {TGS}
    s_add_u32 s{sT2}, s{sT2}, s{sT}
    s_add_u32 s{sT2}, s{sT2}, {TG}
    s_add_u32 s{RT}, s{sWS}, s{sT2}
    s_addc_u32 s{RT+1}, s{sWS+1}, 0
    {l3}:""")
    for k in range(4):
        a(f"s_mov_b32 s{sT2}, {QCS + k*2048}")
        for u in range(2):
            a(f"buffer_load_dwordx4 {V4(8+16*u+4*k)}, v{vL16}, s[{RT}:{RT+3}], s{sT2} offen offset:{u*1024} sc1")
    a("s_waitcnt vmcnt(0)")
    for u in range(2):
        for k in range(4): xor_acc(8+16*u+4*k, u == 0 and k == 0)
        for h in range(2):
            r = 8 + 16*u + 2*h
            a(f"v_pk_add_f32 v[{r}:{r+1}], v[{r}:{r+1}], v[{r+4}:{r+5}]\nv_pk_add_f32 v[{r+8}:{r+9}], v[{r+8}:{r+9}], v[{r+12}:{r+13}]")
            a(f"v_pk_add_f32 v[{vQCS+4*u+2*h}:{vQCS+4*u+2*h+1}], v[{r}:{r+1}], v[{r+8}:{r+9}]")
    a(f"v_and_b32 v44, 255, v44\nv_cmp_ne_u32 vcc, 0, v44\ns_cbranch_vccz {l4}")
    spin(l3, l4)
    a(f"""{l4}:
    ds_write_b128 v{vL16}, {V4(vQCS)} offset:{L_CS}
    ds_write_b128 v{vL16}, {V4(vQCS+4)} offset:{L_CS+1024}""")
BELL = int(opts["bell"])
def bell_ring(off):
    l1 = a.label("BR"); l2 = a.label("BR")
    a(f"""s_lshl_b32 s{sT2}, s{sA4}, 4
    s_add_u32 s{sT2}, s{sT2}, {BL + off}
    v_mov_b32 v1, 0
    s_mov_b64 exec, 1
    s_cmp_eq_u32 s{sNF}, 0
    {"s_waitcnt vmcnt(0)" if int(opts["bx2" if off else "bx"]) < 0 else ""}
    s_cbranch_scc0 {l1}
    buffer_store_dword v1, v1, s[{RG}:{RG+3}], s{sT2} offen
    {l2}:
    s_mov_b64 exec, -1""")
    tails.append(f"{l1}:\nbuffer_store_dword v1, v1, s[{RG}:{RG+3}], s{sT2} offen sc1\ns_branch {l2}")
tails = []
def bell_wait(off=0):
    if not BELL: return
    l1 = a.label("BW"); l2 = a.label("BW")
    if off == 0 and not int(opts["bell0"]): a(f"s_cmp_eq_u32 s{sLAY}, 0\ns_cbranch_scc1 {l2}")
    a(f"""s_lshl_b32 s{sT2}, s{sA4}, 4
    s_add_u32 s{sT2}, s{sT2}, {BL + off}
    v_mov_b32 v1, 0
    {l1}:
    buffer_load_dword v2, v1, s[{RG}:{RG+3}], s{sT2} offen sc1
    s_waitcnt vmcnt(0)
    v_cmp_eq_u32 vcc, -1, v2
    s_cbranch_vccz {l2}""")
    spin(l1, l2)
    a(f"{l2}:")
    bx = int(opts["bx2" if off else "bx"])
    if bx > 0: a(f"s_sleep {bx}")
def gd_wait(off=0):
    l1 = a.label("GD"); l2 = a.label("GD")
    a(f"""v_and_b32 v1, 7, v0
    v_lshlrev_b32 v1, 7, v1
    v_add_u32 v1, {GD + off*16}, v1
    {l1}:
    global_load_dword v2, v1, s[{sWS}:{sWS+1}] sc1
    s_waitcnt vmcnt(0)
    v_cmp_ne_u32 vcc, s{sTAG}, v2
    s_cbranch_vccz {l2}""")
    spin(l1, l2)
    a(f"{l2}:")
def set_rx(off):
    a(f"""v_add_u32 v{vXWR}, {512 if off == X1 else 0}, v{vHWR}
    s_mul_i32 s{sT}, s{sLAY}, {XLS}
    s_add_u32 s{sT}, s{sT}, {off + GB}
    s_add_u32 s{RX}, s{sWS}, s{sT}
    s_addc_u32 s{RX+1}, s{sWS+1}, 0""")
def next_layer():
    a(f"""s_add_u32 s{RG}, s{RG}, {LS}
    s_addc_u32 s{RG+1}, s{RG+1}, 0
    s_sub_u32 s{sXO}, s{sXO}, {LS - XLS}
    s_mov_b32 s{sALT}, s{sNF}
    s_movk_i32 s{sQH}, {QH}
    v_add_u32 v{vQL}, {QP1 - LS}, v{vL16}
    s_lshl_b32 s{sT2}, s{sKQ}, 11
    s_lshl_b32 s{sM}, s{sCG}, 8
    s_add_u32 s{sT2}, s{sT2}, s{sM}
    s_lshl_b32 s{sM}, s{sW}, 6
    s_add_u32 s{sT2}, s{sT2}, s{sM}
    s_add_u32 s{sT2}, s{sT2}, {QP1 - LS}
    v_add_u32 v{vQPA}, s{sT2}, v{vB16}
    v_and_b32 v1, 0xf8, v{vL8}
    v_add_u32 v{vQGA}, {QS1 - LS}, v1
    v_bfe_u32 v2, v0, 5, 1
    v_mad_u32_u24 v{vMODE}, v2, s{sQH}, v1
    s_lshl_b32 s{sT2}, s{sI}, 3
    s_add_u32 s{sT2}, s{sT2}, {QS1 - LS}
    v_mov_b32 v{vQSA}, s{sT2}
    s_mov_b32 s{sPUBM}, 0x00010001
    s_mov_b32 s{sPUBM+1}, 0x00010001
    s_mov_b32 s{sLAY}, 1""")
a(f"""
s_cmp_eq_u32 s{sW}, 0
s_cbranch_scc0 L_Aside
""")
if BELL and int(opts["bell0"]): bell_ring(0)
a(f"""
s_cmp_eq_u32 s{sLAY}, 0
s_cbranch_scc0 L_Dq
""")
wd_issue()
a(f"""
s_waitcnt vmcnt(0)
""")
wd_reads()
stamp("wd")
a(f"""
s_mov_b32 s{sT}, {HCS - HP}
L_HC:
""")
for k in range(4): a(f"buffer_load_dwordx4 {V4(8+4*k)}, v{vHGA}, s[{RG}:{RG+3}], s{sT} offen offset:{1024*k} sc1")
a(f"""
s_waitcnt vmcnt(0)
v_max3_u32 v44, v8, v12, v16
v_max_u32 v44, v44, v20
v_cmp_eq_u32 vcc, -1, v44
v_pk_add_f32 v[8:9], v[8:9], v[12:13]
v_pk_add_f32 v[10:11], v[10:11], v[14:15]
v_pk_add_f32 v[16:17], v[16:17], v[20:21]
v_pk_add_f32 v[18:19], v[18:19], v[22:23]
v_pk_add_f32 v[{vHCS}:{vHCS+1}], v[8:9], v[16:17]
v_pk_add_f32 v[{vHCS+2}:{vHCS+3}], v[10:11], v[18:19]
s_cbranch_vccz L_Dp0
""")
spin("L_HC", "L_Dp")
a("L_Dq:")
if BELL and not int(opts["bell0"]): bell_ring(0)
if int(opts["sd"]): a(f"s_sleep {opts['sd']}")
a("L_Dp0:")
stamp("hc")
DP = int(opts["dp"])
def d_issue(B, S):
    a(f"buffer_load_dwordx2 v[{S}:{S+1}], v{vHSA}, s[{RG}:{RG+3}], 0 offen sc1")
    for k in range(4): a(f"buffer_load_dwordx4 {V4(B+4*k)}, v{vHGA}, s[{RG}:{RG+3}], 0 offen offset:{1024*k} sc1")
def d_head(S, x, fail):
    a(f"""s_waitcnt vmcnt({4+x})
    v_cmp_eq_u32 vcc, -1, v{S}
    v_add_f32_dpp v46, v{S}, v{S} quad_perm:[1,0,3,2] {DPPALL}
    v_add_f32_dpp v47, v{S+1}, v{S+1} quad_perm:[1,0,3,2] {DPPALL}
    s_cbranch_vccnz {fail}""")
def d_body(B, x, fail):
    a(f"""
    v_add_f32_dpp v46, v46, v46 quad_perm:[2,3,0,1] {DPPALL}
    v_add_f32_dpp v47, v47, v47 quad_perm:[2,3,0,1] {DPPALL}
    v_mul_f32 v45, {f32(1/512)}, v46
    v_mul_f32 v46, {f32(-1/512)}, v47
    v_fma_f32 v45, -v46, v46, v45
    v_max_f32 v45, 0, v45
    v_add_f32 v45, {f32(1e-5)}, v45
    v_rcp_f32 v45, v45
    s_waitcnt vmcnt({2+x})
    v_max_u32 v44, v{B}, v{B+4}
    v_pk_fma_f32 v[40:41], v[{vHCS}:{vHCS+1}], v[46:47], v[{B}:{B+1}] op_sel_hi:[1,0,1]
    v_pk_fma_f32 v[42:43], v[{vHCS+2}:{vHCS+3}], v[46:47], v[{B+2}:{B+3}] op_sel_hi:[1,0,1]
    """)
    for k in range(1, 4):
        if k > 1: a(f"s_waitcnt vmcnt({3-k+x})")
        a(f"v_pk_add_f32 v[40:41], v[40:41], v[{B+4*k}:{B+4*k+1}]\nv_pk_add_f32 v[42:43], v[42:43], v[{B+4*k+2}:{B+4*k+3}]")
        if k > 1: a(f"v_max_u32 v44, v44, v{B+4*k}")
    a(f"""
    v_cmp_eq_u32 vcc, -1, v44
    v_permlane32_swap_b32 v40, v42
    v_permlane32_swap_b32 v41, v43
    v_mul_f32 v40, v40, v45
    v_mul_f32 v41, v41, v45
    v_mul_f32 v40, v40, v42
    v_mul_f32 v41, v41, v43
    v_cvt_pk_bf16_f32 v40, v40, v41
    ds_write_b32 v{vHWR}, v40 offset:{L_HB}
    s_cbranch_vccnz {fail}""")
if not DP:
    a("L_Dp:"); d_issue(8, 48); d_head(48, 0, "L_Dretry"); a("L_D2:"); stamp("d2"); d_body(8, 0, "L_D2retry")
else:
    a("L_Dp:"); d_issue(64, 48)
    a("L_DpB:"); d_issue(80, 50); d_head(48, 5, "L_Dretry"); a("L_D2:"); stamp("d2"); d_body(64, 5, "L_Dretry")
a(f"""
L_Dm:
s_add_u32 s{sT}, s{sXO}, {X2}
s_cmp_ge_u32 s{sW}, 2
s_waitcnt lgkmcnt(0)
s_barrier
s_cbranch_scc1 {"L_Dwb" if int(opts["wb"]) else "L_Ddone"}
""")
stamp("h")
for s in range(4): a(f"ds_read_b128 {V4(8+4*s)}, v{vB16} offset:{L_HB + 64*s}")
for s in range(4):
    a(f"s_waitcnt lgkmcnt({LG(3-s)})")
    for t in range(2): a(mfma(24+4*t, A4(aWD+16*t+4*s), V4(8+4*s), s == 0))
a(f"""
s_mov_b64 exec, s[{sDM}:{sDM+1}]
s_nop 6
v_mov_b32 v24, v28
v_mov_b32 v25, v29
v_mov_b32 v26, v30
v_mov_b32 v27, v31
s_mov_b32 exec_lo, 0x00030003
s_mov_b32 exec_hi, 0x00030003
buffer_store_dwordx4 v[24:27], v{vDPA}, s[{RG}:{RG+3}], s{sT} offen sc1
s_mov_b64 exec, -1
L_Ddone:
""")
stamp("x2pub")
stamp_flush()
set_rx(X2)
a(f"""
ds_read_b32 v{vXW}, v{vHWR} offset:512
s_waitcnt lgkmcnt(0)
v_lshlrev_b32 v{vR0}, 16, v{vXW}
v_and_b32 v{vR1}, 0xffff0000, v{vXW}
s_cmp_eq_u32 s{sLAY}, 0
s_cbranch_scc1 L_Anext
s_mov_b32 s{sPH}, 3
""")
WX = int(opts.get("wx", 0))
if WX:
    a(f"""s_lshl_b32 s{sT2}, s{sI}, 2
    s_add_u32 s{sT2}, s{sT2}, s{sW}
    s_cmp_eq_u32 s{sT2}, 1
    s_cbranch_scc0 L_nowx
    s_waitcnt vmcnt(0)
    s_sleep {WX}
    buffer_wbl2 sc1
    s_branch L_exit
    L_nowx:""")
a(f"""
s_cmp_eq_u32 s{sFIN}, 1
s_cbranch_scc0 L_exit
s_cmp_eq_u32 s{sW}, 0
s_cbranch_scc0 L_exit
""")
if int(opts["xack"]) == 2: a("s_waitcnt vmcnt(0)")
for _ in range(int(opts["fbell"])):
    if _ == 0: bell_ring(256)
    bell_wait(256)
a(f"""
s_branch L_G
L_Anext:
""")
if int(opts["bell2"]):
    a(f"s_cmp_eq_u32 s{sW}, 0\ns_cbranch_scc0 L_next")
    bell_ring(256)
    if int(opts["abell"]): bell_wait(256)
a(f"""
s_branch L_next
L_Aside:
s_cmp_eq_u32 s{sW}, 2
s_cbranch_scc1 L_A2
s_cmp_eq_u32 s{sW}, 1
s_cbranch_scc0 L_Dm
s_cmp_eq_u32 s{sLAY}, 0
s_cbranch_scc0 L_Dm
""")
wd_issue()
a("s_waitcnt vmcnt(0)")
wd_reads()
a(f"""
s_branch L_Dm
L_A2:
s_mov_b32 s{sPH}, 2
s_cmp_eq_u32 s{sLAY}, 0
s_cbranch_scc1 L_A20
s_cmp_eq_u32 s{sFIN}, 1
s_cbranch_scc0 L_Dm
ds_read_b32 v{vXW}, v{vHWR}
s_waitcnt lgkmcnt(0)
v_lshlrev_b32 v{vR0}, 16, v{vXW}
v_and_b32 v{vR1}, 0xffff0000, v{vXW}
s_branch L_A21
L_A20:
""")
qc_gather()
gd_wait()
a("L_A21:")
bell_wait()
set_rx(X1)
a(f"""
s_branch L_G
L_Gother:
s_cmp_eq_u32 s{sPH}, 2
s_cbranch_scc1 L_Dm
L_final:
s_lshl_b32 s{sT}, s{sKQ}, 8
v_add_u32 v1, s{sT}, v{vHWR}
global_store_dword v1, v{vXW}, s[{sOUT}:{sOUT+1}]{" sc1" if int(opts["wb"]) or int(opts.get("wx", 0)) else ""}
s_cmp_eq_u32 s2, 0
s_cbranch_scc0 L_fin2
s_add_u32 s{sT}, s{sNON}, 1
v_mov_b32 v1, {NONCE}
v_mov_b32 v2, s{sT}
s_mov_b64 exec, 1
global_store_dword v1, v2, s[{sWS}:{sWS+1}]{" sc1" if int(opts["wb"]) or int(opts.get("wx", 0)) else ""}
s_mov_b64 exec, -1
L_fin2:
""")
if STAMP:
    a(f"s_memrealtime s[{sST}:{sST+1}]\ns_waitcnt lgkmcnt(0)\nv_writelane_b32 v{vSTMP}, s{sST}, 16")
    if int(opts.get("dbgout", 0)):
        a(f"""v_writelane_b32 v{vSTMP}, s{sST}, 15
        s_nop 4
        v_readlane_b32 s{sT}, v{vSTMP}, 0
        s_nop 4
        v_subrev_u32 v4, s{sT}, v{vSTMP}
        v_lshrrev_b32 v5, 1, v{vL8}
        s_cmp_eq_u32 s2, 0
        s_cbranch_scc0 L_exit
        s_mov_b64 exec, 0xffff
        global_store_dword v5, v4, s[{sDBG}:{sDBG+1}]
        s_mov_b64 exec, -1""")
a("s_branch L_exit")
a(f"""
L_B:
s_mov_b32 s{sPH}, 1
s_cmp_eq_u32 s{sLAY}, 0
s_cbranch_scc0 L_B1
""")
if opts["gu"] == "rec":
    GSP = int(opts["gs"])
    if GSP:
        a("s_waitcnt vmcnt(2)")
        b_issue("L_Bf", "g"); a("L_Bf:")
    if int(opts["g2"]):
        a(f"""s_cmp_eq_u32 s{sW}, 0
        s_cbranch_scc0 L_Bg
        {f"s_cmp_eq_u32 s{sTRY}, 1" if int(opts["ge"]) else ""}
        {"s_cbranch_scc1 L_Bg" if int(opts["ge"]) else ""}
        {"" if GSP else "s_waitcnt vmcnt(2)"}
        v_cmp_ne_u32 vcc, s{sTAG}, v{vJUNK+3}
        s_cbranch_vccz L_Bg""")
        gd_wait(0 if int(opts["g2q"]) else 64)
        a("L_Bg:\ns_barrier")
    if int(opts["ge"]): a(f"s_cmp_eq_u32 s{sTRY}, 1\ns_cbranch_scc1 L_Bs")
    b_issue("L_Bs", "u" if GSP else "gu")
a(f"""L_Bs:
s_mov_b32 s{sPUBM}, 0x00010001
s_mov_b32 s{sPUBM+1}, 0x00010001
v_and_b32 v1, 7, v0
v_lshlrev_b32 v1, 7, v1
v_add_u32 v1, {GD}, v1
global_load_dword v{vJUNK+2}, v1, s[{sWS}:{sWS+1}] sc1
s_cmp_eq_u32 s{sW}, 3
s_cbranch_scc0 L_Bu""")
wd_base(False)
a(f"""v_lshlrev_b32 v4, 6, v{vL16}
global_load_dword v{vJUNK}, v4, s[{sWD}:{sWD+1}] {POL}
v_add_u32 v4, 0x10000, v4
v_subrev_u32 v4, s{sT2}, v4
global_load_dword v{vJUNK+1}, v4, s[{sWD}:{sWD+1}] {POL}
s_waitcnt vmcnt(2)
s_branch L_Bw
L_Bu:
s_waitcnt vmcnt(0)""")
a(f"""L_Bw:
s_cmp_eq_u32 s{sDUM}, 7
s_cbranch_scc0 L_Bload
""")
for k in range(32): a(f"v_accvgpr_write_b32 a{aW2+k}, 0")
a("s_branch L_B0\nL_Bload:")
a(f"""
s_lshl_b32 s{sT}, s{sW}, 5
v_xor_b32 v6, s{sT}, v{vTR0}
v_xor_b32 v7, 32, v6
v_add_u32 v7, {512 + L_W2}, v7
v_add_u32 v6, {L_W2}, v6
s_barrier
""")
if int(opts["gp"]):
    a(f"""s_cmp_eq_u32 s{sW}, 0
    s_cbranch_scc0 L_Bp
    v_cmp_ne_u32 vcc, s{sTAG}, v{vJUNK+2}
    s_cbranch_vccnz L_Bp
    s_mov_b32 s{sDUM}, 9""")
    set_rx(X1)
    g_issue()
    a("L_Bp:")
trW(aW2, 0, 6, 7)
trW(aW2 + 16, 0x4000, 6, 7)
a(f"""
L_B0:
v_mov_b32 v8, v{vONE}
v_mov_b32 v9, v{vONE}
v_mov_b32 v10, v{vONE}
v_mov_b32 v11, v{vONE}
s_waitcnt lgkmcnt(0)
s_nop 0
""")
for s_ in range(4):
    for m in range(2): a(mfma(24+4*m, A4(aW2+16*m+4*s_), V4(8), s_ == 0))
a(f"""
s_mov_b32 s{sT}, {HCS - HP}
s_mov_b64 exec, s[{sPUBM}:{sPUBM+1}]
s_cmp_eq_u32 s{sNF}, 0
s_cbranch_scc0 L_B0s
s_nop 3
buffer_store_dwordx4 v[24:27], v{vPUBA}, s[{RG}:{RG+3}], s{sT} offen
buffer_store_dwordx4 v[28:31], v{vPUBA}, s[{RG}:{RG+3}], s{sT} offen offset:512
s_branch L_B0d
L_B0s:
s_nop 3
buffer_store_dwordx4 v[24:27], v{vPUBA}, s[{RG}:{RG+3}], s{sT} offen sc1
buffer_store_dwordx4 v[28:31], v{vPUBA}, s[{RG}:{RG+3}], s{sT} offen offset:512 sc1
L_B0d:
s_mov_b64 exec, -1
""")
stamp("wd")
a(f"s_cmp_eq_u32 s{sW}, 1\ns_cbranch_scc0 L_Bv")
qc_gather()
a(f"""s_branch L_TU
L_Bv:
s_cmp_eq_u32 s{sW}, 0
s_cbranch_scc0 L_TU
s_cmp_eq_u32 s{sDUM}, 9
s_cbranch_scc1 L_G1
v_cmp_ne_u32 vcc, s{sTAG}, v{vJUNK+2}
s_cbranch_vccz L_B1""")
gd_wait()
a(f"""
L_B1:
s_cmp_eq_u32 s{sW}, 0
s_cbranch_scc0 L_TU
""")
bell_wait()
if int(opts["sb"]): a(f"s_cmp_eq_u32 s{sLAY}, 0\ns_cbranch_scc1 L_B2\ns_sleep {opts['sb']}\nL_B2:")
set_rx(X1)
a("s_branch L_G")
a(f"""
L_TU:
s_cmp_lg_u32 s{sW}, 0
s_waitcnt lgkmcnt(0)
s_barrier
""")
stamp("x1pub")
for s in range(4): a(f"ds_read_b128 {V4(8+4*s)}, v{vXRD} offset:{512 + 64*s}")
def tu_step(s):
    for m in range(2): a(mfma(24+4*m, A4(aW2+16*m+4*s), V4(8+4*s), s == 0))
def tu_tail(fl, done):
    a(f"""s_mov_b64 exec, s[{sPUBM}:{sPUBM+1}]
    s_cmp_lg_u32 s{sW}, 0
    s_nop 2
    buffer_store_dwordx4 v[24:27], v{vPUBA}, s[{RG}:{RG+3}], 0 offen{fl}
    buffer_store_dwordx4 v[28:31], v{vPUBA}, s[{RG}:{RG+3}], 0 offen offset:512{fl}
    s_cbranch_scc1 {done}
    s_mov_b64 exec, s[{sSTM}:{sSTM+1}]
    buffer_store_dwordx2 v[{vSTG}:{vSTG+1}], v{vHSA}, s[{RG}:{RG+3}], 0 offen{fl}""")
a("s_cbranch_scc1 L_TUw")
gemv_stats(tu_step)
a(f"""s_cmp_eq_u32 s{sNF}, 0
s_cbranch_scc0 L_TUsafe
s_mov_b64 exec, s[{sPUBM}:{sPUBM+1}]
s_nop 1
buffer_store_dwordx4 v[24:27], v{vPUBA}, s[{RG}:{RG+3}], 0 offen
buffer_store_dwordx4 v[28:31], v{vPUBA}, s[{RG}:{RG+3}], 0 offen offset:512
s_mov_b64 exec, s[{sSTM}:{sSTM+1}]
buffer_store_dwordx2 v[{vSTG}:{vSTG+1}], v{vHSA}, s[{RG}:{RG+3}], 0 offen""")
a("L_TUd:\ns_mov_b64 exec, -1")
stamp("h")
stamp_flush()
a(f"""
s_cmp_eq_u32 s{sLAY}, 0
s_cbranch_scc0 L_exit
""")
if int(opts["sx"]): a(f"s_sleep {opts['sx']}")
if int(opts["bell2"]):
    a(f"s_cmp_eq_u32 s{sW}, 0\ns_cbranch_scc0 L_B3")
    bell_wait(256)
    a("L_B3:")
set_rx(X2)
a(f"""L_next:
ds_read_b128 {V4(vQCS)}, v{vL16} offset:{L_CS}
ds_read_b128 {V4(vQCS+4)}, v{vL16} offset:{L_CS+1024}""")
next_layer()
a(f"""
s_mov_b32 s{sPH}, 0
s_cmp_eq_u32 s{sW}, 0
s_cbranch_scc1 L_G
s_branch L_TQ
""")
a("L_Gretry:")
if DBG: a(f"s_mov_b64 exec, 1\nv_mov_b32 v45, s{sLAY}\nv_lshlrev_b32 v45, 2, v45\nv_add_u32 v45, s{sPH}, v45\nv_lshlrev_b32 v45, 2, v45\nv_add_u32 v45, 128, v45\nv_mov_b32 v46, 1\nglobal_atomic_add v45, v46, s[{sDBG}:{sDBG+1}]\ns_mov_b64 exec, -1")
spin("L_Gp", "L_Gok")
if not QPI:
    a("L_QFretry:");  spin("L_QFp", "L_QF2")
    a("L_QF2retry:"); spin("L_QFp", "L_S")
else:
    a("L_QFretry:");  spin("L_QFp", "L_S")
for t_ in tails: a(t_)
WB = int(opts["wb"])
if WB:
    a(f"""L_Dwb:
    s_and_b32 s{sT2}, s{sA4}, 7
    s_lshl_b32 s{sT2}, s{sT2}, 2
    s_add_u32 s{sT2}, s{sT2}, s{sW}
    s_cmp_eq_u32 s{sT2}, {4*3 + 3}
    s_cbranch_scc0 L_Ddone""")
    if not WB & 2: a(f"s_cmp_eq_u32 s{sLAY}, 1\ns_cbranch_scc0 L_Ddone")
    a("buffer_wbl2 sc1\ns_branch L_Ddone")
a("L_TQw:")
gemv_plain(tq_step)
a(f"""s_cmp_eq_u32 s{sALT}, 0
s_cbranch_scc0 L_TQalt
s_mov_b64 exec, s[{sPUBM}:{sPUBM+1}]
s_nop 4
buffer_store_dwordx4 v[24:27], v{vQPA}, s[{RG}:{RG+3}], 0 offen
s_branch L_S
L_TUw:""")
gemv_plain(tu_step)
a(f"""s_cmp_eq_u32 s{sNF}, 0
s_cbranch_scc0 L_TUsafe
s_mov_b64 exec, s[{sPUBM}:{sPUBM+1}]
s_nop 3
buffer_store_dwordx4 v[24:27], v{vPUBA}, s[{RG}:{RG+3}], 0 offen
buffer_store_dwordx4 v[28:31], v{vPUBA}, s[{RG}:{RG+3}], 0 offen offset:512
s_branch L_TUd""")
a("L_RECsafe:"); rec_tail(" sc1"); a("s_branch L_RECd")
if WB & 4:
    a(f"""L_TQwb:
    s_lshl_b32 s{sT2}, s{sI}, 2
    s_add_u32 s{sT2}, s{sT2}, s{sW}
    s_cmp_eq_u32 s{sT2}, {4*31 + 3}
    s_cbranch_scc0 L_S
    buffer_wbl2 sc1
    s_branch L_S""")
a("L_TUsafe:"); tu_tail(" sc1", "L_TUd"); a("s_branch L_TUd")
a(f"""
L_Sbig:
s_mov_b64 exec, -1
v_max3_f32 v32, v24, v25, v26
v_max_f32 v32, v32, v27
v_max3_f32 v32, v32, v28, v29
v_max3_f32 v32, v32, v30, v31
v_mov_b32 v33, v32
s_nop 1
v_permlane32_swap_b32 v32, v33
v_max_f32 v32, v32, v33
v_mov_b32 v33, v32
s_nop 1
v_permlane16_swap_b32 v32, v33
v_max_f32 v32, v32, v33
""")
for k in range(8): a(f"v_sub_f32 v{40+k}, v{24+k}, v32")
for k in range(8): a(f"v_exp_f32 v{40+k}, v{40+k}")
p_tail()
a(f"""
s_nop 2
ds_write_b64 v{vMWR}, v[32:33] offset:{L_MB}
s_branch L_Sp
L_PVbig:
s_nop 7
{mfma(24, V4(8), A4(aV), True)}
{mfma(28, V4(8), A4(aV+4), True)}
{mfma(40, V4(12), A4(aV+8), True)}
{mfma(44, V4(12), A4(aV+12), True)}
{mfma(4, V4(16), A4(aV+16), True)}
{mfma(8, V4(16), A4(aV+20), True)}
{mfma(12, V4(20), A4(aV+24), True)}
{mfma(16, V4(20), A4(aV+28), True)}
v_max_f32_dpp v34, v32, v32 row_ror:4 {DPPALL}
s_nop 1
v_max_f32_dpp v34, v34, v34 row_ror:8 {DPPALL}
v_sub_f32 v32, v32, v34
v_exp_f32 v32, v32
s_nop 0
v_mul_f32 v35, v32, v33
s_nop 1
v_add_f32_dpp v35, v35, v35 row_ror:1 {DPPALL}
v_mul_f32_dpp v36, v32, v24 row_newbcast:0 {DPPALL}
v_mul_f32_dpp v37, v32, v28 row_newbcast:0 {DPPALL}
v_add_f32_dpp v35, v35, v35 row_ror:2 {DPPALL}
v_fmac_f32_dpp v36, v32, v40 row_newbcast:4 {DPPALL}
v_fmac_f32_dpp v37, v32, v44 row_newbcast:4 {DPPALL}
v_add_f32_dpp v35, v35, v35 row_ror:4 {DPPALL}
v_fmac_f32_dpp v36, v32, v4 row_newbcast:8 {DPPALL}
v_fmac_f32_dpp v37, v32, v8 row_newbcast:8 {DPPALL}
v_add_f32_dpp v35, v35, v35 row_ror:8 {DPPALL}
v_fmac_f32_dpp v36, v32, v12 row_newbcast:12 {DPPALL}
v_fmac_f32_dpp v37, v32, v16 row_newbcast:12 {DPPALL}
v_cvt_pk_bf16_f32 v36, v36, v37
s_nop 1
s_branch L_PVt
L_Obig:
; some producer shifted its scores: weight every record to the head's common maximum
v_max_f32_dpp v6, v4, v4 quad_perm:[1,0,3,2] {DPPALL}
s_nop 1
v_max_f32_dpp v6, v6, v6 quad_perm:[2,3,0,1] {DPPALL}
s_nop 1
v_max_f32_dpp v6, v6, v6 row_half_mirror {DPPALL}
v_mov_b32 v7, v6
s_nop 1
v_permlane32_swap_b32 v6, v7
v_max_f32 v6, v6, v7
v_mov_b32 v7, v6
s_nop 1
v_permlane16_swap_b32 v6, v7
v_max_f32 v6, v6, v7
v_sub_f32 v4, v4, v6
v_exp_f32 v4, v4
s_nop 0
v_mul_f32 v6, v4, v5
s_nop 1
v_add_f32_dpp v6, v6, v6 quad_perm:[1,0,3,2] {DPPALL}
s_nop 1
v_add_f32_dpp v6, v6, v6 quad_perm:[2,3,0,1] {DPPALL}
s_nop 1
v_add_f32_dpp v6, v6, v6 row_half_mirror {DPPALL}
v_mov_b32 v7, v6
s_nop 1
v_permlane32_swap_b32 v6, v7
v_add_f32 v6, v6, v7
v_mov_b32 v7, v6
s_nop 1
v_permlane16_swap_b32 v6, v7
v_add_f32 v6, v6, v7
v_rcp_f32 v6, v6
""")
for t in range(4):
    a(f"v_mul_f32_dpp v{40+t}, v4, v{24+4*t} row_newbcast:0 {DPPALL}")
    for r in range(1, 4): a(f"v_fmac_f32_dpp v{40+t}, v4, v{24+4*t+r} row_newbcast:{r} {DPPALL}")
a("s_branch L_Ot")
a(f"""
L_TQalt:
s_cmp_eq_u32 s{sLAY}, 0
s_cbranch_scc1 L_TQ0
""")
tq_tail(" sc1")
a(f"""
s_branch L_QFe
L_TQ0:
s_nop 3
""")
for k in range(4): a(f"v_bfi_b32 v{24+k}, v{vMASK}, v{24+k}, s{sT0+k}")
K1 = int(opts["k1"])
def kreads():
    for s in range(4):
        a(f"v_xor_b32 v5, {64*s}, v3")
        for t in range(2): a(f"ds_read_b128 {A4(aK+16*t+4*s)}, v5 offset:{4096*t}")
def vreads():
    for w in range(4):
        for c in range(2):
            for e in range(2):
                r = aV + 8*w + 4*c + 2*e
                a(f"ds_read_b64_tr_b16 a[{r}:{r+1}], v{6+c} offset:{L_V + w*8192 + e*4096}")
def l0_addr():
    a_setup()
    a(f"""v_bfe_u32 v34, v0, 2, 2
    v_bfe_u32 v35, v0, 4, 2
    v_lshl_add_u32 v36, v35, 2, v34
    v_and_b32 v37, 7, v36
    v_lshlrev_b32 v37, 1, v37
    v_bfe_u32 v38, v0, 1, 1
    s_lshl_b32 s{sT}, s{sW}, 2
    v_or_b32 v38, s{sT}, v38
    v_xor_b32 v37, v37, v38
    v_lshlrev_b32 v37, 4, v37
    v_lshl_add_u32 v36, v36, 8, v37
    v_and_b32 v37, 1, v0
    v_lshl_add_u32 v6, v37, 3, v36
    v_xor_b32 v7, 32, v6
    v_and_b32 v3, 15, v0
    v_xor_b32 v5, v35, v3
    v_lshlrev_b32 v5, 4, v5
    v_lshl_add_u32 v3, v3, 8, v5
    s_lshl_b32 s{sT}, s{sW}, 13
    s_add_u32 s{sT}, s{sT}, {L_K}
    v_add_u32 v3, s{sT}, v3""")
    if True:
        l = a.label("BS")
        a(f"s_cmp_lt_u32 s{sI}, 16\ns_cbranch_scc1 {l}")
        b_setup()
        a(f"{l}:")
def qloads():
    a(f"""buffer_load_dwordx4 v[48:51], v{vQGA}, s[{RT}:{RT+3}], 0 offen sc1
    buffer_load_dwordx4 v[8:11], v{vQL}, s[{RT}:{RT+3}], 0 offen sc1
    buffer_load_dwordx4 v[12:15], v{vQL}, s[{RT}:{RT+3}], 0 offen offset:2048 sc1""")
a(f"""
s_cmp_eq_u32 s{sW}, 0
s_cselect_b64 s[{sM}:{sM+1}], s[{sSTM}:{sSTM+1}], 0
s_mov_b64 exec, s[{sPUBM}:{sPUBM+1}]
buffer_store_dwordx4 v[24:27], v{vQPA}, s[{RT}:{RT+3}], 0 offen
s_mov_b64 exec, s[{sM}:{sM+1}]
buffer_store_dwordx4 {V4(vSTG)}, v{vQSA}, s[{RT}:{RT+3}], 0 offen
""")
H2N = int(opts["h2"])
if H2N:
    a(f"""s_add_u32 s{sT}, s{sI}, {H2}
    s_cmp_eq_u32 s{sW}, 0
    s_cselect_b64 exec, 0xff, 0
    v_lshlrev_b32 v5, 3, v{vL16}
    buffer_store_byte v{vSTG+2}, v5, s[{RT}:{RT+3}], s{sT} offen""")
a(f"""
s_mov_b64 exec, -1
s_mov_b32 s{sT2}, {BOFF}
""")
stamp("qpub")
if VL:
    for j in range(VL):
        a(f"s_add_u32 m0, m0, 4096\nv_add_u32 v{vVA}, {VSTEP}, v{vVA}\nglobal_load_lds_dwordx4 v{vVA}, s[{sV}:{sV+1}] {POL}")
    a(f"s_lshl_b32 s{sT}, s{sW}, 13\ns_add_u32 m0, s{sT}, {L_K}")
kdma(KUP, 8)
a(f"""
s_mov_b64 exec, s[{sPUBM}:{sPUBM+1}]
buffer_store_dwordx4 v[24:27], v{vQPA}, s[{RT}:{RT+3}], s{sT2} offen sc1
s_mov_b64 exec, s[{sM}:{sM+1}]
buffer_store_dwordx4 {V4(vSTG)}, v{vQSA}, s[{RT}:{RT+3}], s{sT2} offen sc1
s_mov_b64 exec, -1
""")
l0_addr()
a(f"""
s_lshl_b32 s{sT}, s{sW}, 9
v_and_b32 v5, 0x1f0, v{vL16}
v_bfe_u32 v4, v0, 5, 1
v_lshl_add_u32 v5, v4, 12, v5
v_add_u32 v{vQL}, s{sT}, v5
s_mul_i32 s{sT}, s{sW}, {QH}
v_add_u32 v{vMODE}, s{sT}, v{vHWR}
v_mov_b32 v{vXRD}, v{vB16}
s_mul_i32 s{sT}, s{sW}, {7*128}
v_lshlrev_b32 v2, 3, v{vL16}
v_min_u32 v2, {6*128}, v2
v_add_u32 v2, s{sT}, v2
v_min_u32 v2, {CLR-128}, v2
s_lshl_b32 s{sT}, s{sG}, 7
s_add_u32 s{sT}, s{sT}, {GD + 1024}
v_mov_b32 v1, s{sT}
s_lshl_b32 s{sT}, s{sI}, 2
s_add_u32 s{sT}, s{sT}, s{sW}
s_cmp_eq_u32 s{sT}, 67
s_cselect_b64 s[{sM}:{sM+1}], 1, 0
s_mul_i32 s{sT2}, s{sI}, {CLR}
""")
VM = int(opts["vm"])
if not VM:
    a(f"s_waitcnt vmcnt({13 if H2N else 12})\ns_barrier")
    vreads()
if H2N:
    a(f"""s_cmp_eq_u32 s{sW}, 3
    s_cbranch_scc0 L_H2e
    s_mul_i32 s{sPH}, s{sT0}, 0x01010101
    s_movk_i32 s5, {H2}
    L_H2:
    s_load_dwordx8 s[{sGO}:{sGO+7}], s[{RT}:{RT+1}], s5
    s_add_u32 s5, s5, 128
    s_cmp_eq_u32 s5, {H2 + 128*H2N}
    s_waitcnt lgkmcnt(0)
    s_cbranch_scc1 L_H2d""")
    for k in range(8): a(f"s_xor_b32 s{sGO+k}, s{sGO+k}, s{sPH}")
    for k in range(1, 8): a(f"s_or_b32 s{sGO}, s{sGO}, s{sGO+k}")
    a(f"""s_cbranch_scc1 L_H2
    L_H2d:""")
    for gp in range(8): a(f"s_mov_b32 s{sGO+gp}, {gp*GS}")
    a("L_H2e:")
    stamp("h2")
a(f"s_waitcnt vmcnt({2 + int(opts['kw']) + (3 if int(opts['kw']) > 8 - KUP else 0)})")
if H2N: a("s_barrier")
stamp("kw")
GE = int(opts["ge"])
if GE:
    a(f"""v_lshlrev_b32 v5, 3, v{vL16}
    v_and_b32 v5, 0x380, v5
    global_load_dword v{vJUNK+3}, v5, s[{sWS}:{sWS+1}] offset:{GD + 1024} sc1""")
qloads()
if not H2N or int(opts.get("bb", 0)): a("s_barrier")
a(f"""
buffer_load_dword v{vJUNK}, v2, s[{RG}:{RG+3}], s{sT2} offen sc1
s_mov_b64 exec, s[{sM}:{sM+1}]
global_store_dword v1, v{vSTG+2}, s[{sWS}:{sWS+1}] sc1
s_mov_b64 exec, -1
s_cmp_ge_u32 s{sI}, 16
s_cbranch_scc1 L_K1""")
wo_issue()
if VM: vreads()
stamp("woi")
a(f"s_waitcnt vmcnt({13 + GE})")
stamp("kl")
kreads()
a("s_waitcnt vmcnt(10)\ns_branch L_Q01\nL_K1:")
WOP = int(opts["wop"])
if WOP:
    wo_base()
    a(f"""v_and_b32 v4, {WOP//4 - 1}, v0
    s_and_b32 s{sT}, s{sW}, 1
    s_mul_i32 s{sT}, s{sT}, {WOP//4}
    s_lshr_b32 s{sT2}, s{sW}, 1
    s_lshl_b32 s{sT2}, s{sT2}, 7
    s_add_u32 s{sT}, s{sT}, s{sT2}
    s_add_u32 s{sT}, s{sT}, {128 - WOP//2}""" if int(opts["wp"]) else f"""v_and_b32 v4, {WOP//4 - 1}, v0
    s_mul_i32 s{sT}, s{sW}, {WOP//4}
    s_add_u32 s{sT}, s{sT}, {256 - WOP}""")
    a(f"""
    v_add_u32 v4, s{sT}, v4
    v_lshlrev_b32 v4, 10, v4
    global_load_dword v{vJUNK+1}, v4, s[{sWO}:{sWO+1}] {POL}""")
if VM: vreads()
stamp("woi")
a(f"s_waitcnt vmcnt({(6 if WOP else 5) + GE})")
stamp("kl")
kreads()
a(f"s_waitcnt vmcnt({3 if WOP else 2})")
a("L_Q01:")
stamp("qf2")
xor_acc(8, True); xor_acc(12, False)
a(f"""
v_pk_add_f32 v[8:9], v[8:9], v[12:13]
v_pk_add_f32 v[10:11], v[10:11], v[14:15]
v_xor_b32 v45, s{sTAG}, v50
v_and_or_b32 v44, v44, v{vMASK+2}, v45
v_permlane32_swap_b32 v8, v10
v_permlane32_swap_b32 v9, v11
v_cmp_ne_u32 vcc, 0, v44
v_add_f32 v8, v8, v10
v_add_f32 v9, v9, v11
v_cvt_pk_bf16_f32 v8, v8, v9
ds_write_b32 v{vMODE}, v8 offset:{L_QB}
s_cbranch_vccnz L_Q0retry
L_Q0ok:
""")
stamp("qfok")
a(f"""
v_cmp_ne_u32 vcc, v51, v{vSTG+3}
s_cmp_lg_u64 vcc, 0
s_cselect_b32 s{sNF}, 1, 0
s_cmp_lt_u32 s{sI}, 16
s_cbranch_scc1 L_Q0a
""")
if GE:
    a(f"""s_mov_b32 s{sTRY}, 0
    v_cmp_ne_u32 vcc, s{sTAG}, v{vJUNK+3}
    s_lshl_b32 s{sT}, 1, s{sG}
    s_andn2_b32 s{sT}, vcc_lo, s{sT}
    s_and_b32 s{sT}, s{sT}, 255
    s_cbranch_scc1 L_Q0b
    s_mov_b32 s{sTRY}, 1""")
    b_issue("L_Q0a")
    a("s_branch L_Q0a\nL_Q0b:")
a(f"""
v_lshlrev_b32 v5, 3, v{vL16}
v_and_b32 v5, 0x380, v5
global_load_dword v{vJUNK+3}, v5, s[{sWS}:{sWS+1}] offset:{GD + (0 if int(opts["g2q"]) else 1024)} sc1
L_Q0a:
s_cmp_eq_u32 s{sW}, 0
s_cbranch_scc0 L_S
s_cmp_eq_u32 s{sNF}, 0
s_cbranch_scc0 L_slow
L_slowdone:
s_cmp_eq_u32 s{sI}, 0
s_cbranch_scc0 L_S
s_lshl_b32 s{sT}, s{sG}, 7
s_add_u32 s{sT}, s{sT}, {GD}
v_mov_b32 v9, s{sT}
s_mov_b64 exec, 1
global_store_dword v9, v{vSTG+2}, s[{sWS}:{sWS+1}] sc1
s_branch L_S
L_Q0p:
""")
qloads()
a("s_waitcnt vmcnt(0)\ns_branch L_Q01")
def qretry(giveup):
    l = a.label("QR")
    if DBG: a(f"s_mov_b64 exec, 1\nv_mov_b32 v45, 0\nv_mov_b32 v46, 1\nglobal_atomic_add v45, v46, s[{sDBG}:{sDBG+1}]\ns_mov_b64 exec, -1")
    a(f"""s_sub_u32 s{sTRY}, s{sTRY}, 1
    s_cmp_eq_u32 s{sTRY}, 0
    s_cbranch_scc0 {l}
    s_add_u32 s{RT}, s{RT}, {BOFF}
    s_addc_u32 s{RT+1}, s{RT+1}, 0
    {l}:""")
    spin("L_Q0p", giveup)
a("L_Q0retry:");  qretry("L_Q0ok")
a(f"""
L_slow:
s_mul_i32 s{sT}, s{sI}, {CLR}
v_mov_b32 v12, -1
v_mov_b32 v13, -1
v_mov_b32 v14, -1
v_mov_b32 v15, -1
v_min_u32 v9, {CLR - 3072 - 16}, v{vL16}
buffer_store_dwordx4 v[12:15], v{vL16}, s[{RG}:{RG+3}], s{sT} offen sc1
buffer_store_dwordx4 v[12:15], v{vL16}, s[{RG}:{RG+3}], s{sT} offen offset:1024 sc1
buffer_store_dwordx4 v[12:15], v{vL16}, s[{RG}:{RG+3}], s{sT} offen offset:2048 sc1
buffer_store_dwordx4 v[12:15], v9, s[{RG}:{RG+3}], s{sT} offen offset:3072 sc1
s_mul_i32 s{sT}, s{sG}, {TGS}
s_add_u32 s{sT}, s{sT}, {TG + FL}
s_lshl_b32 s{sT2}, s{sI}, 4
s_add_u32 s{sT2}, s{sT2}, s{sT}
v_mov_b32 v9, s{sT2}
s_waitcnt vmcnt(0)
s_mov_b64 exec, 1
global_store_dword v9, v{vSTG+2}, s[{sWS}:{sWS+1}] sc1
s_mov_b64 exec, -1
v_and_b32 v9, 0x1f0, v{vL16}
v_add_u32 v9, s{sT}, v9
L_slowp:
global_load_dword v8, v9, s[{sWS}:{sWS+1}] sc1
s_waitcnt vmcnt(0)
v_cmp_ne_u32 vcc, s{sTAG}, v8
s_cbranch_vccz L_slowdone
""")
spin("L_slowp", "L_slowdone")
if OM in ("bell", "bell2"):
    a("L_Obretry:"); spin("L_Ob", "L_Op")
def cnt(k):
    if DBG: a(f"s_mov_b64 exec, 1\nv_mov_b32 v45, s{sLAY}\nv_lshlrev_b32 v45, 2, v45\nv_add_u32 v45, {4*k}, v45\nv_mov_b32 v46, 1\nglobal_atomic_add v45, v46, s[{sDBG}:{sDBG+1}]\ns_mov_b64 exec, -1")
a("L_Oretry:");   cnt(40)
if int(opts["orb"]):
    a(f"""L_Orb:
    buffer_load_dwordx2 v[4:5], v{vOML}, s[{RG}:{RG+3}], 0 offen sc1
    s_waitcnt vmcnt(0)
    v_cmp_eq_u32 vcc, -1, v5
    s_cbranch_vccz L_Op""")
    spin("L_Orb", "L_O2")
else: spin("L_Op", "L_O2")
a("L_O2retry:");  cnt(42); spin("L_Op", "L_Ook")
if not DP:
    a("L_Dretry:");   spin("L_Dp", "L_D2")
    a("L_D2retry:");  spin("L_Dp", "L_Dm")
else:
    a("L_Dretry:"); d_issue(64, 48); d_head(50, 5, "L_DretryB"); stamp("d2"); d_body(80, 5, "L_DretryB"); a("s_branch L_Dm")
    a("L_DretryB:"); spin("L_DpB", "L_Dm")
a("L_exit:")
if int(opts.get("xdirty", 0)):
    a(f"s_mov_b64 exec, -1\ns_lshl_b32 s{sT}, s2, 16\ns_add_u32 s{sT}, s{sT}, 0x1000000\nv_lshlrev_b32 v1, 4, v0\nv_add_u32 v1, s{sT}, v1")
    for j in range(int(opts["xdirty"])):
        a(f"global_store_dwordx4 v1, v[8:11], s[{sWS}:{sWS+1}]\nv_add_u32 v1, 4096, v1")
stamp_store()
a("L_end:\ns_endpgm")

txt = a.text()
if int(opts.get("solo", 0)):
    import re
    txt = re.sub(r"s_cbranch_vccnz L_\w*retry\w*", "s_nop 0", txt)
    txt = re.sub(r"s_cbranch_vccz (\w+)\n", r"s_branch \1\n", txt)
    txt = txt.replace("s_cbranch_scc0 L_slow\n", "s_nop 0\n")
    for br in ("s_cbranch_vccnz L_Sbig", "s_cbranch_vccnz L_PVbig", "s_cbranch_scc1 L_Obig"): txt = txt.replace(br, "s_nop 0")
    txt = txt.replace("s_memrealtime", "s_memtime").replace(f"s_cselect_b32 s{sNF}, 1, 0", f"s_mov_b32 s{sNF}, 0")
DOC = """
One persistent launch, 256 workgroups of 4 waves, one per CU.  Every weight, K and V byte is read from memory once
and stays in registers (AGPRs) for both layers; only small vectors travel between workgroups, through d_ws.

Workgroup id = 8*i + g.  Group g (32 workgroups) owns kv head g; i = 4*cg + kq.
  TQ  all   partial q = x[K quarter kq] . wq[quarter, 64 columns cg]; LayerNorm is applied afterwards by linearity:
            q = rstd * (sum of partials - mean * column sums)   (layer 0 normalises x up front, it is an input)
  S   all   128 keys x 4 heads: scores, exp2, P.V -> record (bf16) + {shift, sum}.  The shift is 0 while every
            score of the wave is within +-32 (checked at run time), else the true maximum; readers rescale.
  O   i<16  records of 32 producers as MFMA rows x wo[2 heads, 64 columns] -> partial attention output (X1)
  TU  i>=16 x1[quarter] . gate/up[quarter, 64 columns] -> partials (HP), LayerNorm again by linearity
  D   i<16  h = g*u for 128 hidden units . w_down[128, 64 columns] -> partial FFN output (X2)
  G         16 partial vectors + residual -> next x quarter (bf16)

Hand-offs carry their own validity: slots are set to 0xffffffff at the start and a reader repeats its loads until
no slot is still unset.  The first hand-off (layer-0 q) happens before anything is known to be cleared and carries a
32-bit tag derived from a launch counter in d_ws instead; it also tells each member that the whole group has cleared
its share and on which die every member runs.  Inside a group that shares one L2 the stores are plain, otherwise they
are written through (sc1), as they always are between groups; all reads of hand-offs bypass L1 (sc1).
Every wait is bounded.
"""
open(sys.argv[1], "w").write(wrap(txt, 256, 256, LDS_SIZE, NVGPR + NAGPR, accum=NVGPR, doc=DOC))
if STAMP: print(",".join(stamp_names))
if DBG: print(list(enumerate(spin_ids, 1)))
```

```python
import sys, math, struct
from asmlib import *

opts = dict(stamp=0, pol="nt", dbg=0, wo="spec", kw=6, v1=4, k1=8, om="ack", xack=2, bgd=0, vearly=1, il=1, kup=0, sd=0, sb=0, sx=0, bell=1, bell0=0, bell2=1, abell=1, fbell=0, og=6, wo2="k", bx=-1, bx2=-1, wdp=1, gu="rec", g2=16, h2=8, bb=1, vm=1, g2q=0, wb=0, wop=64, dp=1, qp=0, rl=0, wp=0, orb=0, ge=0, vl=0, gp=0, gs=0, f3=0)
for x in sys.argv[2:]:
    k, v = x.split("="); opts[k] = v
STAMP = int(opts["stamp"]); DBG = int(opts["dbg"]); POL = opts["pol"].replace("def", "").replace("_", " ")

RL = int(opts["rl"])
IL = int(opts["il"])
VSTEP, KSTEP, KWSH, ISH = (131072, 32768, 18, 10) if IL else (4096, 1024, 13, 15)
a = Asm()
NONCE = 0x0
GD = 0x400
GB = 0x2000
GS = 0x1F400
LS = 0xA800
REC, ML, HP, HS, BL = 0x0, 0x8000, 0x8400, 0xA400, 0xA600
HCS = 2 * LS
QP1 = HCS + 0x2000
QS1 = QP1 + 0x2000
CLR = 3328
XR = 32 * CLR
X1, X2, XLS = XR, XR + 5120, 10240
assert HS + 512 <= LS and QS1 + 256 <= XR and XR + 2 * XLS <= GS
TG = 0x200000
QP, QS, QCS = 0x0, 0x2000, 0x2400
FL = QCS + 0x2000
H2 = FL + 0x200
BOFF = 0x5000
TGS = 2 * BOFF + 0x400
WSSIZE = 0x400000
L_X = 0x0
L_HB, L_QB, L_PB, L_MB, L_YB, L_CS = 0x400, 0x500, 0xA00, 0xE00, 0x1000, 0x1800
QH = 320
L_WQ, L_V, L_W2, L_WD = 0x2000, 0x6000, 0xE000, 0x2000
L_K = 0x16000
LDS_SIZE = 0x1E000
sX, sK, sV, sWQ, sWO, sWG, sWU, sWD, sOUT, sDBG, sWS = 4, 6, 8, 10, 12, 16, 18, 20, 22, 24, 26
sG, sI, sW, sKQ, sCG, sA4 = 28, 29, 30, 31, 32, 33
sLAY, sXO = 34, 35
RG = 36
RX = 40
sGO = 44
RT = 52
sTAG, sT0 = 56, 57
sSPIN, sPH, sT, sT2, sNON = 61, 62, 63, 64, 65
sQUADM, sMLM, sPUBM, sDM, sM = 66, 68, 70, 72, 74
sTH = 3
sFIN, sTRY = 76, 77
sQH = 5
sEAR = 24
sDUM = 4
sNF, sALT = 14, 15
sSTM = 78
sST = 80
aK, aV, aWQ, aW2, aWD = 0, 32, 64, 80, 144
NAGPR = 176
vSTG = 52
vMASK, vONE, vJUNK = 56, 57, 60
GB0 = 64
vCS = 64
(vQCS, vHCS) = (96, 104)
(vR0, vR1, vXW, vXRD, vXWR, vGA, vQPA, vQGA, vQSA, vRECA, vMLA, vOA, vOML, vHGA, vPUBA, vROW, vPC16, vTR0,
 vSTMP, vL16, vL8, vQRD, vPRD, vPWR, vMWR, vMRD, vYWR, vB16, vHWR, vHSA, vDPA, vMODE, vVA, vQL, vKA) = range(108, 143)
NVGPR = 176 if int(opts["qp"]) else 144
ONES = 0x3F803F80
QSCALE = math.log2(math.e) / math.sqrt(128.0)
def f32(x): return "0x%08x" % struct.unpack("<I", struct.pack("<f", x))[0]
DPPALL = "row_mask:0xf bank_mask:0xf"
LG = lambda n: n

stamp_names = []; spin_ids = []
SEL = opts.get("sel", "start,wq,xq,qpub,q,p,rec,x1pub,h,x2pub").split(",")
def stamp(name):
    if not STAMP or name not in SEL: return
    if name not in stamp_names: stamp_names.append(name)
    k = stamp_names.index(name); assert k < 11
    a(f"s_memrealtime s[{sST+2*k}:{sST+2*k+1}]")
def stamp_flush():
    if not STAMP: return
    l1 = a.label("SF"); l2 = a.label("SF")
    a("s_waitcnt lgkmcnt(0)")
    a(f"s_cmp_eq_u32 s{sLAY}, 0\ns_cbranch_scc0 {l1}")
    for k in range(11): a(f"v_writelane_b32 v{vSTMP}, s{sST+2*k}, {k}")
    a(f"s_branch {l2}\n{l1}:")
    for k in range(11): a(f"v_writelane_b32 v{vSTMP}, s{sST+2*k}, {k+16}")
    a(f"{l2}:")
def stamp_store():
    if not STAMP: return
    l1 = a.label("SS")
    a(f"""s_cmp_eq_u32 s{sW}, {opts.get("sw", 0)}
    s_cbranch_scc0 {l1}
    s_mov_b32 exec_lo, -1
    s_mov_b32 exec_hi, 0
    s_lshl_b32 s{sT}, s2, 8
    s_add_u32 s{sM}, s{sWS}, s{sT}
    s_addc_u32 s{sM+1}, s{sWS+1}, 0
    s_add_u32 s{sM}, s{sM}, 0x10000000
    s_addc_u32 s{sM+1}, s{sM+1}, 0
    v_mov_b32 v4, v{vSTMP}
    v_mov_b32 v5, 0
    global_store_dwordx2 v{vL8}, v[4:5], s[{sM}:{sM+1}]
    {l1}:""")

def spin(lab_retry, lab_giveup):
    a(f"s_sub_u32 s{sSPIN}, s{sSPIN}, 1\ns_cbranch_scc0 {lab_retry}\ns_mov_b32 s{sSPIN}, 0")
    if DBG:
        spin_ids.append(lab_retry)
        a(f"s_mov_b64 s[{sM}:{sM+1}], exec\ns_mov_b64 exec, 1\nv_mov_b32 v45, {4*len(spin_ids)}\nv_mov_b32 v46, 1\nglobal_atomic_add v45, v46, s[{sDBG}:{sDBG+1}]\ns_mov_b64 exec, s[{sM}:{sM+1}]")
    a(f"s_branch {lab_giveup}")

def dma(ptr, voff, lds_base, n, gstep):
    a(f"s_lshl_b32 s{sT}, s{sW}, 10\ns_add_u32 m0, s{sT}, {lds_base}")
    for j in range(n):
        if j == 0: a("s_nop 0")
        a(f"global_load_lds_dwordx4 v{voff}, s[{ptr}:{ptr+1}] {POL}")
        if j + 1 < n:
            a(f"s_add_u32 m0, m0, 4096\ns_add_u32 s{ptr}, s{ptr}, {gstep}\ns_addc_u32 s{ptr+1}, s{ptr+1}, 0")

def trW(dst, base, vA, vB):
    for s in range(4):
        a(f"ds_read_b64_tr_b16 a[{dst+4*s}:{dst+4*s+1}], v{vA} offset:{base + s*4096}")
        a(f"ds_read_b64_tr_b16 a[{dst+4*s+2}:{dst+4*s+3}], v{vB} offset:{base + s*4096}")
def mfma(d, A, B, first):
    return f"v_mfma_f32_16x16x32_bf16 v[{d}:{d+3}], {A}, {B}, {'0' if first else f'v[{d}:{d+3}]'}"
V4 = lambda r: f"v[{r}:{r+3}]"
A4 = lambda r: f"a[{r}:{r+3}]"

def wo_base():
    a(f"""
    s_lshl_b32 s{sT}, s{sG}, 1
    s_lshr_b32 s{sT2}, s{sA4}, 3
    s_add_u32 s{sT}, s{sT}, s{sT2}
    s_lshl_b32 s{sT}, s{sT}, 18
    s_and_b32 s{sT2}, s{sA4}, 7
    s_lshl_b32 s{sT2}, s{sT2}, 7
    s_add_u32 s{sT}, s{sT}, s{sT2}
    s_add_u32 s{sWO}, s{sWO}, s{sT}
    s_addc_u32 s{sWO+1}, s{sWO+1}, 0
    """)
def wo_issue():
    wo_base()
    a(f"v_lshl_add_u32 v4, v{vROW}, 10, v{vPC16}")
    if not int(opts["wp"]):
        dma(sWO, 4, L_W2, 8, 32 * 1024); return
    a(f"s_lshl_b32 s{sT}, s{sW}, 10\ns_add_u32 m0, s{sT}, {L_W2}\nv_add_u32 v5, {4*32*1024}, v4")
    for j in range(4):
        a(f"global_load_lds_dwordx4 v4, s[{sWO}:{sWO+1}] {POL}\ns_add_u32 m0, m0, 16384\nv_add_u32 v4, {32*1024}, v4")
        a(f"global_load_lds_dwordx4 v5, s[{sWO}:{sWO+1}] {POL}")
        if j < 3: a(f"s_sub_u32 m0, m0, {16384 - 4096}\nv_add_u32 v5, {32*1024}, v5")

def a_setup():
    a(f"""
    v_bfe_u32 v1, v0, 2, 1
    v_bfe_u32 v2, v0, 3, 1
    v_bfe_u32 v4, v0, 4, 2
    v_lshl_add_u32 v5, v4, 2, v2
    v_lshl_add_u32 v5, v1, 4, v5
    v_lshlrev_b32 v5, 7, v5
    v_bfe_u32 v6, v0, 5, 1
    v_xor_b32 v6, v6, v1
    v_and_b32 v7, 1, v4
    v_lshl_or_b32 v6, v6, 1, v7
    v_lshlrev_b32 v6, 5, v6
    v_and_b32 v7, 3, v0
    v_lshl_or_b32 v6, v7, 3, v6
    v_or_b32 v5, v5, v6
    s_lshr_b32 s{sT}, s{sW}, 1
    s_lshl_b32 s{sT}, s{sT}, 14
    s_add_u32 s{sT}, s{sT}, {L_W2}
    v_add_u32 v{vVA}, s{sT}, v5
    """)
def b_setup():
    a(f"""; layer 0: gate/up blocks [128 rows x 64 cols]; the 4th column group of an odd group does not exist
s_and_b32 s{sM}, s{sCG}, 3
s_lshr_b32 s{sT}, s{sG}, 1
s_mul_i32 s{sT}, s{sT}, 7
s_and_b32 s{sT2}, s{sG}, 1
s_lshl_b32 s{sM+1}, s{sT2}, 2
s_add_u32 s{sT}, s{sT}, s{sM+1}
s_add_u32 s{sT}, s{sT}, s{sM}
s_lshl_b32 s{sT}, s{sT}, 7
s_mul_i32 s{sM+1}, s{sKQ}, {128*3584}
s_add_u32 s{sT}, s{sT}, s{sM+1}
s_add_u32 s{sWG}, s{sWG}, s{sT}
s_addc_u32 s{sWG+1}, s{sWG+1}, 0
s_add_u32 s{sWU}, s{sWU}, s{sT}
s_addc_u32 s{sWU+1}, s{sWU+1}, 0
s_lshl_b32 s{sT2}, s{sT2}, 2
s_or_b32 s{sT2}, s{sT2}, s{sM}
s_lshr_b32 s{sT}, s{sM}, 1
s_lshl_b32 s{sT}, s{sT}, 2
s_add_u32 s{sT}, s{sT}, s{sKQ}
s_lshl_b32 s{sT}, s{sT}, 10
s_and_b32 s{sM}, s{sM}, 1
s_lshl_b32 s{sM}, s{sM}, 8
s_add_u32 s{sT}, s{sT}, s{sM}
s_lshl_b32 s{sM}, s{sW}, 6
s_add_u32 s{sT}, s{sT}, s{sM}
s_add_u32 s{sT}, s{sT}, {HP}
v_add_u32 v{vPUBA}, s{sT}, v{vB16}
s_lshl_b32 s{sT}, s{sA4}, 4
s_add_u32 s{sT}, s{sT}, {HS}
v_mov_b32 v{vHSA}, s{sT}
s_mov_b32 s{sDUM}, s{sT2}
s_movk_i32 s{sT}, 3584
v_mul_lo_u32 v{vVA}, v{vROW}, s{sT}
v_add_u32 v{vVA}, v{vVA}, v{vPC16}""")
def b_issue(skip, parts="gu"):
    a(f"s_cmp_eq_u32 s{sDUM}, 7\ns_cbranch_scc1 {skip}")
    if "g" in parts: dma(sWG, vVA, L_W2, 4, 32 * 3584)
    if "u" in parts: dma(sWU, vVA, L_W2 + 0x4000, 4, 32 * 3584)
OA_TXT = f"v_add_u32 v{vOA}, s{sT2}, v{vL16}" if not RL else "\n".join([
    "v_lshrrev_b32 v7, 1, v2", "v_lshlrev_b32 v7, 9, v7", "v_lshl_add_u32 v7, v1, 5, v7", "v_and_b32 v10, 1, v2",
    "v_lshl_add_u32 v7, v10, 4, v7", f"v_add_u32 v{vOA}, s{sT2}, v7"])
stamp("start")
a(f"""
s_cmp_ge_u32 s2, 256
s_cbranch_scc1 L_end
s_getpc_b64 s[{sSTM}:{sSTM+1}]
L_pc:
s_load_dwordx16 s[4:19], s[0:1], 0
s_load_dwordx8 s[20:27], s[0:1], 64
v_lshlrev_b32 v1, 7, v0
v_min_u32 v1, L_end-L_pc, v1
global_load_dword v{vJUNK}, v1, s[{sSTM}:{sSTM+1}]
v_lshrrev_b32 v3, 6, v0
v_lshrrev_b32 v4, 1, v0
v_readfirstlane_b32 s{sW}, v3
v_xor_b32 v4, v4, v0
v_lshlrev_b32 v5, 1, v4
v_and_b32 v5, 32, v5
v_and_or_b32 v5, v4, 64, v5
v_lshlrev_b32 v11, 4, v0
v_and_b32 v6, 0x70, v11
v_xor_b32 v{vPC16}, v5, v6
v_lshrrev_b32 v{vROW}, 3, v0
v_lshl_add_u32 v7, v{vROW}, 13, v{vPC16}
s_and_b32 s{sG}, s2, 7
s_lshr_b32 s{sI}, s2, 3
s_and_b32 s{sKQ}, s{sI}, 3
s_lshr_b32 s{sCG}, s{sI}, 2
s_lshl_b32 s{sT}, s{sKQ}, 20
s_lshl_b32 s{sT2}, s{sG}, 10
s_lshl3_add_u32 s{sT2}, s{sCG}, s{sT2}
s_lshl_b32 s{sM}, s{sW}, 10
s_add_u32 m0, s{sM}, {L_WQ}
s_mul_i32 s{sA4}, s{sCG}, 120
s_add_u32 s{sT}, s{sT}, s{sT2}
s_add_u32 s{sT}, s{sT}, s{sA4}
s_waitcnt lgkmcnt(0)
s_add_u32 s{sWQ}, s{sWQ}, s{sT}
s_addc_u32 s{sWQ+1}, s{sWQ+1}, 0
""")
stamp("karg")
for j in range(4):
    a(f"global_load_lds_dwordx4 v7, s[{sWQ}:{sWQ+1}] {POL}")
    if j < 3: a(f"s_add_u32 m0, m0, 4096\nv_add_u32 v7, {32*8192}, v7")
a(f"""
s_load_dword s{sNON}, s[{sWS}:{sWS+1}], {NONCE}
v_lshlrev_b32 v5, 1, v0
v_and_b32 v5, 0xe0, v5
v_xor_b32 v{vVA}, v11, v5
{f"v_and_b32 v{vVA}, 0x3ff, v{vVA}" if IL else ""}
{f"v_lshl_add_u32 v{vVA}, v3, 15, v{vVA}" if IL else ""}
s_lshl_b32 s{sT}, s{sG}, 24
s_lshl_b32 s{sT2}, s{sI}, {ISH}
s_add_u32 s{sT}, s{sT}, s{sT2}
s_add_u32 s{sT}, s{sT}, 0xF00000
s_add_u32 s{sV}, s{sV}, s{sT}
s_addc_u32 s{sV+1}, s{sV+1}, 0
s_add_u32 m0, s{sM}, {L_V}
s_add_u32 s{sK}, s{sK}, s{sT}
s_addc_u32 s{sK+1}, s{sK+1}, 0
global_load_lds_dwordx4 v{vVA}, s[{sV}:{sV+1}] {POL}
; x (own quarter and all of it), slot clearing, L2 warm-up of the tagged slots
v_and_b32 v8, 31, v0
v_bfe_u32 v9, v0, 5, 1
v_lshlrev_b32 v8, 3, v8
v_lshl_or_b32 v{vHWR}, v9, 2, v8
s_lshl_b32 s{sT}, s{sKQ}, 8
v_add_u32 v10, s{sT}, v{vHWR}
global_load_dword v{vXW}, v10, s[{sX}:{sX+1}]
v_and_b32 v{vL16}, 0x3f0, v11
global_load_dwordx4 v[20:23], v{vL16}, s[{sX}:{sX+1}]
s_mul_i32 s{sT}, s{sG}, {GS}
s_add_u32 s{sT}, s{sT}, {GB}
s_add_u32 s{RG}, s{sWS}, s{sT}
s_addc_u32 s{RG+1}, s{sWS+1}, 0
s_mul_i32 s{sT}, s{sG}, {TGS}
s_add_u32 s{sT}, s{sT}, {TG}
s_add_u32 s{RT}, s{sWS}, s{sT}
s_addc_u32 s{RT+1}, s{sWS+1}, 0
s_lshl_b32 s{sT}, s{sI}, 10
v_lshl_add_u32 v6, v6, 3, s{sT}
global_load_dword v{vJUNK+1}, v6, s[{RT}:{RT+1}] sc1
v_mov_b32 v12, -1
v_mov_b32 v13, -1
v_mov_b32 v14, -1
v_mov_b32 v15, -1
s_mul_i32 s{sT}, s{sI}, {CLR}
v_min_u32 v10, {CLR-16}, v11
v_add_u32 v10, s{sT}, v10
global_store_dwordx4 v10, v[12:15], s[{RG}:{RG+1}]
s_cmp_eq_u32 s{sW}, 3
s_cbranch_scc0 L_clrd
s_mul_i32 s{sT}, s{sI}, 640
s_add_u32 s{sT}, s{sT}, {XR}
v_min_u32 v10, 624, v{vL16}
v_add_u32 v10, s{sT}, v10
global_store_dwordx4 v10, v[12:15], s[{RG}:{RG+1}] sc1
L_clrd:
""")
NV1 = int(opts["v1"])
for j in range(1, NV1):
    a(f"s_add_u32 m0, m0, 4096\nv_add_u32 v{vVA}, {VSTEP}, v{vVA}\nglobal_load_lds_dwordx4 v{vVA}, s[{sV}:{sV+1}] {POL}")
a(f"""
v_and_b32 v1, 15, v0
v_bfe_u32 v2, v0, 4, 2
""")
stamp("iss")
a(f"""
s_mov_b32 s{RG+2}, 0x20000
s_mov_b32 s{RG+3}, 0x20000
s_mov_b64 s[{RX}:{RX+1}], s[{sWS}:{sWS+1}]
s_mov_b32 s{RX+2}, {WSSIZE}
s_mov_b32 s{RX+3}, 0x20000
s_mov_b32 s{RT+2}, {2*BOFF}
s_mov_b32 s{RT+3}, 0x20000
s_mov_b32 s{sLAY}, 0
s_mov_b32 s{sALT}, 1
s_mov_b32 s{sNF}, 1
s_mov_b32 s{sTH}, 0x42000000
s_movk_i32 s{sTRY}, 12
s_mov_b32 s{sSPIN}, 0x20000
s_mov_b32 s{sQUADM}, 0x11111111
s_mov_b32 s{sQUADM+1}, 0x11111111
s_mov_b32 s{sDM}, 0x00020002
s_mov_b32 s{sDM+1}, 0x00020002
s_mov_b32 s{sPUBM}, 0x00110011
s_mov_b32 s{sPUBM+1}, 0x00110011
s_lshl_b32 s{sT}, s{sW}, 4
s_lshl_b64 s[{sMLM}:{sMLM+1}], 1, s{sT}
s_and_b32 s{sA4}, s{sI}, 15
s_or_b32 s{sT}, s{sG}, s{sCG}
s_cmp_eq_u32 s{sT}, 0
s_cselect_b32 s{sFIN}, 1, 0
s_mov_b32 s{sSTM}, 0
s_brev_b32 s{sSTM+1}, 1
s_lshr_b32 s{sXO}, s{sA4}, 3
s_mul_i32 s{sXO}, s{sXO}, 2560
s_and_b32 s{sT2}, s{sA4}, 7
s_lshl_b32 s{sT2}, s{sT2}, 8
s_add_u32 s{sXO}, s{sXO}, s{sT2}
""")
for gp in range(8):
    a(f"s_mov_b32 s{sGO+gp}, {gp*GS}")
a(f"""
v_bfe_u32 v3, v0, 2, 2
v_and_b32 v4, 3, v0
v_lshrrev_b32 v{vL8}, 1, v{vL16}
v_lshlrev_b32 v{vB16}, 4, v2
v_add_u32 v5, 256, v{vB16}
v_cmp_eq_u32 vcc, 1, v3
v_mov_b32 v{vXWR}, v{vHWR}
v_mov_b32 v{vONE}, {ONES}
v_cndmask_b32 v{vXRD}, v{vB16}, v5, vcc
v_lshlrev_b32 v5, 1, v8
s_lshl_b32 s{sT}, s{sKQ}, 9
v_add_u32 v{vGA}, s{sT}, v5
v_mul_u32_u24 v6, 2560, v9
v_add_u32 v{vGA}, v{vGA}, v6
s_lshr_b32 s{sT}, s{sA4}, 3
s_lshl_b32 s{sT}, s{sT}, 12
s_add_u32 s{sT}, s{sT}, {HP}
v_lshl_add_u32 v{vHGA}, v9, 9, v5
v_add_u32 v{vHGA}, s{sT}, v{vHGA}
v_lshlrev_b32 v{vHSA}, 4, v4
v_add_u32 v{vHSA}, {HS}, v{vHSA}
s_lshl_b32 s{sT}, s{sKQ}, 11
s_lshl_b32 s{sT2}, s{sCG}, 8
s_add_u32 s{sT}, s{sT}, s{sT2}
s_lshl_b32 s{sT2}, s{sW}, 6
s_add_u32 s{sT}, s{sT}, s{sT2}
v_add_u32 v{vQPA}, s{sT}, v{vB16}
v_add_u32 v7, {QCS}, v{vQPA}
v_cndmask_b32 v{vQPA}, v{vQPA}, v7, vcc
v_add_u32 v{vQGA}, {QS}, v5
s_lshl_b32 s{sT}, s{sI}, 4
s_add_u32 s{sT}, s{sT}, {QS}
v_mov_b32 v{vQSA}, s{sT}
s_lshr_b32 s{sT}, s{sI}, 4
s_lshl_b32 s{sT}, s{sT}, 12
s_lshl_b32 s{sT2}, s{sW}, 10
s_add_u32 s{sT}, s{sT}, s{sT2}
s_lshl_b32 s{sT2}, s{sA4}, {5 if RL else 4}
s_add_u32 s{sT}, s{sT}, s{sT2}
v_lshlrev_b32 v7, 13, v2
{"v_lshrrev_b32 v10, 1, v3" if RL else ""}
{"v_lshl_add_u32 v7, v10, 9, v7" if RL else "v_lshl_add_u32 v7, v3, 8, v7"}
{"v_and_b32 v10, 1, v3" if RL else ""}
{"v_lshl_add_u32 v7, v10, 4, v7" if RL else ""}
v_add_u32 v{vRECA}, s{sT}, v7
s_lshl_b32 s{sT}, s{sI}, 3
s_add_u32 s{sT}, s{sT}, {ML}
v_lshlrev_b32 v7, 8, v2
v_add_u32 v{vMLA}, s{sT}, v7
s_lshr_b32 s{sT}, s{sA4}, 3
s_lshl_b32 s{sT}, s{sT}, 2
s_add_u32 s{sT}, s{sT}, s{sW}
s_lshl_b32 s{sT2}, s{sT}, 12
{OA_TXT}
s_lshr_b32 s{sT2}, s{sT}, 1
s_lshl_b32 s{sT2}, s{sT2}, 8
s_add_u32 s{sT2}, s{sT2}, {ML}
s_and_b32 s{sT}, s{sT}, 1
v_and_b32 v7, 1, v3
v_xor_b32 v7, s{sT}, v7
v_lshlrev_b32 v7, 4, v7
v_lshl_add_u32 v7, v2, 2, v7
v_add_u32 v7, v7, v4
v_lshlrev_b32 v7, 3, v7
v_add_u32 v{vOML}, s{sT2}, v7
v_lshl_add_u32 v7, v2, 3, v3
v_lshlrev_b32 v7, 7, v7
v_lshrrev_b32 v10, 1, v2
v_xor_b32 v10, v10, v2
v_and_b32 v10, 1, v10
v_lshrrev_b32 v11, 1, v3
v_lshl_or_b32 v10, v10, 1, v11
v_lshlrev_b32 v10, 5, v10
v_lshl_or_b32 v10, v4, 3, v10
v_or_b32 v{vTR0}, v7, v10
v_mul_u32_u24 v{vQRD}, {QH}, v3
v_add_u32 v{vQRD}, v{vQRD}, v{vB16}
v_lshl_add_u32 v{vPRD}, v3, 6, v{vB16}
s_lshl_b32 s{sT}, s{sW}, 8
v_add_u32 v{vPWR}, s{sT}, v{vPRD}
v_lshrrev_b32 v7, 1, v2
v_and_b32 v10, 1, v2
v_lshl_or_b32 v7, v10, 1, v7
v_lshlrev_b32 v7, 6, v7
v_lshl_add_u32 v7, v1, 2, v7
v_add_u32 v{vYWR}, s{sT}, v7
s_lshl_b32 s{sT}, s{sW}, 5
v_lshlrev_b32 v7, 3, v2
v_lshl_add_u32 v7, v3, 7, v7
v_add_u32 v{vMWR}, s{sT}, v7
v_lshlrev_b32 v7, 3, v1
v_lshl_add_u32 v{vMRD}, v2, 7, v7
s_lshl_b32 s{sT}, s{sW}, 7
v_lshl_add_u32 v7, v1, 6, v{vB16}
v_add_u32 v{vDPA}, s{sT}, v7
v_mov_b32 v{vPUBA}, 0
v_mov_b32 v{vQL}, 0
v_mov_b32 v{vMASK}, 0xffffff00
v_mov_b32 v{vMASK+2}, 255
v_lshrrev_b32 v11, 1, v{vL8}
ds_write_b32 v11, v{vONE} offset:{L_X+256}
ds_write_b32 v11, v{vONE} offset:{L_X+768}
s_getreg_b32 s{sT2}, hwreg(HW_REG_XCC_ID)
s_and_b32 s{sT2}, s{sT2}, 15
v_mov_b32 v{vSTG+3}, s{sT2}
s_waitcnt lgkmcnt(0)
s_mul_i32 s{sTAG}, s{sNON}, 0x9E3779B1
s_add_u32 s{sTAG}, s{sTAG}, 0x7F4A7C15
s_and_b32 s{sT0}, s{sTAG}, 255
s_bfe_u32 s{sT0+1}, s{sTAG}, 0x80008
s_bfe_u32 s{sT0+2}, s{sTAG}, 0x80010
s_lshr_b32 s{sT0+3}, s{sTAG}, 24
v_mov_b32 v{vSTG+2}, s{sTAG}
""")
F3 = int(opts["f3"])
def f3_sample():
    for gp in range(1, 8):
        a(f"""s_add_u32 s{sT}, s{sG}, {gp}
        s_and_b32 s{sT}, s{sT}, 7
        s_lshl_b32 s{sT}, s{sT}, 7
        s_add_u32 s{sT}, s{sT}, {GD + 2048}
        s_load_dword s{sGO+gp}, s[{sWS}:{sWS+1}], s{sT}""")
def f3_eval():
    a("s_waitcnt lgkmcnt(0)")
    for gp in range(1, 8): a(f"s_xor_b32 s{sGO+gp}, s{sGO+gp}, s{sTAG}")
    for gp in range(2, 8): a(f"s_or_b32 s{sGO+1}, s{sGO+1}, s{sGO+gp}")
    a(f"s_cselect_b32 s{sEAR}, 1, 0")
    for gp in range(8): a(f"s_mov_b32 s{sGO+gp}, {gp*GS}")
if F3:
    a(f"""s_or_b32 s{sT}, s{sI}, s{sW}
    s_cbranch_scc1 L_f3
    s_lshl_b32 s{sT}, s{sG}, 7
    v_mov_b32 v10, s{sT}
    s_mov_b64 exec, 1
    global_store_dword v10, v{vSTG+2}, s[{sWS}:{sWS+1}] offset:{GD + 2048} sc1
    s_mov_b64 exec, -1
    L_f3:""")
a(f"""
s_lshl_b32 s{sT}, s{sW}, 5
v_xor_b32 v10, s{sT}, v{vTR0}
v_xor_b32 v11, 32, v10
v_add_u32 v11, 512, v11
""")
stamp("setup")
VL = int(opts["vl"])
for j in range(NV1, 8 - VL):
    a(f"s_add_u32 m0, m0, 4096\nv_add_u32 v{vVA}, {VSTEP}, v{vVA}\nglobal_load_lds_dwordx4 v{vVA}, s[{sV}:{sV+1}] {POL}")
KUP = int(opts["kup"])
def kdma(j0, j1):
    for j in range(j0, j1):
        a(f"v_xor_b32 v5, {64*(j&3)}, v{vKA}\nglobal_load_lds_dwordx4 v5, s[{sK}:{sK+1}] {POL}")
        if j < 7: a(f"s_add_u32 m0, m0, 1024\ns_add_u32 s{sK}, s{sK}, {KSTEP}\ns_addc_u32 s{sK+1}, s{sK+1}, 0")
a(f"""v_xor_b32 v{vKA}, v{vB16}, v{vL16}
s_lshl_b32 s{sT}, s{sW}, {KWSH}
v_add_u32 v{vKA}, s{sT}, v{vKA}""")
if not VL: a(f"s_lshl_b32 s{sT}, s{sW}, 13\ns_add_u32 m0, s{sT}, {L_K}")
kdma(0, KUP)
stamp("iss2")
if F3 == 1: f3_sample()
a(f"""
s_waitcnt vmcnt({7 + KUP - VL})
v_dot2_f32_bf16 v24, v20, v{vONE}, 0
v_dot2_f32_bf16 v25, v20, v20, 0
v_dot2_f32_bf16 v24, v21, v{vONE}, v24
v_dot2_f32_bf16 v25, v21, v21, v25
v_dot2_f32_bf16 v24, v22, v{vONE}, v24
v_dot2_f32_bf16 v25, v22, v22, v25
v_dot2_f32_bf16 v24, v23, v{vONE}, v24
v_dot2_f32_bf16 v25, v23, v23, v25
v_lshlrev_b32 v{vR0}, 16, v{vXW}
v_and_b32 v{vR1}, 0xffff0000, v{vXW}
s_nop 0
""")
for r_ in (1, 2, 4, 8):
    a(f"v_add_f32_dpp v24, v24, v24 row_ror:{r_} {DPPALL}\nv_add_f32_dpp v25, v25, v25 row_ror:{r_} {DPPALL}\ns_nop 0")
for sw in (32, 16):
    a(f"""v_mov_b32 v26, v24
    v_mov_b32 v27, v25
    s_nop 0
    v_permlane{sw}_swap_b32 v24, v26
    v_permlane{sw}_swap_b32 v25, v27
    v_add_f32 v24, v24, v26
    v_add_f32 v25, v25, v27""")
a(f"""
v_mul_f32 v24, {f32(-1/512)}, v24
v_mul_f32 v25, {f32(1/512)}, v25
v_fma_f32 v25, -v24, v24, v25
v_max_f32 v25, 0, v25
v_add_f32 v25, {f32(1e-5)}, v25
v_rsq_f32 v25, v25
v_add_f32 v26, v24, v{vR0}
v_add_f32 v27, v24, v{vR1}
v_mul_f32 v25, {f32(QSCALE)}, v25
v_mul_f32 v26, v26, v25
v_mul_f32 v27, v27, v25
v_cvt_pk_bf16_f32 v{vXW}, v26, v27
ds_write_b32 v{vXWR}, v{vXW}
""")
if F3 == 1: f3_eval()
a("s_barrier")
stamp("wq")
if STAMP: a(f"v_mov_b32 v{vSTMP}, 0")
trW(aWQ, L_WQ, 10, 11)
a("s_branch L_TQ")

a(f"""
L_G:
""")
if int(opts["xack"]) == 1: a("s_waitcnt vmcnt(0)")
stamp("g0")
a("L_Gp:")
def g_issue():
    for j in range(8):
        a(f"buffer_load_dwordx4 {V4(GB0+4*j)}, v{vGA}, s[{RX}:{RX+3}], s{sGO+j} offen sc1")
g_issue()
a("L_G1:\ns_waitcnt vmcnt(6)")
a(f"v_pk_add_f32 v[40:41], v[{GB0}:{GB0+1}], v[{GB0+4}:{GB0+5}]\nv_pk_add_f32 v[42:43], v[{GB0+2}:{GB0+3}], v[{GB0+6}:{GB0+7}]\nv_max_u32 v44, v{GB0}, v{GB0+4}")
for j in range(2, 8):
    a(f"s_waitcnt vmcnt({7-j})")
    a(f"v_pk_add_f32 v[40:41], v[40:41], v[{GB0+4*j}:{GB0+1+4*j}]\nv_pk_add_f32 v[42:43], v[42:43], v[{GB0+2+4*j}:{GB0+3+4*j}]")
    a(f"v_max_u32 v44, v44, v{GB0+4*j}")
a(f"""
v_cmp_eq_u32 vcc, -1, v44
v_permlane32_swap_b32 v40, v42
v_permlane32_swap_b32 v41, v43
v_add_f32 v40, v40, v42
v_add_f32 v41, v41, v43
v_add_f32 v40, v40, v{vR0}
v_add_f32 v41, v41, v{vR1}
v_cvt_pk_bf16_f32 v{vXW}, v40, v41
ds_write_b32 v{vXWR}, v{vXW}
s_cbranch_vccnz L_Gretry
L_Gok:
""")
stamp("gok")
a(f"""
v_lshlrev_b32 v{vR0}, 16, v{vXW}
v_and_b32 v{vR1}, 0xffff0000, v{vXW}
s_cmp_eq_u32 s{sPH}, 1
s_cbranch_scc1 L_TU
s_cmp_eq_u32 s{sPH}, 0
s_cbranch_scc0 L_Gother
""")

def gemv_stats(step):
    a(f"""v_dot2_f32_bf16 v46, v{vXW}, v{vXW}, 0
    v_dot2_f32_bf16 v47, v{vXW}, v{vONE}, 0
    s_nop 2
    v_permlane32_swap_b32 v47, v46
    v_add_f32 v46, v46, v47
    s_nop 1
    v_add_f32_dpp v46, v46, v46 row_ror:1 {DPPALL}
    s_nop 1
    v_add_f32_dpp v46, v46, v46 row_ror:2 {DPPALL}""")
    rest = [f"v_add_f32_dpp v46, v46, v46 row_ror:4 {DPPALL}", f"v_add_f32_dpp v46, v46, v46 row_ror:8 {DPPALL}",
            "v_add_f32_dpp v46, v46, v46 row_bcast:15 row_mask:0xa bank_mask:0xf",
            f"v_mov_b32 v{vSTG}, v46\nv_mov_b32_dpp v{vSTG+1}, v46 row_bcast:31 row_mask:0xc bank_mask:0xf"]
    for s in range(4):
        a(f"s_waitcnt lgkmcnt({3-s})"); step(s); a(rest[s])
def gemv_plain(step):
    for s in range(4):
        a(f"s_waitcnt lgkmcnt({3-s})"); step(s)

a(f"""
L_TQ:
s_cmp_lg_u32 s{sW}, 0
s_waitcnt lgkmcnt(0)
s_barrier
""")
stamp("xq")
for s in range(4): a(f"ds_read_b128 {V4(8+4*s)}, v{vXRD} offset:{64*s}")
tq_step = lambda s: a(mfma(24, A4(aWQ+4*s), V4(8+4*s), s == 0))
def tq_tail(fl):
    a(f"""s_mov_b64 exec, s[{sPUBM}:{sPUBM+1}]
    s_cmp_lg_u32 s{sW}, 0
    s_nop 3
    buffer_store_dwordx4 v[24:27], v{vQPA}, s[{RG}:{RG+3}], 0 offen{fl}
    s_cbranch_scc1 L_S
    s_mov_b64 exec, s[{sSTM}:{sSTM+1}]
    buffer_store_dwordx2 v[{vSTG}:{vSTG+1}], v{vQSA}, s[{RG}:{RG+3}], 0 offen{fl}
    s_mov_b64 exec, -1""")
a("s_cbranch_scc1 L_TQw")
gemv_stats(tq_step)
a(f"""s_cmp_eq_u32 s{sALT}, 0
s_cbranch_scc0 L_TQalt
s_mov_b64 exec, s[{sPUBM}:{sPUBM+1}]
s_nop 2
buffer_store_dwordx4 v[24:27], v{vQPA}, s[{RG}:{RG+3}], 0 offen
s_mov_b64 exec, s[{sSTM}:{sSTM+1}]
buffer_store_dwordx2 v[{vSTG}:{vSTG+1}], v{vQSA}, s[{RG}:{RG+3}], 0 offen
s_mov_b64 exec, -1""")
stamp("qpub")
QPI = int(opts["qp"])
def q_issue(B, S):
    a(f"buffer_load_dwordx2 v[{S}:{S+1}], v{vQGA}, s[{RG}:{RG+3}], 0 offen sc1")
    for u in range(2):
        for k in range(4):
            so = "0" if k < 2 else f"s{sT}"
            a(f"buffer_load_dwordx4 {V4(B+16*u+4*k)}, v{vQL}, s[{RG}:{RG+3}], {so} offen offset:{(k&1)*2048+u*1024} sc1")
def q_head(S, x, fail):
    a(f"""s_waitcnt vmcnt({8+x})
    v_cmp_eq_u32 vcc, -1, v{S}
    v_add_f32_dpp v38, v{S}, v{S} quad_perm:[1,0,3,2] {DPPALL}
    v_add_f32_dpp v39, v{S+1}, v{S+1} quad_perm:[1,0,3,2] {DPPALL}
    s_cbranch_vccnz {fail}""")
def q_body(B, x, fail):
    P = lambda r: f"v[{B+r}:{B+r+1}]"
    a(f"""
    v_add_f32_dpp v38, v38, v38 quad_perm:[2,3,0,1] {DPPALL}
    v_add_f32_dpp v39, v39, v39 quad_perm:[2,3,0,1] {DPPALL}
    v_mul_f32 v38, {f32(1/512)}, v38
    v_mul_f32 v46, {f32(-1/512)}, v39
    v_fma_f32 v38, -v46, v46, v38
    v_max_f32 v38, 0, v38
    v_add_f32 v38, {f32(1e-5)}, v38
    v_rsq_f32 v38, v38
    s_waitcnt vmcnt({6+x})
    v_pk_add_f32 v[40:41], {P(0)}, {P(4)}
    v_pk_add_f32 v[42:43], {P(2)}, {P(6)}
    v_mul_f32 v38, {f32(QSCALE)}, v38
    s_waitcnt vmcnt({5+x})
    v_pk_add_f32 v[40:41], v[40:41], {P(8)}
    v_pk_add_f32 v[42:43], v[42:43], {P(10)}
    v_max3_u32 v44, v{B}, v{B+4}, v{B+8}
    v_pk_fma_f32 v[40:41], v[{vQCS}:{vQCS+1}], v[46:47], v[40:41] op_sel_hi:[1,0,1]
    v_pk_fma_f32 v[42:43], v[{vQCS+2}:{vQCS+3}], v[46:47], v[42:43] op_sel_hi:[1,0,1]
    s_waitcnt vmcnt({3+x})
    v_pk_add_f32 v[40:41], v[40:41], {P(12)}
    v_pk_add_f32 v[42:43], v[42:43], {P(14)}
    v_max3_u32 v44, v44, v{B+12}, v{B+16}
    v_pk_fma_f32 v[24:25], v[{vQCS+4}:{vQCS+5}], v[46:47], {P(16)} op_sel_hi:[1,0,1]
    v_pk_fma_f32 v[26:27], v[{vQCS+6}:{vQCS+7}], v[46:47], {P(18)} op_sel_hi:[1,0,1]
    v_pk_mul_f32 v[40:41], v[40:41], v[38:39] op_sel_hi:[1,0]
    v_pk_mul_f32 v[42:43], v[42:43], v[38:39] op_sel_hi:[1,0]
    s_waitcnt vmcnt({2+x})
    v_pk_add_f32 v[24:25], v[24:25], {P(20)}
    v_pk_add_f32 v[26:27], v[26:27], {P(22)}
    v_cvt_pk_bf16_f32 v40, v40, v41
    v_cvt_pk_bf16_f32 v41, v42, v43
    s_waitcnt vmcnt({1+x})
    v_pk_add_f32 v[24:25], v[24:25], {P(24)}
    v_pk_add_f32 v[26:27], v[26:27], {P(26)}
    ds_write_b64 v{vMODE}, v[40:41] offset:{L_QB}
    v_max3_u32 v44, v44, v{B+20}, v{B+24}
    s_waitcnt vmcnt({x})
    v_pk_add_f32 v[24:25], v[24:25], {P(28)}
    v_pk_add_f32 v[26:27], v[26:27], {P(30)}
    v_pk_mul_f32 v[24:25], v[24:25], v[38:39] op_sel_hi:[1,0]
    v_pk_mul_f32 v[26:27], v[26:27], v[38:39] op_sel_hi:[1,0]
    v_cvt_pk_bf16_f32 v24, v24, v25
    v_cvt_pk_bf16_f32 v25, v26, v27
    ds_write_b64 v{vMODE}, v[24:25] offset:{L_QB+2*QH}
    v_max_u32 v44, v44, v{B+28}
    v_cmp_eq_u32 vcc, -1, v44
    s_cbranch_vccnz {fail}""")
a(f"L_QFe:\ns_movk_i32 s{sT}, 4096")
if not QPI:
    a("L_QFp:"); q_issue(64, 48); q_head(48, 0, "L_QFretry"); a("L_QF2:"); stamp("qf2"); q_body(64, 0, "L_QF2retry")
else:
    q_issue(144, 50)
    a("L_QFp:"); q_issue(64, 48); q_head(50, 9, "L_QFn"); q_body(144, 9, "L_QFn"); a("s_branch L_S\nL_QFn:")
    q_issue(144, 50); q_head(48, 9, "L_QFretry"); stamp("qf2"); q_body(64, 9, "L_QFretry")
stamp("qfok")
a(f"""
L_S:
s_mov_b64 exec, -1
s_waitcnt lgkmcnt(0)
s_barrier
""")
stamp("q")
for s in range(4): a(f"ds_read_b128 {V4(8+4*s)}, v{vQRD} offset:{L_QB + 64*s}")
for s in range(4):
    a(f"s_waitcnt lgkmcnt({LG(3-s)})")
    for t in range(2): a(mfma(24+4*t, A4(aK+16*t+4*s), V4(8+4*s), s == 0))
a(f"""
v_mov_b32 v32, 0
s_nop 5
""")
stamp("smm")
for k in range(8): a(f"v_exp_f32 v{40+k}, v{24+k}")
def p_tail():
    a(f"""
    v_cvt_pk_bf16_f32 v36, v40, v41
    v_cvt_pk_bf16_f32 v37, v42, v43
    v_cvt_pk_bf16_f32 v38, v44, v45
    v_cvt_pk_bf16_f32 v39, v46, v47
    s_mov_b64 exec, s[{sQUADM}:{sQUADM+1}]
    ds_write_b128 v{vPWR}, v[36:39] offset:{L_PB}
    v_dot2_f32_bf16 v33, v36, v{vONE}, 0
    v_dot2_f32_bf16 v33, v37, v{vONE}, v33
    v_dot2_f32_bf16 v33, v38, v{vONE}, v33
    v_dot2_f32_bf16 v33, v39, v{vONE}, v33""")
p_tail()
a(f"""
v_max3_f32 v34, v24, v25, v26
v_max3_f32 v35, v27, v28, v29
v_max3_f32 v34, v34, v30, v31
ds_write_b64 v{vMWR}, v[32:33] offset:{L_MB}
v_max_f32 v34, v34, v35
v_cmp_nle_f32 vcc, |v34|, s{sTH}
s_cbranch_vccnz L_Sbig
L_Sp:
s_mov_b64 exec, -1
s_cmp_eq_u32 s{sNF}, 0
s_waitcnt lgkmcnt(0)
s_barrier
""")
stamp("p")
for w in range(4): a(f"ds_read_b128 {V4(8+4*w)}, v{vPRD} offset:{L_PB + 256*w}")
a(f"ds_read_b64 v[32:33], v{vMRD} offset:{L_MB}")
for w in range(4):
    a(f"s_waitcnt lgkmcnt({LG(4-w)})")
    for c in range(2): a(mfma(24+4*c, V4(8+4*w), A4(aV+8*w+4*c), w == 0))
a(f"""
s_waitcnt lgkmcnt(0)
v_add_f32_dpp v35, v33, v33 row_ror:1 {DPPALL}
v_cmp_neq_f32 vcc, 0, v32
v_mov_b32 v34, 0
v_add_f32_dpp v35, v35, v35 row_ror:2 {DPPALL}
s_cbranch_vccnz L_PVbig
s_nop 0
v_add_f32_dpp v35, v35, v35 row_ror:4 {DPPALL}
v_cvt_pk_bf16_f32 v36, v24, v28
s_nop 0
v_add_f32_dpp v35, v35, v35 row_ror:8 {DPPALL}
L_PVt:
v_mov_b32_dpp v37, v36 quad_perm:[1,1,1,1] {DPPALL}
v_mov_b32_dpp v38, v36 quad_perm:[2,2,2,2] {DPPALL}
v_mov_b32_dpp v39, v36 quad_perm:[3,3,3,3] {DPPALL}
s_mov_b64 exec, s[{sQUADM}:{sQUADM+1}]
s_cbranch_scc0 L_RECsafe
""")
def rec_tail(fl):
    a(f"""buffer_store_dwordx4 v[36:39], v{vRECA}, s[{RG}:{RG+3}], 0 offen{fl}
    s_mov_b64 exec, s[{sMLM}:{sMLM+1}]
    buffer_store_dwordx2 v[34:35], v{vMLA}, s[{RG}:{RG+3}], 0 offen{fl}""")
rec_tail("")
a(f"""L_RECd:
s_mov_b64 exec, -1""")
stamp("rec")
a(f"""
s_cmp_ge_u32 s{sI}, 16
s_cbranch_scc1 L_B
""")
a(f"""
s_cmp_eq_u32 s{sLAY}, 0
s_cbranch_scc0 L_O
""")
if opts["wo2"] == "all": wo_issue()
if opts["wo2"] == "rec":
    a(f"s_cmp_eq_u32 s{sW}, 0\ns_cbranch_scc0 L_W0")
    wo_issue()
    a("L_W0:")
WP = int(opts["wp"])
def wo_reads(steps):
    for t in range(4):
        a(f"v_xor_b32 v6, {32*t}, v{vVA}\nv_xor_b32 v7, 32, v6\nv_add_u32 v7, 256, v7")
        for s in steps:
            d = aW2 + 16*t + 4*s
            a(f"ds_read_b64_tr_b16 a[{d}:{d+1}], v6 offset:{s*4096}\nds_read_b64_tr_b16 a[{d+2}:{d+3}], v7 offset:{s*4096}")
def oloads(gap):
    a(f"buffer_load_dwordx2 v[4:5], v{vOML}, s[{RG}:{RG+3}], 0 offen sc1")
    for s in range(4):
        a(f"buffer_load_dwordx4 {V4(8+4*s)}, v{vOA}, s[{RG}:{RG+3}], 0 offen offset:{1024*s} sc1")
        if gap and s < 3: a(f"s_nop {gap-1}")
if not WP:
    a("s_waitcnt vmcnt(2)"); stamp("wl"); a("s_barrier"); stamp("wb"); wo_reads(range(4)); stamp("wt")
else:
    a("s_waitcnt vmcnt(4)\ns_barrier")
    oloads(0)
    wo_reads(range(3))
    a("s_waitcnt vmcnt(7)\ns_barrier")
    wo_reads([3])
    a("s_branch L_O1")
OM = opts["om"]
a("L_O:")
if OM == "ack": a("s_waitcnt vmcnt(0)")
if OM == "ack1": a("s_waitcnt vmcnt(1)")
if OM.startswith("d"):
    for _ in range(int(OM[1:])): a("s_nop 15")
if OM in ("bell", "bell2"):
    a(f"""L_Ob:
    buffer_load_dwordx2 v[4:5], v{vOML}, s[{RG}:{RG+3}], 0 offen sc1
    s_waitcnt vmcnt(0)
    v_cmp_eq_u32 vcc, -1, v5
    s_cbranch_vccnz L_Obretry""")
a("L_Op:")
oloads(int(opts["og"]))
a("L_O1:")
mo = lambda t, s: mfma(24+4*t, V4(8+4*s), A4(aW2+16*t+4*s), s == 0)
a(f"""
s_waitcnt vmcnt(4) lgkmcnt(0)
v_cmp_eq_u32 vcc, -1, v5
s_cbranch_vccnz L_Oretry
L_O2:
""")
stamp("o2")
a(f"""
s_waitcnt vmcnt(3)
{mo(0,0)}
{mo(1,0)}
{mo(2,0)}
{mo(3,0)}
s_waitcnt vmcnt(2)
{mo(0,1)}
{mo(1,1)}
{mo(2,1)}
{mo(3,1)}
s_waitcnt vmcnt(1)
{mo(0,2)}
v_add_f32_dpp v6, v5, v5 quad_perm:[1,0,3,2] {DPPALL}
v_max3_u32 v44, v8, v12, v16
{mo(1,2)}
v_add_f32_dpp v6, v6, v6 quad_perm:[2,3,0,1] {DPPALL}
v_cmp_neq_f32 s[{sM}:{sM+1}], 0, v4
{mo(2,2)}
v_add_f32_dpp v6, v6, v6 row_half_mirror {DPPALL}
v_mov_b32 v7, v6
{mo(3,2)}
s_waitcnt vmcnt(0)
v_permlane32_swap_b32 v6, v7
{mo(0,3)}
v_add_f32 v6, v6, v7
v_mov_b32 v7, v6
{mo(1,3)}
v_max_u32 v44, v44, v20
v_permlane16_swap_b32 v6, v7
{mo(2,3)}
v_cmp_eq_u32 vcc, -1, v44
v_add_f32 v6, v6, v7
{mo(3,3)}
v_rcp_f32 v6, v6
s_cbranch_vccnz L_O2retry
L_Ook:
""")
stamp("ook")
a(f"""
s_cmp_lg_u64 s[{sM}:{sM+1}], 0
s_cbranch_scc1 L_Obig
v_pk_add_f32 v[24:25], v[24:25], v[26:27]
v_pk_add_f32 v[28:29], v[28:29], v[30:31]
v_add_f32 v40, v24, v25
v_add_f32 v41, v28, v29
v_pk_add_f32 v[32:33], v[32:33], v[34:35]
v_pk_add_f32 v[36:37], v[36:37], v[38:39]
v_add_f32 v42, v32, v33
v_add_f32 v43, v36, v37
L_Ot:
v_permlane32_swap_b32 v40, v41
v_add_f32 v40, v40, v41
v_permlane32_swap_b32 v42, v43
v_add_f32 v42, v42, v43
s_add_u32 s{sT}, s{sXO}, {X1}
s_cmp_eq_u32 s{sW}, 0
v_permlane16_swap_b32 v40, v42
v_add_f32 v40, v40, v42
v_mul_f32 v40, v40, v6
ds_write_b32 v{vYWR}, v40 offset:{L_YB}
s_waitcnt lgkmcnt(0)
s_barrier
s_cbranch_scc0 L_Odone
s_mov_b64 exec, 0xffff
""")
stamp("ob")
for w in range(4): a(f"ds_read_b128 {V4(8+4*w)}, v{vL16} offset:{L_YB + 256*w}")
a(f"""
s_waitcnt lgkmcnt({LG(2)})
v_pk_add_f32 v[8:9], v[8:9], v[12:13]
v_pk_add_f32 v[10:11], v[10:11], v[14:15]
s_waitcnt lgkmcnt({LG(1)})
v_pk_add_f32 v[8:9], v[8:9], v[16:17]
v_pk_add_f32 v[10:11], v[10:11], v[18:19]
s_waitcnt lgkmcnt(0)
v_pk_add_f32 v[8:9], v[8:9], v[20:21]
v_pk_add_f32 v[10:11], v[10:11], v[22:23]
buffer_store_dwordx4 v[8:11], v{vL16}, s[{RG}:{RG+3}], s{sT} offen sc1
s_mov_b64 exec, -1
L_Odone:
""")
stamp("x1pub")
def xor_acc(base, first, acc=44):
    for k in range(4): a(f"v_xor_b32 v{base+k}, s{sT0+k}, v{base+k}")
    if first:
        a(f"v_or3_b32 v{acc}, v{base}, v{base+1}, v{base+2}\nv_or_b32 v{acc}, v{acc}, v{base+3}")
    else:
        a(f"v_or3_b32 v{acc}, v{acc}, v{base}, v{base+1}\nv_or3_b32 v{acc}, v{acc}, v{base+2}, v{base+3}")
def wd_base(own):
    a(f"""s_lshr_b32 s{sT}, s{sG}, 1
    s_mul_i32 s{sT}, s{sT}, 7
    s_and_b32 s{sT2}, s{sG}, 1
    s_lshl_b32 s{sM}, s{sT2}, 2
    s_add_u32 s{sT}, s{sT}, s{sM}
    s_lshr_b32 s{sM}, s{sA4}, 3
    s_and_b32 s{sT2}, s{sT2}, s{sM}
    s_lshl_b32 s{sM}, s{sM}, 1
    s_add_u32 s{sT}, s{sT}, s{sM}
    s_lshl_b32 s{sT}, s{sT}, 16
    s_and_b32 s{sM}, s{sA4}, 7
    s_lshl_b32 s{sM}, s{sM}, 1
    {f"s_add_u32 s{sM}, s{sM}, s{sW}" if own else ""}
    s_lshl_b32 s{sM}, s{sM}, 6
    s_add_u32 s{sT}, s{sT}, s{sM}
    s_add_u32 s{sWD}, s{sWD}, s{sT}
    s_addc_u32 s{sWD+1}, s{sWD+1}, 0
    s_lshl_b32 s{sT2}, s{sT2}, 16""")
def wd_issue():
    wd_base(True)
    a(f"""s_lshl_b32 s{sT}, s{sW}, 13
    s_add_u32 m0, s{sT}, {L_WD}
    v_bfe_u32 v4, v0, 2, 4
    v_and_b32 v5, 32, v0
    v_and_b32 v6, 48, v{vL16}
    v_xor_b32 v5, v5, v6
    v_lshl_add_u32 v4, v4, 10, v5""")
    for j in range(8):
        a(f"global_load_lds_dwordx4 v4, s[{sWD}:{sWD+1}] {POL}")
        if j < 7: a(f"s_add_u32 m0, m0, 1024\nv_add_u32 v4, 0x4000, v4")
        if j == 3: a(f"v_subrev_u32 v4, s{sT2}, v4")
    a(f"""v_bfe_u32 v4, v0, 2, 2
    v_bfe_u32 v5, v0, 4, 2
    v_lshl_add_u32 v4, v5, 3, v4
    v_lshlrev_b32 v4, 6, v4
    v_and_b32 v5, 1, v5
    v_lshl_add_u32 v4, v5, 5, v4
    v_and_b32 v5, 3, v0
    v_lshl_add_u32 v4, v5, 3, v4
    v_add_u32 v6, s{sT}, v4
    v_xor_b32 v7, 32, v6""")
def wd_reads():
    for t in range(2):
        for s_ in range(4):
            for e in range(2):
                r = aWD + 16*t + 4*s_ + 2*e
                a(f"ds_read_b64_tr_b16 a[{r}:{r+1}], v{6+t} offset:{L_WD + s_*2048 + e*256}")
def qc_gather():
    l3 = a.label("QC"); l4 = a.label("QC")
    a(f"""s_mul_i32 s{sT2}, s{sNF}, {BOFF}
    s_mul_i32 s{sT}, s{sG}, {TGS}
    s_add_u32 s{sT2}, s{sT2}, s{sT}
    s_add_u32 s{sT2}, s{sT2}, {TG}
    s_add_u32 s{RT}, s{sWS}, s{sT2}
    s_addc_u32 s{RT+1}, s{sWS+1}, 0
    {l3}:""")
    for k in range(4):
        a(f"s_mov_b32 s{sT2}, {QCS + k*2048}")
        for u in range(2):
            a(f"buffer_load_dwordx4 {V4(8+16*u+4*k)}, v{vL16}, s[{RT}:{RT+3}], s{sT2} offen offset:{u*1024} sc1")
    a("s_waitcnt vmcnt(0)")
    for u in range(2):
        for k in range(4): xor_acc(8+16*u+4*k, u == 0 and k == 0)
        for h in range(2):
            r = 8 + 16*u + 2*h
            a(f"v_pk_add_f32 v[{r}:{r+1}], v[{r}:{r+1}], v[{r+4}:{r+5}]\nv_pk_add_f32 v[{r+8}:{r+9}], v[{r+8}:{r+9}], v[{r+12}:{r+13}]")
            a(f"v_pk_add_f32 v[{vQCS+4*u+2*h}:{vQCS+4*u+2*h+1}], v[{r}:{r+1}], v[{r+8}:{r+9}]")
    a(f"v_and_b32 v44, 255, v44\nv_cmp_ne_u32 vcc, 0, v44\ns_cbranch_vccz {l4}")
    spin(l3, l4)
    a(f"""{l4}:
    ds_write_b128 v{vL16}, {V4(vQCS)} offset:{L_CS}
    ds_write_b128 v{vL16}, {V4(vQCS+4)} offset:{L_CS+1024}""")
BELL = int(opts["bell"])
def bell_ring(off):
    l1 = a.label("BR"); l2 = a.label("BR")
    a(f"""s_lshl_b32 s{sT2}, s{sA4}, 4
    s_add_u32 s{sT2}, s{sT2}, {BL + off}
    v_mov_b32 v1, 0
    s_mov_b64 exec, 1
    s_cmp_eq_u32 s{sNF}, 0
    {"s_waitcnt vmcnt(0)" if int(opts["bx2" if off else "bx"]) < 0 else ""}
    s_cbranch_scc0 {l1}
    buffer_store_dword v1, v1, s[{RG}:{RG+3}], s{sT2} offen
    {l2}:
    s_mov_b64 exec, -1""")
    tails.append(f"{l1}:\nbuffer_store_dword v1, v1, s[{RG}:{RG+3}], s{sT2} offen sc1\ns_branch {l2}")
tails = []
def bell_wait(off=0):
    if not BELL: return
    l1 = a.label("BW"); l2 = a.label("BW")
    if off == 0 and not int(opts["bell0"]): a(f"s_cmp_eq_u32 s{sLAY}, 0\ns_cbranch_scc1 {l2}")
    a(f"""s_lshl_b32 s{sT2}, s{sA4}, 4
    s_add_u32 s{sT2}, s{sT2}, {BL + off}
    v_mov_b32 v1, 0
    {l1}:
    buffer_load_dword v2, v1, s[{RG}:{RG+3}], s{sT2} offen sc1
    s_waitcnt vmcnt(0)
    v_cmp_eq_u32 vcc, -1, v2
    s_cbranch_vccz {l2}""")
    spin(l1, l2)
    a(f"{l2}:")
    bx = int(opts["bx2" if off else "bx"])
    if bx > 0: a(f"s_sleep {bx}")
def gd_wait(off=0):
    l1 = a.label("GD"); l2 = a.label("GD")
    a(f"""v_and_b32 v1, 7, v0
    v_lshlrev_b32 v1, 7, v1
    v_add_u32 v1, {GD + off*16}, v1
    {l1}:
    global_load_dword v2, v1, s[{sWS}:{sWS+1}] sc1
    s_waitcnt vmcnt(0)
    v_cmp_ne_u32 vcc, s{sTAG}, v2
    s_cbranch_vccz {l2}""")
    spin(l1, l2)
    a(f"{l2}:")
def set_rx(off):
    a(f"""v_add_u32 v{vXWR}, {512 if off == X1 else 0}, v{vHWR}
    s_mul_i32 s{sT}, s{sLAY}, {XLS}
    s_add_u32 s{sT}, s{sT}, {off + GB}
    s_add_u32 s{RX}, s{sWS}, s{sT}
    s_addc_u32 s{RX+1}, s{sWS+1}, 0""")
def next_layer():
    a(f"""s_add_u32 s{RG}, s{RG}, {LS}
    s_addc_u32 s{RG+1}, s{RG+1}, 0
    s_sub_u32 s{sXO}, s{sXO}, {LS - XLS}
    s_mov_b32 s{sALT}, s{sNF}
    s_movk_i32 s{sQH}, {QH}
    v_add_u32 v{vQL}, {QP1 - LS}, v{vL16}
    s_lshl_b32 s{sT2}, s{sKQ}, 11
    s_lshl_b32 s{sM}, s{sCG}, 8
    s_add_u32 s{sT2}, s{sT2}, s{sM}
    s_lshl_b32 s{sM}, s{sW}, 6
    s_add_u32 s{sT2}, s{sT2}, s{sM}
    s_add_u32 s{sT2}, s{sT2}, {QP1 - LS}
    v_add_u32 v{vQPA}, s{sT2}, v{vB16}
    v_and_b32 v1, 0xf8, v{vL8}
    v_add_u32 v{vQGA}, {QS1 - LS}, v1
    v_bfe_u32 v2, v0, 5, 1
    v_mad_u32_u24 v{vMODE}, v2, s{sQH}, v1
    s_lshl_b32 s{sT2}, s{sI}, 3
    s_add_u32 s{sT2}, s{sT2}, {QS1 - LS}
    v_mov_b32 v{vQSA}, s{sT2}
    s_mov_b32 s{sPUBM}, 0x00010001
    s_mov_b32 s{sPUBM+1}, 0x00010001
    s_mov_b32 s{sLAY}, 1""")
a(f"""
s_cmp_eq_u32 s{sW}, 0
s_cbranch_scc0 L_Aside
""")
if BELL and int(opts["bell0"]): bell_ring(0)
a(f"""
s_cmp_eq_u32 s{sLAY}, 0
s_cbranch_scc0 L_Dq
""")
wd_issue()
a(f"""
s_waitcnt vmcnt(0)
""")
wd_reads()
stamp("wd")
a(f"""
s_mov_b32 s{sT}, {HCS - HP}
L_HC:
""")
for k in range(4): a(f"buffer_load_dwordx4 {V4(8+4*k)}, v{vHGA}, s[{RG}:{RG+3}], s{sT} offen offset:{1024*k} sc1")
a(f"""
s_waitcnt vmcnt(0)
v_max3_u32 v44, v8, v12, v16
v_max_u32 v44, v44, v20
v_cmp_eq_u32 vcc, -1, v44
v_pk_add_f32 v[8:9], v[8:9], v[12:13]
v_pk_add_f32 v[10:11], v[10:11], v[14:15]
v_pk_add_f32 v[16:17], v[16:17], v[20:21]
v_pk_add_f32 v[18:19], v[18:19], v[22:23]
v_pk_add_f32 v[{vHCS}:{vHCS+1}], v[8:9], v[16:17]
v_pk_add_f32 v[{vHCS+2}:{vHCS+3}], v[10:11], v[18:19]
s_cbranch_vccz L_Dp0
""")
spin("L_HC", "L_Dp")
a("L_Dq:")
if BELL and not int(opts["bell0"]): bell_ring(0)
if int(opts["sd"]): a(f"s_sleep {opts['sd']}")
a("L_Dp0:")
stamp("hc")
DP = int(opts["dp"])
def d_issue(B, S):
    a(f"buffer_load_dwordx2 v[{S}:{S+1}], v{vHSA}, s[{RG}:{RG+3}], 0 offen sc1")
    for k in range(4): a(f"buffer_load_dwordx4 {V4(B+4*k)}, v{vHGA}, s[{RG}:{RG+3}], 0 offen offset:{1024*k} sc1")
def d_head(S, x, fail):
    a(f"""s_waitcnt vmcnt({4+x})
    v_cmp_eq_u32 vcc, -1, v{S}
    v_add_f32_dpp v46, v{S}, v{S} quad_perm:[1,0,3,2] {DPPALL}
    v_add_f32_dpp v47, v{S+1}, v{S+1} quad_perm:[1,0,3,2] {DPPALL}
    s_cbranch_vccnz {fail}""")
def d_body(B, x, fail):
    a(f"""
    v_add_f32_dpp v46, v46, v46 quad_perm:[2,3,0,1] {DPPALL}
    v_add_f32_dpp v47, v47, v47 quad_perm:[2,3,0,1] {DPPALL}
    v_mul_f32 v45, {f32(1/512)}, v46
    v_mul_f32 v46, {f32(-1/512)}, v47
    v_fma_f32 v45, -v46, v46, v45
    v_max_f32 v45, 0, v45
    v_add_f32 v45, {f32(1e-5)}, v45
    v_rcp_f32 v45, v45
    s_waitcnt vmcnt({2+x})
    v_max_u32 v44, v{B}, v{B+4}
    v_pk_fma_f32 v[40:41], v[{vHCS}:{vHCS+1}], v[46:47], v[{B}:{B+1}] op_sel_hi:[1,0,1]
    v_pk_fma_f32 v[42:43], v[{vHCS+2}:{vHCS+3}], v[46:47], v[{B+2}:{B+3}] op_sel_hi:[1,0,1]
    """)
    for k in range(1, 4):
        if k > 1: a(f"s_waitcnt vmcnt({3-k+x})")
        a(f"v_pk_add_f32 v[40:41], v[40:41], v[{B+4*k}:{B+4*k+1}]\nv_pk_add_f32 v[42:43], v[42:43], v[{B+4*k+2}:{B+4*k+3}]")
        if k > 1: a(f"v_max_u32 v44, v44, v{B+4*k}")
    a(f"""
    v_cmp_eq_u32 vcc, -1, v44
    v_permlane32_swap_b32 v40, v42
    v_permlane32_swap_b32 v41, v43
    v_mul_f32 v40, v40, v45
    v_mul_f32 v41, v41, v45
    v_mul_f32 v40, v40, v42
    v_mul_f32 v41, v41, v43
    v_cvt_pk_bf16_f32 v40, v40, v41
    ds_write_b32 v{vHWR}, v40 offset:{L_HB}
    s_cbranch_vccnz {fail}""")
if not DP:
    a("L_Dp:"); d_issue(8, 48); d_head(48, 0, "L_Dretry"); a("L_D2:"); stamp("d2"); d_body(8, 0, "L_D2retry")
else:
    a("L_Dp:"); d_issue(64, 48)
    a("L_DpB:"); d_issue(80, 50); d_head(48, 5, "L_Dretry"); a("L_D2:"); stamp("d2"); d_body(64, 5, "L_Dretry")
a(f"""
L_Dm:
s_add_u32 s{sT}, s{sXO}, {X2}
s_cmp_ge_u32 s{sW}, 2
s_waitcnt lgkmcnt(0)
s_barrier
s_cbranch_scc1 {"L_Dwb" if int(opts["wb"]) else "L_Ddone"}
""")
stamp("h")
for s in range(4): a(f"ds_read_b128 {V4(8+4*s)}, v{vB16} offset:{L_HB + 64*s}")
for s in range(4):
    a(f"s_waitcnt lgkmcnt({LG(3-s)})")
    for t in range(2): a(mfma(24+4*t, A4(aWD+16*t+4*s), V4(8+4*s), s == 0))
a(f"""
s_mov_b64 exec, s[{sDM}:{sDM+1}]
s_nop 6
v_mov_b32 v24, v28
v_mov_b32 v25, v29
v_mov_b32 v26, v30
v_mov_b32 v27, v31
s_mov_b32 exec_lo, 0x00030003
s_mov_b32 exec_hi, 0x00030003
buffer_store_dwordx4 v[24:27], v{vDPA}, s[{RG}:{RG+3}], s{sT} offen sc1
s_mov_b64 exec, -1
L_Ddone:
""")
stamp("x2pub")
stamp_flush()
set_rx(X2)
a(f"""
ds_read_b32 v{vXW}, v{vHWR} offset:512
s_waitcnt lgkmcnt(0)
v_lshlrev_b32 v{vR0}, 16, v{vXW}
v_and_b32 v{vR1}, 0xffff0000, v{vXW}
s_cmp_eq_u32 s{sLAY}, 0
s_cbranch_scc1 L_Anext
s_mov_b32 s{sPH}, 3
""")
WX = int(opts.get("wx", 0))
if WX:
    a(f"""s_lshl_b32 s{sT2}, s{sI}, 2
    s_add_u32 s{sT2}, s{sT2}, s{sW}
    s_cmp_eq_u32 s{sT2}, 1
    s_cbranch_scc0 L_nowx
    s_waitcnt vmcnt(0)
    s_sleep {WX}
    buffer_wbl2 sc1
    s_branch L_exit
    L_nowx:""")
a(f"""
s_cmp_eq_u32 s{sFIN}, 1
s_cbranch_scc0 L_exit
s_cmp_eq_u32 s{sW}, 0
s_cbranch_scc0 L_exit
""")
if int(opts["xack"]) == 2: a("s_waitcnt vmcnt(0)")
for _ in range(int(opts["fbell"])):
    if _ == 0: bell_ring(256)
    bell_wait(256)
a(f"""
s_branch L_G
L_Anext:
""")
if int(opts["bell2"]):
    a(f"s_cmp_eq_u32 s{sW}, 0\ns_cbranch_scc0 L_next")
    bell_ring(256)
    if int(opts["abell"]): bell_wait(256)
a(f"""
s_branch L_next
L_Aside:
s_cmp_eq_u32 s{sW}, 2
s_cbranch_scc1 L_A2
s_cmp_eq_u32 s{sW}, 1
s_cbranch_scc0 L_Dm
s_cmp_eq_u32 s{sLAY}, 0
s_cbranch_scc0 L_Dm
""")
wd_issue()
a("s_waitcnt vmcnt(0)")
wd_reads()
a(f"""
s_branch L_Dm
L_A2:
s_mov_b32 s{sPH}, 2
s_cmp_eq_u32 s{sLAY}, 0
s_cbranch_scc1 L_A20
s_cmp_eq_u32 s{sFIN}, 1
s_cbranch_scc0 L_Dm
ds_read_b32 v{vXW}, v{vHWR}
s_waitcnt lgkmcnt(0)
v_lshlrev_b32 v{vR0}, 16, v{vXW}
v_and_b32 v{vR1}, 0xffff0000, v{vXW}
s_branch L_A21
L_A20:
""")
qc_gather()
gd_wait()
a("L_A21:")
bell_wait()
set_rx(X1)
a(f"""
s_branch L_G
L_Gother:
s_cmp_eq_u32 s{sPH}, 2
s_cbranch_scc1 L_Dm
L_final:
s_lshl_b32 s{sT}, s{sKQ}, 8
v_add_u32 v1, s{sT}, v{vHWR}
global_store_dword v1, v{vXW}, s[{sOUT}:{sOUT+1}]{" sc1" if int(opts["wb"]) or int(opts.get("wx", 0)) else ""}
s_cmp_eq_u32 s2, 0
s_cbranch_scc0 L_fin2
s_add_u32 s{sT}, s{sNON}, 1
v_mov_b32 v1, {NONCE}
v_mov_b32 v2, s{sT}
s_mov_b64 exec, 1
global_store_dword v1, v2, s[{sWS}:{sWS+1}]{" sc1" if int(opts["wb"]) or int(opts.get("wx", 0)) else ""}
s_mov_b64 exec, -1
L_fin2:
""")
if STAMP:
    a(f"s_memrealtime s[{sST}:{sST+1}]\ns_waitcnt lgkmcnt(0)\nv_writelane_b32 v{vSTMP}, s{sST}, 16")
    if int(opts.get("dbgout", 0)):
        a(f"""v_writelane_b32 v{vSTMP}, s{sST}, 15
        s_nop 4
        v_readlane_b32 s{sT}, v{vSTMP}, 0
        s_nop 4
        v_subrev_u32 v4, s{sT}, v{vSTMP}
        v_lshrrev_b32 v5, 1, v{vL8}
        s_cmp_eq_u32 s2, 0
        s_cbranch_scc0 L_exit
        s_mov_b64 exec, 0xffff
        global_store_dword v5, v4, s[{sDBG}:{sDBG+1}]
        s_mov_b64 exec, -1""")
a("s_branch L_exit")
a(f"""
L_B:
s_mov_b32 s{sPH}, 1
s_cmp_eq_u32 s{sLAY}, 0
s_cbranch_scc0 L_B1
""")
if opts["gu"] == "rec":
    GSP = int(opts["gs"])
    if GSP == 1:
        a("s_waitcnt vmcnt(2)")
        b_issue("L_Bf", "g"); a("L_Bf:")
    if int(opts["g2"]):
        a(f"""s_cmp_eq_u32 s{sW}, 0
        s_cbranch_scc0 L_Bg
        {f"s_cmp_eq_u32 s{sTRY}, 1" if int(opts["ge"]) else ""}
        {"s_cbranch_scc1 L_Bg" if int(opts["ge"]) else ""}
        {"" if GSP == 1 else "s_waitcnt vmcnt(6)" if GSP == 2 else "s_waitcnt vmcnt(2)"}
        v_cmp_ne_u32 vcc, s{sTAG}, v{vJUNK+3}
        s_cbranch_vccz L_Bg""")
        gd_wait(0 if int(opts["g2q"]) else 64)
        a("L_Bg:\ns_barrier")
    if int(opts["ge"]): a(f"s_cmp_eq_u32 s{sTRY}, 1\ns_cbranch_scc1 L_Bs")
    b_issue("L_Bs", "u" if GSP else "gu")
a(f"""L_Bs:
s_mov_b32 s{sPUBM}, 0x00010001
s_mov_b32 s{sPUBM+1}, 0x00010001
; behind the stream: a first look at the group-done flags; wave 3 pulls the w_down block of the partner workgroup into L2
v_and_b32 v1, 7, v0
v_lshlrev_b32 v1, 7, v1
v_add_u32 v1, {GD}, v1
global_load_dword v{vJUNK+2}, v1, s[{sWS}:{sWS+1}] sc1
s_cmp_eq_u32 s{sW}, 3
s_cbranch_scc0 L_Bu""")
wd_base(False)
a(f"""v_lshlrev_b32 v4, 6, v{vL16}
global_load_dword v{vJUNK}, v4, s[{sWD}:{sWD+1}] {POL}
v_add_u32 v4, 0x10000, v4
v_subrev_u32 v4, s{sT2}, v4
global_load_dword v{vJUNK+1}, v4, s[{sWD}:{sWD+1}] {POL}
s_waitcnt vmcnt(2)
s_branch L_Bw
L_Bu:
s_waitcnt vmcnt(0)""")
a(f"""L_Bw:
s_cmp_eq_u32 s{sDUM}, 7
s_cbranch_scc0 L_Bload
""")
for k in range(32): a(f"v_accvgpr_write_b32 a{aW2+k}, 0")
a("s_branch L_B0\nL_Bload:")
a(f"""
s_lshl_b32 s{sT}, s{sW}, 5
v_xor_b32 v6, s{sT}, v{vTR0}
v_xor_b32 v7, 32, v6
v_add_u32 v7, {512 + L_W2}, v7
v_add_u32 v6, {L_W2}, v6
s_barrier
""")
if int(opts["gp"]):
    a(f"""s_cmp_eq_u32 s{sW}, 0
    s_cbranch_scc0 L_Bp
    v_cmp_ne_u32 vcc, s{sTAG}, v{vJUNK+2}
    s_cbranch_vccnz L_Bp
    s_mov_b32 s{sDUM}, 9""")
    set_rx(X1)
    g_issue()
    a("L_Bp:")
trW(aW2, 0, 6, 7)
trW(aW2 + 16, 0x4000, 6, 7)
a(f"""
L_B0:
v_mov_b32 v8, v{vONE}
v_mov_b32 v9, v{vONE}
v_mov_b32 v10, v{vONE}
v_mov_b32 v11, v{vONE}
s_waitcnt lgkmcnt(0)
s_nop 0
""")
for s_ in range(4):
    for m in range(2): a(mfma(24+4*m, A4(aW2+16*m+4*s_), V4(8), s_ == 0))
a(f"""
s_mov_b32 s{sT}, {HCS - HP}
s_mov_b64 exec, s[{sPUBM}:{sPUBM+1}]
s_cmp_eq_u32 s{sNF}, 0
s_cbranch_scc0 L_B0s
s_nop 3
buffer_store_dwordx4 v[24:27], v{vPUBA}, s[{RG}:{RG+3}], s{sT} offen
buffer_store_dwordx4 v[28:31], v{vPUBA}, s[{RG}:{RG+3}], s{sT} offen offset:512
s_branch L_B0d
L_B0s:
s_nop 3
buffer_store_dwordx4 v[24:27], v{vPUBA}, s[{RG}:{RG+3}], s{sT} offen sc1
buffer_store_dwordx4 v[28:31], v{vPUBA}, s[{RG}:{RG+3}], s{sT} offen offset:512 sc1
L_B0d:
s_mov_b64 exec, -1
""")
stamp("wd")
a(f"s_cmp_eq_u32 s{sW}, 1\ns_cbranch_scc0 L_Bv")
qc_gather()
a(f"""s_branch L_TU
L_Bv:
s_cmp_eq_u32 s{sW}, 0
s_cbranch_scc0 L_TU
s_cmp_eq_u32 s{sDUM}, 9
s_cbranch_scc1 L_G1
v_cmp_ne_u32 vcc, s{sTAG}, v{vJUNK+2}
s_cbranch_vccz L_B1""")
gd_wait()
a(f"""
L_B1:
s_cmp_eq_u32 s{sW}, 0
s_cbranch_scc0 L_TU
""")
bell_wait()
if int(opts["sb"]): a(f"s_cmp_eq_u32 s{sLAY}, 0\ns_cbranch_scc1 L_B2\ns_sleep {opts['sb']}\nL_B2:")
set_rx(X1)
a("s_branch L_G")
a(f"""
L_TU:
s_cmp_lg_u32 s{sW}, 0
s_waitcnt lgkmcnt(0)
s_barrier
""")
stamp("x1pub")
for s in range(4): a(f"ds_read_b128 {V4(8+4*s)}, v{vXRD} offset:{512 + 64*s}")
def tu_step(s):
    for m in range(2): a(mfma(24+4*m, A4(aW2+16*m+4*s), V4(8+4*s), s == 0))
def tu_tail(fl, done):
    a(f"""s_mov_b64 exec, s[{sPUBM}:{sPUBM+1}]
    s_cmp_lg_u32 s{sW}, 0
    s_nop 2
    buffer_store_dwordx4 v[24:27], v{vPUBA}, s[{RG}:{RG+3}], 0 offen{fl}
    buffer_store_dwordx4 v[28:31], v{vPUBA}, s[{RG}:{RG+3}], 0 offen offset:512{fl}
    s_cbranch_scc1 {done}
    s_mov_b64 exec, s[{sSTM}:{sSTM+1}]
    buffer_store_dwordx2 v[{vSTG}:{vSTG+1}], v{vHSA}, s[{RG}:{RG+3}], 0 offen{fl}""")
a("s_cbranch_scc1 L_TUw")
gemv_stats(tu_step)
a(f"""s_cmp_eq_u32 s{sNF}, 0
s_cbranch_scc0 L_TUsafe
s_mov_b64 exec, s[{sPUBM}:{sPUBM+1}]
s_nop 1
buffer_store_dwordx4 v[24:27], v{vPUBA}, s[{RG}:{RG+3}], 0 offen
buffer_store_dwordx4 v[28:31], v{vPUBA}, s[{RG}:{RG+3}], 0 offen offset:512
s_mov_b64 exec, s[{sSTM}:{sSTM+1}]
buffer_store_dwordx2 v[{vSTG}:{vSTG+1}], v{vHSA}, s[{RG}:{RG+3}], 0 offen""")
a("L_TUd:\ns_mov_b64 exec, -1")
stamp("h")
stamp_flush()
a(f"""
s_cmp_eq_u32 s{sLAY}, 0
s_cbranch_scc0 L_exit
""")
if int(opts["sx"]): a(f"s_sleep {opts['sx']}")
if int(opts["bell2"]):
    a(f"s_cmp_eq_u32 s{sW}, 0\ns_cbranch_scc0 L_B3")
    bell_wait(256)
    a("L_B3:")
set_rx(X2)
a(f"""L_next:
ds_read_b128 {V4(vQCS)}, v{vL16} offset:{L_CS}
ds_read_b128 {V4(vQCS+4)}, v{vL16} offset:{L_CS+1024}""")
next_layer()
a(f"""
s_mov_b32 s{sPH}, 0
s_cmp_eq_u32 s{sW}, 0
s_cbranch_scc1 L_G
s_branch L_TQ
""")
a("L_Gretry:")
if DBG: a(f"s_mov_b64 exec, 1\nv_mov_b32 v45, s{sLAY}\nv_lshlrev_b32 v45, 2, v45\nv_add_u32 v45, s{sPH}, v45\nv_lshlrev_b32 v45, 2, v45\nv_add_u32 v45, 128, v45\nv_mov_b32 v46, 1\nglobal_atomic_add v45, v46, s[{sDBG}:{sDBG+1}]\ns_mov_b64 exec, -1")
spin("L_Gp", "L_Gok")
if not QPI:
    a("L_QFretry:");  spin("L_QFp", "L_QF2")
    a("L_QF2retry:"); spin("L_QFp", "L_S")
else:
    a("L_QFretry:");  spin("L_QFp", "L_S")
for t_ in tails: a(t_)
WB = int(opts["wb"])
if WB:
    a(f"""L_Dwb:
    s_and_b32 s{sT2}, s{sA4}, 7
    s_lshl_b32 s{sT2}, s{sT2}, 2
    s_add_u32 s{sT2}, s{sT2}, s{sW}
    s_cmp_eq_u32 s{sT2}, {4*3 + 3}
    s_cbranch_scc0 L_Ddone""")
    if not WB & 2: a(f"s_cmp_eq_u32 s{sLAY}, 1\ns_cbranch_scc0 L_Ddone")
    a("buffer_wbl2 sc1\ns_branch L_Ddone")
a("L_TQw:")
gemv_plain(tq_step)
a(f"""s_cmp_eq_u32 s{sALT}, 0
s_cbranch_scc0 L_TQalt
s_mov_b64 exec, s[{sPUBM}:{sPUBM+1}]
s_nop 4
buffer_store_dwordx4 v[24:27], v{vQPA}, s[{RG}:{RG+3}], 0 offen
s_branch L_S
L_TUw:""")
gemv_plain(tu_step)
a(f"""s_cmp_eq_u32 s{sNF}, 0
s_cbranch_scc0 L_TUsafe
s_mov_b64 exec, s[{sPUBM}:{sPUBM+1}]
s_nop 3
buffer_store_dwordx4 v[24:27], v{vPUBA}, s[{RG}:{RG+3}], 0 offen
buffer_store_dwordx4 v[28:31], v{vPUBA}, s[{RG}:{RG+3}], 0 offen offset:512
s_branch L_TUd""")
a("L_RECsafe:"); rec_tail(" sc1"); a("s_branch L_RECd")
if WB & 4:
    a(f"""L_TQwb:
    s_lshl_b32 s{sT2}, s{sI}, 2
    s_add_u32 s{sT2}, s{sT2}, s{sW}
    s_cmp_eq_u32 s{sT2}, {4*31 + 3}
    s_cbranch_scc0 L_S
    buffer_wbl2 sc1
    s_branch L_S""")
a("L_TUsafe:"); tu_tail(" sc1", "L_TUd"); a("s_branch L_TUd")
a(f"""
L_Sbig:
s_mov_b64 exec, -1
v_max3_f32 v32, v24, v25, v26
v_max_f32 v32, v32, v27
v_max3_f32 v32, v32, v28, v29
v_max3_f32 v32, v32, v30, v31
v_mov_b32 v33, v32
s_nop 1
v_permlane32_swap_b32 v32, v33
v_max_f32 v32, v32, v33
v_mov_b32 v33, v32
s_nop 1
v_permlane16_swap_b32 v32, v33
v_max_f32 v32, v32, v33
""")
for k in range(8): a(f"v_sub_f32 v{40+k}, v{24+k}, v32")
for k in range(8): a(f"v_exp_f32 v{40+k}, v{40+k}")
p_tail()
a(f"""
s_nop 2
ds_write_b64 v{vMWR}, v[32:33] offset:{L_MB}
s_branch L_Sp
L_PVbig:
s_nop 7
{mfma(24, V4(8), A4(aV), True)}
{mfma(28, V4(8), A4(aV+4), True)}
{mfma(40, V4(12), A4(aV+8), True)}
{mfma(44, V4(12), A4(aV+12), True)}
{mfma(4, V4(16), A4(aV+16), True)}
{mfma(8, V4(16), A4(aV+20), True)}
{mfma(12, V4(20), A4(aV+24), True)}
{mfma(16, V4(20), A4(aV+28), True)}
v_max_f32_dpp v34, v32, v32 row_ror:4 {DPPALL}
s_nop 1
v_max_f32_dpp v34, v34, v34 row_ror:8 {DPPALL}
v_sub_f32 v32, v32, v34
v_exp_f32 v32, v32
s_nop 0
v_mul_f32 v35, v32, v33
s_nop 1
v_add_f32_dpp v35, v35, v35 row_ror:1 {DPPALL}
v_mul_f32_dpp v36, v32, v24 row_newbcast:0 {DPPALL}
v_mul_f32_dpp v37, v32, v28 row_newbcast:0 {DPPALL}
v_add_f32_dpp v35, v35, v35 row_ror:2 {DPPALL}
v_fmac_f32_dpp v36, v32, v40 row_newbcast:4 {DPPALL}
v_fmac_f32_dpp v37, v32, v44 row_newbcast:4 {DPPALL}
v_add_f32_dpp v35, v35, v35 row_ror:4 {DPPALL}
v_fmac_f32_dpp v36, v32, v4 row_newbcast:8 {DPPALL}
v_fmac_f32_dpp v37, v32, v8 row_newbcast:8 {DPPALL}
v_add_f32_dpp v35, v35, v35 row_ror:8 {DPPALL}
v_fmac_f32_dpp v36, v32, v12 row_newbcast:12 {DPPALL}
v_fmac_f32_dpp v37, v32, v16 row_newbcast:12 {DPPALL}
v_cvt_pk_bf16_f32 v36, v36, v37
s_nop 1
s_branch L_PVt
L_Obig:
; some producer shifted its scores: weight every record to the head's common maximum
v_max_f32_dpp v6, v4, v4 quad_perm:[1,0,3,2] {DPPALL}
s_nop 1
v_max_f32_dpp v6, v6, v6 quad_perm:[2,3,0,1] {DPPALL}
s_nop 1
v_max_f32_dpp v6, v6, v6 row_half_mirror {DPPALL}
v_mov_b32 v7, v6
s_nop 1
v_permlane32_swap_b32 v6, v7
v_max_f32 v6, v6, v7
v_mov_b32 v7, v6
s_nop 1
v_permlane16_swap_b32 v6, v7
v_max_f32 v6, v6, v7
v_sub_f32 v4, v4, v6
v_exp_f32 v4, v4
s_nop 0
v_mul_f32 v6, v4, v5
s_nop 1
v_add_f32_dpp v6, v6, v6 quad_perm:[1,0,3,2] {DPPALL}
s_nop 1
v_add_f32_dpp v6, v6, v6 quad_perm:[2,3,0,1] {DPPALL}
s_nop 1
v_add_f32_dpp v6, v6, v6 row_half_mirror {DPPALL}
v_mov_b32 v7, v6
s_nop 1
v_permlane32_swap_b32 v6, v7
v_add_f32 v6, v6, v7
v_mov_b32 v7, v6
s_nop 1
v_permlane16_swap_b32 v6, v7
v_add_f32 v6, v6, v7
v_rcp_f32 v6, v6
""")
for t in range(4):
    a(f"v_mul_f32_dpp v{40+t}, v4, v{24+4*t} row_newbcast:0 {DPPALL}")
    for r in range(1, 4): a(f"v_fmac_f32_dpp v{40+t}, v4, v{24+4*t+r} row_newbcast:{r} {DPPALL}")
a("s_branch L_Ot")
a(f"""
L_TQalt:
s_cmp_eq_u32 s{sLAY}, 0
s_cbranch_scc1 L_TQ0
""")
tq_tail(" sc1")
a(f"""
s_branch L_QFe
L_TQ0:
s_nop 3
""")
for k in range(4): a(f"v_bfi_b32 v{24+k}, v{vMASK}, v{24+k}, s{sT0+k}")
K1 = int(opts["k1"])
def kreads():
    for s in range(4):
        a(f"v_xor_b32 v5, {64*s}, v3")
        for t in range(2): a(f"ds_read_b128 {A4(aK+16*t+4*s)}, v5 offset:{4096*t}")
def vreads():
    for w in range(4):
        for c in range(2):
            for e in range(2):
                r = aV + 8*w + 4*c + 2*e
                a(f"ds_read_b64_tr_b16 a[{r}:{r+1}], v{6+c} offset:{L_V + w*8192 + e*4096}")
def l0_addr():
    a_setup()
    a(f"""v_bfe_u32 v34, v0, 2, 2
    v_bfe_u32 v35, v0, 4, 2
    v_lshl_add_u32 v36, v35, 2, v34
    v_and_b32 v37, 7, v36
    v_lshlrev_b32 v37, 1, v37
    v_bfe_u32 v38, v0, 1, 1
    s_lshl_b32 s{sT}, s{sW}, 2
    v_or_b32 v38, s{sT}, v38
    v_xor_b32 v37, v37, v38
    v_lshlrev_b32 v37, 4, v37
    v_lshl_add_u32 v36, v36, 8, v37
    v_and_b32 v37, 1, v0
    v_lshl_add_u32 v6, v37, 3, v36
    v_xor_b32 v7, 32, v6
    v_and_b32 v3, 15, v0
    v_xor_b32 v5, v35, v3
    v_lshlrev_b32 v5, 4, v5
    v_lshl_add_u32 v3, v3, 8, v5
    s_lshl_b32 s{sT}, s{sW}, 13
    s_add_u32 s{sT}, s{sT}, {L_K}
    v_add_u32 v3, s{sT}, v3""")
    if True:
        l = a.label("BS")
        a(f"s_cmp_lt_u32 s{sI}, 16\ns_cbranch_scc1 {l}")
        b_setup()
        a(f"{l}:")
def qloads():
    a(f"""buffer_load_dwordx4 v[48:51], v{vQGA}, s[{RT}:{RT+3}], 0 offen sc1
    buffer_load_dwordx4 v[8:11], v{vQL}, s[{RT}:{RT+3}], 0 offen sc1
    buffer_load_dwordx4 v[12:15], v{vQL}, s[{RT}:{RT+3}], 0 offen offset:2048 sc1""")
a(f"""
s_cmp_eq_u32 s{sW}, 0
s_cselect_b64 s[{sM}:{sM+1}], s[{sSTM}:{sSTM+1}], 0
s_mov_b64 exec, s[{sPUBM}:{sPUBM+1}]
buffer_store_dwordx4 v[24:27], v{vQPA}, s[{RT}:{RT+3}], 0 offen
s_mov_b64 exec, s[{sM}:{sM+1}]
buffer_store_dwordx4 {V4(vSTG)}, v{vQSA}, s[{RT}:{RT+3}], 0 offen
""")
H2N = int(opts["h2"])
if H2N:
    a(f"""s_add_u32 s{sT}, s{sI}, {H2}
    s_cmp_eq_u32 s{sW}, 0
    s_cselect_b64 exec, 0xff, 0
    v_lshlrev_b32 v5, 3, v{vL16}
    buffer_store_byte v{vSTG+2}, v5, s[{RT}:{RT+3}], s{sT} offen""")
a(f"""
s_mov_b64 exec, -1
s_mov_b32 s{sT2}, {BOFF}
""")
stamp("qpub")
if F3 == 2: f3_sample()
if VL:
    for j in range(VL):
        a(f"s_add_u32 m0, m0, 4096\nv_add_u32 v{vVA}, {VSTEP}, v{vVA}\nglobal_load_lds_dwordx4 v{vVA}, s[{sV}:{sV+1}] {POL}")
    a(f"s_lshl_b32 s{sT}, s{sW}, 13\ns_add_u32 m0, s{sT}, {L_K}")
kdma(KUP, 8)
a(f"""
s_mov_b64 exec, s[{sPUBM}:{sPUBM+1}]
buffer_store_dwordx4 v[24:27], v{vQPA}, s[{RT}:{RT+3}], s{sT2} offen sc1
s_mov_b64 exec, s[{sM}:{sM+1}]
buffer_store_dwordx4 {V4(vSTG)}, v{vQSA}, s[{RT}:{RT+3}], s{sT2} offen sc1
s_mov_b64 exec, -1
""")
l0_addr()
a(f"""
s_lshl_b32 s{sT}, s{sW}, 9
v_and_b32 v5, 0x1f0, v{vL16}
v_bfe_u32 v4, v0, 5, 1
v_lshl_add_u32 v5, v4, 12, v5
v_add_u32 v{vQL}, s{sT}, v5
s_mul_i32 s{sT}, s{sW}, {QH}
v_add_u32 v{vMODE}, s{sT}, v{vHWR}
v_mov_b32 v{vXRD}, v{vB16}
s_mul_i32 s{sT}, s{sW}, {7*128}
v_lshlrev_b32 v2, 3, v{vL16}
v_min_u32 v2, {6*128}, v2
v_add_u32 v2, s{sT}, v2
v_min_u32 v2, {CLR-128}, v2
s_lshl_b32 s{sT}, s{sG}, 7
s_add_u32 s{sT}, s{sT}, {GD + 1024}
v_mov_b32 v1, s{sT}
s_lshl_b32 s{sT}, s{sI}, 2
s_add_u32 s{sT}, s{sT}, s{sW}
s_cmp_eq_u32 s{sT}, 67
s_cselect_b64 s[{sM}:{sM+1}], 1, 0
s_mul_i32 s{sT2}, s{sI}, {CLR}
""")
if F3 == 2: f3_eval()
VM = int(opts["vm"])
if not VM:
    a(f"s_waitcnt vmcnt({13 if H2N else 12})\ns_barrier")
    vreads()
if H2N:
    a(f"""s_cmp_eq_u32 s{sW}, 3
    s_cbranch_scc0 L_H2e
    s_mul_i32 s{sPH}, s{sT0}, 0x01010101
    s_movk_i32 s5, {H2}
    L_H2:
    s_load_dwordx8 s[{sGO}:{sGO+7}], s[{RT}:{RT+1}], s5
    s_add_u32 s5, s5, 128
    s_cmp_eq_u32 s5, {H2 + 128*H2N}
    s_waitcnt lgkmcnt(0)
    s_cbranch_scc1 L_H2d""")
    for k in range(8): a(f"s_xor_b32 s{sGO+k}, s{sGO+k}, s{sPH}")
    for k in range(1, 8): a(f"s_or_b32 s{sGO}, s{sGO}, s{sGO+k}")
    a(f"""s_cbranch_scc1 L_H2
    L_H2d:""")
    for gp in range(8): a(f"s_mov_b32 s{sGO+gp}, {gp*GS}")
    a("L_H2e:")
    stamp("h2")
a(f"s_waitcnt vmcnt({2 + int(opts['kw']) + (3 if int(opts['kw']) > 8 - KUP else 0)})")
if H2N: a("s_barrier")
stamp("kw")
GE = int(opts["ge"])
if GE:
    a(f"""v_lshlrev_b32 v5, 3, v{vL16}
    v_and_b32 v5, 0x380, v5
    global_load_dword v{vJUNK+3}, v5, s[{sWS}:{sWS+1}] offset:{GD + 1024} sc1""")
qloads()
if not H2N or int(opts.get("bb", 0)): a("s_barrier")
a(f"""
buffer_load_dword v{vJUNK}, v2, s[{RG}:{RG+3}], s{sT2} offen sc1
s_mov_b64 exec, s[{sM}:{sM+1}]
global_store_dword v1, v{vSTG+2}, s[{sWS}:{sWS+1}] sc1
s_mov_b64 exec, -1
""")
if F3: a(f"s_cmp_eq_u32 s{sEAR}, 1\ns_cbranch_scc1 L_K3")
a(f"""s_cmp_ge_u32 s{sI}, 16
s_cbranch_scc1 L_K1""")
wo_issue()
if VM: vreads()
stamp("woi")
a(f"s_waitcnt vmcnt({13 + GE})")
stamp("kl")
kreads()
a("s_waitcnt vmcnt(10)\ns_branch L_Q01\nL_K1:")
WOP = int(opts["wop"])
if WOP:
    wo_base()
    a(f"""v_and_b32 v4, {WOP//4 - 1}, v0
    s_and_b32 s{sT}, s{sW}, 1
    s_mul_i32 s{sT}, s{sT}, {WOP//4}
    s_lshr_b32 s{sT2}, s{sW}, 1
    s_lshl_b32 s{sT2}, s{sT2}, 7
    s_add_u32 s{sT}, s{sT}, s{sT2}
    s_add_u32 s{sT}, s{sT}, {128 - WOP//2}""" if int(opts["wp"]) else f"""v_and_b32 v4, {WOP//4 - 1}, v0
    s_mul_i32 s{sT}, s{sW}, {WOP//4}
    s_add_u32 s{sT}, s{sT}, {256 - WOP}""")
    a(f"""
    v_add_u32 v4, s{sT}, v4
    v_lshlrev_b32 v4, 10, v4
    global_load_dword v{vJUNK+1}, v4, s[{sWO}:{sWO+1}] {POL}""")
if VM: vreads()
stamp("woi")
a(f"s_waitcnt vmcnt({(6 if WOP else 5) + GE})")
stamp("kl")
kreads()
a(f"s_waitcnt vmcnt({3 if WOP else 2})")
if F3:
    a("s_branch L_Q01\nL_K3:")
    vreads()
    a(f"s_waitcnt vmcnt({5 + GE})")
    kreads()
    a("s_waitcnt vmcnt(2)")
a("L_Q01:")
stamp("qf2")
xor_acc(8, True); xor_acc(12, False)
a(f"""
v_pk_add_f32 v[8:9], v[8:9], v[12:13]
v_pk_add_f32 v[10:11], v[10:11], v[14:15]
v_xor_b32 v45, s{sTAG}, v50
v_and_or_b32 v44, v44, v{vMASK+2}, v45
v_permlane32_swap_b32 v8, v10
v_permlane32_swap_b32 v9, v11
v_cmp_ne_u32 vcc, 0, v44
v_add_f32 v8, v8, v10
v_add_f32 v9, v9, v11
v_cvt_pk_bf16_f32 v8, v8, v9
ds_write_b32 v{vMODE}, v8 offset:{L_QB}
s_cbranch_vccnz L_Q0retry
L_Q0ok:
""")
stamp("qfok")
a(f"""
v_cmp_ne_u32 vcc, v51, v{vSTG+3}
s_cmp_lg_u64 vcc, 0
s_cselect_b32 s{sNF}, 1, 0
s_cmp_lt_u32 s{sI}, 16
s_cbranch_scc1 {"L_Q0w" if F3 else "L_Q0a"}
""")
if GE:
    a(f"""s_mov_b32 s{sTRY}, 0
    v_cmp_ne_u32 vcc, s{sTAG}, v{vJUNK+3}
    s_lshl_b32 s{sT}, 1, s{sG}
    s_andn2_b32 s{sT}, vcc_lo, s{sT}
    s_and_b32 s{sT}, s{sT}, 255
    s_cbranch_scc1 L_Q0b
    s_mov_b32 s{sTRY}, 1""")
    b_issue("L_Q0a")
    a("s_branch L_Q0a\nL_Q0b:")
a(f"""
v_lshlrev_b32 v5, 3, v{vL16}
v_and_b32 v5, 0x380, v5
global_load_dword v{vJUNK+3}, v5, s[{sWS}:{sWS+1}] offset:{GD + (0 if int(opts["g2q"]) else 1024)} sc1
""")
if int(opts["gs"]) == 2: b_issue("L_Q0a", "g")
a(f"""
L_Q0a:
s_cmp_eq_u32 s{sW}, 0
s_cbranch_scc0 L_S
s_cmp_eq_u32 s{sNF}, 0
s_cbranch_scc0 L_slow
L_slowdone:
s_cmp_eq_u32 s{sI}, 0
s_cbranch_scc0 L_S
s_lshl_b32 s{sT}, s{sG}, 7
s_add_u32 s{sT}, s{sT}, {GD}
v_mov_b32 v9, s{sT}
s_mov_b64 exec, 1
global_store_dword v9, v{vSTG+2}, s[{sWS}:{sWS+1}] sc1
s_branch L_S
""")
if F3:
    a(f"L_Q0w:\ns_cmp_eq_u32 s{sEAR}, 1\ns_cbranch_scc0 L_Q0a")
    wo_issue()
    a("s_branch L_Q0a")
a("L_Q0p:")
qloads()
a("s_waitcnt vmcnt(0)\ns_branch L_Q01")
def qretry(giveup):
    l = a.label("QR")
    if DBG: a(f"s_mov_b64 exec, 1\nv_mov_b32 v45, 0\nv_mov_b32 v46, 1\nglobal_atomic_add v45, v46, s[{sDBG}:{sDBG+1}]\ns_mov_b64 exec, -1")
    a(f"""s_sub_u32 s{sTRY}, s{sTRY}, 1
    s_cmp_eq_u32 s{sTRY}, 0
    s_cbranch_scc0 {l}
    s_add_u32 s{RT}, s{RT}, {BOFF}
    s_addc_u32 s{RT+1}, s{RT+1}, 0
    {l}:""")
    spin("L_Q0p", giveup)
a("L_Q0retry:");  qretry("L_Q0ok")
a(f"""
L_slow:
s_mul_i32 s{sT}, s{sI}, {CLR}
v_mov_b32 v12, -1
v_mov_b32 v13, -1
v_mov_b32 v14, -1
v_mov_b32 v15, -1
v_min_u32 v9, {CLR - 3072 - 16}, v{vL16}
buffer_store_dwordx4 v[12:15], v{vL16}, s[{RG}:{RG+3}], s{sT} offen sc1
buffer_store_dwordx4 v[12:15], v{vL16}, s[{RG}:{RG+3}], s{sT} offen offset:1024 sc1
buffer_store_dwordx4 v[12:15], v{vL16}, s[{RG}:{RG+3}], s{sT} offen offset:2048 sc1
buffer_store_dwordx4 v[12:15], v9, s[{RG}:{RG+3}], s{sT} offen offset:3072 sc1
s_mul_i32 s{sT}, s{sG}, {TGS}
s_add_u32 s{sT}, s{sT}, {TG + FL}
s_lshl_b32 s{sT2}, s{sI}, 4
s_add_u32 s{sT2}, s{sT2}, s{sT}
v_mov_b32 v9, s{sT2}
s_waitcnt vmcnt(0)
s_mov_b64 exec, 1
global_store_dword v9, v{vSTG+2}, s[{sWS}:{sWS+1}] sc1
s_mov_b64 exec, -1
v_and_b32 v9, 0x1f0, v{vL16}
v_add_u32 v9, s{sT}, v9
L_slowp:
global_load_dword v8, v9, s[{sWS}:{sWS+1}] sc1
s_waitcnt vmcnt(0)
v_cmp_ne_u32 vcc, s{sTAG}, v8
s_cbranch_vccz L_slowdone
""")
spin("L_slowp", "L_slowdone")
if OM in ("bell", "bell2"):
    a("L_Obretry:"); spin("L_Ob", "L_Op")
def cnt(k):
    if DBG: a(f"s_mov_b64 exec, 1\nv_mov_b32 v45, s{sLAY}\nv_lshlrev_b32 v45, 2, v45\nv_add_u32 v45, {4*k}, v45\nv_mov_b32 v46, 1\nglobal_atomic_add v45, v46, s[{sDBG}:{sDBG+1}]\ns_mov_b64 exec, -1")
a("L_Oretry:");   cnt(40)
if int(opts["orb"]):
    a(f"""L_Orb:
    buffer_load_dwordx2 v[4:5], v{vOML}, s[{RG}:{RG+3}], 0 offen sc1
    s_waitcnt vmcnt(0)
    v_cmp_eq_u32 vcc, -1, v5
    s_cbranch_vccz L_Op""")
    spin("L_Orb", "L_O2")
else: spin("L_Op", "L_O2")
a("L_O2retry:");  cnt(42); spin("L_Op", "L_Ook")
if not DP:
    a("L_Dretry:");   spin("L_Dp", "L_D2")
    a("L_D2retry:");  spin("L_Dp", "L_Dm")
else:
    a("L_Dretry:"); d_issue(64, 48); d_head(50, 5, "L_DretryB"); stamp("d2"); d_body(80, 5, "L_DretryB"); a("s_branch L_Dm")
    a("L_DretryB:"); spin("L_DpB", "L_Dm")
a("L_exit:")
if int(opts.get("xdirty", 0)):
    a(f"s_mov_b64 exec, -1\ns_lshl_b32 s{sT}, s2, 16\ns_add_u32 s{sT}, s{sT}, 0x1000000\nv_lshlrev_b32 v1, 4, v0\nv_add_u32 v1, s{sT}, v1")
    for j in range(int(opts["xdirty"])):
        a(f"global_store_dwordx4 v1, v[8:11], s[{sWS}:{sWS+1}]\nv_add_u32 v1, 4096, v1")
stamp_store()
a("L_end:\ns_endpgm")

txt = a.text()
if int(opts.get("solo", 0)):
    import re
    txt = re.sub(r"s_cbranch_vccnz L_\w*retry\w*", "s_nop 0", txt)
    txt = re.sub(r"s_cbranch_vccz (\w+)\n", r"s_branch \1\n", txt)
    txt = txt.replace("s_cbranch_scc0 L_slow\n", "s_nop 0\n")
    for br in ("s_cbranch_vccnz L_Sbig", "s_cbranch_vccnz L_PVbig", "s_cbranch_scc1 L_Obig"): txt = txt.replace(br, "s_nop 0")
    txt = txt.replace("s_memrealtime", "s_memtime").replace(f"s_cselect_b32 s{sNF}, 1, 0", f"s_mov_b32 s{sNF}, 0")
DOC = """
One persistent launch, 256 workgroups of 4 waves, one per CU.  Every weight, K and V byte is read from memory once
and stays in registers (AGPRs) for both layers; only small vectors travel between workgroups, through d_ws.

Workgroup id = 8*i + g.  Group g (32 workgroups) owns kv head g; i = 4*cg + kq.
  TQ  all   partial q = x[K quarter kq] . wq[quarter, 64 columns cg]; LayerNorm is applied afterwards by linearity:
            q = rstd * (sum of partials - mean * column sums)   (layer 0 normalises x up front, it is an input)
  S   all   128 keys x 4 heads: scores, exp2, P.V -> record (bf16) + {shift, sum}.  The shift is 0 while every
            score of the wave is within +-32 (checked at run time), else the true maximum; readers rescale.
  O   i<16  records of 32 producers as MFMA rows x wo[2 heads, 64 columns] -> partial attention output (X1)
  TU  i>=16 x1[quarter] . gate/up[quarter, 64 columns] -> partials (HP), LayerNorm again by linearity
  D   i<16  h = g*u for 128 hidden units . w_down[128, 64 columns] -> partial FFN output (X2)
  G         16 partial vectors + residual -> next x quarter (bf16)

Hand-offs carry their own validity: slots are set to 0xffffffff at the start and a reader repeats its loads until
no slot is still unset.  The first hand-off (layer-0 q) happens before anything is known to be cleared and carries a
32-bit tag derived from a launch counter in d_ws instead; it also tells each member that the whole group has cleared
its share and on which die every member runs.  Inside a group that shares one L2 the stores are plain, otherwise they
are written through (sc1), as they always are between groups; all reads of hand-offs bypass L1 (sc1).
Every wait is bounded.
"""
open(sys.argv[1], "w").write(wrap(txt, 256, 256, LDS_SIZE, NVGPR + NAGPR, accum=NVGPR, doc=DOC))
if STAMP: print(",".join(stamp_names))
if DBG: print(list(enumerate(spin_ids, 1)))
```

```python
import sys, math, struct
from asmlib import *

opts = dict(stamp=0, pol="nt", dbg=0, wo="spec", kw=6, v1=4, k1=8, om="ack", xack=2, bgd=0, vearly=1, il=1, kup=0, sd=0, sb=0, sx=0, bell=1, bell0=0, bell2=1, abell=1, fbell=0, og=6, wo2="k", bx=-1, bx2=-1, wdp=1, gu="rec", g2=16, h2=20, bb=1, vm=1, g2q=0, wb=0, wop=64, dp=1, qp=0, rl=0, wp=0, orb=0, ge=0, vl=0, gp=0, gs=0, f3=0, cl=0, lz=0, lk=0, lkn=4, hb=1)
for x in sys.argv[2:]:
    k, v = x.split("="); opts[k] = v
STAMP = int(opts["stamp"]); DBG = int(opts["dbg"]); POL = opts["pol"].replace("def", "").replace("_", " ")

RL = int(opts["rl"])
IL = int(opts["il"])
VSTEP, KSTEP, KWSH, ISH = (131072, 32768, 18, 10) if IL else (4096, 1024, 13, 15)
a = Asm()
NONCE = 0x0
GD = 0x400
GB = 0x2000
GS = 0x1F400
LS = 0xA800
REC, ML, HP, HS, BL = 0x0, 0x8000, 0x8400, 0xA400, 0xA600
HCS = 2 * LS
QP1 = HCS + 0x2000
QS1 = QP1 + 0x2000
CLR = 3328
XR = 32 * CLR
X1, X2, XLS = XR, XR + 5120, 10240
assert HS + 512 <= LS and QS1 + 256 <= XR and XR + 2 * XLS <= GS
TG = 0x200000
QP, QS, QCS = 0x0, 0x2000, 0x2400
FL = QCS + 0x2000
H2 = FL + 0x200
BOFF = 0x5000
TGS = 2 * BOFF + 0x400
WSSIZE = 0x400000
L_X = 0x0
L_HB, L_QB, L_PB, L_MB, L_YB, L_CS = 0x400, 0x500, 0xA00, 0xE00, 0x1000, 0x1800
QH = 320
L_WQ, L_V, L_W2, L_WD = 0x2000, 0x6000, 0xE000, 0x2000
L_K = 0x16000
LDS_SIZE = 0x1E000
sX, sK, sV, sWQ, sWO, sWG, sWU, sWD, sOUT, sDBG, sWS = 4, 6, 8, 10, 12, 16, 18, 20, 22, 24, 26
sG, sI, sW, sKQ, sCG, sA4 = 28, 29, 30, 31, 32, 33
sLAY, sXO = 34, 35
RG = 36
RX = 40
sGO = 44
RT = 52
sTAG, sT0 = 56, 57
sSPIN, sPH, sT, sT2, sNON = 61, 62, 63, 64, 65
sQUADM, sMLM, sPUBM, sDM, sM = 66, 68, 70, 72, 74
sTH = 3
sFIN, sTRY = 76, 77
sQH = 5
sEAR = 24
sDUM = 4
sNF, sALT = 14, 15
sSTM = 78
sST = 80
aK, aV, aWQ, aW2, aWD = 0, 32, 64, 80, 144
NAGPR = 176
vSTG = 52
vMASK, vONE, vJUNK = 56, 57, 60
GB0 = 64
vCS = 64
(vQCS, vHCS) = (96, 104)
(vR0, vR1, vXW, vXRD, vXWR, vGA, vQPA, vQGA, vQSA, vRECA, vMLA, vOA, vOML, vHGA, vPUBA, vROW, vPC16, vTR0,
 vSTMP, vL16, vL8, vQRD, vPRD, vPWR, vMWR, vMRD, vYWR, vB16, vHWR, vHSA, vDPA, vMODE, vVA, vQL, vKA) = range(108, 143)
NVGPR = 176 if int(opts["qp"]) else 144
ONES = 0x3F803F80
QSCALE = math.log2(math.e) / math.sqrt(128.0)
def f32(x): return "0x%08x" % struct.unpack("<I", struct.pack("<f", x))[0]
DPPALL = "row_mask:0xf bank_mask:0xf"
LG = lambda n: n

stamp_names = []; spin_ids = []
SEL = opts.get("sel", "start,wq,xq,qpub,q,p,rec,x1pub,h,x2pub").split(",")
def stamp(name):
    if not STAMP or name not in SEL: return
    if name not in stamp_names: stamp_names.append(name)
    k = stamp_names.index(name); assert k < 11
    a(f"s_memrealtime s[{sST+2*k}:{sST+2*k+1}]")
def stamp_flush():
    if not STAMP: return
    l1 = a.label("SF"); l2 = a.label("SF")
    a("s_waitcnt lgkmcnt(0)")
    a(f"s_cmp_eq_u32 s{sLAY}, 0\ns_cbranch_scc0 {l1}")
    for k in range(11): a(f"v_writelane_b32 v{vSTMP}, s{sST+2*k}, {k}")
    a(f"s_branch {l2}\n{l1}:")
    for k in range(11): a(f"v_writelane_b32 v{vSTMP}, s{sST+2*k}, {k+16}")
    a(f"{l2}:")
def stamp_store():
    if not STAMP: return
    l1 = a.label("SS")
    a(f"""s_cmp_eq_u32 s{sW}, {opts.get("sw", 0)}
    s_cbranch_scc0 {l1}
    s_mov_b32 exec_lo, -1
    s_mov_b32 exec_hi, 0
    s_lshl_b32 s{sT}, s2, 8
    s_add_u32 s{sM}, s{sWS}, s{sT}
    s_addc_u32 s{sM+1}, s{sWS+1}, 0
    s_add_u32 s{sM}, s{sM}, 0x10000000
    s_addc_u32 s{sM+1}, s{sM+1}, 0
    v_mov_b32 v4, v{vSTMP}
    v_mov_b32 v5, 0
    global_store_dwordx2 v{vL8}, v[4:5], s[{sM}:{sM+1}]
    {l1}:""")

def spin(lab_retry, lab_giveup):
    a(f"s_sub_u32 s{sSPIN}, s{sSPIN}, 1\ns_cbranch_scc0 {lab_retry}\ns_mov_b32 s{sSPIN}, 0")
    if DBG:
        spin_ids.append(lab_retry)
        a(f"s_mov_b64 s[{sM}:{sM+1}], exec\ns_mov_b64 exec, 1\nv_mov_b32 v45, {4*len(spin_ids)}\nv_mov_b32 v46, 1\nglobal_atomic_add v45, v46, s[{sDBG}:{sDBG+1}]\ns_mov_b64 exec, s[{sM}:{sM+1}]")
    a(f"s_branch {lab_giveup}")

def dma(ptr, voff, lds_base, n, gstep):
    a(f"s_lshl_b32 s{sT}, s{sW}, 10\ns_add_u32 m0, s{sT}, {lds_base}")
    for j in range(n):
        if j == 0: a("s_nop 0")
        a(f"global_load_lds_dwordx4 v{voff}, s[{ptr}:{ptr+1}] {POL}")
        if j + 1 < n:
            a(f"s_add_u32 m0, m0, 4096\ns_add_u32 s{ptr}, s{ptr}, {gstep}\ns_addc_u32 s{ptr+1}, s{ptr+1}, 0")

def trW(dst, base, vA, vB):
    for s in range(4):
        a(f"ds_read_b64_tr_b16 a[{dst+4*s}:{dst+4*s+1}], v{vA} offset:{base + s*4096}")
        a(f"ds_read_b64_tr_b16 a[{dst+4*s+2}:{dst+4*s+3}], v{vB} offset:{base + s*4096}")
def mfma(d, A, B, first):
    return f"v_mfma_f32_16x16x32_bf16 v[{d}:{d+3}], {A}, {B}, {'0' if first else f'v[{d}:{d+3}]'}"
V4 = lambda r: f"v[{r}:{r+3}]"
A4 = lambda r: f"a[{r}:{r+3}]"

def wo_base():
    a(f"""
    s_lshl_b32 s{sT}, s{sG}, 1
    s_lshr_b32 s{sT2}, s{sA4}, 3
    s_add_u32 s{sT}, s{sT}, s{sT2}
    s_lshl_b32 s{sT}, s{sT}, 18
    s_and_b32 s{sT2}, s{sA4}, 7
    s_lshl_b32 s{sT2}, s{sT2}, 7
    s_add_u32 s{sT}, s{sT}, s{sT2}
    s_add_u32 s{sWO}, s{sWO}, s{sT}
    s_addc_u32 s{sWO+1}, s{sWO+1}, 0
    """)
def wo_issue():
    wo_base()
    a(f"v_lshl_add_u32 v4, v{vROW}, 10, v{vPC16}")
    if not int(opts["wp"]):
        dma(sWO, 4, L_W2, 8, 32 * 1024); return
    a(f"s_lshl_b32 s{sT}, s{sW}, 10\ns_add_u32 m0, s{sT}, {L_W2}\nv_add_u32 v5, {4*32*1024}, v4")
    for j in range(4):
        a(f"global_load_lds_dwordx4 v4, s[{sWO}:{sWO+1}] {POL}\ns_add_u32 m0, m0, 16384\nv_add_u32 v4, {32*1024}, v4")
        a(f"global_load_lds_dwordx4 v5, s[{sWO}:{sWO+1}] {POL}")
        if j < 3: a(f"s_sub_u32 m0, m0, {16384 - 4096}\nv_add_u32 v5, {32*1024}, v5")

def a_setup():
    a(f"""
    v_bfe_u32 v1, v0, 2, 1
    v_bfe_u32 v2, v0, 3, 1
    v_bfe_u32 v4, v0, 4, 2
    v_lshl_add_u32 v5, v4, 2, v2
    v_lshl_add_u32 v5, v1, 4, v5
    v_lshlrev_b32 v5, 7, v5
    v_bfe_u32 v6, v0, 5, 1
    v_xor_b32 v6, v6, v1
    v_and_b32 v7, 1, v4
    v_lshl_or_b32 v6, v6, 1, v7
    v_lshlrev_b32 v6, 5, v6
    v_and_b32 v7, 3, v0
    v_lshl_or_b32 v6, v7, 3, v6
    v_or_b32 v5, v5, v6
    s_lshr_b32 s{sT}, s{sW}, 1
    s_lshl_b32 s{sT}, s{sT}, 14
    s_add_u32 s{sT}, s{sT}, {L_W2}
    v_add_u32 v{vVA}, s{sT}, v5
    """)
def b_setup():
    a(f"""; layer 0: gate/up blocks [128 rows x 64 cols]; the 4th column group of an odd group does not exist
s_and_b32 s{sM}, s{sCG}, 3
s_lshr_b32 s{sT}, s{sG}, 1
s_mul_i32 s{sT}, s{sT}, 7
s_and_b32 s{sT2}, s{sG}, 1
s_lshl_b32 s{sM+1}, s{sT2}, 2
s_add_u32 s{sT}, s{sT}, s{sM+1}
s_add_u32 s{sT}, s{sT}, s{sM}
s_lshl_b32 s{sT}, s{sT}, 7
s_mul_i32 s{sM+1}, s{sKQ}, {128*3584}
s_add_u32 s{sT}, s{sT}, s{sM+1}
s_add_u32 s{sWG}, s{sWG}, s{sT}
s_addc_u32 s{sWG+1}, s{sWG+1}, 0
s_add_u32 s{sWU}, s{sWU}, s{sT}
s_addc_u32 s{sWU+1}, s{sWU+1}, 0
s_lshl_b32 s{sT2}, s{sT2}, 2
s_or_b32 s{sT2}, s{sT2}, s{sM}
s_lshr_b32 s{sT}, s{sM}, 1
s_lshl_b32 s{sT}, s{sT}, 2
s_add_u32 s{sT}, s{sT}, s{sKQ}
s_lshl_b32 s{sT}, s{sT}, 10
s_and_b32 s{sM}, s{sM}, 1
s_lshl_b32 s{sM}, s{sM}, 8
s_add_u32 s{sT}, s{sT}, s{sM}
s_lshl_b32 s{sM}, s{sW}, 6
s_add_u32 s{sT}, s{sT}, s{sM}
s_add_u32 s{sT}, s{sT}, {HP}
v_add_u32 v{vPUBA}, s{sT}, v{vB16}
s_lshl_b32 s{sT}, s{sA4}, 4
s_add_u32 s{sT}, s{sT}, {HS}
v_mov_b32 v{vHSA}, s{sT}
s_mov_b32 s{sDUM}, s{sT2}
s_movk_i32 s{sT}, 3584
v_mul_lo_u32 v{vVA}, v{vROW}, s{sT}
v_add_u32 v{vVA}, v{vVA}, v{vPC16}""")
def b_issue(skip, parts="gu"):
    a(f"s_cmp_eq_u32 s{sDUM}, 7\ns_cbranch_scc1 {skip}")
    if "g" in parts: dma(sWG, vVA, L_W2, 4, 32 * 3584)
    if "u" in parts: dma(sWU, vVA, L_W2 + 0x4000, 4, 32 * 3584)
OA_TXT = f"v_add_u32 v{vOA}, s{sT2}, v{vL16}" if not RL else "\n".join([
    "v_lshrrev_b32 v7, 1, v2", "v_lshlrev_b32 v7, 9, v7", "v_lshl_add_u32 v7, v1, 5, v7", "v_and_b32 v10, 1, v2",
    "v_lshl_add_u32 v7, v10, 4, v7", f"v_add_u32 v{vOA}, s{sT2}, v7"])
stamp("start")
a(f"""
s_cmp_ge_u32 s2, 256
s_cbranch_scc1 L_end
s_getpc_b64 s[{sSTM}:{sSTM+1}]
L_pc:
s_load_dwordx16 s[4:19], s[0:1], 0
s_load_dwordx8 s[20:27], s[0:1], 64
v_lshlrev_b32 v1, 7, v0
v_min_u32 v1, L_end-L_pc, v1
global_load_dword v{vJUNK}, v1, s[{sSTM}:{sSTM+1}]
v_lshrrev_b32 v3, 6, v0
v_lshrrev_b32 v4, 1, v0
v_readfirstlane_b32 s{sW}, v3
v_xor_b32 v4, v4, v0
v_lshlrev_b32 v5, 1, v4
v_and_b32 v5, 32, v5
v_and_or_b32 v5, v4, 64, v5
v_lshlrev_b32 v11, 4, v0
v_and_b32 v6, 0x70, v11
v_xor_b32 v{vPC16}, v5, v6
v_lshrrev_b32 v{vROW}, 3, v0
v_lshl_add_u32 v7, v{vROW}, 13, v{vPC16}
s_and_b32 s{sG}, s2, 7
s_lshr_b32 s{sI}, s2, 3
s_and_b32 s{sKQ}, s{sI}, 3
s_lshr_b32 s{sCG}, s{sI}, 2
s_lshl_b32 s{sT}, s{sKQ}, 20
s_lshl_b32 s{sT2}, s{sG}, 10
s_lshl3_add_u32 s{sT2}, s{sCG}, s{sT2}
s_lshl_b32 s{sM}, s{sW}, 10
s_add_u32 m0, s{sM}, {L_WQ}
s_mul_i32 s{sA4}, s{sCG}, 120
s_add_u32 s{sT}, s{sT}, s{sT2}
s_add_u32 s{sT}, s{sT}, s{sA4}
s_waitcnt lgkmcnt(0)
s_add_u32 s{sWQ}, s{sWQ}, s{sT}
s_addc_u32 s{sWQ+1}, s{sWQ+1}, 0
""")
stamp("karg")
for j in range(4):
    a(f"global_load_lds_dwordx4 v7, s[{sWQ}:{sWQ+1}] {POL}")
    if j < 3: a(f"s_add_u32 m0, m0, 4096\nv_add_u32 v7, {32*8192}, v7")
a(f"""
s_load_dword s{sNON}, s[{sWS}:{sWS+1}], {NONCE}
v_lshlrev_b32 v5, 1, v0
v_and_b32 v5, 0xe0, v5
v_xor_b32 v{vVA}, v11, v5
{f"v_and_b32 v{vVA}, 0x3ff, v{vVA}" if IL else ""}
{f"v_lshl_add_u32 v{vVA}, v3, 15, v{vVA}" if IL else ""}
s_lshl_b32 s{sT}, s{sG}, 24
s_lshl_b32 s{sT2}, s{sI}, {ISH}
s_add_u32 s{sT}, s{sT}, s{sT2}
s_add_u32 s{sT}, s{sT}, 0xF00000
s_add_u32 s{sV}, s{sV}, s{sT}
s_addc_u32 s{sV+1}, s{sV+1}, 0
s_add_u32 m0, s{sM}, {L_V}
s_add_u32 s{sK}, s{sK}, s{sT}
s_addc_u32 s{sK+1}, s{sK+1}, 0
global_load_lds_dwordx4 v{vVA}, s[{sV}:{sV+1}] {POL}
; x (own quarter and all of it), slot clearing, L2 warm-up of the tagged slots
v_and_b32 v8, 31, v0
v_bfe_u32 v9, v0, 5, 1
v_lshlrev_b32 v8, 3, v8
v_lshl_or_b32 v{vHWR}, v9, 2, v8
s_lshl_b32 s{sT}, s{sKQ}, 8
v_add_u32 v10, s{sT}, v{vHWR}
global_load_dword v{vXW}, v10, s[{sX}:{sX+1}]
v_and_b32 v{vL16}, 0x3f0, v11
global_load_dwordx4 v[20:23], v{vL16}, s[{sX}:{sX+1}]
s_mul_i32 s{sT}, s{sG}, {GS}
s_add_u32 s{sT}, s{sT}, {GB}
s_add_u32 s{RG}, s{sWS}, s{sT}
s_addc_u32 s{RG+1}, s{sWS+1}, 0
s_mul_i32 s{sT}, s{sG}, {TGS}
s_add_u32 s{sT}, s{sT}, {TG}
s_add_u32 s{RT}, s{sWS}, s{sT}
s_addc_u32 s{RT+1}, s{sWS+1}, 0
s_lshl_b32 s{sT}, s{sI}, 10
v_lshl_add_u32 v6, v6, 3, s{sT}
global_load_dword v{vJUNK+1}, v6, s[{RT}:{RT+1}] sc1
v_mov_b32 v12, -1
v_mov_b32 v13, -1
v_mov_b32 v14, -1
v_mov_b32 v15, -1
s_mul_i32 s{sT}, s{sI}, {CLR}
v_min_u32 v10, {CLR-16}, v11
v_add_u32 v10, s{sT}, v10
global_store_dwordx4 v10, v[12:15], s[{RG}:{RG+1}]
s_cmp_eq_u32 s{sW}, 3
s_cbranch_scc0 L_clrd
s_mul_i32 s{sT}, s{sI}, 640
s_add_u32 s{sT}, s{sT}, {XR}
v_min_u32 v10, 624, v{vL16}
v_add_u32 v10, s{sT}, v10
global_store_dwordx4 v10, v[12:15], s[{RG}:{RG+1}] sc1
L_clrd:
""")
NV1 = int(opts["v1"])
for j in range(1, NV1):
    a(f"s_add_u32 m0, m0, 4096\nv_add_u32 v{vVA}, {VSTEP}, v{vVA}\nglobal_load_lds_dwordx4 v{vVA}, s[{sV}:{sV+1}] {POL}")
a(f"""
v_and_b32 v1, 15, v0
v_bfe_u32 v2, v0, 4, 2
""")
stamp("iss")
a(f"""
s_mov_b32 s{RG+2}, 0x20000
s_mov_b32 s{RG+3}, 0x20000
s_mov_b64 s[{RX}:{RX+1}], s[{sWS}:{sWS+1}]
s_mov_b32 s{RX+2}, {WSSIZE}
s_mov_b32 s{RX+3}, 0x20000
s_mov_b32 s{RT+2}, {2*BOFF}
s_mov_b32 s{RT+3}, 0x20000
s_mov_b32 s{sLAY}, 0
s_mov_b32 s{sALT}, 1
s_mov_b32 s{sNF}, 1
s_mov_b32 s{sTH}, 0x42000000
s_movk_i32 s{sTRY}, 12
s_mov_b32 s{sSPIN}, 0x20000
s_mov_b32 s{sQUADM}, 0x11111111
s_mov_b32 s{sQUADM+1}, 0x11111111
s_mov_b32 s{sDM}, 0x00020002
s_mov_b32 s{sDM+1}, 0x00020002
s_mov_b32 s{sPUBM}, 0x00110011
s_mov_b32 s{sPUBM+1}, 0x00110011
s_lshl_b32 s{sT}, s{sW}, 4
s_lshl_b64 s[{sMLM}:{sMLM+1}], 1, s{sT}
s_and_b32 s{sA4}, s{sI}, 15
s_or_b32 s{sT}, s{sG}, s{sCG}
s_cmp_eq_u32 s{sT}, 0
s_cselect_b32 s{sFIN}, 1, 0
s_mov_b32 s{sSTM}, 0
s_brev_b32 s{sSTM+1}, 1
s_lshr_b32 s{sXO}, s{sA4}, 3
s_mul_i32 s{sXO}, s{sXO}, 2560
s_and_b32 s{sT2}, s{sA4}, 7
s_lshl_b32 s{sT2}, s{sT2}, 8
s_add_u32 s{sXO}, s{sXO}, s{sT2}
""")
for gp in range(8):
    a(f"s_mov_b32 s{sGO+gp}, {gp*GS}")
a(f"""
v_bfe_u32 v3, v0, 2, 2
v_and_b32 v4, 3, v0
v_lshrrev_b32 v{vL8}, 1, v{vL16}
v_lshlrev_b32 v{vB16}, 4, v2
v_add_u32 v5, 256, v{vB16}
v_cmp_eq_u32 vcc, 1, v3
v_mov_b32 v{vXWR}, v{vHWR}
v_mov_b32 v{vONE}, {ONES}
v_cndmask_b32 v{vXRD}, v{vB16}, v5, vcc
v_lshlrev_b32 v5, 1, v8
s_lshl_b32 s{sT}, s{sKQ}, 9
v_add_u32 v{vGA}, s{sT}, v5
v_mul_u32_u24 v6, 2560, v9
v_add_u32 v{vGA}, v{vGA}, v6
s_lshr_b32 s{sT}, s{sA4}, 3
s_lshl_b32 s{sT}, s{sT}, 12
s_add_u32 s{sT}, s{sT}, {HP}
v_lshl_add_u32 v{vHGA}, v9, 9, v5
v_add_u32 v{vHGA}, s{sT}, v{vHGA}
v_lshlrev_b32 v{vHSA}, 4, v4
v_add_u32 v{vHSA}, {HS}, v{vHSA}
s_lshl_b32 s{sT}, s{sKQ}, 11
s_lshl_b32 s{sT2}, s{sCG}, 8
s_add_u32 s{sT}, s{sT}, s{sT2}
s_lshl_b32 s{sT2}, s{sW}, 6
s_add_u32 s{sT}, s{sT}, s{sT2}
v_add_u32 v{vQPA}, s{sT}, v{vB16}
v_add_u32 v7, {QCS}, v{vQPA}
v_cndmask_b32 v{vQPA}, v{vQPA}, v7, vcc
v_add_u32 v{vQGA}, {QS}, v5
s_lshl_b32 s{sT}, s{sI}, 4
s_add_u32 s{sT}, s{sT}, {QS}
v_mov_b32 v{vQSA}, s{sT}
s_lshr_b32 s{sT}, s{sI}, 4
s_lshl_b32 s{sT}, s{sT}, 12
s_lshl_b32 s{sT2}, s{sW}, 10
s_add_u32 s{sT}, s{sT}, s{sT2}
s_lshl_b32 s{sT2}, s{sA4}, {5 if RL else 4}
s_add_u32 s{sT}, s{sT}, s{sT2}
v_lshlrev_b32 v7, 13, v2
{"v_lshrrev_b32 v10, 1, v3" if RL else ""}
{"v_lshl_add_u32 v7, v10, 9, v7" if RL else "v_lshl_add_u32 v7, v3, 8, v7"}
{"v_and_b32 v10, 1, v3" if RL else ""}
{"v_lshl_add_u32 v7, v10, 4, v7" if RL else ""}
v_add_u32 v{vRECA}, s{sT}, v7
s_lshl_b32 s{sT}, s{sI}, 3
s_add_u32 s{sT}, s{sT}, {ML}
v_lshlrev_b32 v7, 8, v2
v_add_u32 v{vMLA}, s{sT}, v7
s_lshr_b32 s{sT}, s{sA4}, 3
s_lshl_b32 s{sT}, s{sT}, 2
s_add_u32 s{sT}, s{sT}, s{sW}
s_lshl_b32 s{sT2}, s{sT}, 12
{OA_TXT}
s_lshr_b32 s{sT2}, s{sT}, 1
s_lshl_b32 s{sT2}, s{sT2}, 8
s_add_u32 s{sT2}, s{sT2}, {ML}
s_and_b32 s{sT}, s{sT}, 1
v_and_b32 v7, 1, v3
v_xor_b32 v7, s{sT}, v7
v_lshlrev_b32 v7, 4, v7
v_lshl_add_u32 v7, v2, 2, v7
v_add_u32 v7, v7, v4
v_lshlrev_b32 v7, 3, v7
v_add_u32 v{vOML}, s{sT2}, v7
v_lshl_add_u32 v7, v2, 3, v3
v_lshlrev_b32 v7, 7, v7
v_lshrrev_b32 v10, 1, v2
v_xor_b32 v10, v10, v2
v_and_b32 v10, 1, v10
v_lshrrev_b32 v11, 1, v3
v_lshl_or_b32 v10, v10, 1, v11
v_lshlrev_b32 v10, 5, v10
v_lshl_or_b32 v10, v4, 3, v10
v_or_b32 v{vTR0}, v7, v10
v_mul_u32_u24 v{vQRD}, {QH}, v3
v_add_u32 v{vQRD}, v{vQRD}, v{vB16}
v_lshl_add_u32 v{vPRD}, v3, 6, v{vB16}
s_lshl_b32 s{sT}, s{sW}, 8
v_add_u32 v{vPWR}, s{sT}, v{vPRD}
v_lshrrev_b32 v7, 1, v2
v_and_b32 v10, 1, v2
v_lshl_or_b32 v7, v10, 1, v7
v_lshlrev_b32 v7, 6, v7
v_lshl_add_u32 v7, v1, 2, v7
v_add_u32 v{vYWR}, s{sT}, v7
s_lshl_b32 s{sT}, s{sW}, 5
v_lshlrev_b32 v7, 3, v2
v_lshl_add_u32 v7, v3, 7, v7
v_add_u32 v{vMWR}, s{sT}, v7
v_lshlrev_b32 v7, 3, v1
v_lshl_add_u32 v{vMRD}, v2, 7, v7
s_lshl_b32 s{sT}, s{sW}, 7
v_lshl_add_u32 v7, v1, 6, v{vB16}
v_add_u32 v{vDPA}, s{sT}, v7
v_mov_b32 v{vPUBA}, 0
v_mov_b32 v{vQL}, 0
v_mov_b32 v{vMASK}, 0xffffff00
v_mov_b32 v{vMASK+2}, 255
v_lshrrev_b32 v11, 1, v{vL8}
ds_write_b32 v11, v{vONE} offset:{L_X+256}
ds_write_b32 v11, v{vONE} offset:{L_X+768}
s_getreg_b32 s{sT2}, hwreg(HW_REG_XCC_ID)
s_and_b32 s{sT2}, s{sT2}, 15
v_mov_b32 v{vSTG+3}, s{sT2}
s_waitcnt lgkmcnt(0)
s_mul_i32 s{sTAG}, s{sNON}, 0x9E3779B1
s_add_u32 s{sTAG}, s{sTAG}, 0x7F4A7C15
s_and_b32 s{sT0}, s{sTAG}, 255
s_bfe_u32 s{sT0+1}, s{sTAG}, 0x80008
s_bfe_u32 s{sT0+2}, s{sTAG}, 0x80010
s_lshr_b32 s{sT0+3}, s{sTAG}, 24
v_mov_b32 v{vSTG+2}, s{sTAG}
""")
F3 = int(opts["f3"])
def f3_sample():
    for gp in range(1, 8):
        a(f"""s_add_u32 s{sT}, s{sG}, {gp}
        s_and_b32 s{sT}, s{sT}, 7
        s_lshl_b32 s{sT}, s{sT}, 7
        s_add_u32 s{sT}, s{sT}, {GD + 2048}
        s_load_dword s{sGO+gp}, s[{sWS}:{sWS+1}], s{sT}""")
def f3_eval():
    a("s_waitcnt lgkmcnt(0)")
    for gp in range(1, 8): a(f"s_xor_b32 s{sGO+gp}, s{sGO+gp}, s{sTAG}")
    for gp in range(2, 8): a(f"s_or_b32 s{sGO+1}, s{sGO+1}, s{sGO+gp}")
    a(f"s_cselect_b32 s{sEAR}, 1, 0")
    for gp in range(8): a(f"s_mov_b32 s{sGO+gp}, {gp*GS}")
LK = int(opts["lk"]); LKN = int(opts["lkn"])
if F3 or LK:
    a(f"""s_or_b32 s{sT}, s{sI}, s{sW}
    s_cbranch_scc1 L_f3
    s_lshl_b32 s{sT}, s{sG}, 7
    v_mov_b32 v10, s{sT}
    s_mov_b64 exec, 1
    global_store_dword v10, v{vSTG+2}, s[{sWS}:{sWS+1}] offset:{GD + 2048} sc1
    s_mov_b64 exec, -1
    L_f3:""")
if LK: f3_sample()
a(f"""
s_lshl_b32 s{sT}, s{sW}, 5
v_xor_b32 v10, s{sT}, v{vTR0}
v_xor_b32 v11, 32, v10
v_add_u32 v11, 512, v11
""")
stamp("setup")
VL = int(opts["vl"])
for j in range(NV1, 8 - VL):
    a(f"s_add_u32 m0, m0, 4096\nv_add_u32 v{vVA}, {VSTEP}, v{vVA}\nglobal_load_lds_dwordx4 v{vVA}, s[{sV}:{sV+1}] {POL}")
KUP = int(opts["kup"])
def kdma(j0, j1):
    for j in range(j0, j1):
        a(f"v_xor_b32 v5, {64*(j&3)}, v{vKA}\nglobal_load_lds_dwordx4 v5, s[{sK}:{sK+1}] {POL}")
        if j < 7: a(f"s_add_u32 m0, m0, 1024\ns_add_u32 s{sK}, s{sK}, {KSTEP}\ns_addc_u32 s{sK+1}, s{sK+1}, 0")
a(f"""v_xor_b32 v{vKA}, v{vB16}, v{vL16}
s_lshl_b32 s{sT}, s{sW}, {KWSH}
v_add_u32 v{vKA}, s{sT}, v{vKA}""")
if not VL: a(f"s_lshl_b32 s{sT}, s{sW}, 13\ns_add_u32 m0, s{sT}, {L_K}")
kdma(0, KUP)
if LK:
    a("s_waitcnt lgkmcnt(0)")
    a(f"s_mov_b32 s{sEAR}, 0")
    for gp in range(1, 8): a(f"s_cmp_eq_u32 s{sGO+gp}, s{sTAG}\ns_addc_u32 s{sEAR}, s{sEAR}, 0")
    for gp in range(8): a(f"s_mov_b32 s{sGO+gp}, {gp*GS}")
    a(f"""s_cmp_ge_u32 s{sEAR}, {LK}
    s_cselect_b32 s{sEAR}, 1, 0
    s_cbranch_scc0 L_lk0""")
    kdma(0, LKN)
    a(f"s_waitcnt vmcnt({7 + LKN})\ns_branch L_lk1\nL_lk0:\ns_waitcnt vmcnt(7)\nL_lk1:")
stamp("iss2")
if F3 == 1: f3_sample()
a(f"""
{"" if LK else f"s_waitcnt vmcnt({7 + KUP - VL})"}
v_dot2_f32_bf16 v24, v20, v{vONE}, 0
v_dot2_f32_bf16 v25, v20, v20, 0
v_dot2_f32_bf16 v24, v21, v{vONE}, v24
v_dot2_f32_bf16 v25, v21, v21, v25
v_dot2_f32_bf16 v24, v22, v{vONE}, v24
v_dot2_f32_bf16 v25, v22, v22, v25
v_dot2_f32_bf16 v24, v23, v{vONE}, v24
v_dot2_f32_bf16 v25, v23, v23, v25
v_lshlrev_b32 v{vR0}, 16, v{vXW}
v_and_b32 v{vR1}, 0xffff0000, v{vXW}
s_nop 0
""")
for r_ in (1, 2, 4, 8):
    a(f"v_add_f32_dpp v24, v24, v24 row_ror:{r_} {DPPALL}\nv_add_f32_dpp v25, v25, v25 row_ror:{r_} {DPPALL}\ns_nop 0")
for sw in (32, 16):
    a(f"""v_mov_b32 v26, v24
    v_mov_b32 v27, v25
    s_nop 0
    v_permlane{sw}_swap_b32 v24, v26
    v_permlane{sw}_swap_b32 v25, v27
    v_add_f32 v24, v24, v26
    v_add_f32 v25, v25, v27""")
a(f"""
v_mul_f32 v24, {f32(-1/512)}, v24
v_mul_f32 v25, {f32(1/512)}, v25
v_fma_f32 v25, -v24, v24, v25
v_max_f32 v25, 0, v25
v_add_f32 v25, {f32(1e-5)}, v25
v_rsq_f32 v25, v25
v_add_f32 v26, v24, v{vR0}
v_add_f32 v27, v24, v{vR1}
v_mul_f32 v25, {f32(QSCALE)}, v25
v_mul_f32 v26, v26, v25
v_mul_f32 v27, v27, v25
v_cvt_pk_bf16_f32 v{vXW}, v26, v27
ds_write_b32 v{vXWR}, v{vXW}
""")
if F3 == 1: f3_eval()
a("s_barrier")
stamp("wq")
if STAMP: a(f"v_mov_b32 v{vSTMP}, 0")
trW(aWQ, L_WQ, 10, 11)
a("s_branch L_TQ")

a(f"""
L_G:
""")
if int(opts["xack"]) == 1: a("s_waitcnt vmcnt(0)")
stamp("g0")
a("L_Gp:")
def g_issue():
    for j in range(8):
        a(f"buffer_load_dwordx4 {V4(GB0+4*j)}, v{vGA}, s[{RX}:{RX+3}], s{sGO+j} offen sc1")
g_issue()
a("L_G1:\ns_waitcnt vmcnt(6)")
a(f"v_pk_add_f32 v[40:41], v[{GB0}:{GB0+1}], v[{GB0+4}:{GB0+5}]\nv_pk_add_f32 v[42:43], v[{GB0+2}:{GB0+3}], v[{GB0+6}:{GB0+7}]\nv_max_u32 v44, v{GB0}, v{GB0+4}")
for j in range(2, 8):
    a(f"s_waitcnt vmcnt({7-j})")
    a(f"v_pk_add_f32 v[40:41], v[40:41], v[{GB0+4*j}:{GB0+1+4*j}]\nv_pk_add_f32 v[42:43], v[42:43], v[{GB0+2+4*j}:{GB0+3+4*j}]")
    a(f"v_max_u32 v44, v44, v{GB0+4*j}")
a(f"""
v_cmp_eq_u32 vcc, -1, v44
v_permlane32_swap_b32 v40, v42
v_permlane32_swap_b32 v41, v43
v_add_f32 v40, v40, v42
v_add_f32 v41, v41, v43
v_add_f32 v40, v40, v{vR0}
v_add_f32 v41, v41, v{vR1}
v_cvt_pk_bf16_f32 v{vXW}, v40, v41
ds_write_b32 v{vXWR}, v{vXW}
s_cbranch_vccnz L_Gretry
L_Gok:
""")
stamp("gok")
a(f"""
v_lshlrev_b32 v{vR0}, 16, v{vXW}
v_and_b32 v{vR1}, 0xffff0000, v{vXW}
s_cmp_eq_u32 s{sPH}, 1
s_cbranch_scc1 L_TU
s_cmp_eq_u32 s{sPH}, 0
s_cbranch_scc0 L_Gother
""")

def gemv_stats(step):
    a(f"""v_dot2_f32_bf16 v46, v{vXW}, v{vXW}, 0
    v_dot2_f32_bf16 v47, v{vXW}, v{vONE}, 0
    s_nop 2
    v_permlane32_swap_b32 v47, v46
    v_add_f32 v46, v46, v47
    s_nop 1
    v_add_f32_dpp v46, v46, v46 row_ror:1 {DPPALL}
    s_nop 1
    v_add_f32_dpp v46, v46, v46 row_ror:2 {DPPALL}""")
    rest = [f"v_add_f32_dpp v46, v46, v46 row_ror:4 {DPPALL}", f"v_add_f32_dpp v46, v46, v46 row_ror:8 {DPPALL}",
            "v_add_f32_dpp v46, v46, v46 row_bcast:15 row_mask:0xa bank_mask:0xf",
            f"v_mov_b32 v{vSTG}, v46\nv_mov_b32_dpp v{vSTG+1}, v46 row_bcast:31 row_mask:0xc bank_mask:0xf"]
    for s in range(4):
        a(f"s_waitcnt lgkmcnt({3-s})"); step(s); a(rest[s])
def gemv_plain(step):
    for s in range(4):
        a(f"s_waitcnt lgkmcnt({3-s})"); step(s)

a(f"""
L_TQ:
s_cmp_lg_u32 s{sW}, 0
s_waitcnt lgkmcnt(0)
s_barrier
""")
stamp("xq")
for s in range(4): a(f"ds_read_b128 {V4(8+4*s)}, v{vXRD} offset:{64*s}")
tq_step = lambda s: a(mfma(24, A4(aWQ+4*s), V4(8+4*s), s == 0))
def tq_tail(fl):
    a(f"""s_mov_b64 exec, s[{sPUBM}:{sPUBM+1}]
    s_cmp_lg_u32 s{sW}, 0
    s_nop 3
    buffer_store_dwordx4 v[24:27], v{vQPA}, s[{RG}:{RG+3}], 0 offen{fl}
    s_cbranch_scc1 L_S
    s_mov_b64 exec, s[{sSTM}:{sSTM+1}]
    buffer_store_dwordx2 v[{vSTG}:{vSTG+1}], v{vQSA}, s[{RG}:{RG+3}], 0 offen{fl}
    s_mov_b64 exec, -1""")
a("s_cbranch_scc1 L_TQw")
gemv_stats(tq_step)
a(f"""s_cmp_eq_u32 s{sALT}, 0
s_cbranch_scc0 L_TQalt
s_mov_b64 exec, s[{sPUBM}:{sPUBM+1}]
s_nop 2
buffer_store_dwordx4 v[24:27], v{vQPA}, s[{RG}:{RG+3}], 0 offen
s_mov_b64 exec, s[{sSTM}:{sSTM+1}]
buffer_store_dwordx2 v[{vSTG}:{vSTG+1}], v{vQSA}, s[{RG}:{RG+3}], 0 offen
s_mov_b64 exec, -1""")
stamp("qpub")
QPI = int(opts["qp"])
def q_issue(B, S):
    a(f"buffer_load_dwordx2 v[{S}:{S+1}], v{vQGA}, s[{RG}:{RG+3}], 0 offen sc1")
    for u in range(2):
        for k in range(4):
            so = "0" if k < 2 else f"s{sT}"
            a(f"buffer_load_dwordx4 {V4(B+16*u+4*k)}, v{vQL}, s[{RG}:{RG+3}], {so} offen offset:{(k&1)*2048+u*1024} sc1")
def q_head(S, x, fail):
    a(f"""s_waitcnt vmcnt({8+x})
    v_cmp_eq_u32 vcc, -1, v{S}
    v_add_f32_dpp v38, v{S}, v{S} quad_perm:[1,0,3,2] {DPPALL}
    v_add_f32_dpp v39, v{S+1}, v{S+1} quad_perm:[1,0,3,2] {DPPALL}
    s_cbranch_vccnz {fail}""")
def q_body(B, x, fail):
    P = lambda r: f"v[{B+r}:{B+r+1}]"
    a(f"""
    v_add_f32_dpp v38, v38, v38 quad_perm:[2,3,0,1] {DPPALL}
    v_add_f32_dpp v39, v39, v39 quad_perm:[2,3,0,1] {DPPALL}
    v_mul_f32 v38, {f32(1/512)}, v38
    v_mul_f32 v46, {f32(-1/512)}, v39
    v_fma_f32 v38, -v46, v46, v38
    v_max_f32 v38, 0, v38
    v_add_f32 v38, {f32(1e-5)}, v38
    v_rsq_f32 v38, v38
    s_waitcnt vmcnt({6+x})
    v_pk_add_f32 v[40:41], {P(0)}, {P(4)}
    v_pk_add_f32 v[42:43], {P(2)}, {P(6)}
    v_mul_f32 v38, {f32(QSCALE)}, v38
    s_waitcnt vmcnt({5+x})
    v_pk_add_f32 v[40:41], v[40:41], {P(8)}
    v_pk_add_f32 v[42:43], v[42:43], {P(10)}
    v_max3_u32 v44, v{B}, v{B+4}, v{B+8}
    v_pk_fma_f32 v[40:41], v[{vQCS}:{vQCS+1}], v[46:47], v[40:41] op_sel_hi:[1,0,1]
    v_pk_fma_f32 v[42:43], v[{vQCS+2}:{vQCS+3}], v[46:47], v[42:43] op_sel_hi:[1,0,1]
    s_waitcnt vmcnt({3+x})
    v_pk_add_f32 v[40:41], v[40:41], {P(12)}
    v_pk_add_f32 v[42:43], v[42:43], {P(14)}
    v_max3_u32 v44, v44, v{B+12}, v{B+16}
    v_pk_fma_f32 v[24:25], v[{vQCS+4}:{vQCS+5}], v[46:47], {P(16)} op_sel_hi:[1,0,1]
    v_pk_fma_f32 v[26:27], v[{vQCS+6}:{vQCS+7}], v[46:47], {P(18)} op_sel_hi:[1,0,1]
    v_pk_mul_f32 v[40:41], v[40:41], v[38:39] op_sel_hi:[1,0]
    v_pk_mul_f32 v[42:43], v[42:43], v[38:39] op_sel_hi:[1,0]
    s_waitcnt vmcnt({2+x})
    v_pk_add_f32 v[24:25], v[24:25], {P(20)}
    v_pk_add_f32 v[26:27], v[26:27], {P(22)}
    v_cvt_pk_bf16_f32 v40, v40, v41
    v_cvt_pk_bf16_f32 v41, v42, v43
    s_waitcnt vmcnt({1+x})
    v_pk_add_f32 v[24:25], v[24:25], {P(24)}
    v_pk_add_f32 v[26:27], v[26:27], {P(26)}
    ds_write_b64 v{vMODE}, v[40:41] offset:{L_QB}
    v_max3_u32 v44, v44, v{B+20}, v{B+24}
    s_waitcnt vmcnt({x})
    v_pk_add_f32 v[24:25], v[24:25], {P(28)}
    v_pk_add_f32 v[26:27], v[26:27], {P(30)}
    v_pk_mul_f32 v[24:25], v[24:25], v[38:39] op_sel_hi:[1,0]
    v_pk_mul_f32 v[26:27], v[26:27], v[38:39] op_sel_hi:[1,0]
    v_cvt_pk_bf16_f32 v24, v24, v25
    v_cvt_pk_bf16_f32 v25, v26, v27
    ds_write_b64 v{vMODE}, v[24:25] offset:{L_QB+2*QH}
    v_max_u32 v44, v44, v{B+28}
    v_cmp_eq_u32 vcc, -1, v44
    s_cbranch_vccnz {fail}""")
a(f"L_QFe:\ns_movk_i32 s{sT}, 4096")
if not QPI:
    a("L_QFp:"); q_issue(64, 48); q_head(48, 0, "L_QFretry"); a("L_QF2:"); stamp("qf2"); q_body(64, 0, "L_QF2retry")
else:
    q_issue(144, 50)
    a("L_QFp:"); q_issue(64, 48); q_head(50, 9, "L_QFn"); q_body(144, 9, "L_QFn"); a("s_branch L_S\nL_QFn:")
    q_issue(144, 50); q_head(48, 9, "L_QFretry"); stamp("qf2"); q_body(64, 9, "L_QFretry")
stamp("qfok")
a(f"""
L_S:
s_mov_b64 exec, -1
s_waitcnt lgkmcnt(0)
s_barrier
""")
stamp("q")
for s in range(4): a(f"ds_read_b128 {V4(8+4*s)}, v{vQRD} offset:{L_QB + 64*s}")
for s in range(4):
    a(f"s_waitcnt lgkmcnt({LG(3-s)})")
    for t in range(2): a(mfma(24+4*t, A4(aK+16*t+4*s), V4(8+4*s), s == 0))
a(f"""
v_mov_b32 v32, 0
s_nop 5
""")
stamp("smm")
for k in range(8): a(f"v_exp_f32 v{40+k}, v{24+k}")
def p_tail():
    a(f"""
    v_cvt_pk_bf16_f32 v36, v40, v41
    v_cvt_pk_bf16_f32 v37, v42, v43
    v_cvt_pk_bf16_f32 v38, v44, v45
    v_cvt_pk_bf16_f32 v39, v46, v47
    s_mov_b64 exec, s[{sQUADM}:{sQUADM+1}]
    ds_write_b128 v{vPWR}, v[36:39] offset:{L_PB}
    v_dot2_f32_bf16 v33, v36, v{vONE}, 0
    v_dot2_f32_bf16 v33, v37, v{vONE}, v33
    v_dot2_f32_bf16 v33, v38, v{vONE}, v33
    v_dot2_f32_bf16 v33, v39, v{vONE}, v33""")
p_tail()
a(f"""
v_max3_f32 v34, v24, v25, v26
v_max3_f32 v35, v27, v28, v29
v_max3_f32 v34, v34, v30, v31
ds_write_b64 v{vMWR}, v[32:33] offset:{L_MB}
v_max_f32 v34, v34, v35
v_cmp_nle_f32 vcc, |v34|, s{sTH}
s_cbranch_vccnz L_Sbig
L_Sp:
s_mov_b64 exec, -1
s_cmp_eq_u32 s{sNF}, 0
s_waitcnt lgkmcnt(0)
s_barrier
""")
stamp("p")
for w in range(4): a(f"ds_read_b128 {V4(8+4*w)}, v{vPRD} offset:{L_PB + 256*w}")
a(f"ds_read_b64 v[32:33], v{vMRD} offset:{L_MB}")
for w in range(4):
    a(f"s_waitcnt lgkmcnt({LG(4-w)})")
    for c in range(2): a(mfma(24+4*c, V4(8+4*w), A4(aV+8*w+4*c), w == 0))
a(f"""
s_waitcnt lgkmcnt(0)
v_add_f32_dpp v35, v33, v33 row_ror:1 {DPPALL}
v_cmp_neq_f32 vcc, 0, v32
v_mov_b32 v34, 0
v_add_f32_dpp v35, v35, v35 row_ror:2 {DPPALL}
s_cbranch_vccnz L_PVbig
s_nop 0
v_add_f32_dpp v35, v35, v35 row_ror:4 {DPPALL}
v_cvt_pk_bf16_f32 v36, v24, v28
s_nop 0
v_add_f32_dpp v35, v35, v35 row_ror:8 {DPPALL}
L_PVt:
v_mov_b32_dpp v37, v36 quad_perm:[1,1,1,1] {DPPALL}
v_mov_b32_dpp v38, v36 quad_perm:[2,2,2,2] {DPPALL}
v_mov_b32_dpp v39, v36 quad_perm:[3,3,3,3] {DPPALL}
s_mov_b64 exec, s[{sQUADM}:{sQUADM+1}]
s_cbranch_scc0 L_RECsafe
""")
def rec_tail(fl):
    a(f"""buffer_store_dwordx4 v[36:39], v{vRECA}, s[{RG}:{RG+3}], 0 offen{fl}
    s_mov_b64 exec, s[{sMLM}:{sMLM+1}]
    buffer_store_dwordx2 v[34:35], v{vMLA}, s[{RG}:{RG+3}], 0 offen{fl}""")
rec_tail("")
a(f"""L_RECd:
s_mov_b64 exec, -1""")
stamp("rec")
a(f"""
s_cmp_ge_u32 s{sI}, 16
s_cbranch_scc1 L_B
""")
a(f"""
s_cmp_eq_u32 s{sLAY}, 0
s_cbranch_scc0 L_O
""")
if opts["wo2"] == "all": wo_issue()
if opts["wo2"] == "rec":
    a(f"s_cmp_eq_u32 s{sW}, 0\ns_cbranch_scc0 L_W0")
    wo_issue()
    a("L_W0:")
WP = int(opts["wp"])
def wo_reads(steps):
    for t in range(4):
        a(f"v_xor_b32 v6, {32*t}, v{vVA}\nv_xor_b32 v7, 32, v6\nv_add_u32 v7, 256, v7")
        for s in steps:
            d = aW2 + 16*t + 4*s
            a(f"ds_read_b64_tr_b16 a[{d}:{d+1}], v6 offset:{s*4096}\nds_read_b64_tr_b16 a[{d+2}:{d+3}], v7 offset:{s*4096}")
def oloads(gap):
    a(f"buffer_load_dwordx2 v[4:5], v{vOML}, s[{RG}:{RG+3}], 0 offen sc1")
    for s in range(4):
        a(f"buffer_load_dwordx4 {V4(8+4*s)}, v{vOA}, s[{RG}:{RG+3}], 0 offen offset:{1024*s} sc1")
        if gap and s < 3: a(f"s_nop {gap-1}")
if not WP:
    a("s_waitcnt vmcnt(2)"); stamp("wl"); a("s_barrier"); stamp("wb"); wo_reads(range(4)); stamp("wt")
else:
    a("s_waitcnt vmcnt(4)\ns_barrier")
    oloads(0)
    wo_reads(range(3))
    a("s_waitcnt vmcnt(7)\ns_barrier")
    wo_reads([3])
    a("s_branch L_O1")
OM = opts["om"]
a("L_O:")
if OM == "ack": a("s_waitcnt vmcnt(0)")
if OM == "ack1": a("s_waitcnt vmcnt(1)")
if OM.startswith("d"):
    for _ in range(int(OM[1:])): a("s_nop 15")
if OM in ("bell", "bell2"):
    a(f"""L_Ob:
    buffer_load_dwordx2 v[4:5], v{vOML}, s[{RG}:{RG+3}], 0 offen sc1
    s_waitcnt vmcnt(0)
    v_cmp_eq_u32 vcc, -1, v5
    s_cbranch_vccnz L_Obretry""")
a("L_Op:")
oloads(int(opts["og"]))
a("L_O1:")
mo = lambda t, s: mfma(24+4*t, V4(8+4*s), A4(aW2+16*t+4*s), s == 0)
a(f"""
s_waitcnt vmcnt(4) lgkmcnt(0)
v_cmp_eq_u32 vcc, -1, v5
s_cbranch_vccnz L_Oretry
L_O2:
""")
stamp("o2")
a(f"""
s_waitcnt vmcnt(3)
{mo(0,0)}
{mo(1,0)}
{mo(2,0)}
{mo(3,0)}
s_waitcnt vmcnt(2)
{mo(0,1)}
{mo(1,1)}
{mo(2,1)}
{mo(3,1)}
s_waitcnt vmcnt(1)
{mo(0,2)}
v_add_f32_dpp v6, v5, v5 quad_perm:[1,0,3,2] {DPPALL}
v_max3_u32 v44, v8, v12, v16
{mo(1,2)}
v_add_f32_dpp v6, v6, v6 quad_perm:[2,3,0,1] {DPPALL}
v_cmp_neq_f32 s[{sM}:{sM+1}], 0, v4
{mo(2,2)}
v_add_f32_dpp v6, v6, v6 row_half_mirror {DPPALL}
v_mov_b32 v7, v6
{mo(3,2)}
s_waitcnt vmcnt(0)
v_permlane32_swap_b32 v6, v7
{mo(0,3)}
v_add_f32 v6, v6, v7
v_mov_b32 v7, v6
{mo(1,3)}
v_max_u32 v44, v44, v20
v_permlane16_swap_b32 v6, v7
{mo(2,3)}
v_cmp_eq_u32 vcc, -1, v44
v_add_f32 v6, v6, v7
{mo(3,3)}
v_rcp_f32 v6, v6
s_cbranch_vccnz L_O2retry
L_Ook:
""")
stamp("ook")
a(f"""
s_cmp_lg_u64 s[{sM}:{sM+1}], 0
s_cbranch_scc1 L_Obig
v_pk_add_f32 v[24:25], v[24:25], v[26:27]
v_pk_add_f32 v[28:29], v[28:29], v[30:31]
v_add_f32 v40, v24, v25
v_add_f32 v41, v28, v29
v_pk_add_f32 v[32:33], v[32:33], v[34:35]
v_pk_add_f32 v[36:37], v[36:37], v[38:39]
v_add_f32 v42, v32, v33
v_add_f32 v43, v36, v37
L_Ot:
v_permlane32_swap_b32 v40, v41
v_add_f32 v40, v40, v41
v_permlane32_swap_b32 v42, v43
v_add_f32 v42, v42, v43
s_add_u32 s{sT}, s{sXO}, {X1}
s_cmp_eq_u32 s{sW}, 0
v_permlane16_swap_b32 v40, v42
v_add_f32 v40, v40, v42
v_mul_f32 v40, v40, v6
ds_write_b32 v{vYWR}, v40 offset:{L_YB}
s_waitcnt lgkmcnt(0)
s_barrier
s_cbranch_scc0 L_Odone
s_mov_b64 exec, 0xffff
""")
stamp("ob")
for w in range(4): a(f"ds_read_b128 {V4(8+4*w)}, v{vL16} offset:{L_YB + 256*w}")
a(f"""
s_waitcnt lgkmcnt({LG(2)})
v_pk_add_f32 v[8:9], v[8:9], v[12:13]
v_pk_add_f32 v[10:11], v[10:11], v[14:15]
s_waitcnt lgkmcnt({LG(1)})
v_pk_add_f32 v[8:9], v[8:9], v[16:17]
v_pk_add_f32 v[10:11], v[10:11], v[18:19]
s_waitcnt lgkmcnt(0)
v_pk_add_f32 v[8:9], v[8:9], v[20:21]
v_pk_add_f32 v[10:11], v[10:11], v[22:23]
buffer_store_dwordx4 v[8:11], v{vL16}, s[{RG}:{RG+3}], s{sT} offen sc1
s_mov_b64 exec, -1
L_Odone:
""")
stamp("x1pub")
def xor_acc(base, first, acc=44):
    for k in range(4): a(f"v_xor_b32 v{base+k}, s{sT0+k}, v{base+k}")
    if first:
        a(f"v_or3_b32 v{acc}, v{base}, v{base+1}, v{base+2}\nv_or_b32 v{acc}, v{acc}, v{base+3}")
    else:
        a(f"v_or3_b32 v{acc}, v{acc}, v{base}, v{base+1}\nv_or3_b32 v{acc}, v{acc}, v{base+2}, v{base+3}")
def wd_base(own):
    a(f"""s_lshr_b32 s{sT}, s{sG}, 1
    s_mul_i32 s{sT}, s{sT}, 7
    s_and_b32 s{sT2}, s{sG}, 1
    s_lshl_b32 s{sM}, s{sT2}, 2
    s_add_u32 s{sT}, s{sT}, s{sM}
    s_lshr_b32 s{sM}, s{sA4}, 3
    s_and_b32 s{sT2}, s{sT2}, s{sM}
    s_lshl_b32 s{sM}, s{sM}, 1
    s_add_u32 s{sT}, s{sT}, s{sM}
    s_lshl_b32 s{sT}, s{sT}, 16
    s_and_b32 s{sM}, s{sA4}, 7
    s_lshl_b32 s{sM}, s{sM}, 1
    {f"s_add_u32 s{sM}, s{sM}, s{sW}" if own else ""}
    s_lshl_b32 s{sM}, s{sM}, 6
    s_add_u32 s{sT}, s{sT}, s{sM}
    s_add_u32 s{sWD}, s{sWD}, s{sT}
    s_addc_u32 s{sWD+1}, s{sWD+1}, 0
    s_lshl_b32 s{sT2}, s{sT2}, 16""")
def wd_issue():
    wd_base(True)
    a(f"""s_lshl_b32 s{sT}, s{sW}, 13
    s_add_u32 m0, s{sT}, {L_WD}
    v_bfe_u32 v4, v0, 2, 4
    v_and_b32 v5, 32, v0
    v_and_b32 v6, 48, v{vL16}
    v_xor_b32 v5, v5, v6
    v_lshl_add_u32 v4, v4, 10, v5""")
    for j in range(8):
        a(f"global_load_lds_dwordx4 v4, s[{sWD}:{sWD+1}] {POL}")
        if j < 7: a(f"s_add_u32 m0, m0, 1024\nv_add_u32 v4, 0x4000, v4")
        if j == 3: a(f"v_subrev_u32 v4, s{sT2}, v4")
    a(f"""v_bfe_u32 v4, v0, 2, 2
    v_bfe_u32 v5, v0, 4, 2
    v_lshl_add_u32 v4, v5, 3, v4
    v_lshlrev_b32 v4, 6, v4
    v_and_b32 v5, 1, v5
    v_lshl_add_u32 v4, v5, 5, v4
    v_and_b32 v5, 3, v0
    v_lshl_add_u32 v4, v5, 3, v4
    v_add_u32 v6, s{sT}, v4
    v_xor_b32 v7, 32, v6""")
def wd_reads():
    for t in range(2):
        for s_ in range(4):
            for e in range(2):
                r = aWD + 16*t + 4*s_ + 2*e
                a(f"ds_read_b64_tr_b16 a[{r}:{r+1}], v{6+t} offset:{L_WD + s_*2048 + e*256}")
def qc_gather():
    l3 = a.label("QC"); l4 = a.label("QC")
    a(f"""s_mul_i32 s{sT2}, s{sNF}, {BOFF}
    s_mul_i32 s{sT}, s{sG}, {TGS}
    s_add_u32 s{sT2}, s{sT2}, s{sT}
    s_add_u32 s{sT2}, s{sT2}, {TG}
    s_add_u32 s{RT}, s{sWS}, s{sT2}
    s_addc_u32 s{RT+1}, s{sWS+1}, 0
    {l3}:""")
    for k in range(4):
        a(f"s_mov_b32 s{sT2}, {QCS + k*2048}")
        for u in range(2):
            a(f"buffer_load_dwordx4 {V4(8+16*u+4*k)}, v{vL16}, s[{RT}:{RT+3}], s{sT2} offen offset:{u*1024} sc1")
    a("s_waitcnt vmcnt(0)")
    for u in range(2):
        for k in range(4): xor_acc(8+16*u+4*k, u == 0 and k == 0)
        for h in range(2):
            r = 8 + 16*u + 2*h
            a(f"v_pk_add_f32 v[{r}:{r+1}], v[{r}:{r+1}], v[{r+4}:{r+5}]\nv_pk_add_f32 v[{r+8}:{r+9}], v[{r+8}:{r+9}], v[{r+12}:{r+13}]")
            a(f"v_pk_add_f32 v[{vQCS+4*u+2*h}:{vQCS+4*u+2*h+1}], v[{r}:{r+1}], v[{r+8}:{r+9}]")
    a(f"v_and_b32 v44, 255, v44\nv_cmp_ne_u32 vcc, 0, v44\ns_cbranch_vccz {l4}")
    spin(l3, l4)
    a(f"""{l4}:
    ds_write_b128 v{vL16}, {V4(vQCS)} offset:{L_CS}
    ds_write_b128 v{vL16}, {V4(vQCS+4)} offset:{L_CS+1024}""")
BELL = int(opts["bell"])
def bell_ring(off):
    l1 = a.label("BR"); l2 = a.label("BR")
    a(f"""s_lshl_b32 s{sT2}, s{sA4}, 4
    s_add_u32 s{sT2}, s{sT2}, {BL + off}
    v_mov_b32 v1, 0
    s_mov_b64 exec, 1
    s_cmp_eq_u32 s{sNF}, 0
    {"s_waitcnt vmcnt(0)" if int(opts["bx2" if off else "bx"]) < 0 else ""}
    s_cbranch_scc0 {l1}
    buffer_store_dword v1, v1, s[{RG}:{RG+3}], s{sT2} offen
    {l2}:
    s_mov_b64 exec, -1""")
    tails.append(f"{l1}:\nbuffer_store_dword v1, v1, s[{RG}:{RG+3}], s{sT2} offen sc1\ns_branch {l2}")
tails = []
def bell_wait(off=0):
    if not BELL: return
    l1 = a.label("BW"); l2 = a.label("BW")
    if off == 0 and not int(opts["bell0"]): a(f"s_cmp_eq_u32 s{sLAY}, 0\ns_cbranch_scc1 {l2}")
    a(f"""s_lshl_b32 s{sT2}, s{sA4}, 4
    s_add_u32 s{sT2}, s{sT2}, {BL + off}
    v_mov_b32 v1, 0
    {l1}:
    buffer_load_dword v2, v1, s[{RG}:{RG+3}], s{sT2} offen sc1
    s_waitcnt vmcnt(0)
    v_cmp_eq_u32 vcc, -1, v2
    s_cbranch_vccz {l2}""")
    spin(l1, l2)
    a(f"{l2}:")
    bx = int(opts["bx2" if off else "bx"])
    if bx > 0: a(f"s_sleep {bx}")
def gd_wait(off=0):
    l1 = a.label("GD"); l2 = a.label("GD")
    a(f"""v_and_b32 v1, 7, v0
    v_lshlrev_b32 v1, 7, v1
    v_add_u32 v1, {GD + off*16}, v1
    {l1}:
    global_load_dword v2, v1, s[{sWS}:{sWS+1}] sc1
    s_waitcnt vmcnt(0)
    v_cmp_ne_u32 vcc, s{sTAG}, v2
    s_cbranch_vccz {l2}""")
    spin(l1, l2)
    a(f"{l2}:")
def set_rx(off):
    a(f"""v_add_u32 v{vXWR}, {512 if off == X1 else 0}, v{vHWR}
    s_mul_i32 s{sT}, s{sLAY}, {XLS}
    s_add_u32 s{sT}, s{sT}, {off + GB}
    s_add_u32 s{RX}, s{sWS}, s{sT}
    s_addc_u32 s{RX+1}, s{sWS+1}, 0""")
def next_layer():
    a(f"""s_add_u32 s{RG}, s{RG}, {LS}
    s_addc_u32 s{RG+1}, s{RG+1}, 0
    s_sub_u32 s{sXO}, s{sXO}, {LS - XLS}
    s_mov_b32 s{sALT}, s{sNF}
    s_movk_i32 s{sQH}, {QH}
    v_add_u32 v{vQL}, {QP1 - LS}, v{vL16}
    s_lshl_b32 s{sT2}, s{sKQ}, 11
    s_lshl_b32 s{sM}, s{sCG}, 8
    s_add_u32 s{sT2}, s{sT2}, s{sM}
    s_lshl_b32 s{sM}, s{sW}, 6
    s_add_u32 s{sT2}, s{sT2}, s{sM}
    s_add_u32 s{sT2}, s{sT2}, {QP1 - LS}
    v_add_u32 v{vQPA}, s{sT2}, v{vB16}
    v_and_b32 v1, 0xf8, v{vL8}
    v_add_u32 v{vQGA}, {QS1 - LS}, v1
    v_bfe_u32 v2, v0, 5, 1
    v_mad_u32_u24 v{vMODE}, v2, s{sQH}, v1
    s_lshl_b32 s{sT2}, s{sI}, 3
    s_add_u32 s{sT2}, s{sT2}, {QS1 - LS}
    v_mov_b32 v{vQSA}, s{sT2}
    s_mov_b32 s{sPUBM}, 0x00010001
    s_mov_b32 s{sPUBM+1}, 0x00010001
    s_mov_b32 s{sLAY}, 1""")
a(f"""
s_cmp_eq_u32 s{sW}, 0
s_cbranch_scc0 L_Aside
""")
if BELL and int(opts["bell0"]): bell_ring(0)
a(f"""
s_cmp_eq_u32 s{sLAY}, 0
s_cbranch_scc0 L_Dq
""")
wd_issue()
a(f"""
s_waitcnt vmcnt(0)
""")
wd_reads()
stamp("wd")
a(f"""
s_mov_b32 s{sT}, {HCS - HP}
L_HC:
""")
for k in range(4): a(f"buffer_load_dwordx4 {V4(8+4*k)}, v{vHGA}, s[{RG}:{RG+3}], s{sT} offen offset:{1024*k} sc1")
a(f"""
s_waitcnt vmcnt(0)
v_max3_u32 v44, v8, v12, v16
v_max_u32 v44, v44, v20
v_cmp_eq_u32 vcc, -1, v44
v_pk_add_f32 v[8:9], v[8:9], v[12:13]
v_pk_add_f32 v[10:11], v[10:11], v[14:15]
v_pk_add_f32 v[16:17], v[16:17], v[20:21]
v_pk_add_f32 v[18:19], v[18:19], v[22:23]
v_pk_add_f32 v[{vHCS}:{vHCS+1}], v[8:9], v[16:17]
v_pk_add_f32 v[{vHCS+2}:{vHCS+3}], v[10:11], v[18:19]
s_cbranch_vccz L_Dp0
""")
spin("L_HC", "L_Dp")
a("L_Dq:")
if BELL and not int(opts["bell0"]): bell_ring(0)
if int(opts["sd"]): a(f"s_sleep {opts['sd']}")
a("L_Dp0:")
stamp("hc")
DP = int(opts["dp"])
def d_issue(B, S):
    a(f"buffer_load_dwordx2 v[{S}:{S+1}], v{vHSA}, s[{RG}:{RG+3}], 0 offen sc1")
    for k in range(4): a(f"buffer_load_dwordx4 {V4(B+4*k)}, v{vHGA}, s[{RG}:{RG+3}], 0 offen offset:{1024*k} sc1")
def d_head(S, x, fail):
    a(f"""s_waitcnt vmcnt({4+x})
    v_cmp_eq_u32 vcc, -1, v{S}
    v_add_f32_dpp v46, v{S}, v{S} quad_perm:[1,0,3,2] {DPPALL}
    v_add_f32_dpp v47, v{S+1}, v{S+1} quad_perm:[1,0,3,2] {DPPALL}
    s_cbranch_vccnz {fail}""")
def d_body(B, x, fail):
    a(f"""
    v_add_f32_dpp v46, v46, v46 quad_perm:[2,3,0,1] {DPPALL}
    v_add_f32_dpp v47, v47, v47 quad_perm:[2,3,0,1] {DPPALL}
    v_mul_f32 v45, {f32(1/512)}, v46
    v_mul_f32 v46, {f32(-1/512)}, v47
    v_fma_f32 v45, -v46, v46, v45
    v_max_f32 v45, 0, v45
    v_add_f32 v45, {f32(1e-5)}, v45
    v_rcp_f32 v45, v45
    s_waitcnt vmcnt({2+x})
    v_max_u32 v44, v{B}, v{B+4}
    v_pk_fma_f32 v[40:41], v[{vHCS}:{vHCS+1}], v[46:47], v[{B}:{B+1}] op_sel_hi:[1,0,1]
    v_pk_fma_f32 v[42:43], v[{vHCS+2}:{vHCS+3}], v[46:47], v[{B+2}:{B+3}] op_sel_hi:[1,0,1]
    """)
    for k in range(1, 4):
        if k > 1: a(f"s_waitcnt vmcnt({3-k+x})")
        a(f"v_pk_add_f32 v[40:41], v[40:41], v[{B+4*k}:{B+4*k+1}]\nv_pk_add_f32 v[42:43], v[42:43], v[{B+4*k+2}:{B+4*k+3}]")
        if k > 1: a(f"v_max_u32 v44, v44, v{B+4*k}")
    a(f"""
    v_cmp_eq_u32 vcc, -1, v44
    v_permlane32_swap_b32 v40, v42
    v_permlane32_swap_b32 v41, v43
    v_mul_f32 v40, v40, v45
    v_mul_f32 v41, v41, v45
    v_mul_f32 v40, v40, v42
    v_mul_f32 v41, v41, v43
    v_cvt_pk_bf16_f32 v40, v40, v41
    ds_write_b32 v{vHWR}, v40 offset:{L_HB}
    s_cbranch_vccnz {fail}""")
if not DP:
    a("L_Dp:"); d_issue(8, 48); d_head(48, 0, "L_Dretry"); a("L_D2:"); stamp("d2"); d_body(8, 0, "L_D2retry")
else:
    a("L_Dp:"); d_issue(64, 48)
    a("L_DpB:"); d_issue(80, 50); d_head(48, 5, "L_Dretry"); a("L_D2:"); stamp("d2"); d_body(64, 5, "L_Dretry")
a(f"""
L_Dm:
s_add_u32 s{sT}, s{sXO}, {X2}
s_cmp_ge_u32 s{sW}, 2
s_waitcnt lgkmcnt(0)
s_barrier
s_cbranch_scc1 {"L_Dwb" if int(opts["wb"]) else "L_Ddone"}
""")
stamp("h")
for s in range(4): a(f"ds_read_b128 {V4(8+4*s)}, v{vB16} offset:{L_HB + 64*s}")
for s in range(4):
    a(f"s_waitcnt lgkmcnt({LG(3-s)})")
    for t in range(2): a(mfma(24+4*t, A4(aWD+16*t+4*s), V4(8+4*s), s == 0))
a(f"""
s_mov_b64 exec, s[{sDM}:{sDM+1}]
s_nop 6
v_mov_b32 v24, v28
v_mov_b32 v25, v29
v_mov_b32 v26, v30
v_mov_b32 v27, v31
s_mov_b32 exec_lo, 0x00030003
s_mov_b32 exec_hi, 0x00030003
buffer_store_dwordx4 v[24:27], v{vDPA}, s[{RG}:{RG+3}], s{sT} offen sc1
s_mov_b64 exec, -1
L_Ddone:
""")
stamp("x2pub")
stamp_flush()
set_rx(X2)
a(f"""
ds_read_b32 v{vXW}, v{vHWR} offset:512
s_waitcnt lgkmcnt(0)
v_lshlrev_b32 v{vR0}, 16, v{vXW}
v_and_b32 v{vR1}, 0xffff0000, v{vXW}
s_cmp_eq_u32 s{sLAY}, 0
s_cbranch_scc1 L_Anext
s_mov_b32 s{sPH}, 3
""")
WX = int(opts.get("wx", 0))
if WX:
    a(f"""s_lshl_b32 s{sT2}, s{sI}, 2
    s_add_u32 s{sT2}, s{sT2}, s{sW}
    s_cmp_eq_u32 s{sT2}, 1
    s_cbranch_scc0 L_nowx
    s_waitcnt vmcnt(0)
    s_sleep {WX}
    buffer_wbl2 sc1
    s_branch L_exit
    L_nowx:""")
a(f"""
s_cmp_eq_u32 s{sFIN}, 1
s_cbranch_scc0 L_exit
s_cmp_eq_u32 s{sW}, 0
s_cbranch_scc0 L_exit
""")
if int(opts["xack"]) == 2: a("s_waitcnt vmcnt(0)")
for _ in range(int(opts["fbell"])):
    if _ == 0: bell_ring(256)
    bell_wait(256)
a(f"""
s_branch L_G
L_Anext:
""")
if int(opts["bell2"]):
    a(f"s_cmp_eq_u32 s{sW}, 0\ns_cbranch_scc0 L_next")
    bell_ring(256)
    if int(opts["abell"]): bell_wait(256)
a(f"""
s_branch L_next
L_Aside:
s_cmp_eq_u32 s{sW}, 2
s_cbranch_scc1 L_A2
s_cmp_eq_u32 s{sW}, 1
s_cbranch_scc0 L_Dm
s_cmp_eq_u32 s{sLAY}, 0
s_cbranch_scc0 L_Dm
""")
wd_issue()
a("s_waitcnt vmcnt(0)")
wd_reads()
a(f"""
s_branch L_Dm
L_A2:
s_mov_b32 s{sPH}, 2
s_cmp_eq_u32 s{sLAY}, 0
s_cbranch_scc1 L_A20
s_cmp_eq_u32 s{sFIN}, 1
s_cbranch_scc0 L_Dm
ds_read_b32 v{vXW}, v{vHWR}
s_waitcnt lgkmcnt(0)
v_lshlrev_b32 v{vR0}, 16, v{vXW}
v_and_b32 v{vR1}, 0xffff0000, v{vXW}
s_branch L_A21
L_A20:
""")
qc_gather()
gd_wait()
a("L_A21:")
bell_wait()
set_rx(X1)
a(f"""
s_branch L_G
L_Gother:
s_cmp_eq_u32 s{sPH}, 2
s_cbranch_scc1 L_Dm
L_final:
s_lshl_b32 s{sT}, s{sKQ}, 8
v_add_u32 v1, s{sT}, v{vHWR}
global_store_dword v1, v{vXW}, s[{sOUT}:{sOUT+1}]{" sc1" if int(opts["wb"]) or int(opts.get("wx", 0)) else ""}
s_cmp_eq_u32 s2, 0
s_cbranch_scc0 L_fin2
s_add_u32 s{sT}, s{sNON}, 1
v_mov_b32 v1, {NONCE}
v_mov_b32 v2, s{sT}
s_mov_b64 exec, 1
global_store_dword v1, v2, s[{sWS}:{sWS+1}]{" sc1" if int(opts["wb"]) or int(opts.get("wx", 0)) else ""}
s_mov_b64 exec, -1
L_fin2:
""")
if STAMP:
    a(f"s_memrealtime s[{sST}:{sST+1}]\ns_waitcnt lgkmcnt(0)\nv_writelane_b32 v{vSTMP}, s{sST}, 16")
    if int(opts.get("dbgout", 0)):
        a(f"""v_writelane_b32 v{vSTMP}, s{sST}, 15
        s_nop 4
        v_readlane_b32 s{sT}, v{vSTMP}, 0
        s_nop 4
        v_subrev_u32 v4, s{sT}, v{vSTMP}
        v_lshrrev_b32 v5, 1, v{vL8}
        s_cmp_eq_u32 s2, 0
        s_cbranch_scc0 L_exit
        s_mov_b64 exec, 0xffff
        global_store_dword v5, v4, s[{sDBG}:{sDBG+1}]
        s_mov_b64 exec, -1""")
a("s_branch L_exit")
a(f"""
L_B:
s_mov_b32 s{sPH}, 1
s_cmp_eq_u32 s{sLAY}, 0
s_cbranch_scc0 L_B1
""")
if opts["gu"] == "rec":
    GSP = int(opts["gs"])
    if GSP == 1:
        a("s_waitcnt vmcnt(2)")
        b_issue("L_Bf", "g"); a("L_Bf:")
    if int(opts["g2"]):
        a(f"""s_cmp_eq_u32 s{sW}, 0
        s_cbranch_scc0 L_Bg
        {f"s_cmp_eq_u32 s{sTRY}, 1" if int(opts["ge"]) else ""}
        {"s_cbranch_scc1 L_Bg" if int(opts["ge"]) else ""}
        {"" if GSP == 1 else "s_waitcnt vmcnt(6)" if GSP == 2 else "s_waitcnt vmcnt(2)"}
        v_cmp_ne_u32 vcc, s{sTAG}, v{vJUNK+3}
        s_cbranch_vccz L_Bg""")
        gd_wait(0 if int(opts["g2q"]) else 64)
        a("L_Bg:\ns_barrier")
    if int(opts["ge"]): a(f"s_cmp_eq_u32 s{sTRY}, 1\ns_cbranch_scc1 L_Bs")
    b_issue("L_Bs", "u" if GSP else "gu")
a(f"""L_Bs:
s_mov_b32 s{sPUBM}, 0x00010001
s_mov_b32 s{sPUBM+1}, 0x00010001
; behind the stream: a first look at the group-done flags; wave 3 pulls the w_down block of the partner workgroup into L2
v_and_b32 v1, 7, v0
v_lshlrev_b32 v1, 7, v1
v_add_u32 v1, {GD}, v1
global_load_dword v{vJUNK+2}, v1, s[{sWS}:{sWS+1}] sc1
s_cmp_eq_u32 s{sW}, 3
s_cbranch_scc0 L_Bu""")
wd_base(False)
a(f"""v_lshlrev_b32 v4, 6, v{vL16}
global_load_dword v{vJUNK}, v4, s[{sWD}:{sWD+1}] {POL}
v_add_u32 v4, 0x10000, v4
v_subrev_u32 v4, s{sT2}, v4
global_load_dword v{vJUNK+1}, v4, s[{sWD}:{sWD+1}] {POL}
s_waitcnt vmcnt(2)
s_branch L_Bw
L_Bu:
s_waitcnt vmcnt(0)""")
a(f"""L_Bw:
s_cmp_eq_u32 s{sDUM}, 7
s_cbranch_scc0 L_Bload
""")
for k in range(32): a(f"v_accvgpr_write_b32 a{aW2+k}, 0")
a("s_branch L_B0\nL_Bload:")
a(f"""
s_lshl_b32 s{sT}, s{sW}, 5
v_xor_b32 v6, s{sT}, v{vTR0}
v_xor_b32 v7, 32, v6
v_add_u32 v7, {512 + L_W2}, v7
v_add_u32 v6, {L_W2}, v6
s_barrier
""")
if int(opts["gp"]):
    a(f"""s_cmp_eq_u32 s{sW}, 0
    s_cbranch_scc0 L_Bp
    v_cmp_ne_u32 vcc, s{sTAG}, v{vJUNK+2}
    s_cbranch_vccnz L_Bp
    s_mov_b32 s{sDUM}, 9""")
    set_rx(X1)
    g_issue()
    a("L_Bp:")
trW(aW2, 0, 6, 7)
trW(aW2 + 16, 0x4000, 6, 7)
a(f"""
L_B0:
v_mov_b32 v8, v{vONE}
v_mov_b32 v9, v{vONE}
v_mov_b32 v10, v{vONE}
v_mov_b32 v11, v{vONE}
s_waitcnt lgkmcnt(0)
s_nop 0
""")
for s_ in range(4):
    for m in range(2): a(mfma(24+4*m, A4(aW2+16*m+4*s_), V4(8), s_ == 0))
a(f"""
s_mov_b32 s{sT}, {HCS - HP}
s_mov_b64 exec, s[{sPUBM}:{sPUBM+1}]
s_cmp_eq_u32 s{sNF}, 0
s_cbranch_scc0 L_B0s
s_nop 3
buffer_store_dwordx4 v[24:27], v{vPUBA}, s[{RG}:{RG+3}], s{sT} offen
buffer_store_dwordx4 v[28:31], v{vPUBA}, s[{RG}:{RG+3}], s{sT} offen offset:512
s_branch L_B0d
L_B0s:
s_nop 3
buffer_store_dwordx4 v[24:27], v{vPUBA}, s[{RG}:{RG+3}], s{sT} offen sc1
buffer_store_dwordx4 v[28:31], v{vPUBA}, s[{RG}:{RG+3}], s{sT} offen offset:512 sc1
L_B0d:
s_mov_b64 exec, -1
""")
stamp("wd")
a(f"s_cmp_eq_u32 s{sW}, 1\ns_cbranch_scc0 L_Bv")
qc_gather()
a(f"""s_branch L_TU
L_Bv:
s_cmp_eq_u32 s{sW}, 0
s_cbranch_scc0 L_TU
s_cmp_eq_u32 s{sDUM}, 9
s_cbranch_scc1 L_G1
v_cmp_ne_u32 vcc, s{sTAG}, v{vJUNK+2}
s_cbranch_vccz L_B1""")
gd_wait()
a(f"""
L_B1:
s_cmp_eq_u32 s{sW}, 0
s_cbranch_scc0 {"L_CL1" if int(opts["cl"]) else "L_TU"}
""")
bell_wait()
if int(opts["sb"]): a(f"s_cmp_eq_u32 s{sLAY}, 0\ns_cbranch_scc1 L_B2\ns_sleep {opts['sb']}\nL_B2:")
set_rx(X1)
a("s_branch L_G")
a(f"""
L_TU:
s_cmp_lg_u32 s{sW}, 0
s_waitcnt lgkmcnt(0)
s_barrier
""")
stamp("x1pub")
for s in range(4): a(f"ds_read_b128 {V4(8+4*s)}, v{vXRD} offset:{512 + 64*s}")
def tu_step(s):
    for m in range(2): a(mfma(24+4*m, A4(aW2+16*m+4*s), V4(8+4*s), s == 0))
def tu_tail(fl, done):
    a(f"""s_mov_b64 exec, s[{sPUBM}:{sPUBM+1}]
    s_cmp_lg_u32 s{sW}, 0
    s_nop 2
    buffer_store_dwordx4 v[24:27], v{vPUBA}, s[{RG}:{RG+3}], 0 offen{fl}
    buffer_store_dwordx4 v[28:31], v{vPUBA}, s[{RG}:{RG+3}], 0 offen offset:512{fl}
    s_cbranch_scc1 {done}
    s_mov_b64 exec, s[{sSTM}:{sSTM+1}]
    buffer_store_dwordx2 v[{vSTG}:{vSTG+1}], v{vHSA}, s[{RG}:{RG+3}], 0 offen{fl}""")
a("s_cbranch_scc1 L_TUw")
gemv_stats(tu_step)
a(f"""s_cmp_eq_u32 s{sNF}, 0
s_cbranch_scc0 L_TUsafe
s_mov_b64 exec, s[{sPUBM}:{sPUBM+1}]
s_nop 1
buffer_store_dwordx4 v[24:27], v{vPUBA}, s[{RG}:{RG+3}], 0 offen
buffer_store_dwordx4 v[28:31], v{vPUBA}, s[{RG}:{RG+3}], 0 offen offset:512
s_mov_b64 exec, s[{sSTM}:{sSTM+1}]
buffer_store_dwordx2 v[{vSTG}:{vSTG+1}], v{vHSA}, s[{RG}:{RG+3}], 0 offen""")
a("L_TUd:\ns_mov_b64 exec, -1")
stamp("h")
stamp_flush()
a(f"""
s_cmp_eq_u32 s{sLAY}, 0
s_cbranch_scc0 {"L_CL2" if int(opts["cl"]) else "L_exit"}
""")
if int(opts["sx"]): a(f"s_sleep {opts['sx']}")
if int(opts["bell2"]):
    a(f"s_cmp_eq_u32 s{sW}, 0\ns_cbranch_scc0 L_B3")
    bell_wait(256)
    a("L_B3:")
set_rx(X2)
a(f"""L_next:
ds_read_b128 {V4(vQCS)}, v{vL16} offset:{L_CS}
ds_read_b128 {V4(vQCS+4)}, v{vL16} offset:{L_CS+1024}""")
next_layer()
a(f"""
s_mov_b32 s{sPH}, 0
s_cmp_eq_u32 s{sW}, 0
s_cbranch_scc1 L_G
s_branch L_TQ
""")
a("L_Gretry:")
if DBG: a(f"s_mov_b64 exec, 1\nv_mov_b32 v45, s{sLAY}\nv_lshlrev_b32 v45, 2, v45\nv_add_u32 v45, s{sPH}, v45\nv_lshlrev_b32 v45, 2, v45\nv_add_u32 v45, 128, v45\nv_mov_b32 v46, 1\nglobal_atomic_add v45, v46, s[{sDBG}:{sDBG+1}]\ns_mov_b64 exec, -1")
spin("L_Gp", "L_Gok")
if not QPI:
    a("L_QFretry:");  spin("L_QFp", "L_QF2")
    a("L_QF2retry:"); spin("L_QFp", "L_S")
else:
    a("L_QFretry:");  spin("L_QFp", "L_S")
for t_ in tails: a(t_)
WB = int(opts["wb"])
if WB:
    a(f"""L_Dwb:
    s_and_b32 s{sT2}, s{sA4}, 7
    s_lshl_b32 s{sT2}, s{sT2}, 2
    s_add_u32 s{sT2}, s{sT2}, s{sW}
    s_cmp_eq_u32 s{sT2}, {4*3 + 3}
    s_cbranch_scc0 L_Ddone""")
    if not WB & 2: a(f"s_cmp_eq_u32 s{sLAY}, 1\ns_cbranch_scc0 L_Ddone")
    a("buffer_wbl2 sc1\ns_branch L_Ddone")
if int(opts["cl"]):
    def wipe(srd, base, share, parts):
        for w, off, nb in parts:
            l = a.label("CL")
            a(f"""s_cmp_eq_u32 s{sW}, {w}
            s_cbranch_scc0 {l}
            s_mul_i32 s{sT}, s{sA4}, {share}
            s_add_u32 s{sT}, s{sT}, {base + off}
            v_min_u32 v1, {nb - 16}, v{vL16}
            buffer_store_dwordx4 v[8:11], v1, s[{srd}:{srd+3}], s{sT} offen sc1
            {l}:""")
    a(f"""L_CL1:
    s_cmp_eq_u32 s{sLAY}, 1
    s_cbranch_scc0 L_TU
    s_mul_i32 s{sT}, s{sG}, {GS}
    s_add_u32 s{sT}, s{sT}, {GB}
    s_add_u32 s{RX}, s{sWS}, s{sT}
    s_addc_u32 s{RX+1}, s{sWS+1}, 0
    s_mul_i32 s{sT}, s{sG}, {TGS}
    s_add_u32 s{sT}, s{sT}, {TG}
    s_add_u32 s{RT}, s{sWS}, s{sT}
    s_addc_u32 s{RT+1}, s{sWS+1}, 0""")
    wipe(RX, 0, LS // 16, [(1, 0, 1024), (1, 1024, 1024), (2, 2048, LS // 16 - 2048)])
    wipe(RX, HCS, 512, [(2, 0, 512)])
    wipe(RT, 0, 1280, [(3, 0, 1024), (3, 1024, 256)])
    a("s_branch L_TU\nL_CL2:\ns_mov_b64 exec, -1")
    wipe(RG, 0, 2112, [(1, 0, 1024), (2, 1024, 1024), (0, 2048, 64)])
    wipe(RG, QP1 - LS, 528, [(3, 0, 528)])
    a("s_branch L_exit")
a("L_TQw:")
gemv_plain(tq_step)
a(f"""s_cmp_eq_u32 s{sALT}, 0
s_cbranch_scc0 L_TQalt
s_mov_b64 exec, s[{sPUBM}:{sPUBM+1}]
s_nop 4
buffer_store_dwordx4 v[24:27], v{vQPA}, s[{RG}:{RG+3}], 0 offen
s_branch L_S
L_TUw:""")
gemv_plain(tu_step)
a(f"""s_cmp_eq_u32 s{sNF}, 0
s_cbranch_scc0 L_TUsafe
s_mov_b64 exec, s[{sPUBM}:{sPUBM+1}]
s_nop 3
buffer_store_dwordx4 v[24:27], v{vPUBA}, s[{RG}:{RG+3}], 0 offen
buffer_store_dwordx4 v[28:31], v{vPUBA}, s[{RG}:{RG+3}], 0 offen offset:512
s_branch L_TUd""")
a("L_RECsafe:"); rec_tail(" sc1"); a("s_branch L_RECd")
if WB & 4:
    a(f"""L_TQwb:
    s_lshl_b32 s{sT2}, s{sI}, 2
    s_add_u32 s{sT2}, s{sT2}, s{sW}
    s_cmp_eq_u32 s{sT2}, {4*31 + 3}
    s_cbranch_scc0 L_S
    buffer_wbl2 sc1
    s_branch L_S""")
a("L_TUsafe:"); tu_tail(" sc1", "L_TUd"); a("s_branch L_TUd")
a(f"""
L_Sbig:
s_mov_b64 exec, -1
v_max3_f32 v32, v24, v25, v26
v_max_f32 v32, v32, v27
v_max3_f32 v32, v32, v28, v29
v_max3_f32 v32, v32, v30, v31
v_mov_b32 v33, v32
s_nop 1
v_permlane32_swap_b32 v32, v33
v_max_f32 v32, v32, v33
v_mov_b32 v33, v32
s_nop 1
v_permlane16_swap_b32 v32, v33
v_max_f32 v32, v32, v33
""")
for k in range(8): a(f"v_sub_f32 v{40+k}, v{24+k}, v32")
for k in range(8): a(f"v_exp_f32 v{40+k}, v{40+k}")
p_tail()
a(f"""
s_nop 2
ds_write_b64 v{vMWR}, v[32:33] offset:{L_MB}
s_branch L_Sp
L_PVbig:
s_nop 7
{mfma(24, V4(8), A4(aV), True)}
{mfma(28, V4(8), A4(aV+4), True)}
{mfma(40, V4(12), A4(aV+8), True)}
{mfma(44, V4(12), A4(aV+12), True)}
{mfma(4, V4(16), A4(aV+16), True)}
{mfma(8, V4(16), A4(aV+20), True)}
{mfma(12, V4(20), A4(aV+24), True)}
{mfma(16, V4(20), A4(aV+28), True)}
v_max_f32_dpp v34, v32, v32 row_ror:4 {DPPALL}
s_nop 1
v_max_f32_dpp v34, v34, v34 row_ror:8 {DPPALL}
v_sub_f32 v32, v32, v34
v_exp_f32 v32, v32
s_nop 0
v_mul_f32 v35, v32, v33
s_nop 1
v_add_f32_dpp v35, v35, v35 row_ror:1 {DPPALL}
v_mul_f32_dpp v36, v32, v24 row_newbcast:0 {DPPALL}
v_mul_f32_dpp v37, v32, v28 row_newbcast:0 {DPPALL}
v_add_f32_dpp v35, v35, v35 row_ror:2 {DPPALL}
v_fmac_f32_dpp v36, v32, v40 row_newbcast:4 {DPPALL}
v_fmac_f32_dpp v37, v32, v44 row_newbcast:4 {DPPALL}
v_add_f32_dpp v35, v35, v35 row_ror:4 {DPPALL}
v_fmac_f32_dpp v36, v32, v4 row_newbcast:8 {DPPALL}
v_fmac_f32_dpp v37, v32, v8 row_newbcast:8 {DPPALL}
v_add_f32_dpp v35, v35, v35 row_ror:8 {DPPALL}
v_fmac_f32_dpp v36, v32, v12 row_newbcast:12 {DPPALL}
v_fmac_f32_dpp v37, v32, v16 row_newbcast:12 {DPPALL}
v_cvt_pk_bf16_f32 v36, v36, v37
s_nop 1
s_branch L_PVt
L_Obig:
; some producer shifted its scores: weight every record to the head's common maximum
v_max_f32_dpp v6, v4, v4 quad_perm:[1,0,3,2] {DPPALL}
s_nop 1
v_max_f32_dpp v6, v6, v6 quad_perm:[2,3,0,1] {DPPALL}
s_nop 1
v_max_f32_dpp v6, v6, v6 row_half_mirror {DPPALL}
v_mov_b32 v7, v6
s_nop 1
v_permlane32_swap_b32 v6, v7
v_max_f32 v6, v6, v7
v_mov_b32 v7, v6
s_nop 1
v_permlane16_swap_b32 v6, v7
v_max_f32 v6, v6, v7
v_sub_f32 v4, v4, v6
v_exp_f32 v4, v4
s_nop 0
v_mul_f32 v6, v4, v5
s_nop 1
v_add_f32_dpp v6, v6, v6 quad_perm:[1,0,3,2] {DPPALL}
s_nop 1
v_add_f32_dpp v6, v6, v6 quad_perm:[2,3,0,1] {DPPALL}
s_nop 1
v_add_f32_dpp v6, v6, v6 row_half_mirror {DPPALL}
v_mov_b32 v7, v6
s_nop 1
v_permlane32_swap_b32 v6, v7
v_add_f32 v6, v6, v7
v_mov_b32 v7, v6
s_nop 1
v_permlane16_swap_b32 v6, v7
v_add_f32 v6, v6, v7
v_rcp_f32 v6, v6
""")
for t in range(4):
    a(f"v_mul_f32_dpp v{40+t}, v4, v{24+4*t} row_newbcast:0 {DPPALL}")
    for r in range(1, 4): a(f"v_fmac_f32_dpp v{40+t}, v4, v{24+4*t+r} row_newbcast:{r} {DPPALL}")
a("s_branch L_Ot")
a(f"""
L_TQalt:
s_cmp_eq_u32 s{sLAY}, 0
s_cbranch_scc1 L_TQ0
""")
tq_tail(" sc1")
a(f"""
s_branch L_QFe
L_TQ0:
s_nop 3
""")
for k in range(4): a(f"v_bfi_b32 v{24+k}, v{vMASK}, v{24+k}, s{sT0+k}")
K1 = int(opts["k1"])
def kreads():
    for s in range(4):
        a(f"v_xor_b32 v5, {64*s}, v3")
        for t in range(2): a(f"ds_read_b128 {A4(aK+16*t+4*s)}, v5 offset:{4096*t}")
def vreads():
    for w in range(4):
        for c in range(2):
            for e in range(2):
                r = aV + 8*w + 4*c + 2*e
                a(f"ds_read_b64_tr_b16 a[{r}:{r+1}], v{6+c} offset:{L_V + w*8192 + e*4096}")
def l0_addr():
    a_setup()
    a(f"""v_bfe_u32 v34, v0, 2, 2
    v_bfe_u32 v35, v0, 4, 2
    v_lshl_add_u32 v36, v35, 2, v34
    v_and_b32 v37, 7, v36
    v_lshlrev_b32 v37, 1, v37
    v_bfe_u32 v38, v0, 1, 1
    s_lshl_b32 s{sT}, s{sW}, 2
    v_or_b32 v38, s{sT}, v38
    v_xor_b32 v37, v37, v38
    v_lshlrev_b32 v37, 4, v37
    v_lshl_add_u32 v36, v36, 8, v37
    v_and_b32 v37, 1, v0
    v_lshl_add_u32 v6, v37, 3, v36
    v_xor_b32 v7, 32, v6
    v_and_b32 v3, 15, v0
    v_xor_b32 v5, v35, v3
    v_lshlrev_b32 v5, 4, v5
    v_lshl_add_u32 v3, v3, 8, v5
    s_lshl_b32 s{sT}, s{sW}, 13
    s_add_u32 s{sT}, s{sT}, {L_K}
    v_add_u32 v3, s{sT}, v3""")
    if True:
        l = a.label("BS")
        a(f"s_cmp_lt_u32 s{sI}, 16\ns_cbranch_scc1 {l}")
        b_setup()
        a(f"{l}:")
def qloads():
    a(f"""buffer_load_dwordx4 v[48:51], v{vQGA}, s[{RT}:{RT+3}], 0 offen sc1
    buffer_load_dwordx4 v[8:11], v{vQL}, s[{RT}:{RT+3}], 0 offen sc1
    buffer_load_dwordx4 v[12:15], v{vQL}, s[{RT}:{RT+3}], 0 offen offset:2048 sc1""")
a(f"""
s_cmp_eq_u32 s{sW}, 0
s_cselect_b64 s[{sM}:{sM+1}], s[{sSTM}:{sSTM+1}], 0
s_mov_b64 exec, s[{sPUBM}:{sPUBM+1}]
buffer_store_dwordx4 v[24:27], v{vQPA}, s[{RT}:{RT+3}], 0 offen
{"s_barrier" if int(opts["hb"]) else ""}
s_mov_b64 exec, s[{sM}:{sM+1}]
buffer_store_dwordx4 {V4(vSTG)}, v{vQSA}, s[{RT}:{RT+3}], 0 offen
""")
H2N = int(opts["h2"])
if H2N:
    a(f"""s_add_u32 s{sT}, s{sI}, {H2}
    s_cmp_eq_u32 s{sW}, 0
    s_cselect_b64 exec, {hex((1 << H2N) - 1)}, 0
    v_lshlrev_b32 v5, 3, v{vL16}
    buffer_store_byte v{vSTG+2}, v5, s[{RT}:{RT+3}], s{sT} offen""")
a(f"""
s_mov_b64 exec, -1
s_mov_b32 s{sT2}, {BOFF}
""")
stamp("qpub")
if F3 == 2: f3_sample()
if VL:
    for j in range(VL):
        a(f"s_add_u32 m0, m0, 4096\nv_add_u32 v{vVA}, {VSTEP}, v{vVA}\nglobal_load_lds_dwordx4 v{vVA}, s[{sV}:{sV+1}] {POL}")
    a(f"s_lshl_b32 s{sT}, s{sW}, 13\ns_add_u32 m0, s{sT}, {L_K}")
if LK:
    a(f"s_cmp_eq_u32 s{sEAR}, 1\ns_cbranch_scc1 L_lk2")
    kdma(0, LKN)
    a("L_lk2:")
    kdma(LKN, 8)
else: kdma(KUP, 8)
LZ = int(opts["lz"])
def b_copies():
    a(f"""s_mul_i32 s{sT}, s{sG}, {TGS}
    s_add_u32 s{sT}, s{sT}, {TG + BOFF}
    s_cmp_eq_u32 s{sW}, 0
    s_cselect_b64 s[{sM}:{sM+1}], s[{sSTM}:{sSTM+1}], 0
    s_mov_b64 exec, s[{sPUBM}:{sPUBM+1}]
    buffer_store_dwordx4 v[24:27], v{vQPA}, s[{RX}:{RX+3}], s{sT} offen sc1
    s_mov_b64 exec, s[{sM}:{sM+1}]
    buffer_store_dwordx4 {V4(vSTG)}, v{vQSA}, s[{RX}:{RX+3}], s{sT} offen sc1
    s_mov_b64 exec, -1""")
if not LZ: b_copies()
NB = 0 if LZ else 2
l0_addr()
a(f"""
s_lshl_b32 s{sT}, s{sW}, 9
v_and_b32 v5, 0x1f0, v{vL16}
v_bfe_u32 v4, v0, 5, 1
v_lshl_add_u32 v5, v4, 12, v5
v_add_u32 v{vQL}, s{sT}, v5
s_mul_i32 s{sT}, s{sW}, {QH}
v_add_u32 v{vMODE}, s{sT}, v{vHWR}
v_mov_b32 v{vXRD}, v{vB16}
s_mul_i32 s{sT}, s{sW}, {7*128}
v_lshlrev_b32 v2, 3, v{vL16}
v_min_u32 v2, {6*128}, v2
v_add_u32 v2, s{sT}, v2
v_min_u32 v2, {CLR-128}, v2
s_lshl_b32 s{sT}, s{sG}, 7
s_add_u32 s{sT}, s{sT}, {GD + 1024}
v_mov_b32 v1, s{sT}
s_lshl_b32 s{sT}, s{sI}, 2
s_add_u32 s{sT}, s{sT}, s{sW}
s_cmp_eq_u32 s{sT}, 67
s_cselect_b64 s[{sM}:{sM+1}], 1, 0
s_mul_i32 s{sT2}, s{sI}, {CLR}
""")
if F3 == 2: f3_eval()
VM = int(opts["vm"])
if not VM:
    a(f"s_waitcnt vmcnt({13 if H2N else 12})\ns_barrier")
    vreads()
if H2N:
    a(f"""s_cmp_eq_u32 s{sW}, 3
    s_cbranch_scc0 L_H2e
    s_mul_i32 s{sPH}, s{sT0}, 0x01010101
    s_movk_i32 s5, {H2}
    L_H2:
    s_load_dwordx8 s[{sGO}:{sGO+7}], s[{RT}:{RT+1}], s5
    s_add_u32 s5, s5, 128
    s_cmp_eq_u32 s5, {H2 + 128*H2N}
    s_waitcnt lgkmcnt(0)
    s_cbranch_scc1 L_H2d""")
    for k in range(8): a(f"s_xor_b32 s{sGO+k}, s{sGO+k}, s{sPH}")
    for k in range(1, 8): a(f"s_or_b32 s{sGO}, s{sGO}, s{sGO+k}")
    a(f"""s_cbranch_scc1 L_H2
    L_H2d:""")
    for gp in range(8): a(f"s_mov_b32 s{sGO+gp}, {gp*GS}")
    a("L_H2e:")
    stamp("h2")
a(f"s_waitcnt vmcnt({NB + int(opts['kw']) + (3 if int(opts['kw']) > 8 - KUP else 0)})")
if H2N: a("s_barrier")
stamp("kw")
GE = int(opts["ge"])
if GE:
    a(f"""v_lshlrev_b32 v5, 3, v{vL16}
    v_and_b32 v5, 0x380, v5
    global_load_dword v{vJUNK+3}, v5, s[{sWS}:{sWS+1}] offset:{GD + 1024} sc1""")
qloads()
if not H2N or int(opts.get("bb", 0)): a("s_barrier")
a(f"""
buffer_load_dword v{vJUNK}, v2, s[{RG}:{RG+3}], s{sT2} offen sc1
s_mov_b64 exec, s[{sM}:{sM+1}]
global_store_dword v1, v{vSTG+2}, s[{sWS}:{sWS+1}] sc1
s_mov_b64 exec, -1
""")
if F3: a(f"s_cmp_eq_u32 s{sEAR}, 1\ns_cbranch_scc1 L_K3")
a(f"""s_cmp_ge_u32 s{sI}, 16
s_cbranch_scc1 L_K1""")
wo_issue()
if VM: vreads()
stamp("woi")
a(f"s_waitcnt vmcnt({13 + GE})")
stamp("kl")
kreads()
a("s_waitcnt vmcnt(10)\ns_branch L_Q01\nL_K1:")
WOP = int(opts["wop"])
if WOP:
    wo_base()
    a(f"""v_and_b32 v4, {WOP//4 - 1}, v0
    s_and_b32 s{sT}, s{sW}, 1
    s_mul_i32 s{sT}, s{sT}, {WOP//4}
    s_lshr_b32 s{sT2}, s{sW}, 1
    s_lshl_b32 s{sT2}, s{sT2}, 7
    s_add_u32 s{sT}, s{sT}, s{sT2}
    s_add_u32 s{sT}, s{sT}, {128 - WOP//2}""" if int(opts["wp"]) else f"""v_and_b32 v4, {WOP//4 - 1}, v0
    s_mul_i32 s{sT}, s{sW}, {WOP//4}
    s_add_u32 s{sT}, s{sT}, {256 - WOP}""")
    a(f"""
    v_add_u32 v4, s{sT}, v4
    v_lshlrev_b32 v4, 10, v4
    global_load_dword v{vJUNK+1}, v4, s[{sWO}:{sWO+1}] {POL}""")
if VM: vreads()
stamp("woi")
a(f"s_waitcnt vmcnt({(6 if WOP else 5) + GE})")
stamp("kl")
kreads()
a(f"s_waitcnt vmcnt({3 if WOP else 2})")
if F3:
    a("s_branch L_Q01\nL_K3:")
    vreads()
    a(f"s_waitcnt vmcnt({5 + GE})")
    kreads()
    a("s_waitcnt vmcnt(2)")
a("L_Q01:")
stamp("qf2")
xor_acc(8, True); xor_acc(12, False)
a(f"""
v_pk_add_f32 v[8:9], v[8:9], v[12:13]
v_pk_add_f32 v[10:11], v[10:11], v[14:15]
v_xor_b32 v45, s{sTAG}, v50
v_and_or_b32 v44, v44, v{vMASK+2}, v45
v_permlane32_swap_b32 v8, v10
v_permlane32_swap_b32 v9, v11
v_cmp_ne_u32 vcc, 0, v44
v_add_f32 v8, v8, v10
v_add_f32 v9, v9, v11
v_cvt_pk_bf16_f32 v8, v8, v9
ds_write_b32 v{vMODE}, v8 offset:{L_QB}
s_cbranch_vccnz L_Q0retry
L_Q0ok:
""")
stamp("qfok")
a(f"""
v_cmp_ne_u32 vcc, v51, v{vSTG+3}
s_cmp_lg_u64 vcc, 0
s_cselect_b32 s{sNF}, 1, 0
{"s_cbranch_scc1 L_Q0c" if LZ else ""}
L_Q0d:
s_cmp_lt_u32 s{sI}, 16
s_cbranch_scc1 {"L_Q0w" if F3 else "L_Q0a"}
""")
if GE:
    a(f"""s_mov_b32 s{sTRY}, 0
    v_cmp_ne_u32 vcc, s{sTAG}, v{vJUNK+3}
    s_lshl_b32 s{sT}, 1, s{sG}
    s_andn2_b32 s{sT}, vcc_lo, s{sT}
    s_and_b32 s{sT}, s{sT}, 255
    s_cbranch_scc1 L_Q0b
    s_mov_b32 s{sTRY}, 1""")
    b_issue("L_Q0a")
    a("s_branch L_Q0a\nL_Q0b:")
a(f"""
v_lshlrev_b32 v5, 3, v{vL16}
v_and_b32 v5, 0x380, v5
global_load_dword v{vJUNK+3}, v5, s[{sWS}:{sWS+1}] offset:{GD + (0 if int(opts["g2q"]) else 1024)} sc1
""")
if int(opts["gs"]) == 2: b_issue("L_Q0a", "g")
a(f"""
L_Q0a:
s_cmp_eq_u32 s{sW}, 0
s_cbranch_scc0 L_S
s_cmp_eq_u32 s{sNF}, 0
s_cbranch_scc0 L_slow
L_slowdone:
s_cmp_eq_u32 s{sI}, 0
s_cbranch_scc0 L_S
s_lshl_b32 s{sT}, s{sG}, 7
s_add_u32 s{sT}, s{sT}, {GD}
v_mov_b32 v9, s{sT}
s_mov_b64 exec, 1
global_store_dword v9, v{vSTG+2}, s[{sWS}:{sWS+1}] sc1
s_branch L_S
""")
if F3:
    a(f"L_Q0w:\ns_cmp_eq_u32 s{sEAR}, 1\ns_cbranch_scc0 L_Q0a")
    wo_issue()
    a("s_branch L_Q0a")
a("L_Q0p:")
qloads()
a("s_waitcnt vmcnt(0)\ns_branch L_Q01")
def qretry(giveup):
    l = a.label("QR")
    if DBG: a(f"s_mov_b64 exec, 1\nv_mov_b32 v45, 0\nv_mov_b32 v46, 1\nglobal_atomic_add v45, v46, s[{sDBG}:{sDBG+1}]\ns_mov_b64 exec, -1")
    a(f"""s_sub_u32 s{sTRY}, s{sTRY}, 1
    s_cmp_eq_u32 s{sTRY}, 8
    s_cbranch_scc0 {l}x""")
    if LZ: b_copies()
    a(f"""{l}x:
    s_cmp_eq_u32 s{sTRY}, 0
    s_cbranch_scc0 {l}
    s_add_u32 s{RT}, s{RT}, {BOFF}
    s_addc_u32 s{RT+1}, s{RT+1}, 0
    {l}:""")
    spin("L_Q0p", giveup)
a("L_Q0retry:");  qretry("L_Q0ok")
if LZ:
    a("L_Q0c:"); b_copies(); a("s_branch L_Q0d")
a(f"""
L_slow:
s_mul_i32 s{sT}, s{sI}, {CLR}
v_mov_b32 v12, -1
v_mov_b32 v13, -1
v_mov_b32 v14, -1
v_mov_b32 v15, -1
v_min_u32 v9, {CLR - 3072 - 16}, v{vL16}
buffer_store_dwordx4 v[12:15], v{vL16}, s[{RG}:{RG+3}], s{sT} offen sc1
buffer_store_dwordx4 v[12:15], v{vL16}, s[{RG}:{RG+3}], s{sT} offen offset:1024 sc1
buffer_store_dwordx4 v[12:15], v{vL16}, s[{RG}:{RG+3}], s{sT} offen offset:2048 sc1
buffer_store_dwordx4 v[12:15], v9, s[{RG}:{RG+3}], s{sT} offen offset:3072 sc1
s_mul_i32 s{sT}, s{sG}, {TGS}
s_add_u32 s{sT}, s{sT}, {TG + FL}
s_lshl_b32 s{sT2}, s{sI}, 4
s_add_u32 s{sT2}, s{sT2}, s{sT}
v_mov_b32 v9, s{sT2}
s_waitcnt vmcnt(0)
s_mov_b64 exec, 1
global_store_dword v9, v{vSTG+2}, s[{sWS}:{sWS+1}] sc1
s_mov_b64 exec, -1
v_and_b32 v9, 0x1f0, v{vL16}
v_add_u32 v9, s{sT}, v9
L_slowp:
global_load_dword v8, v9, s[{sWS}:{sWS+1}] sc1
s_waitcnt vmcnt(0)
v_cmp_ne_u32 vcc, s{sTAG}, v8
s_cbranch_vccz L_slowdone
""")
spin("L_slowp", "L_slowdone")
if OM in ("bell", "bell2"):
    a("L_Obretry:"); spin("L_Ob", "L_Op")
def cnt(k):
    if DBG: a(f"s_mov_b64 exec, 1\nv_mov_b32 v45, s{sLAY}\nv_lshlrev_b32 v45, 2, v45\nv_add_u32 v45, {4*k}, v45\nv_mov_b32 v46, 1\nglobal_atomic_add v45, v46, s[{sDBG}:{sDBG+1}]\ns_mov_b64 exec, -1")
a("L_Oretry:");   cnt(40)
if int(opts["orb"]):
    a(f"""L_Orb:
    buffer_load_dwordx2 v[4:5], v{vOML}, s[{RG}:{RG+3}], 0 offen sc1
    s_waitcnt vmcnt(0)
    v_cmp_eq_u32 vcc, -1, v5
    s_cbranch_vccz L_Op""")
    spin("L_Orb", "L_O2")
else: spin("L_Op", "L_O2")
a("L_O2retry:");  cnt(42); spin("L_Op", "L_Ook")
if not DP:
    a("L_Dretry:");   spin("L_Dp", "L_D2")
    a("L_D2retry:");  spin("L_Dp", "L_Dm")
else:
    a("L_Dretry:"); d_issue(64, 48); d_head(50, 5, "L_DretryB"); stamp("d2"); d_body(80, 5, "L_DretryB"); a("s_branch L_Dm")
    a("L_DretryB:"); spin("L_DpB", "L_Dm")
a("L_exit:")
if int(opts.get("xdirty", 0)):
    a(f"s_mov_b64 exec, -1\ns_lshl_b32 s{sT}, s2, 16\ns_add_u32 s{sT}, s{sT}, 0x1000000\nv_lshlrev_b32 v1, 4, v0\nv_add_u32 v1, s{sT}, v1")
    for j in range(int(opts["xdirty"])):
        a(f"global_store_dwordx4 v1, v[8:11], s[{sWS}:{sWS+1}]\nv_add_u32 v1, 4096, v1")
stamp_store()
a("L_end:\ns_endpgm")

txt = a.text()
NOTES = {
 "L_pc": "prologue: code into L2, wq / V streams (LDS-DMA), x, slot clearing, address set-up, LayerNorm of the input",
 "L_G": "G: one wave sums 16 partial vectors of its K quarter, adds the residual, rounds to bf16 (phase s62 says what follows)",
 "L_TQ": "TQ: partial q; wave 0 also publishes sum x^2 / sum x of its quarter",
 "L_QFe": "layer 1: wave 0 finishes q = rstd*scale*(sum of partials - mean*column sums)",
 "L_S": "S: scores (log2 units), exp2 without shift, then the range check: anything outside +-32 redoes the step at L_Sbig with the true maximum",
 "L_Sp": "P.V over the keys of all four waves; shifted waves (rare) take L_PVbig",
 "L_O": "O: records x wo; shifted records (rare) take L_Obig, which rescales to the head's common maximum",
 "L_HC": "layer 0: column sums of gate / up",
 "L_Dp": "D: wave 0 forms h = rstd^2 * (g - mean*cs_g) * (u - mean*cs_u); two looks are kept in flight",
 "L_Dm": "h . w_down, two waves, one full 128-byte line each",
 "L_B": "role B (i >= 16)",
 "L_TU": "TU: partial gate / up",
 "L_TQ0": "layer 0: tagged q hand-off, K stream, wo stream",
}
for k, v in NOTES.items():
    assert txt.count("\n" + k + ":\n") == 1, k
    txt = txt.replace("\n" + k + ":\n", "\n" + k + ":\n    ; " + v + "\n")
if int(opts.get("solo", 0)):
    import re
    txt = re.sub(r"s_cbranch_vccnz L_\w*retry\w*", "s_nop 0", txt)
    txt = re.sub(r"s_cbranch_vccz (\w+)\n", r"s_branch \1\n", txt)
    txt = txt.replace("s_cbranch_scc0 L_slow\n", "s_nop 0\n")
    for br in ("s_cbranch_vccnz L_Sbig", "s_cbranch_vccnz L_PVbig", "s_cbranch_scc1 L_Obig"): txt = txt.replace(br, "s_nop 0")
    txt = txt.replace("s_memrealtime", "s_memtime").replace(f"s_cselect_b32 s{sNF}, 1, 0", f"s_mov_b32 s{sNF}, 0")
DOC = """
One persistent launch, 256 workgroups of 4 waves, one per CU.  Every weight, K and V byte is read from memory once
and stays in registers (AGPRs) for both layers; only small vectors travel between workgroups, through d_ws.

Workgroup id = 8*i + g.  Group g (32 workgroups) owns kv head g; i = 4*cg + kq.
  TQ  all   partial q = x[K quarter kq] . wq[quarter, 64 columns cg]; LayerNorm is applied afterwards by linearity:
            q = rstd * (sum of partials - mean * column sums)   (layer 0 normalises x up front, it is an input)
  S   all   128 keys x 4 heads: scores, exp2, P.V -> record (bf16) + {shift, sum}.  The shift is 0 while every
            score of the wave is within +-32 (checked at run time), else the true maximum; readers rescale.
  O   i<16  records of 32 producers as MFMA rows x wo[2 heads, 64 columns] -> partial attention output (X1)
  TU  i>=16 x1[quarter] . gate/up[quarter, 64 columns] -> partials (HP), LayerNorm again by linearity
  D   i<16  h = g*u for 128 hidden units . w_down[128, 64 columns] -> partial FFN output (X2)
  G         16 partial vectors + residual -> next x quarter (bf16)

Hand-offs carry their own validity: slots are set to 0xffffffff at the start and a reader repeats its loads until
no slot is still unset.  The first hand-off (layer-0 q) happens before anything is known to be cleared and carries a
32-bit tag derived from a launch counter in d_ws instead; it also tells each member that the whole group has cleared
its share and on which die every member runs.  Inside a group that shares one L2 the stores are plain, otherwise they
are written through (sc1), as they always are between groups; all reads of hand-offs bypass L1 (sc1).
Every wait is bounded.
"""
open(sys.argv[1], "w").write(wrap(txt, 256, 256, LDS_SIZE, NVGPR + NAGPR, accum=NVGPR, doc=DOC))
if STAMP: print(",".join(stamp_names))
if DBG: print(list(enumerate(spin_ids, 1)))
```
